```python
import torch

def _softmax(x, axis=-1):
    return torch.softmax(x, dim=axis)
def _gelu(x):
    return torch.nn.functional.gelu(x, approximate="tanh")
def _silu(x):
    return torch.nn.functional.silu(x)
def _sigmoid(x):
    return torch.sigmoid(x)
def _layernorm(x, axis=-1, eps=1e-5):
    m = x.mean(dim=axis, keepdim=True)
    v = x.var(dim=axis, keepdim=True, unbiased=False)
    return (x - m) / torch.sqrt(v + eps)
def _scatter_add(tgt, idx, src, axis=0):
    return tgt.clone().index_add_(axis, idx, src)
def _segment_sum(src, seg, n):
    out = torch.zeros((n,) + src.shape[1:], dtype=src.dtype)
    return out.index_add_(0, seg, src)
def _pad(x, pw):
    flat = tuple(v for pair in reversed(pw) for v in pair)
    return torch.nn.functional.pad(x, flat)

kernel_name = 'parallel_sum__ssm_conv_s5__geglu_ffn__prompt'

def setup_inputs():

    _w = (lambda a: (lambda t: t.to(torch.bfloat16) if t.is_floating_point() else t)(torch.as_tensor(a)))
    def _A_setup():
        B, S, D = 1, 2048, 512
        P = D
        Lambda_re = -0.5 * (lambda _x: torch.exp(torch.as_tensor(_x)))((lambda *s: torch.randn(*s, dtype=torch.bfloat16) * 0.8)(P))
        Lambda_im = (lambda *s: torch.randn(*s, dtype=torch.bfloat16) * 0.8)(P) * 1.0
        B_re = (lambda *s: torch.randn(*s, dtype=torch.bfloat16) * 0.8)(P, D) * (D ** -0.5)
        B_im = (lambda *s: torch.randn(*s, dtype=torch.bfloat16) * 0.8)(P, D) * (D ** -0.5)
        C_re = (lambda *s: torch.randn(*s, dtype=torch.bfloat16) * 0.8)(D, P) * (P ** -0.5)
        C_im = (lambda *s: torch.randn(*s, dtype=torch.bfloat16) * 0.8)(D, P) * (P ** -0.5)
        log_dt = (lambda *s: torch.randn(*s, dtype=torch.bfloat16) * 0.8)(P) * 0.3 - 2.0
        Dskip = (lambda *s: torch.randn(*s, dtype=torch.bfloat16) * 0.8)(D)
        return {
            "x": _w((lambda *s: torch.randn(*s, dtype=torch.bfloat16) * 0.05)(B, S, D)),
            "Lambda_re": _w(Lambda_re),
            "Lambda_im": _w(Lambda_im),
            "B_re": _w(B_re),
            "B_im": _w(B_im),
            "C_re": _w(C_re),
            "C_im": _w(C_im),
            "log_dt": _w(log_dt),
            "Dskip": _w(Dskip),
        }
    _A_in = _A_setup()

    def _B_setup():
        B, S, D, F = 1, 2048, 512, 1376
        return {
            "x": _w((lambda *s: torch.randn(*s, dtype=torch.bfloat16) * 0.05)(B, S, D)),
            "w_gate": _w((lambda *s: torch.randn(*s, dtype=torch.bfloat16) * 0.05)(D, F)),
            "w_up": _w((lambda *s: torch.randn(*s, dtype=torch.bfloat16) * 0.05)(D, F)),
            "w_down": _w((lambda *s: torch.randn(*s, dtype=torch.bfloat16) * 0.05)(F, D)),
        }
    _B_in = _B_setup()

    return {
        "A_x": _A_in["x"],
        "A_Lambda_re": _A_in["Lambda_re"],
        "A_Lambda_im": _A_in["Lambda_im"],
        "A_B_re": _A_in["B_re"],
        "A_B_im": _A_in["B_im"],
        "A_C_re": _A_in["C_re"],
        "A_C_im": _A_in["C_im"],
        "A_log_dt": _A_in["log_dt"],
        "A_Dskip": _A_in["Dskip"],
        "B_x": _B_in["x"],
        "B_w_gate": _B_in["w_gate"],
        "B_w_up": _B_in["w_up"],
        "B_w_down": _B_in["w_down"],
    }

def reference(A_x, A_Lambda_re, A_Lambda_im, A_B_re, A_B_im, A_C_re, A_C_im, A_log_dt, A_Dskip, B_x, B_w_gate, B_w_up, B_w_down):
    def _A_ref(x, Lambda_re, Lambda_im, B_re, B_im, C_re, C_im, log_dt, Dskip):
        Bsz, L, H = x.shape
        Lam = Lambda_re + 1j * Lambda_im
        Bmat = B_re + 1j * B_im
        Cmat = C_re + 1j * C_im
        dt = torch.exp(log_dt)
        Lam_bar = torch.exp(dt * Lam)
        B_bar = ((Lam_bar - 1.0) / Lam)[:, None] * Bmat
        Bu = torch.einsum("bld,pd->blp", x + 0j, B_bar)
        h = torch.zeros_like(Bu[:, 0, :])
        hs = []
        for t in range(L):
            h = Lam_bar[None, :] * h + Bu[:, t, :]
            hs.append(h)
        hseq = torch.stack(hs, 1)
        y = 2.0 * torch.einsum("blp,dp->bld", hseq, Cmat).real + x * Dskip[None, None, :]
        return y

    def _B_ref(x, w_gate, w_up, w_down):
        return (_gelu(x @ w_gate) * (x @ w_up)) @ w_down

    x = A_x
    xn = _layernorm(x, axis=-1)
    return x + _A_ref(xn, A_Lambda_re, A_Lambda_im, A_B_re, A_B_im, A_C_re, A_C_im, A_log_dt, A_Dskip) + _B_ref(xn, B_w_gate, B_w_up, B_w_down)
```

```python
NAME='parallel_sum__ssm_conv_s5__geglu_ffn__prompt_kernel'
def header(launches):
    s=''
    if len(launches)==1 and launches[0][0]==NAME:
        k,g,b,l=launches[0]
        s+=f'; @launch grid=({g},1,1) block=({b},1,1) lds={l}\n'
    else:
        for (k,g,b,l) in launches:
            s+=f'; @launch kernel={k} grid=({g},1,1) block=({b},1,1) lds={l}\n'
    s+='.amdgcn_target "amdgcn-amd-amdhsa--gfx950"\n.text\n'
    return s
def kstart(k):
    return f'.globl {k}\n.p2align 8\n.type {k},@function\n{k}:\n'
def kd(name, vgpr=256, acc=256, sgpr=102):
    return f'''.p2align 6
.amdhsa_kernel {name}
  .amdhsa_next_free_vgpr {vgpr}
  .amdhsa_next_free_sgpr {sgpr}
  .amdhsa_accum_offset {acc}
  .amdhsa_group_segment_fixed_size 0
  .amdhsa_kernarg_size 128
  .amdhsa_user_sgpr_count 2
  .amdhsa_user_sgpr_kernarg_segment_ptr 1
  .amdhsa_system_sgpr_workgroup_id_x 1
  .amdhsa_float_denorm_mode_32 3
.end_amdhsa_kernel
'''
RODATA='.section .rodata,"a"\n'
```

```python
from asmlib import *
TAIL='''
  s_memtime s[28:29]
  s_memrealtime s[32:33]
  s_waitcnt lgkmcnt(0)
  s_add_u32 s8, s4, 0x8000000
  s_addc_u32 s9, s5, 0
  s_mov_b32 s10, 0x100000
  s_mov_b32 s11, 0x20000
  s_lshl_b32 s3, s2, 7
  v_mov_b32 v10, s20
  v_mov_b32 v11, s21
  v_mov_b32 v12, s22
  v_mov_b32 v13, s23
  v_mov_b32 v14, s24
  v_mov_b32 v15, s25
  v_mov_b32 v16, s26
  v_mov_b32 v17, s27
  v_mov_b32 v18, s28
  v_mov_b32 v19, s29
  v_mov_b32 v20, s32
  v_mov_b32 v21, s33
  v_mov_b32 v22, s30
  v_mov_b32 v23, 0
  v_mov_b32 v1, s3
  v_cmp_eq_u32 vcc, 0, v0
  s_and_saveexec_b64 s[40:41], vcc
  s_cbranch_execz L_end
  buffer_store_dwordx4 v[10:13], v1, s[8:11], 0 offen
  buffer_store_dwordx4 v[14:17], v1, s[8:11], 0 offen offset:16
  buffer_store_dwordx4 v[18:21], v1, s[8:11], 0 offen offset:32
  buffer_store_dwordx2 v[22:23], v1, s[8:11], 0 offen offset:48
  s_waitcnt vmcnt(0)
L_end:
  s_endpgm
'''
def gen(fname, mode, ncnt=1, stride=4, delay=0):
    s=header([(NAME,256,64,0)])+kstart(NAME)
    s+='''
  s_memrealtime s[20:21]
  s_memtime s[22:23]
  s_cmp_ge_u32 s2, 256
  s_cbranch_scc1 L_end
  s_load_dwordx2 s[4:5], s[0:1], 120
  s_load_dwordx2 s[6:7], s[0:1], 112
  s_waitcnt lgkmcnt(0)
  s_mov_b32 s12, s6
  s_mov_b32 s13, s7
  s_mov_b32 s14, 256
  s_mov_b32 s15, 0x20000
  s_memrealtime s[24:25]
  s_mov_b32 s30, 0
  v_lshlrev_b32 v5, 2, v0
'''
    if mode=='atomic':
        s+=f'''
  s_and_b32 s16, s2, {ncnt-1}
  s_mul_i32 s16, s16, {stride}
  v_mov_b32 v2, s16
  v_mov_b32 v3, 1
  v_cmp_eq_u32 vcc, 0, v0
  s_and_saveexec_b64 s[40:41], vcc
  buffer_atomic_add v3, v2, s[12:15], 0 offen sc1
  s_mov_b64 exec, s[40:41]
'''
    elif mode=='byte':
        s+=f'''
  v_mov_b32 v2, s2
  v_mov_b32 v3, 1
  v_cmp_eq_u32 vcc, 0, v0
  s_and_saveexec_b64 s[40:41], vcc
  buffer_store_byte v3, v2, s[12:15], 0 offen sc1
  s_mov_b64 exec, s[40:41]
'''
    s+='''  s_waitcnt vmcnt(0)
  s_memrealtime s[26:27]
  s_waitcnt lgkmcnt(0)
'''
    if delay:
        s+=f'''L_dly:
  s_memrealtime s[42:43]
  s_waitcnt lgkmcnt(0)
  s_sub_u32 s42, s42, s20
  s_cmp_lt_u32 s42, {delay}
  s_cbranch_scc1 L_dly
'''
    s+='''L_poll:
  s_add_u32 s30, s30, 1
  buffer_load_dword v6, v5, s[12:15], 0 offen sc1
  s_waitcnt vmcnt(0)
'''
    if mode=='atomic':
        mask=0
        for i in range(ncnt): mask|=1<<(i*stride//4)
        s+=f'''  v_cmp_eq_u32 vcc, {256//ncnt}, v6
  s_mov_b32 s44, {mask&0xffffffff}
  s_mov_b32 s45, {mask>>32}
  s_and_b64 s[46:47], vcc, s[44:45]
  s_cmp_eq_u64 s[46:47], s[44:45]
'''
    else:
        s+='''  v_cmp_eq_u32 vcc, 0x01010101, v6
  s_nop 1
  s_cmp_eq_u64 vcc, -1
'''
    s+='''  s_cbranch_scc1 L_done
  s_cmp_lt_u32 s30, 100000
  s_cbranch_scc1 L_poll
L_done:
'''
    s+=TAIL+RODATA+kd(NAME,64,64)
    open(fname,'w').write(s)
files=[]
import sys
def g(name,*a,**k):
    gen(name,*a,**k); files.append(name)
if __name__=="__main__": g('s_at1.s','atomic',1)
if __name__=="__main__": g('s_at2.s','atomic',2,128)
if __name__=="__main__": g('s_at4.s','atomic',4,64)
if __name__=="__main__": g('s_at8.s','atomic',8,32)
if __name__=="__main__": g('s_at64.s','atomic',64,4)
if __name__=="__main__": g('s_byte.s','byte')
if __name__=="__main__": g('s_at1_d.s','atomic',1,4,delay=300)
if __name__=="__main__": g('s_at4_d.s','atomic',4,64,delay=200)
if __name__=="__main__": g('s_byte_d.s','byte',delay=200)
if __name__=="__main__": print(' '.join(files))
```

```python
from asmlib import *
from mb_sync import TAIL
def gen(fname, shape, order, block=256, agpr=False, reps=1, nsets=2, active=None, pad=0):
    s=header([(NAME,256,block,0)])+kstart(NAME)
    s+='''
  s_memrealtime s[20:21]
  s_cmp_ge_u32 s2, 256
  s_cbranch_scc1 L_end
  s_load_dwordx2 s[4:5], s[0:1], 120
  s_load_dwordx2 s[48:49], s[0:1], 0       ; x
  s_load_dwordx2 s[52:53], s[0:1], 80      ; gate
  v_lshlrev_b32 v3, 4, v0
  s_waitcnt lgkmcnt(0)
  s_mov_b32 s8, s48
  s_mov_b32 s9, s49
  s_mov_b32 s10, 2097152
  s_mov_b32 s11, 0x20000
  s_mov_b32 s12, s52
  s_mov_b32 s13, s53
  s_mov_b32 s14, 1409024
  s_mov_b32 s15, 0x20000
'''
    for i in range(24):
        srd='s[8:11]' if i<8 else 's[12:15]'
        s+=f'  s_mov_b32 s39, {i*8192}\n  buffer_load_dwordx4 v[{8+4*i}:{11+4*i}], v3, {srd}, s39 offen\n'
    A='a' if agpr else 'v'; base=0 if agpr else 128
    for r in range(128):
        s+= f'  v_accvgpr_write_b32 a{r}, 0\n' if agpr else f'  v_mov_b32 v{128+r}, 0\n'
    s+='''  s_waitcnt vmcnt(0)
  s_barrier
  s_memrealtime s[24:25]
  s_memrealtime s[26:27]
  s_memtime s[22:23]
  s_mov_b32 s30, 0
  s_waitcnt lgkmcnt(0)
'''
    if active:
        sh_,mask,lim=active
        s+=f'  s_lshr_b32 s35, s2, {sh_}\n  s_and_b32 s35, s35, {mask}\n  s_cmp_ge_u32 s35, {lim}\n  s_cbranch_scc1 L_skip\n'
    s+='''.p2align 6
L_loop:
'''
    X=lambda i: f'v[{8+4*i}:{11+4*i}]'
    W=lambda i: f'v[{40+4*i}:{43+4*i}]'
    nw=block//256
    cnt=0
    if shape==32:
        nx,nwf=(2,4) if nw==1 else (2,2)
        for st in range(nsets):
            if order=='xfast': pairs=[(i,j) for j in range(nwf) for i in range(nx)]
            elif order=='wfast': pairs=[(i,j) for i in range(nx) for j in range(nwf)]
            elif order=='snake': pairs=[(i if j%2==0 else nx-1-i,j) for j in range(nwf) for i in range(nx)]
            elif order=='diag': pairs=[((k)%nx,(k+k//nwf)%nwf) for k in range(nx*nwf)]
            for (i,j) in pairs:
                a=base+16*(i*nwf+j)
                s+=f'  v_mfma_f32_32x32x16_bf16 {A}[{a}:{a+15}], {W(st*nwf+j)}, {X(st*nx+i)}, {A}[{a}:{a+15}]\n'+('  s_nop %d\n'%(pad-1) if pad else ''); cnt+=1
        iters=256*reps//nw//cnt
    else:
        nx,nwf=(4,8) if nw==1 else (4,4)
        for st in range(nsets):
            if order=='xfast': pairs=[(i,j) for j in range(nwf) for i in range(nx)]
            elif order=='wfast': pairs=[(i,j) for i in range(nx) for j in range(nwf)]
            elif order=='snake': pairs=[(i if j%2==0 else nx-1-i,j) for j in range(nwf) for i in range(nx)]
            elif order=='diag': pairs=[((k)%nx,(k+k//nwf)%nwf) for k in range(nx*nwf)]
            for (i,j) in pairs:
                a=base+4*(i*nwf+j)
                s+=f'  v_mfma_f32_16x16x32_bf16 {A}[{a}:{a+3}], {W(st*nwf+j)}, {X(st*nx+i)}, {A}[{a}:{a+3}]\n'; cnt+=1
        iters=512*reps//nw//cnt
    s+=f'''  s_add_u32 s30, s30, 1
  s_cmp_lt_u32 s30, {iters}
  s_cbranch_scc1 L_loop
L_skip:
  s_barrier
'''
    s+=TAIL+RODATA+(kd(NAME,256,128) if agpr else kd(NAME,256,256))
    open(fname,'w').write(s)
files=[]
def g(name,*a,**k):
    gen(name,*a,**k); files.append(name)
if __name__=='__main__':
    g('f_all.s',32,'snake')
    g('f_halfcu.s',32,'snake',active=(3,1,1))
    g('f_34cu.s',32,'snake',active=(3,3,3))
    g('f_78cu.s',32,'snake',active=(3,7,7))
    g('f_halfxcd.s',32,'snake',active=(0,7,4))
    g('f_halfxcd_alt.s',32,'snake',active=(0,1,1))
    g('f_1xcd.s',32,'snake',active=(0,7,1))
    g('f_pad8.s',32,'snake',pad=8)
    g('f_pad10.s',32,'snake',pad=10)
    g('f_pad12.s',32,'snake',pad=12)
    g('f_pad16.s',32,'snake',pad=16)
    print(' '.join(files))
```

```python
import sys, struct, math
from asmlib import *
import hz
def f2u(x): return struct.unpack('<I',struct.pack('<f',x))[0]
def F(x): return '0x%08x'%f2u(x)
LOG2E=1.4426950408889634
BIG='0x40000000'
XW=24576; WB=98304; WSS=16640; GOFF=4096; UOFF=4096+6144+128
SCR=WB+3*WSS; SP=SCR+12288; TX=SCR+14336
HSTR=150*1024; ST_M=0xA00000; ST_R=0xA04000; EOFF=0xA60000; FLG=0xA20000; WSSZ=0xA80000
STAMP=0x8000000
sX,sW,sWS,sDBG,sCR,sCI,sDN,sE,sOUT=4,8,12,16,20,24,28,32,68
srd=lambda n: f's[{n}:{n+3}]'
FS=3; CB=73; FCNT=74; FB=75
W_,TQ,NH,RB,CT,ROT,WSTEP,XL,WL=76,77,78,79,80,81,82,83,84
RB2,TQ2,DQ,SOX,SOW,T0,T1,T2,F0,HB,XR,WQ=85,86,87,88,89,90,91,92,93,94,95,96
SPIN=97; HA=98; V14=99; WI=72
DX=16; DW=20; DC=12; DF=14
XA=22; SA=26; TA=30
L64,WG,WH,L32,WSEL,KAP,SPR=34,36,38,40,42,44,46
SELT=40; PT=16
ACC0=48; PR=80; PI=96
B1,B2,B3=112,160,208
FR=160; SACC=192; SEL=200; STT=204
ACC1=208; RS=240
def v(a,n=1): return f'v{a}' if n==1 else f'v[{a}:{a+n-1}]'

class G:
    POOL=[38,40,42,44,46,48,50,54,56,58,60,36,64]
    DEF='rowld,B0,B8,loopend,B9,B10,Eok,flag,join,B12,p2end,done'
    def __init__(s, opt):
        s.L=[]; s.o=opt; s.cold=[]
    def e(s, t):
        if isinstance(t,list):
            for x in t: s.e(x)
            return
        for ln in t.strip('\n').split('\n'):
            if ln.strip(): s.L.append(ln if ln.rstrip().endswith(':') or ln.startswith('.') else '  '+ln.strip())
    def names(s): return s.o.get('sn',s.DEF).split(',')
    def st(s,k):
        if not s.o.get('stamps') or k not in s.names(): return ''
        op='s_memtime' if s.o.get('stamps')==2 else 's_memrealtime'
        r=s.POOL[s.names().index(k)]
        return f'{op} s[{r}:{r+1}]'
    def stamp(s, k): s.e(s.st(k))
def cmul(d,a,b):
    return [f'v_mul_f32 {v(d)}, {v(a)}, {v(b)}',f'v_mul_f32 {v(d+1)}, {v(a)}, {v(b+1)}',f'v_fma_f32 {v(d)}, -{v(a+1)}, {v(b+1)}, {v(d)}',f'v_fmac_f32 {v(d+1)}, {v(a+1)}, {v(b)}']
def cfma(d,a,b,c):
    P=lambda x: x if isinstance(x,tuple) else (x,x+1)
    d,a,b,c=P(d),P(a),P(b),P(c)
    return [f'v_fma_f32 {v(d[0])}, {v(a[0])}, {v(b[0])}, {v(c[0])}',f'v_fma_f32 {v(d[1])}, {v(a[0])}, {v(b[1])}, {v(c[1])}',f'v_fma_f32 {v(d[0])}, -{v(a[1])}, {v(b[1])}, {v(d[0])}',f'v_fmac_f32 {v(d[1])}, {v(a[1])}, {v(b[0])}']
def mix(main, extra, every, start=0):
    out=[]; k=0
    for i,m in enumerate(main):
        out.append(m)
        if i>=start and (i-start)%every==every-1 and k<len(extra): out.append(extra[k]); k+=1
    out+=extra[k:]
    return out
def mksrd(n,lo,hi,size): return f's_mov_b32 s{n}, s{lo}\ns_mov_b32 s{n+1}, s{hi}\ns_mov_b32 s{n+2}, {size}\ns_mov_b32 s{n+3}, 0x20000'
def fsplit(ct,fs,cnt,t):
    return f'''s_lshr_b32 s{t}, s{ct}, 3
s_mul_i32 s{fs}, s{t}, 22
s_cmp_eq_u32 s{t}, 3
s_subb_u32 s{fs}, s{fs}, 0
s_cmp_lt_u32 s{t}, 2
s_cselect_b32 s{cnt}, 1, 0
s_and_b32 s{t}, s{ct}, 7
s_cmp_lt_u32 s{t}, 7
s_cselect_b32 s{cnt}, 3, s{cnt}
s_mul_i32 s{t}, s{t}, 3
s_add_u32 s{fs}, s{fs}, s{t}'''

def build(opt):
    g=G(opt); e=g.e
    PF=opt.get('pf',9)
    e(f'''s_cmp_ge_u32 s2, 256
s_cbranch_scc1 L_end
s_load_dwordx16 s[36:51], s[0:1], 0
s_load_dwordx16 s[52:67], s[0:1], 64
s_getpc_b64 s[72:73]
L_pc0:
v_lshlrev_b32 v2, 7, v0
v_min_u32 v2, L_end-L_pc0, v2
v_lshrrev_b32 v3, 6, v0
v_and_b32 v1, 63, v0
v_readfirstlane_b32 s{W_}, v3
global_load_dword v9, v2, s[72:73]
s_and_b32 s{RB2}, s2, 7
s_lshr_b32 s{WI}, s2, 3
s_and_b32 s{TQ2}, s{WI}, 3
s_lshr_b32 s{DQ}, s{WI}, 2''')
    if opt.get('stamps'): e(('s_memtime' if opt['stamps']==2 else 's_memrealtime')+' s[100:101]')
    e(f'''s_and_b32 s{T0}, s2, 1
s_lshl_b32 s{RB}, s{T0}, 2
s_add_u32 s{RB}, s{RB}, s{TQ2}
s_lshr_b32 s{T1}, s{RB2}, 1
s_lshl_b32 s{CT}, s{T1}, 3
s_add_u32 s{CT}, s{CT}, s{DQ}''')
    ra,rg,rr,rm,rc,cm=[int(x) for x in opt.get('rot','4.2.0.0.0.0').split('.')]
    e(f'''s_mul_i32 s{ROT}, s{T0}, {ra}
s_mul_i32 s{T1}, s{T1}, {rg}
s_add_u32 s{ROT}, s{ROT}, s{T1}
s_and_b32 s{T0}, s{RB}, {rm}
s_mul_i32 s{T0}, s{T0}, {rr}
s_add_u32 s{ROT}, s{ROT}, s{T0}
s_and_b32 s{T0}, s{CT}, {cm}
s_mul_i32 s{T0}, s{T0}, {rc}
s_add_u32 s{ROT}, s{ROT}, s{T0}''')
    e(fsplit(CT,FS,FCNT,T0))
    e(f'''s_and_b32 s{TQ}, s{W_}, 3
s_lshr_b32 s{NH}, s{W_}, 2
v_lshrrev_b32 v4, 3, v1          ; q
v_and_b32 v5, 7, v1              ; pos
v_lshrrev_b32 v6, 2, v4
v_lshlrev_b32 v6, 5, v6
v_and_or_b32 v6, v4, 3, v6
s_lshl_b32 s{T0}, s{RB}, 2
s_add_u32 s{HB}, s{T0}, s{TQ}        ; rb*4+tq
s_lshl_b32 s{T0}, s{HB}, 6
s_lshl_b32 s{T1}, s{NH}, 4
s_add_u32 s{T1}, s{T1}, s{T0}
v_add_u32 v6, s{T1}, v6
v_lshlrev_b32 v6, 10, v6
v_lshrrev_b32 v7, 1, v4
v_xor_b32 v7, v5, v7
v_xor_b32 v8, 4, v7
v_lshl_add_u32 v{DX}, v7, 4, v6
v_lshl_add_u32 v{DX+1}, v8, 4, v6
v_add_u32 v{DX+1}, 3072, v{DX+1}
v_add_u32 v{DX+2}, 6144, v{DX}
v_add_u32 v{DX+3}, 6144, v{DX+1}
s_cmp_ge_u32 s{W_}, 5
s_cselect_b32 s{T1}, 5, 2
s_cselect_b32 s{T2}, {WB+128}, {0}
s_cselect_b32 s{WL}, 0, {WB}
s_add_u32 s{WL}, s{WL}, s{T2}
s_lshl_b32 s{T2}, s{W_}, 11
s_add_u32 s{WL}, s{WL}, s{T2}
s_sub_u32 s{T1}, s{W_}, s{T1}
s_lshl_b32 s{T1}, s{T1}, 7
s_lshl_b32 s{T2}, s{FS}, 5
s_lshl_b32 s{SOX}, s{FCNT}, 1
v_mov_b32 v0, 0x80000000''')
    for j in range(2):
        e(f'''v_add_u32 v6, s{T1}, v1
v_add_u32 v6, {64*j}, v6
v_mul_u32_u24 v10, 10923, v6
v_lshrrev_b32 v10, 16, v10       ; k
v_mul_u32_u24 v11, 6, v10
v_sub_u32 v11, v6, v11           ; c
v_mul_u32_u24 v10, 2752, v10
v_lshl_add_u32 v10, v11, 4, v10
v_add_u32 v10, s{T2}, v10
v_cmp_gt_u32 vcc, s{SOX}, v11
v_subrev_u32 v10, {1024*j}, v10
v_cndmask_b32 v{DW+j}, v0, v10, vcc''')
    e(f'''s_mul_i32 s{XR}, s{TQ}, {XW}
s_lshl_b32 s{T1}, s{NH}, 12
s_add_u32 s{XL}, s{XR}, s{T1}
s_mov_b32 s{WSTEP}, 176128
s_mov_b32 s{sW+2}, 1409024
s_mov_b32 s{sW+3}, 0x20000
s_mov_b32 s{sX+2}, 2097152
s_mov_b32 s{sX+3}, 0x20000
s_cmp_eq_u32 s{NH}, 1
s_cbranch_scc1 L_role1''')

    def slab(i):
        st=i%3
        L=[f's_add_u32 s{T0}, s{ROT}, {i}\ns_and_b32 s{T0}, s{T0}, 7\ns_add_u32 m0, s{WL}, {st*WSS}\ns_mul_i32 s{SOW}, s{T0}, s{WSTEP}\nbuffer_load_dwordx4 v{DW}, {srd(sW)}, s{SOW} offen lds']
        L.append(f'buffer_load_dwordx4 v{DW+1}, {srd(sW)}, s{SOW} offen offset:1024 lds')
        L.append(f's_add_u32 s{T0}, s{ROT}, {i}\ns_and_b32 s{T0}, s{T0}, 7\ns_add_u32 m0, s{XL}, {st*8192}\ns_lshl_b32 s{SOX}, s{T0}, 7\nbuffer_load_dwordx4 v{DX}, {srd(sX)}, s{SOX} offen lds')
        for j in range(1,4): L.append(f'buffer_load_dwordx4 v{DX+j}, {srd(sX)}, s{SOX} offen offset:{1024*j} lds')
        return L
    def setup(nh):
        e(mksrd(sWS,66,67,WSSZ)); e(mksrd(sCR,46,47,524288)); e(mksrd(sCI,48,49,524288)); e(mksrd(sDN,60,61,1409024)); e(mksrd(sOUT,62,63,4194304))
        if nh==0:
            e(mksrd(sDBG,64,65,256))
            e(f's_lshl_b32 s{T0}, s{CT}, 12\ns_add_u32 s{T0}, s{T0}, {EOFF}\ns_add_u32 s{sE}, s66, s{T0}\ns_addc_u32 s{sE+1}, s67, 0\ns_mov_b32 s{sE+2}, 4096\ns_mov_b32 s{sE+3}, 0x20000')
        e(f'''s_lshl_b32 s{T0}, s{DQ}, 6
v_add_u32 v6, s{T0}, v4
v_lshlrev_b32 v6, 10, v6
v_lshl_add_u32 v{DC}, v7, 4, v6
v_lshl_add_u32 v{DC+1}, v8, 4, v6
v_lshlrev_b32 v6, 1, v4
v_and_b32 v6, 4, v6
v_xor_b32 v6, v5, v6
v_lshlrev_b32 v6, 4, v6
v_lshl_add_u32 v6, v4, 10, v6
s_lshl_b32 s{T0}, s{DQ}, 7
v_add_u32 v{DF}, s{T0}, v6
s_mul_i32 s{F0}, s{TQ}, 22
s_cmp_eq_u32 s{TQ}, 3
s_cselect_b32 s{T0}, 1, 0
s_sub_u32 s{F0}, s{F0}, s{T0}
s_lshl_b32 s{FB}, s{F0}, 14
s_lshl_b32 s{CB}, s{TQ}, 8
s_lshl_b32 s{WQ}, s{TQ}, 12
s_lshl_b32 s{T0}, s{T0}, 11
s_sub_u32 s{V14}, s{WQ}, s{T0}
s_add_u32 s{V14}, s{V14}, {SCR}
s_add_u32 s{WQ}, s{WQ}, {WB}
s_lshl_b32 s{HA}, s{HB}, 5
s_add_u32 s{HA}, s{HA}, s{CT}
s_lshl_b32 s{HA}, s{HA}, 8
s_add_u32 s{HA}, s{HA}, {FLG+128*nh}
v_and_b32 v2, 31, v1             ; r
v_lshrrev_b32 v3, 5, v1          ; h
v_bfe_u32 v6, v1, 1, 3
v_xor_b32 v6, v3, v6
v_lshlrev_b32 v6, 4, v6
v_lshl_add_u32 v6, v2, 7, v6
v_bfe_u32 v10, v1, 2, 2
v_lshl_add_u32 v10, v3, 3, v10
v_mul_u32_u24 v10, 96, v10
v_and_b32 v11, 3, v1
v_lshl_add_u32 v10, v11, 3, v10
v_bfe_u32 v11, v1, 4, 1
v_mul_u32_u24 v15, {UOFF-GOFF}, v11
v_add_u32 v10, v10, v15''')
        for u in range(4):
            e(f'''s_add_u32 s{T0}, s{TQ}, {u}
s_and_b32 s{T0}, s{T0}, 3
s_lshl_b32 s{T1}, s{T0}, 5
s_mul_i32 s{T2}, s{T0}, 1536
s_add_u32 s{T2}, s{T2}, {WB+GOFF}
v_xor_b32 v15, s{T1}, v6
v_add_u32 v{XA+u}, s{XR}, v15
v_add_u32 v{TA+u}, s{T2}, v10''')
            if nh==0: e(f'v_add_u32 v{SA+u}, {WB}, v15')
        e(f'''v_bfe_u32 v15, v1, 2, 1
v_cmp_eq_u32 vcc, v15, v11
v_mov_b32 v15, 0x3f803f80
v_cndmask_b32 v{SEL}, 0, v15, vcc
v_cndmask_b32 v{SEL+1}, 0, v15, vcc
v_cndmask_b32 v{SEL+2}, 0, v15, vcc
v_cndmask_b32 v{SEL+3}, 0, v15, vcc
v_lshlrev_b32 v15, 4, v1''')
        if opt.get('stamps'):
            for r in G.POOL: e(f's_mov_b64 s[{r}:{r+1}], 0')

    def vgroup(m0, vregs, sr, sb, imm, n):
        L=[]
        for j in range(n):
            t=f's_add_u32 m0, {m0}\n' if j==0 else ''
            t+=f's_add_u32 s{T0}, s{sb}, {imm+j*(8192-1024)}\nbuffer_load_dwordx4 v{vregs[j%len(vregs)]}, {srd(sr)}, s{T0} offen'+(f' offset:{1024*j}' if j else '')+' lds'
            L.append(t)
        return L
    def vx(vs,half):
        st=vs%3; m0=f's{XR}, {st*8192+half*4096}'
        if vs<12: return vgroup(m0,[DC,DC+1],sCI if (vs-8)&1 else sCR,CB,((vs-8)>>1)*128+half*32768,4)
        return vgroup(m0,[DF],sDN,FB,(8+6*(vs-12))*16384+half*32768,4)
    def vw(vs,half=None):
        st=vs%3; fs=2*(vs-8) if vs<12 else 12+6*(vs-12)
        if half is None: return vgroup(f's{WQ}, {st*WSS}',[DF],sDN,FB,fs*16384,4)
        return vgroup(f's{WQ}, {st*WSS+half*2048}',[DF],sDN,FB,(fs+half)*16384,2)
    def vhalf(vs,nh): return vw(vs,nh)+vx(vs,nh)
    def vfull(vs): return vx(vs,0)+vx(vs,1)+vw(vs)
    def p2addr():
        return ['v_bfe_u32 v0, v1, 2, 2','v_lshrrev_b32 v11, 5, v1','v_lshl_add_u32 v0, v11, 2, v0','v_lshlrev_b32 v0, 7, v0','v_and_b32 v11, 3, v1','v_lshl_add_u32 v0, v11, 3, v0',
            'v_bfe_u32 v11, v1, 4, 1','v_lshl_add_u32 v0, v11, 5, v0','v_bfe_u32 v11, v1, 3, 1','v_lshl_add_u32 v0, v11, 6, v0','v_xor_b32 v11, 64, v0',
            f'v_add_u32 v{PT}, s{XR}, v0',f'v_add_u32 v{PT+1}, s{XR}, v11',f'v_add_u32 v{PT+2}, s{WQ}, v0',f'v_add_u32 v{PT+3}, s{WQ}, v11',f'v_add_u32 v{PT+4}, s{V14}, v0',f'v_add_u32 v{PT+5}, s{V14}, v11']
    def vread(vs, base):
        st=vs%3; L=[]
        def tr(step,areg,off):
            for dh in range(2):
                for j in range(2):
                    r=base+step*8+dh*4+2*j
                    L.append(f'ds_read_b64_tr_b16 {v(r,2)}, v{areg+dh} offset:{off+j*1024}')
        if vs==14:
            for k in range(2): tr(k,PT+4,k*2048)
            return L
        for k in range(4):
            if vs<12:
                for dh in range(2): L.append(f'ds_read_b128 {v(base+k*8+dh*4,4)}, v{XA+k} offset:{st*8192+dh*4096}')
            else: tr(k,PT,st*8192+k*2048)
        for k in range(2): tr(4+k,PT+2,st*WSS+k*2048)
        return L
    def gelu(acc, tb, tmp, soff):
        L=[]; c=4+4*tb
        cp=v(c,2); rp=v(c+2,2); t=tmp
        G_=lambda i: v(acc+2*i,2); U_=lambda i: v(acc+8+2*i,2); T_=lambda i: v(t+2*i,2)
        for i in range(4): L.append(f'v_pk_mul_f32 {T_(i)}, {G_(i)}, {G_(i)}')
        for i in range(4): L.append(f'v_pk_fma_f32 {T_(i)}, {T_(i)}, {cp}, {cp} op_sel:[0,1,0] op_sel_hi:[1,1,0]')
        for i in range(4): L.append(f'v_pk_mul_f32 {T_(i)}, {T_(i)}, {G_(i)}')
        for i in range(8): L.append(f'v_exp_f32 {v(t+i)}, {v(t+i)}')
        for i in range(4): L.append(f'v_pk_mul_f32 {G_(i)}, {G_(i)}, {U_(i)}')
        for i in range(4): L.append(f'v_pk_fma_f32 {T_(i)}, {T_(i)}, {rp}, {rp} op_sel_hi:[1,0,0]')
        for i in range(8): L.append(f'v_rcp_f32 {v(t+i)}, {v(t+i)}')
        for i in range(4): L.append(f'v_pk_mul_f32 {G_(i)}, {G_(i)}, {T_(i)}')
        for i in range(4): L.append(f'v_cvt_pk_bf16_f32 {v(acc+8+i)}, {v(acc+2*i)}, {v(acc+2*i+1)}')
        st=f's_add_u32 s{T1}, s{soff}, {tb*HSTR}\nbuffer_store_dwordx4 {v(acc+8,4)}, v15, {srd(sWS)}, s{T1} offen sc1'
        return L, st
    def setflag(): return f'v_mov_b32 v2, 1\nv_mov_b32 v3, 0\ns_mov_b64 exec, 1\nbuffer_store_dword v2, v3, {srd(sWS)}, s{HA} offen sc1\ns_mov_b64 exec, -1'

    X=lambda b,tb: FR+16*b+4*tb
    Wf=lambda b,sub: FR+16*b+8+4*sub
    for nh in range(2):
        if nh==0:
            e(f'''; SSM W offsets for waves 0,1
s_lshl_b32 s{T1}, s{CT}, 4
v_add_u32 v6, s{T1}, v4
v_lshlrev_b32 v6, 10, v6
v_lshl_add_u32 v10, v7, 4, v6
v_lshl_add_u32 v11, v8, 4, v6
v_add_u32 v11, 7168, v11
s_cmp_lt_u32 s{W_}, 2
s_cselect_b64 vcc, -1, 0
s_cselect_b32 s{WSTEP}, 128, s{WSTEP}
s_cselect_b32 s{sW+2}, 524288, s{sW+2}
v_cndmask_b32 v{DW}, v{DW}, v10, vcc
v_cndmask_b32 v{DW+1}, v{DW+1}, v11, vcc
s_lshl_b32 s{T0}, s{RB}, 5
s_add_u32 s{T0}, s{T0}, s{CT}
s_lshl_b32 s{T0}, s{T0}, 2
s_add_u32 s{SPIN}, s{T0}, s{TQ}
s_lshl_b32 s{T0}, s{SPIN}, 11
v_and_b32 v2, 31, v1
v_lshlrev_b32 v2, 4, v2
v_and_b32 v3, 32, v1
v_lshl_add_u32 v2, v3, 5, v2
v_and_b32 v3, 15, v1
s_lshl_b32 s{T1}, s{CT}, 5
v_lshl_add_u32 v3, v3, 1, s{T1}
s_waitcnt lgkmcnt(0)
s_mov_b32 s{sX}, s36
s_mov_b32 s{sX+1}, s37
s_cmp_eq_u32 s{W_}, 0
s_cselect_b32 s{sW}, s42, s44
s_cselect_b32 s{sW+1}, s43, s45
s_cmp_ge_u32 s{W_}, 2
s_cselect_b32 s{sW}, s56, s{sW}
s_cselect_b32 s{sW+1}, s57, s{sW+1}
buffer_load_dwordx4 v[112:115], v2, {srd(sX)}, s{T0} offen
buffer_load_dwordx4 v[116:119], v2, {srd(sX)}, s{T0} offen offset:512''')
            e(slab(0))
            e('global_load_ushort v144, v3, s[38:39]\nglobal_load_ushort v145, v3, s[40:41]\nglobal_load_ushort v146, v3, s[50:51]')
            setup(0)
            def allred(r,t):
                for k in (8,4,2,1): e(f'v_add_f32_dpp {v(r)}, {v(r)}, {v(r)} row_ror:{k} row_mask:0xf bank_mask:0xf')
                e(f'v_mov_b32 {v(t)}, {v(r)}\nv_permlane16_swap_b32 {v(t)}, {v(r)}\nv_add_f32 {v(r)}, {v(r)}, {v(t)}')
            e('s_waitcnt vmcnt(9)')
            g.stamp('rowld')
            for i in range(8): e(f'v_lshlrev_b32 v{120+2*i}, 16, v{112+i}\nv_and_b32 v{121+2*i}, 0xffff0000, v{112+i}')
            e('v_pk_add_f32 v[136:137], v[120:121], v[122:123]')
            for i in range(2,8): e(f'v_pk_add_f32 v[136:137], v[136:137], v[{120+2*i}:{121+2*i}]')
            e('v_add_f32 v136, v136, v137')
            allred(136,137)
            e(f'v_mul_f32 v136, {F(1/512)}, v136')
            for i in range(8): e(f'v_pk_add_f32 v[{120+2*i}:{121+2*i}], v[{120+2*i}:{121+2*i}], v[136:137] op_sel_hi:[1,0] neg_lo:[0,1] neg_hi:[0,1]')
            e('v_pk_mul_f32 v[138:139], v[120:121], v[120:121]')
            for i in range(1,8): e(f'v_pk_fma_f32 v[138:139], v[{120+2*i}:{121+2*i}], v[{120+2*i}:{121+2*i}], v[138:139]')
            e('v_add_f32 v138, v138, v139')
            allred(138,139)
            e(f'''v_mul_f32 v138, {F(1/512)}, v138
v_cvt_pk_bf16_f32 v136, v136, v138
v_and_b32 v138, 0xffff0000, v136
v_lshlrev_b32 v136, 16, v136
v_add_f32 v138, {F(1e-5)}, v138
v_cvt_pk_bf16_f32 v138, v138, v138
v_lshlrev_b32 v138, 16, v138
v_sqrt_f32 v138, v138
v_cvt_pk_bf16_f32 v138, v138, v138
v_lshlrev_b32 v138, 16, v138          ; sd
v_rcp_f32 v138, v138                  ; r
v_and_b32 v2, 31, v1
v_lshrrev_b32 v3, 5, v1
s_lshl_b32 s{T1}, s{CT}, 5
s_sub_u32 s{T1}, s{T1}, s{HB}
s_add_u32 s{T1}, s{T1}, 31
s_lshl_b32 s{T1}, s{T1}, 7
s_add_u32 s{T1}, s{T1}, {EOFF-64}
v_lshl_add_u32 v140, v3, 4, v2
v_lshl_add_u32 v140, v140, 2, s{T1}      ; E addr
v_mov_b32 v141, -1
v_lshl_add_u32 v142, v3, 7, s{HA}
v_cmp_eq_u32 vcc, 3, v2
v_cndmask_b32 v140, v140, v142, vcc
v_cndmask_b32 v141, v141, 0, vcc
s_lshl_b32 s{T1}, s{SPIN}, 3
s_add_u32 s{T1}, s{T1}, {ST_R}
v_lshl_add_u32 v142, v3, 2, s{T1}
v_cmp_gt_u32 vcc, 3, v2
v_cndmask_b32 v140, v140, v142, vcc
v_cndmask_b32 v141, v141, v138, vcc
s_lshl_b32 s{T1}, s{SPIN}, 4
s_add_u32 s{T1}, s{T1}, {ST_M}
v_lshl_add_u32 v142, v3, 1, v2
v_lshl_add_u32 v142, v142, 2, s{T1}
v_cmp_gt_u32 vcc, 2, v2
v_cndmask_b32 v140, v140, v142, vcc
v_cmp_eq_u32 vcc, 0, v2
v_cndmask_b32 v141, v141, v136, vcc
s_mov_b32 exec_lo, 0xffff000f
s_mov_b32 exec_hi, 0xffff000f
buffer_store_dword v141, v140, {srd(sWS)}, 0 offen sc1
s_mov_b64 exec, -1''')
            e(slab(1))
            W2PF=f'''s_cmp_eq_u32 s{TQ}, 0
s_cselect_b32 s{sOUT}, s{sCR}, s{sCI}
s_cselect_b32 s{sOUT+1}, s{sCR+1}, s{sCI+1}
s_lshl_b32 s{T1}, s2, 11
s_mul_i32 s{T2}, s2, {43*128}
s_cmp_ge_u32 s{TQ}, 2
s_cselect_b32 s{sOUT}, s{sDN}, s{sOUT}
s_cselect_b32 s{sOUT+1}, s{sDN+1}, s{sOUT+1}
s_cselect_b32 s{T1}, s{T2}, s{T1}
s_cselect_b32 s{T2}, 21, 15
v_min_u32 v10, s{T2}, v1
s_cmp_eq_u32 s{TQ}, 3
s_cselect_b32 s{T2}, {21*128}, 0
s_add_u32 s{T1}, s{T1}, s{T2}
v_lshlrev_b32 v10, 7, v10
buffer_load_dword v9, v10, {srd(sOUT)}, s{T1} offen
s_mov_b32 s{sOUT}, s62
s_mov_b32 s{sOUT+1}, s63'''
            if PF==9: e(W2PF)
            e(f's_waitcnt vmcnt({8 if PF==9 else 7})')
            LAM=[]
            LAM.extend(f'''v_lshlrev_b32 v116, 16, v144
v_lshlrev_b32 v117, 16, v145
v_lshlrev_b32 v118, 16, v146
v_mul_f32 v118, {F(LOG2E)}, v118
v_exp_f32 v118, v118
v_cvt_pk_bf16_f32 v118, v118, v118
v_lshlrev_b32 v118, 16, v118         ; dt
v_mul_f32 v120, v118, v116
v_mul_f32 v121, v118, v117
v_mul_f32 v120, {F(LOG2E)}, v120     ; a'
v_mul_f32 v121, 0.15915494, v121     ; b' (revolutions)'''.split('\n'))
            def cpow(dr,di,n):
                if n is None: LAM.extend(['v_mov_b32 v122, v120','v_mov_b32 v123, v121'])
                else: LAM.extend([f'v_mul_f32 v122, {n}, v120',f'v_mul_f32 v123, {n}, v121'])
                LAM.extend(['v_rndne_f32 v124, v123','v_exp_f32 v122, v122','v_sub_f32 v123, v123, v124','v_cos_f32 v124, v123','v_sin_f32 v123, v123',f'v_mul_f32 {v(dr)}, v122, v124',f'v_mul_f32 {v(di)}, v122, v123'])
            cpow(PR,PI,None)
            for j in range(1,16):
                a=(j-1)//2; b=j-1-a
                LAM.extend([f'v_mul_f32 {v(PR+j)}, {v(PR+a)}, {v(PR+b)}',f'v_mul_f32 {v(PI+j)}, {v(PR+a)}, {v(PI+b)}',f'v_fma_f32 {v(PR+j)}, -{v(PI+a)}, {v(PI+b)}, {v(PR+j)}',f'v_fmac_f32 {v(PI+j)}, {v(PI+a)}, {v(PR+b)}'])
            cpow(L32,L32+1,F(32.0)); cpow(L64,L64+1,F(64.0))
            LAM.extend(['v_and_b32 v125, 16, v1','v_cvt_f32_u32 v125, v125']); cpow(WSEL,WSEL+1,'v125')
            LAM.extend(['v_and_b32 v125, 48, v1','v_cvt_f32_u32 v126, v125']); cpow(WG,WG+1,'v126')
            LAM.extend([f'v_mul_f32 v125, {F(32.0)}, v126']); cpow(126,127,'v125')
            LAM.extend(['v_mul_f32 v122, v116, v116','v_fmac_f32 v122, v117, v117','v_rcp_f32 v122, v122',f'v_add_f32 v123, -1.0, v{PR}',f'v_mul_f32 v{KAP}, v123, v116',f'v_fmac_f32 v{KAP}, v{PI}, v117',
                f'v_mul_f32 v{KAP+1}, v{PI}, v116',f'v_fma_f32 v{KAP+1}, -v123, v117, v{KAP+1}','v_add_f32 v122, v122, v122',f'v_mul_f32 v{KAP}, v122, v{KAP}',f'v_mul_f32 v{KAP+1}, v122, v{KAP+1}'])
            LAM.extend(cmul(WH,KAP,126))
            e('s_barrier')
        else:
            e(f'''.p2align 3
L_role1:
s_waitcnt lgkmcnt(0)
s_mov_b32 s{sX}, s36
s_mov_b32 s{sX+1}, s37
s_cmp_ge_u32 s{W_}, 5
s_cselect_b32 s{sW}, s58, s56
s_cselect_b32 s{sW+1}, s59, s57''')
            e(slab(0)); setup(1); e(slab(1))
            LAM=[]
            e('s_waitcnt vmcnt(6)\ns_barrier')
        e(f's_mul_i32 s{HB}, s{HB}, {2*HSTR}')
        if opt.get('prio')==nh: e('s_setprio 1')
        subs=[('S',ACC0),(0,ACC1)] if nh==0 else [(2,ACC0),(1,ACC1)]
        def reads(n):
            i,u=divmod(n,4); st=i%3; b=n&1; L=[]
            def wr(k):
                sb=subs[k][0]
                if sb=='S': L.append(f'ds_read_b128 {v(Wf(b,k),4)}, v{SA+u} offset:{st*WSS}')
                else:
                    for j in range(2): L.append(f'ds_read_b64_tr_b16 {v(Wf(b,k)+2*j,2)}, v{TA+u} offset:{st*WSS+4*j*96+32*sb}')
            L.append(f'ds_read_b128 {v(X(b,0),4)}, v{XA+u} offset:{st*8192}')
            wr(0)
            L.append(f'ds_read_b128 {v(X(b,1),4)}, v{XA+u} offset:{st*8192+4096}')
            wr(1)
            return L
        def mf(k,tb,xo,wo,first=False):
            a=subs[k][1]+16*tb; c='0' if first else v(a,16)
            if subs[k][0]=='S': return f'v_mfma_f32_32x32x16_bf16 {v(a,16)}, {xo}, {wo}, {c}'
            return f'v_mfma_f32_32x32x16_bf16 {v(a,16)}, {wo}, {xo}, {c}'
        g.stamp('B0')
        e(reads(0))
        DEFS={0:'02.03.12.13.22.23',1:'02.03.12.13.22.23'}
        slots=[(int(x[0]),int(x[1])) for x in opt.get(f'ds{nh}',DEFS[nh]).split('.')]
        slots7=[(int(x[0]),int(x[1])) for x in opt.get(f'dl{nh}','30.31.32.33.00.01').split('.')]
        pend=slab(2); xtra=1 if (PF==9 and nh==0) else 0
        if any(u_==3 for u_,_ in slots):
            for _ in [1 for u_,_ in slots if u_==3]: e(pend.pop(0))
        for n in range(32):
            i,u=divmod(n,4); b=n&1
            post=[]
            if u==3:
                assert not pend
                bi=i+1
                if LAM:
                    k=(len(LAM)+ (3-bi))//max(1,(4-bi)) if bi<4 else len(LAM)
                    e(LAM[:k]); del LAM[:k]
                g.stamp(f'p{bi}')
                if bi==6 and nh==0:
                    e(f's_waitcnt vmcnt(6)\nv_cmp_gt_u32 vcc, 4, v2\ns_cmp_eq_u64 vcc, 0\ns_cbranch_scc0 L_poll\nL_pollok:')
                    g.cold.append(f'''L_poll:
s_mov_b32 s{SPIN}, 0
L_poll1:
buffer_load_dword v2, v3, {srd(sDBG)}, 0 offen sc1
s_add_u32 s{SPIN}, s{SPIN}, 1
s_cmp_gt_u32 s{SPIN}, 100000
s_cbranch_scc1 L_pollok
s_waitcnt vmcnt(0)
v_cmp_gt_u32 vcc, 4, v2
s_cmp_eq_u64 vcc, 0
s_cbranch_scc0 L_poll1
s_branch L_pollok''')
                e(f's_waitcnt vmcnt({6+xtra}) lgkmcnt(0)')
                g.stamp(f'w{bi}')
                e('s_barrier')
                g.stamp(f'B{bi}')
                xtra=0
                if nh==0:
                    if bi==1:
                        post.append(f's_and_b32 s{T1}, s2, 63\ns_lshl_b32 s{T1}, s{T1}, 2\ns_cmp_eq_u32 s{W_}, 0\ns_cselect_b32 s{T1}, s{T1}, {BIG}\nv_mov_b32 v2, 1\nv_mov_b32 v3, 0\ns_mov_b64 exec, 1\nbuffer_atomic_add v2, v3, {srd(sDBG)}, s{T1} offen sc1\ns_mov_b64 exec, -1'); xtra+=1
                    if PF==bi: post.append(W2PF); xtra+=1
                    if bi==5:
                        post.append(f'v_lshlrev_b32 v3, 2, v1\nbuffer_load_dword v2, v3, {srd(sDBG)}, 0 offen sc1'); xtra=0
                if bi==6:
                    t=f'''v_bfe_u32 v2, v1, 2, 1
v_lshlrev_b32 v2, 5, v2
v_and_or_b32 v2, v1, 3, v2
v_bfe_u32 v3, v1, 3, 2
v_lshl_add_u32 v2, v3, 2, v2
v_lshlrev_b32 v2, 3, v2
s_lshl_b32 s{T2}, s{RB}, 2
s_add_u32 s{T2}, s{T2}, s{TQ}
s_lshl_b32 s{T1}, s{T2}, 9
s_add_u32 s{T1}, s{T1}, {ST_M}
buffer_load_dwordx2 {v(STT,2)}, v2, {srd(sWS)}, s{T1} offen sc1
buffer_load_dwordx2 {v(STT+2,2)}, v2, {srd(sWS)}, s{T1} offen offset:128 sc1'''
                    if nh==0:
                        t+=f'\ns_lshl_b32 s{T2}, s{T2}, 8\ns_add_u32 s{T2}, s{T2}, {ST_R}\nv_and_b32 v3, 48, v1\nv_lshlrev_b32 v3, 2, v3'
                        for k in range(4): t+=f'\nbuffer_load_dwordx4 {v(RS+4*k,4)}, v3, {srd(sWS)}, s{T2} offen offset:{16*k} sc1'
                    post.append(t)
                if bi+2<8: pend=slab(bi+2)
                elif bi+2<10: pend=vhalf(bi+2,nh)
            else:
                e('s_waitcnt lgkmcnt(0)')
            R=reads(n+1) if n<31 else []
            M=[mf(k,tb,v(X(b,tb),4),v(Wf(b,k),4),n==0) for k in range(2) for tb in range(2)]
            extra=[[],[],[],[],[]]
            if n in (24,25):
                pa=p2addr(); pa=pa[:9] if n==24 else pa[9:]
                for q_ in range(len(pa)): extra[min(3,q_//3)].append(pa[q_])
            if n==28:
                for tb in range(2):
                    c=4+4*tb; r=STT+2*tb+1
                    extra[2*tb].append(f'v_mul_f32 v3, v{r}, v{r}\nv_mul_f32 v{c}, {F(-2*math.sqrt(2/math.pi)*LOG2E)}, v{r}\nv_rcp_f32 v{c+2}, v3')
                    extra[2*tb+1].append(f'v_mul_f32 v3, {F(0.044715)}, v3\nv_mul_f32 v{c+1}, v{c}, v3')
            if n==29:
                extra[1].append(f'v_and_b32 v2, 31, v1\ns_lshl_b32 s{T1}, s{W_}, 8\ns_add_u32 s{T1}, s{T1}, {SP}\nv_lshl_add_u32 v3, v2, 3, s{T1}')
                extra[2].append(f'v_mov_b32 v{SACC+1}, v{SACC+4}\nv_lshlrev_b32 v2, 3, v2\nv_add_u32 v2, {SP+1024*nh}, v2')
            if n==30:
                extra[2].append(f'ds_write_b64 v3, {v(SACC,2)}')
            if n==31: break
            sl_=slots7 if n>=27 else slots
            k=0
            for mi in range(4):
                e(M[mi])
                for _ in range(2):
                    if k<len(R): e(R[k]); k+=1
                if mi==0: e(post)
                e(extra[mi])
                for sl in sl_:
                    if sl==(u,mi) and pend: e(pend.pop(0))
            if u==0:
                for kk in range(2):
                    c='0' if n==0 else v(SACC+4*kk,4)
                    e(f'v_mfma_f32_16x16x32_bf16 {v(SACC+4*kk,4)}, {v(SEL,4)}, {v(Wf(b,kk),4)}, {c}')
            for sl in sl_:
                if sl==(u,4) and pend: e(pend.pop(0))
        if opt.get('prio')==nh: e('s_setprio 0')
        for k in range(4): e(f'ds_read_b64 {v(SACC+2*k,2)}, v2 offset:{k*256}')
        z=[X(0,0)+1,X(0,0)+2,X(0,0)+3,X(0,1)+1,X(0,1)+2,X(0,1)+3,Wf(0,0)+1,Wf(0,0)+2,Wf(0,0)+3,Wf(0,1)+1,Wf(0,1)+2,Wf(0,1)+3]
        ZR=[f'v_mov_b32 v{r}, 0' for r in z]+[f'v_cvt_pk_bf16_f32 v{X(0,0)}, -v{STT}, 0',f'v_cvt_pk_bf16_f32 v{X(0,1)}, -v{STT+2}, 0','v_cmp_gt_u32 vcc, 32, v1']
        RK=f"""v_add_f32 v{SACC}, v{SACC}, v{SACC+2}
v_add_f32 v{SACC+1}, v{SACC+1}, v{SACC+3}
v_add_f32 v{SACC+4}, v{SACC+4}, v{SACC+6}
v_add_f32 v{SACC+5}, v{SACC+5}, v{SACC+7}
v_add_f32 v{SACC}, v{SACC}, v{SACC+4}
v_add_f32 v{SACC+1}, v{SACC+1}, v{SACC+5}
v_and_b32 v3, 0xffff0000, v{SACC}
v_and_b32 v2, 0xffff0000, v{SACC+1}
v_sub_f32 v{SACC}, v{SACC}, v3
v_sub_f32 v{SACC+1}, v{SACC+1}, v2
v_cndmask_b32 v3, v{SACC}, v3, vcc
v_cndmask_b32 v2, v{SACC+1}, v2, vcc
v_cvt_pk_bf16_f32 v{Wf(0,0)}, v3, 0
v_cvt_pk_bf16_f32 v{Wf(0,1)}, v2, 0""".split('\n')
        R1=lambda k,tb: mf(k,tb,v(X(0,tb),4),v(Wf(0,k),4))
        def foff(reg,sb):
            return f's_add_u32 s{T2}, s{FS}, {sb}\ns_lshl_b32 s{T2}, s{T2}, 10\ns_add_u32 s{T2}, s{T2}, s{HB}\ns_cmp_gt_u32 s{FCNT}, {sb}\ns_cselect_b32 s{reg}, s{T2}, {BIG}'
        v14=vgroup(f's{V14}, 0',[DF],sDN,FB,20*16384,4)
        if nh==1:
            V=vfull(10); nb=opt.get('nb',6)
            e(mix(ZR+['s_waitcnt lgkmcnt(0)']+RK,V[:nb],4))
            rd8=vread(8,B1)
            MM=[M[2],M[3],R1(1,0),R1(1,1),M[0],M[1],R1(0,0),R1(0,1)]
            V=V[nb:]
            for m_ in MM:
                e(m_); e(rd8[:2]); del rd8[:2]
                if V: e(V.pop(0))
            e(V)
            g.stamp('loopend')
            e(foff(SOX,1)); e(foff(SOW,2))
            g.stamp('preB9')
            e('s_waitcnt vmcnt(12) lgkmcnt(0)\ns_barrier')
            g.stamp('B9')
            L=[]
            for tb in range(2):
                a,s0=gelu(ACC1+16*tb,tb,PR,SOX); L+=a+[s0]
            e(mix(mix(L,vfull(11),7),vread(9,B2),3))
            g.stamp('preB10')
            e('s_waitcnt vmcnt(14) lgkmcnt(0)\ns_barrier')
            g.stamp('B10')
            a,s0=gelu(ACC0,0,PR,SOW); b_,s1=gelu(ACC0+16,1,PR,SOW)
            V=vfull(12); k1=opt.get('k1',20)
            e(mix(mix(a[:k1],V[:3],6),vread(10,B3),1))
            e('s_waitcnt lgkmcnt(0)\ns_barrier')
            g.stamp('B11')
            V=V[3:]+vfull(13)+v14[:2]
            L=a[k1:]+[s0]+b_
            nv=len(L)//opt.get('pace',6)
            e(mix(L,V[:nv],opt.get('pace',6))); e(s1); V=V[nv:]
            g.stamp('gdone')
            nf=min(len(V),opt.get('nf',8))
            e(V[:nf]); e(f's_waitcnt vmcnt({nf})'); e(setflag())
            g.stamp('flag')
            e(V[nf:])
            e(f's_cmp_ge_u32 s{TQ}, 2\ns_cbranch_scc1 L_join'); e(v14[2:])
        else:
            Xr=ACC0; Yr=ACC0+16
            rd8=vread(8,B1)
            e(M[0]); e(ZR[:7]); e(M[1]); e(ZR[7:]); e('s_waitcnt lgkmcnt(0)'); e(M[2]); e(RK[:7]); e(M[3]); e(RK[7:])
            for m_ in (R1(0,0),R1(0,1),R1(1,0),R1(1,1)):
                e(m_); e(rd8[:4]); del rd8[:4]
            g.stamp('loopend')
            EA=30; NI=31; Z,T,P,Q,CP=RS,RS+2,RS+4,RS+6,28
            e(foff(SOX,0))
            e(f'v_and_b32 v{EA}, 15, v1\nv_lshlrev_b32 v{EA}, 3, v{EA}\nv_sub_f32 v{NI}, 0, v{PI}\ns_lshl_b32 s{T0}, s{RB}, 2\ns_add_u32 s{T0}, s{T0}, s{TQ}\ns_sub_u32 s{T0}, 31, s{T0}\ns_lshl_b32 s{SOW}, s{T0}, 7')
            for i in range(16):
                e(f'v_permlane16_swap_b32 v{Xr+i}, v{Yr+i}')
            if opt.get('pksc',0):
                for i in range(8): e(f'v_pk_mul_f32 {v(Xr+2*i,2)}, {v(Xr+2*i,2)}, {v(RS+2*i,2)}\nv_pk_mul_f32 {v(Yr+2*i,2)}, {v(Yr+2*i,2)}, {v(RS+2*i,2)}')
            else:
                for i in range(16): e(f'v_mul_f32 v{Xr+i}, v{Xr+i}, v{RS+i}\nv_mul_f32 v{Yr+i}, v{Yr+i}, v{RS+i}')
            g.stamp('a_scale')
            for j in range(1,16):
                e(f'v_fmac_f32 v{Xr+j}, v{PR}, v{Xr+j-1}\nv_fmac_f32 v{Yr+j}, v{PR}, v{Yr+j-1}\nv_fmac_f32 v{Xr+j}, v{NI}, v{Yr+j-1}\nv_fmac_f32 v{Yr+j}, v{PI}, v{Xr+j-1}')
            g.stamp('a_scan')
            e(f'v_mov_b32 v{T}, v{Xr+15}\nv_mov_b32 v{T+1}, v{Yr+15}\nv_mov_b32 v{Z}, 0\nv_mov_b32 v{Z+1}, 0\nv_permlane16_swap_b32 v{Z}, v{T}\nv_permlane16_swap_b32 v{Z+1}, v{T+1}')
            e(cfma(P,(PR+15,PI+15),Z,(Xr+15,Yr+15)))
            e(f'v_mov_b32 v{Q}, v{P}\nv_mov_b32 v{Q+1}, v{P+1}\nv_mov_b32 v{T}, 0\nv_mov_b32 v{T+1}, 0\nv_permlane16_swap_b32 v{Q}, v{P}\nv_permlane16_swap_b32 v{Q+1}, v{P+1}')
            e(f'v_permlane32_swap_b32 v{T}, v{P}\nv_permlane32_swap_b32 v{T+1}, v{P+1}')
            e(cfma(P,L32,T,P))
            e(f"""v_min_u32 v{P}, -2, v{P}
v_min_u32 v{P+1}, -2, v{P+1}
s_mov_b32 exec_lo, 0
s_mov_b32 exec_hi, 0xffff0000
buffer_store_dwordx2 {v(P,2)}, v{EA}, {srd(sE)}, s{SOW} offen sc1
s_mov_b64 exec, -1""")
            g.stamp('b_pub')
            e('s_waitcnt vmcnt(1) lgkmcnt(0)\ns_barrier')
            g.stamp('B9')
            PRE=cfma(Z,WSEL,T,Z)+cmul(CP,KAP,Z)+[f'v_and_b32 v{NI}, 48, v1',f'v_lshl_add_u32 v{EA}, v{NI}, 6, v{EA}',f's_add_u32 s{SOW}, s{SOW}, 128']
            a,s0=gelu(ACC1,0,RS,SOX); b_,s1=gelu(ACC1+16,1,RS,SOX)
            e(mix(PRE+a+[s0]+b_+[s1],vread(9,B2),3))
            g.stamp('preB10')
            e('s_waitcnt lgkmcnt(0)\ns_barrier')
            g.stamp('B10')
            ER=[2,4,6,8,10,26,32,SPR]
            eld='\n'.join(f'buffer_load_dwordx2 {v(ER[u_],2)}, v{EA}, {srd(sE)}, s{SOW} offen offset:{128*u_} sc1' for u_ in range(8))
            e(eld)
            kp=v(KAP,2); KH=[]
            for i in range(8):
                xx=v(Xr+2*i,2); yy=v(Yr+2*i,2); tt=v(L32+2*(i&1),2)
                KH+=[f'v_pk_mul_f32 {tt}, {xx}, {kp} op_sel:[0,1] op_sel_hi:[1,1] neg_lo:[0,1] neg_hi:[0,1]',f'v_pk_mul_f32 {xx}, {xx}, {kp} op_sel_hi:[1,0]',
                     f'v_pk_fma_f32 {xx}, {yy}, {kp}, {xx} op_sel:[0,1,0] op_sel_hi:[1,1,1] neg_lo:[0,1,0] neg_hi:[0,1,0]',f'v_pk_fma_f32 {yy}, {yy}, {kp}, {tt} op_sel_hi:[1,0,1] neg_lo:[0,1,0] neg_hi:[0,1,0]']
            e(mix(KH,vread(10,B3),1))
            e(f"""v_and_b32 v0, 1, v1
v_lshlrev_b32 v0, 4, v0
v_lshlrev_b32 v0, v0, 0x3f80
v_bfe_u32 v{NI}, v1, 1, 1
v_bfe_u32 v{KAP}, v1, 3, 1
v_lshl_add_u32 v{NI}, v{KAP}, 1, v{NI}
v_bfe_u32 v{KAP}, v1, 2, 1
v_lshrrev_b32 v{KAP+1}, 5, v1
v_cmp_eq_u32 vcc, v{KAP}, v{KAP+1}
v_cndmask_b32 v0, 0, v0, vcc""".replace('v_lshlrev_b32 v0, v0, 0x3f80',f'v_mov_b32 v{KAP}, 0x3f80\nv_lshlrev_b32 v0, v0, v{KAP}'))
            for d_ in range(4): e(f'v_cmp_eq_u32 vcc, {d_}, v{NI}\nv_cndmask_b32 v{SELT+d_}, 0, v0, vcc')
            e(f's_add_u32 s{T2}, s{CT}, 86\ns_lshl_b32 s{T2}, s{T2}, 10\ns_add_u32 s{T2}, s{T2}, s{HB}')
            e('s_waitcnt lgkmcnt(0)\ns_barrier')
            g.stamp('B11')
            chk='\n'.join([f'v_max3_u32 v0, v{ER[0]}, v{ER[0]+1}, v{ER[1]}',f'v_max3_u32 v{NI}, v{ER[1]+1}, v{ER[2]}, v{ER[2]+1}']+[f'v_max3_u32 v{(0,NI)[u_&1]}, v{ER[u_]}, v{ER[u_]+1}, v{(0,NI)[u_&1]}' for u_ in range(3,8)]+[f'v_max_u32 v0, v0, v{NI}','v_cmp_eq_u32 vcc, -1, v0','s_cmp_eq_u64 vcc, 0'])
            e(f's_waitcnt vmcnt(0)\n{chk}\ns_cbranch_scc0 L_epoll\nL_eok:')
            g.cold.append(f"""L_epoll:
s_mov_b32 s{SPIN}, 0
L_epoll1:
{eld}
s_add_u32 s{SPIN}, s{SPIN}, 1
s_cmp_gt_u32 s{SPIN}, 100000
s_cbranch_scc1 L_eok
s_waitcnt vmcnt(0)
{chk}
s_cbranch_scc0 L_epoll1
s_branch L_eok""")
            g.stamp('Eok')
            for u_ in range(6,-1,-1): e(cfma(ER[u_],L64,ER[u_+1],ER[u_]))
            e(cmul(4,WH,2))
            for sw in ('16','32'):
                e(f'v_mov_b32 v2, v4\nv_mov_b32 v3, v5\nv_permlane{sw}_swap_b32 v2, v4\nv_permlane{sw}_swap_b32 v3, v5\nv_add_f32 v4, v2, v4\nv_add_f32 v5, v3, v5')
            e(cfma(CP,WG,4,CP))
            cp=v(CP,2)
            g.stamp('c_carry')
            e('v_and_b32 v0, 16, v1\nv_cmp_eq_u32 vcc, 0, v0')
            for d_ in range(4): e(f'v_cndmask_b32 v{4+d_}, v{SELT+d_}, 0, vcc\nv_cndmask_b32 v{SELT+d_}, 0, v{SELT+d_}, vcc')
            for comp,R_ in ((0,Xr),(1,Yr)):
                for i in range(8):
                    rr=v(R_+2*i,2); pr=v(PR+2*i,2); pi=v(PI+2*i,2)
                    if comp==0: e(f'v_pk_fma_f32 {rr}, {pr}, {cp}, {rr} op_sel_hi:[1,0,1]\nv_pk_fma_f32 {rr}, {pi}, {cp}, {rr} op_sel:[0,1,0] op_sel_hi:[1,1,1] neg_lo:[0,1,0] neg_hi:[0,1,0]')
                    else: e(f'v_pk_fma_f32 {rr}, {pr}, {cp}, {rr} op_sel:[0,1,0] op_sel_hi:[1,1,1] neg_lo:[0,1,0] neg_hi:[0,1,0]\nv_pk_fma_f32 {rr}, {pi}, {cp}, {rr} op_sel_hi:[1,0,1] neg_lo:[0,1,0] neg_hi:[0,1,0]')
            g.stamp('c_fix')
            for comp,R_,D_ in ((0,Xr,PR),(1,Yr,PI)):
                for i in range(8): e(f'v_cvt_pk_bf16_f32 v{R_+i}, v{R_+2*i}, v{R_+2*i+1}')
                for tb in range(2):
                    for hf in range(2): e(f'v_mfma_f32_16x16x32_bf16 {v(D_+8*tb+4*hf,4)}, {v(R_+4*hf,4)}, {v((SELT,4)[tb],4)}, 0')
            for comp,R_,D_ in ((0,Xr,PR),(1,Yr,PI)):
                for i in range(8): e(f'v_cvt_pk_bf16_f32 v{R_+8+i}, v{D_+2*i}, v{D_+2*i+1}')
                for tb in range(2):
                    o=R_+8+4*tb
                    e(f'v_permlane16_swap_b32 v{o}, v{o+2}\nv_permlane16_swap_b32 v{o+1}, v{o+3}')
                    e(f's_add_u32 s{T1}, s{T2}, {comp*32768+tb*HSTR}\nbuffer_store_dwordx4 {v(o,4)}, v15, {srd(sWS)}, s{T1} offen sc1')
            g.stamp('c_st')
            e('s_waitcnt vmcnt(0)'); e(setflag())
            g.stamp('flag')
            e('s_branch L_join')
            e(g.cold); g.cold=[]
    e('L_join:')
    g.stamp('join')
    BS=34
    e(f'''s_lshl_b32 s{T0}, s{RB2}, 2
s_add_u32 s{T0}, s{T0}, s{TQ2}
s_lshl_b32 s{SOX}, s{T0}, 1
s_add_u32 s{SOX}, s{SOX}, s{NH}
s_mul_i32 s{SOX}, s{SOX}, {HSTR}
s_lshl_b32 s{HB}, s{T0}, 13
s_add_u32 s{HB}, s{HB}, {FLG}
s_lshl_b32 s{T0}, s{T0}, 6
s_lshl_b32 s{T1}, s{NH}, 4
s_add_u32 s{T0}, s{T0}, s{T1}
s_lshl_b32 s{T1}, s{TQ}, 2
s_add_u32 s{T0}, s{T0}, s{T1}
v_and_b32 v2, 32, v1
v_add_u32 v2, s{T0}, v2                   ; row0
v_and_b32 v3, 31, v1
s_lshl_b32 s{T1}, s{DQ}, 6
v_add_u32 v3, s{T1}, v3                   ; col0
v_lshl_add_u32 v44, v2, 9, v3
v_lshlrev_b32 v45, 1, v44
v_lshlrev_b32 v44, 2, v44
v_lshlrev_b32 v2, 3, v2
v_lshlrev_b32 v3, 1, v3
s_mov_b32 s{T1}, {ST_M}''')
    for dh in range(2):
        for i in range(4): e(f'buffer_load_ushort v{BS+4*dh+i}, v45, {srd(sX)}, 0 offen offset:{i*1024+dh*64}')
    e(f'''buffer_load_dwordx4 v[4:7], v2, {srd(sWS)}, s{T1} offen sc1
buffer_load_dwordx4 v[8:11], v2, {srd(sWS)}, s{T1} offen offset:16 sc1
global_load_ushort v42, v3, s[52:53]
global_load_ushort v43, v3, s[52:53] offset:64
s_lshl_b32 s{T0}, s{F0}, 10
s_add_u32 s{SOW}, s{SOX}, s{T0}
s_lshl_b32 s{T0}, s{TQ}, 13
s_add_u32 s{SOX}, s{SOX}, s{T0}
s_lshl_b32 s{T0}, s{TQ}, 10
s_add_u32 s{ROT}, s{SOX}, s{T0}
s_add_u32 s{T0}, s{T0}, 1024
s_and_b32 s{T0}, s{T0}, 3072
s_add_u32 s{ROT+1}, s{SOX}, s{T0}
s_add_u32 s{T0}, s{T0}, 1024
s_and_b32 s{T0}, s{T0}, 3072
s_add_u32 s{ROT+2}, s{SOX}, s{T0}
s_add_u32 s{T0}, s{T0}, 1024
s_and_b32 s{T0}, s{T0}, 3072
s_add_u32 s{ROT+3}, s{SOX}, s{T0}
s_lshl_b32 s{T0}, s{TQ}, 7
v_xor_b32 v46, s{T0}, v15
s_cmp_eq_u32 s{NH}, 1
s_cbranch_scc1 L_fdone''')
    if opt.get('hpf',0):
        e(fsplit(WI,FS,FCNT,T0))
        e(f'''s_lshl_b32 s{T0}, s{RB2}, 2
s_add_u32 s{T0}, s{T0}, s{TQ}
s_mul_i32 s{T2}, s{T0}, {2*HSTR}
s_lshl_b32 s{T0}, s{T0}, 5
s_add_u32 s{T0}, s{T0}, s{WI}
s_lshl_b32 s{T0}, s{T0}, 8
s_add_u32 s{T0}, s{T0}, {FLG}
v_and_b32 v26, 1, v1
v_lshlrev_b32 v26, 7, v26
s_lshl_b32 s{FS}, s{FS}, 3
s_lshl_b32 s{FCNT}, s{FCNT}, 3
s_lshl_b32 s{T1}, s{WI}, 3
s_add_u32 s{T1}, s{T1}, {86*8}
v_and_b32 v27, 7, v1
v_add_u32 v27, s{T1}, v27
v_and_b32 v28, 32, v1
v_lshl_add_u32 v27, v28, 3, v27
v_add_u32 v28, s{FS}, v1
v_cmp_gt_u32 vcc, s{FCNT}, v1
v_cndmask_b32 v27, v27, v28, vcc
v_lshlrev_b32 v27, 7, v27
s_mov_b32 s{SPIN}, 0
L_dpoll:
buffer_load_dword v47, v26, {srd(sWS)}, s{T0} offen sc1
s_add_u32 s{SPIN}, s{SPIN}, 1
s_cmp_gt_u32 s{SPIN}, 100000
s_cbranch_scc1 L_fdone
s_waitcnt vmcnt(0)
v_cmp_ne_u32 vcc, 1, v47
s_cmp_eq_u64 vcc, 0
s_cbranch_scc0 L_dpoll
s_mov_b32 exec_hi, 0xff
buffer_load_dword v28, v27, {srd(sWS)}, s{T2} offen sc1
s_add_u32 s{T2}, s{T2}, {HSTR}
buffer_load_dword v29, v27, {srd(sWS)}, s{T2} offen sc1
s_mov_b64 exec, -1''')
    e(f'''s_cmp_eq_u32 s{W_}, 0
s_cbranch_scc0 L_fdone
v_lshlrev_b32 v26, 7, v1
s_mov_b32 s{SPIN}, 0
L_fpoll:
buffer_load_dword v47, v26, {srd(sWS)}, s{HB} offen sc1
s_add_u32 s{SPIN}, s{SPIN}, 1
s_cmp_gt_u32 s{SPIN}, 100000
s_cbranch_scc1 L_fdone
s_waitcnt vmcnt(0)
v_cmp_ne_u32 vcc, 1, v47
s_cmp_eq_u64 vcc, 0
s_cbranch_scc0 L_fpoll
L_fdone:
s_barrier''')
    g.stamp('B12')
    steps=[]
    for vs in range(8,15):
        base=[B1,B2,B3][(vs-8)%3]
        if vs<12:
            comp=(vs-8)&1; blk=(vs-8)>>1
            for k in range(4): steps.append((ROT+k,(86+32*comp+4*blk)*1024,base+8*k))
            for k in range(2): steps.append((SOW,(2*(vs-8)+k)*1024,base+32+8*k))
        elif vs<14:
            for k in range(6): steps.append((SOW,(8+6*(vs-12)+k)*1024,base+8*k))
        else:
            for k in range(2): steps.append((SOW,(20+k)*1024,base+8*k))
    NR=8; AR=80
    def aload(n):
        sr,imm,_=steps[n]
        return f's_add_u32 s{T0}, s{sr}, {imm}\nbuffer_load_dwordx4 {v(AR+4*(n%NR),4)}, v46, {srd(sWS)}, s{T0} offen sc1'
    for n in range(NR): e(aload(n))
    e(f's_waitcnt vmcnt({NR})')
    e('v_lshlrev_b32 v42, 16, v42\nv_lshlrev_b32 v43, 16, v43')
    for dh in range(2):
        for i in range(4):
            r=BS+4*dh+i
            e(f'v_lshlrev_b32 v{r}, 16, v{r}\nv_sub_f32 v2, v{r}, v{4+2*i}\nv_mul_f32 v2, v2, v{5+2*i}\nv_fmac_f32 v{r}, v2, v{42+dh}')
    for j in range(1,4):
        e(f's_xor_b32 s{T1}, s{W_}, {j}\ns_mul_i32 s{T1}, s{T1}, 6144\ns_add_u32 s{T1}, s{T1}, {(j-1)*2048}\nv_add_u32 v{3+j}, s{T1}, v15')
    e(f's_mul_i32 s{T1}, s{W_}, 6144\nv_add_u32 v3, s{T1}, v15')
    g.stamp('p2go')
    rd=[]
    for n in range(38):
        ph=n//6
        if n%6==0:
            assert not rd
            if n==6 or n==30: e('s_waitcnt lgkmcnt(0)\ns_barrier')
            elif n>=12: e('s_waitcnt lgkmcnt(0)')
            if 1<=ph<=4: rd=vread(10+ph,[B1,B2,B3][(ph-1)%3])
            g.stamp(f'q{n}')
        out=min(38,n+NR)-n-1
        if n==37: e(f's_cmp_ge_u32 s{TQ}, 2\ns_cbranch_scc1 L_skip37')
        e(f's_waitcnt vmcnt({out})')
        A=v(AR+4*(n%NR),4); Bq=steps[n][2]
        for dh in range(2):
            a=ACC0+16*dh; c='0' if n==0 else v(a,16)
            e(f'v_mfma_f32_32x32x16_bf16 {v(a,16)}, {A}, {v(Bq+4*dh,4)}, {c}')
            for _ in range(2):
                if rd: e(rd.pop(0))
        if n+NR<38: e(aload(n+NR))
    e('L_skip37:')
    g.stamp('p2end')
    e('s_nop 11')
    for dh in range(2):
        for j in range(1,4): e(f'ds_write_b128 v{3+j}, {v(ACC0+16*dh+4*j,4)} offset:{dh*1024}')
    for dh in range(2):
        for j in range(2): e(f'v_pk_add_f32 {v(BS+4*dh+2*j,2)}, {v(BS+4*dh+2*j,2)}, {v(ACC0+16*dh+2*j,2)}')
    e('s_waitcnt lgkmcnt(0)\ns_barrier')
    g.stamp('red')
    for dh in range(2):
        for k in range(3): e(f'ds_read_b128 {v(B1+12*dh+4*k,4)}, v3 offset:{k*2048+dh*1024}')
    osc=' '+opt.get('osc','sc1').replace('+',' ') if opt.get('osc','sc1')!='none' else ''
    for dh in range(2):
        e(f's_waitcnt lgkmcnt({3-3*dh})')
        for k in range(3):
            for j in range(2): e(f'v_pk_add_f32 {v(BS+4*dh+2*j,2)}, {v(BS+4*dh+2*j,2)}, {v(B1+12*dh+4*k+2*j,2)}')
        for i in range(4):
            if i==2: e(f's_mov_b32 s{T0}, 4096')
            e(f'buffer_store_dword v{BS+4*dh+i}, v44, {srd(sOUT)}, {"0" if i<2 else "s%d"%T0} offen offset:{dh*128+(i&1)*2048}{osc}')
    if opt.get('stamps'):
        e('s_waitcnt vmcnt(0)'); g.stamp('done')
        e(f'''s_waitcnt lgkmcnt(0)
s_cmp_eq_u32 s{TQ}, {opt.get('stq',0)}
s_cbranch_scc0 L_end
s_add_u32 s{sX}, s66, {STAMP}
s_addc_u32 s{sX+1}, s67, 0
s_lshl_b32 s{T0}, s2, 1
s_add_u32 s{T0}, s{T0}, s{NH}
s_lshl_b32 s{T0}, s{T0}, 7
v_mov_b32 v2, 0''')
        prs=[100]+G.POOL[:len(g.names())]
        if 'diag' in opt:
            p=prs[(['start']+g.names()).index(opt['diag'])]
            e(f's_cmp_eq_u32 s{NH}, 0\ns_cbranch_scc0 L_end\nL_dg:\ns_memrealtime s[72:73]\ns_waitcnt lgkmcnt(0)\ns_sub_u32 s72, s72, s{p}\ns_cmp_lt_u32 s72, 6000\ns_cbranch_scc1 L_dg')
            prs=[]
        for i,p in enumerate(prs): e(f'v_mov_b32 v4, s{p}\nv_mov_b32 v5, s{p+1}\nbuffer_store_dwordx2 v[4:5], v2, {srd(sX)}, s{T0} offen offset:{8*i}')
    e('L_end:\ns_endpgm')
    if opt.get('stamps'): g.L.insert(0,'; STAMPS start,'+','.join(g.names()))
    body=hz.fix('\n'.join(g.L), verbose=opt.get('v',0))
    ref=open('parallel_sum__ssm_conv_s5__geglu_ffn__prompt.s.ref').read() if opt.get('final') else ''
    cm_=''.join(l+'\n' for l in ref.split('\n') if l.startswith(';') and '@launch' not in l and 'Override' not in l and 'grid=ceil' not in l)
    return cm_+header([(NAME,256,512,163840)])+kstart(NAME)+body+'\n'+RODATA+kd(NAME,256,256)

if __name__=='__main__':
    out=sys.argv[1]; opt={}
    for a in sys.argv[2:]:
        k,_,val=a.partition('='); opt[k]=int(val) if val.lstrip('-').isdigit() else (val or 1)
    open(out,'w').write(build(opt))
```

```python
import re
TRANS=('v_exp_f32','v_log_f32','v_rcp_f32','v_rsq_f32','v_sqrt_f32','v_sin_f32','v_cos_f32','v_rcp_iflag_f32')
def regs(tok):
    tok=tok.strip()
    tok=tok.lstrip('-')
    m=re.fullmatch(r'abs\((.*)\)',tok) or re.fullmatch(r'\|(.*)\|',tok)
    if m: tok=m.group(1)
    m=re.fullmatch(r'([vsa])(\d+)',tok)
    if m: return {(m.group(1),int(m.group(2)))}
    m=re.fullmatch(r'([vsa])\[(\d+):(\d+)\]',tok)
    if m: return {(m.group(1),i) for i in range(int(m.group(2)),int(m.group(3))+1)}
    if tok=='vcc': return {('s','vcc')}
    if tok in('vcc_lo','vcc_hi'): return {('s','vcc')}
    if tok=='exec': return {('s','exec')}
    if tok=='m0': return {('s','m0')}
    return set()
class I:
    def __init__(s,line):
        s.line=line
        t=line.split(';')[0].strip()
        s.op=None; s.w=set(); s.r=set(); s.kind=None; s.srcC=set(); s.srcAB=set(); s.data=set(); s.ws=1
        if not t or t.endswith(':') or t.startswith('.'):
            s.ws=0; return
        p=t.split(None,1); op=p[0]; s.op=op
        rest=p[1] if len(p)>1 else ''
        ops=[]; d=0; cur=''
        for ch in rest:
            if ch=='[': d+=1
            if ch==']': d-=1
            if ch==',' and d==0: ops.append(cur); cur=''
            else: cur+=ch
        if cur.strip(): ops.append(cur)
        mods=''
        if ops:
            last=ops[-1].strip().split(None,1)
            ops[-1]=last[0]; mods=last[1] if len(last)>1 else ''
        ops=[o.strip() for o in ops]
        s.ops=ops; s.mods=mods
        R=[regs(o) for o in ops]
        base=re.sub(r'_(e32|e64|dpp|sdwa)$','',op); s.base=base
        U=lambda L: set().union(*L) if L else set()
        if op=='s_nop': s.kind='nop'; s.ws=int(ops[0],0)+1; return
        if op.startswith('v_mfma'):
            s.kind='mfma'; s.w=R[0]; s.srcAB=R[1]|R[2]; s.srcC=R[3]; s.r=s.srcAB|s.srcC
            s.passes=8 if '32x32x16' in op else 4 if '16x16x32' in op else None
            assert s.passes
        elif op.startswith('v_'):
            s.kind='valu'
            if op.startswith('v_pk_') and re.search(r'op_sel:\[\d,1',mods): raise Exception('pk op_sel on src1 is unsafe next to MFMA: '+line)
            s.dpp=('_dpp' in op) or ('row_' in mods) or ('quad_perm' in mods)
            if base.startswith('v_cmp'):
                s.w=R[0]; s.r=U(R[1:])
            elif base in('v_permlane16_swap_b32','v_permlane32_swap_b32','v_swap_b32'):
                s.w=R[0]|R[1]; s.r=R[0]|R[1]
            elif base in('v_add_co_u32','v_sub_co_u32'):
                s.w=R[0]|R[1]; s.r=U(R[2:])
            elif base in('v_addc_co_u32','v_subb_co_u32'):
                s.w=R[0]|R[1]; s.r=U(R[2:])
            elif base in('v_fmac_f32','v_dot2c_f32_bf16','v_writelane_b32'):
                s.w=R[0]; s.r=U(R)
            else:
                s.w=R[0]; s.r=U(R[1:])
                if s.dpp: s.r|=R[0]
        elif op.startswith('ds_'):
            s.kind='ds'
            if op.startswith('ds_read') or op.startswith('ds_bpermute') or op.startswith('ds_swizzle'): s.w=R[0]; s.r=U(R[1:])
            else: s.r=U(R)
        elif op.startswith('buffer_') or op.startswith('global_'):
            s.kind='vmem'
            s.lds=' lds' in (' '+mods) or 'load_lds' in op
            if op in('buffer_inv','buffer_wbl2'): pass
            elif s.lds: s.r=U(R)|{('s','m0')}
            elif 'load' in op: s.w=R[0]; s.r=U(R[1:])
            else:
                s.r=U(R)
                if op.startswith('buffer_'): s.data=R[0]
                else: s.data=R[1]
                if not re.search(r'x[34]$',op): s.data=set()
                if 'atomic' in op and 'sc0' in mods: s.w=R[0]
        elif op.startswith('s_'):
            s.kind='salu'
            if op.startswith('s_cmp') or op.startswith('s_cbranch') or op in('s_branch','s_waitcnt','s_barrier','s_endpgm','s_setprio','s_sleep') or op.startswith('s_bitcmp'):
                s.r=U(R)
            else:
                s.w=R[0] if R else set(); s.r=U(R[1:])
                if 'saveexec' in op: s.w|={('s','exec')}
        else: raise Exception('unknown op '+line)
def need(p,c):
    n=0
    isv=lambda S:{x for x in S if x[0] in 'va'}
    iss=lambda S:{x for x in S if x[0]=='s'}
    if p.kind=='valu':
        wv=isv(p.w); wsg=iss(p.w)
        if c.kind=='mfma' and wv&c.r: n=max(n,2)
        if c.kind=='valu':
            if c.base.startswith('v_permlane') and wv&c.r: n=max(n,2)
            if c.dpp and wv&c.r: n=max(n,2)
            if c.base in('v_readlane_b32','v_readfirstlane_b32') and wv&c.r: n=max(n,1)
            if p.base in TRANS and wv&c.r: n=max(n,1)
            if p.base.startswith('v_dot2') and wv&(c.r|c.w) and not (c.base==p.base and not (wv&(regs(c.ops[1])|regs(c.ops[2])))): n=max(n,3)
            rs=set(c.r)
            if c.base=='v_cndmask_b32' and len(c.ops)==3: rs|={('s','vcc')}
            if wsg&rs:
                n=max(n,4 if c.base in('v_readlane_b32','v_writelane_b32') else 2)
        if p.base.startswith('v_dot2') and c.kind in('vmem','ds','mfma') and wv&c.r: n=max(n,3)
        if c.kind=='vmem' and wsg&c.r: n=max(n,5)
        if c.kind=='salu' and wsg&c.r: n=max(n,1)
        if ('s','exec') in wsg: raise Exception('valu exec write')
    if p.kind=='salu':
        if ('s','m0') in p.w and c.kind=='vmem' and getattr(c,'lds',False): n=max(n,1)
    if p.kind=='mfma':
        big={4:8,8:12}[p.passes]
        if c.kind=='mfma':
            if p.w&c.srcAB: n=max(n,big)
            if p.w&c.srcC and not (p.w==c.srcC and p.passes==c.passes): n=max(n,{4:6,8:10}[p.passes])
            if p.w&c.w and not (p.w&c.srcC): n=max(n,big)
        elif c.kind in('valu','vmem','ds'):
            if p.w&(c.r|c.w): n=max(n,big)
            if c.kind=='valu' and isv(p.srcC)&c.w: n=max(n,{4:3,8:7}[p.passes])
    if p.kind=='vmem' and p.data and c.kind in('valu','mfma','ds','vmem') and p.data&c.w: n=max(n,2)
    return n
def commute(ln):
    m=re.match(r'(\s*v_pk_(?:fma|mul)_f32 v\[\d+:\d+\]), (v\[\d+:\d+\]), (v\[\d+:\d+\])(.*?)op_sel:\[0,1(.*?)op_sel_hi:\[(\d),(\d)(.*)$',ln)
    if not m: return ln
    return f'{m.group(1)}, {m.group(3)}, {m.group(2)}{m.group(4)}op_sel:[1,0{m.group(5)}op_sel_hi:[{m.group(7)},{m.group(6)}{m.group(8)}'
def fix(text, verbose=False):
    lines=[commute(l) for l in text.split('\n')]; out=[]; hist=[]; added=0
    for ln in lines:
        c=I(ln)
        if c.op and c.kind!='nop':
            dist=0; req=0
            for p in reversed(hist):
                k=need(p,c)-dist
                if k>req: req=k
                dist+=p.ws
                if dist>=20: break
            if req>0:
                nop=I(f'  s_nop {req-1}'); out.append(nop.line+'   ; hz'); hist.append(nop); added+=req
        out.append(ln)
        if c.op:
            hist.append(c)
            if c.op in('s_branch','s_endpgm'): hist=[]
    if verbose: print('hazard nops added (states):',added)
    return '\n'.join(out)
```

```python
import sys, struct, math
from asmlib import *
import hz
from gen_v3 import F, LOG2E, BIG, G, cmul, cfma, mix, mksrd, fsplit, v, srd
XW=24576; WB=98304; WSS=16640; GOFF=4096; UOFF=4096+6144+128
SCR=WB+3*WSS; SP=SCR+12288; ZF=SP+1024
HSTR=150*1024; ST_M=0xA00000; ST_R=0xA08000; FLG=0xA20000; EOFF=0xA60000; WSSZ=0xA80000
STAMP=0x8000000
sX,sW,sWS,sDBG,sCR,sCI,sDN,sE,sOUT=4,8,12,16,20,24,28,32,68
FS=3; WI=72; CB=73; FCNT=74; FB=75
W_,TQ,NH,RB,CT,ROT,WSTEP,XL,WL=76,77,78,79,80,81,82,83,84
RB2,TQ2,DQ,SOX,SOW,T0,T1,T2,F0,HB,XR,WQ=85,86,87,88,89,90,91,92,93,94,95,96
SPIN=97; HA=98; V14=99
FBR=[0,1,54]; CB2=55; R4=60; R3=61
G.POOL=[38,40,42,44,46,48,50,56,58,36,64,62]
DX=16; DW=20; DC=12; DF=14; PTX=24; PTW=27
XA=22; SA=24; TA=26; S1=27; S2=28
GC=32; SFS=[4,8,32,36]; SACC=40; SELS=224
ACC0=48; PR=80; PI=96
B1,B2,B3=112,160,208
FR=160; MR=224; RS=240
L64,WG,WH,L32,WSEL,KAP,CP,EA,NI=144,146,148,150,152,154,156,158,159
G.DEF='B0,B8,b_pub,gdone,Eok,flag,go,ph1,Z1,Z23,p2end,done'

def build(opt):
    g=G(opt); e=g.e
    PF=opt.get('pf',1)
    e(f'''s_cmp_ge_u32 s2, 256
s_cbranch_scc1 L_end
s_load_dwordx16 s[36:51], s[0:1], 0
s_load_dwordx16 s[52:67], s[0:1], 64
s_getpc_b64 s[72:73]
L_pc0:
v_lshlrev_b32 v2, 7, v0
v_min_u32 v2, L_end-L_pc0, v2
v_lshrrev_b32 v3, 6, v0
v_and_b32 v1, 63, v0
v_readfirstlane_b32 s{W_}, v3
global_load_dword v9, v2, s[72:73]
s_and_b32 s{RB2}, s2, 7
s_lshr_b32 s{WI}, s2, 3
s_and_b32 s{TQ2}, s{WI}, 3
s_lshr_b32 s{DQ}, s{WI}, 2''')
    if opt.get('stamps'): e(('s_memtime' if opt['stamps']==2 else 's_memrealtime')+' s[100:101]')
    e(f'''s_and_b32 s{T0}, s2, 1
s_lshl_b32 s{RB}, s{T0}, 2
s_add_u32 s{RB}, s{RB}, s{TQ2}
s_lshr_b32 s{T1}, s{RB2}, 1
s_lshl_b32 s{CT}, s{T1}, 3
s_add_u32 s{CT}, s{CT}, s{DQ}''')
    if opt.setdefault('jx',4): e(f's_xor_b32 s{CT}, s{CT}, {opt["jx"]}')
    if opt.get('dx'): e(f's_xor_b32 s{DQ}, s{DQ}, {opt["dx"]}')
    if opt.get('map')=='A':
        e(f's_mov_b32 s{RB}, s{RB2}\ns_lshl_b32 s{CT}, s{TQ2}, 3\ns_add_u32 s{CT}, s{CT}, s{DQ}\ns_xor_b32 s{CT}, s{CT}, {opt.get("jx",0)}')
    ra,rg,rr,rm,rc,cm=[int(x) for x in opt.get('rot','4.2.0.0.0.0').split('.')]
    e(f's_mul_i32 s{ROT}, s{T0}, {ra}\ns_mul_i32 s{T1}, s{T1}, {rg}\ns_add_u32 s{ROT}, s{ROT}, s{T1}')
    if rr: e(f's_and_b32 s{T0}, s{RB}, {rm}\ns_mul_i32 s{T0}, s{T0}, {rr}\ns_add_u32 s{ROT}, s{ROT}, s{T0}')
    if rc: e(f's_and_b32 s{T0}, s{CT}, {cm}\ns_mul_i32 s{T0}, s{T0}, {rc}\ns_add_u32 s{ROT}, s{ROT}, s{T0}')
    e(fsplit(CT,FS,FCNT,T0))
    e(f'''s_and_b32 s{TQ}, s{W_}, 3
s_lshr_b32 s{NH}, s{W_}, 2
v_lshrrev_b32 v4, 3, v1          ; q
v_and_b32 v5, 7, v1              ; pos
v_lshrrev_b32 v6, 2, v4
v_lshlrev_b32 v6, 4, v6
v_and_or_b32 v6, v4, 3, v6
s_lshl_b32 s{T0}, s{RB}, 2
s_add_u32 s{HB}, s{T0}, s{TQ}        ; rb*4+tq
s_lshl_b32 s{T0}, s{HB}, 6
s_lshl_b32 s{T1}, s{NH}, 3
s_add_u32 s{T1}, s{T1}, s{T0}
v_add_u32 v6, s{T1}, v6
v_lshlrev_b32 v6, 10, v6
v_lshrrev_b32 v7, 1, v4
v_xor_b32 v7, v5, v7
v_xor_b32 v8, 4, v7
v_lshl_add_u32 v{DX}, v7, 4, v6
v_lshl_add_u32 v{DX+1}, v8, 4, v6
v_add_u32 v{DX+1}, {32768-1024}, v{DX+1}
v_add_u32 v{DX+2}, 2048, v{DX}
v_add_u32 v{DX+3}, 2048, v{DX+1}
s_cmp_ge_u32 s{W_}, 5
s_cselect_b32 s{T1}, 5, 2
s_cselect_b32 s{T2}, {WB+128}, {0}
s_cselect_b32 s{WL}, 0, {WB}
s_add_u32 s{WL}, s{WL}, s{T2}
s_lshl_b32 s{T2}, s{W_}, 11
s_add_u32 s{WL}, s{WL}, s{T2}
s_sub_u32 s{T1}, s{W_}, s{T1}
s_lshl_b32 s{T1}, s{T1}, 7
s_lshl_b32 s{T2}, s{FS}, 5
s_lshl_b32 s{SOX}, s{FCNT}, 1
v_mov_b32 v0, 0x80000000''')
    for j in range(2):
        e(f'''v_add_u32 v6, s{T1}, v1
v_add_u32 v6, {64*j}, v6
v_mul_u32_u24 v10, 10923, v6
v_lshrrev_b32 v10, 16, v10
v_mul_u32_u24 v11, 6, v10
v_sub_u32 v11, v6, v11           ; c
v_lshrrev_b32 v6, 1, v10
v_xor_b32 v6, v6, v10
v_and_b32 v6, 4, v6
v_mul_u32_u24 v6, 3, v6
v_xor_b32 v10, v10, v6
v_mul_u32_u24 v10, 2752, v10
v_lshl_add_u32 v10, v11, 4, v10
v_add_u32 v10, s{T2}, v10
v_cmp_gt_u32 vcc, s{SOX}, v11
v_subrev_u32 v10, {1024*j}, v10
v_cndmask_b32 v{DW+j}, v0, v10, vcc''')
    e(f'''s_mul_i32 s{XR}, s{TQ}, {XW}
s_lshl_b32 s{T1}, s{NH}, 12
s_add_u32 s{XL}, s{XR}, s{T1}
s_mov_b32 s{WSTEP}, 176128
s_mov_b32 s{sW+2}, 1409024
s_mov_b32 s{sW+3}, 0x20000
s_mov_b32 s{sX+2}, 2097152
s_mov_b32 s{sX+3}, 0x20000
s_cmp_eq_u32 s{NH}, 1
s_cbranch_scc1 L_role1''')

    def slab(i):
        st=i%3
        L=[f's_add_u32 s{T0}, s{ROT}, {i}\ns_and_b32 s{T0}, s{T0}, 7\ns_lshl_b32 s{SOX}, s{T0}, 7\ns_add_u32 m0, s{WL}, {st*WSS}\ns_mul_i32 s{SOW}, s{T0}, s{WSTEP}\nbuffer_load_dwordx4 v{DW}, {srd(sW)}, s{SOW} offen lds']
        L.append(f'buffer_load_dwordx4 v{DW+1}, {srd(sW)}, s{SOW} offen offset:1024 lds\ns_add_u32 m0, s{XL}, {st*8192}')
        for j in range(4): L.append(f'buffer_load_dwordx4 v{DX+j}, {srd(sX)}, s{SOX} offen'+(f' offset:{1024*j}' if j else '')+' lds')
        return L
    def setup(nh):
        e(mksrd(sWS,66,67,WSSZ)); nd=0 if opt.get('nodma') else 1; e(mksrd(sCR,46,47,524288*nd)); e(mksrd(sCI,48,49,524288*nd)); e(mksrd(sDN,60,61,1409024*nd)); e(mksrd(sOUT,62,63,4194304))
        if nh==0:
            e(mksrd(sDBG,64,65,256))
            e(f's_lshl_b32 s{T0}, s{CT}, 12\ns_add_u32 s{T0}, s{T0}, {EOFF}\ns_add_u32 s{sE}, s66, s{T0}\ns_addc_u32 s{sE+1}, s67, 0\ns_mov_b32 s{sE+2}, 4096\ns_mov_b32 s{sE+3}, 0x20000')
        else:
            e(f's_lshl_b32 s{T0}, s{DQ}, 6\nv_add_u32 v6, s{T0}, v4\nv_lshlrev_b32 v6, 10, v6\nv_lshl_add_u32 v{DC}, v7, 4, v6\nv_lshl_add_u32 v{DC+1}, v8, 4, v6')
        a3,b3,a4,b4,m4=[int(x) for x in opt.get('rr','0.0.0.0.0').split('.')]
        rots=f'''s_mul_i32 s{R3}, s{DQ}, {a3}
s_mul_i32 s{T1}, s{TQ2}, {b3}
s_add_u32 s{R3}, s{R3}, s{T1}
s_mul_i32 s{T1}, s{R3}, 11
s_lshr_b32 s{T1}, s{T1}, 5
s_mul_i32 s{T1}, s{T1}, 3
s_sub_u32 s{R3}, s{R3}, s{T1}
s_mul_i32 s{R3}, s{R3}, 6
s_lshl_b32 s{T1}, s{R3}, 14
s_add_u32 s{FBR[0]}, s{FB}, s{T1}
s_add_u32 s{FBR[1]}, s{FBR[0]}, {6*16384}
s_cmp_eq_u32 s{R3}, 12
s_cselect_b32 s{FBR[1]}, s{FB}, s{FBR[1]}
s_add_u32 s{FBR[2]}, s{FBR[1]}, {6*16384}
s_cmp_eq_u32 s{R3}, 6
s_cselect_b32 s{FBR[2]}, s{FB}, s{FBR[2]}
s_mul_i32 s{R4}, s{DQ}, {a4}
s_mul_i32 s{T1}, s{TQ2}, {b4}
s_add_u32 s{R4}, s{R4}, s{T1}
s_and_b32 s{R4}, s{R4}, {m4}
s_and_b32 s{T1}, s{R4}, 2
s_lshl_b32 s{T1}, s{T1}, 6
s_add_u32 s{CB}, s{CB}, s{T1}
s_xor_b32 s{CB2}, s{CB}, 128
s_bitcmp1_b32 s{R4}, 0
s_cselect_b32 s{sCR}, s48, s46
s_cselect_b32 s{sCR+1}, s49, s47
s_cselect_b32 s{sCI}, s46, s48
s_cselect_b32 s{sCI+1}, s47, s49'''
        e(f'''v_lshlrev_b32 v6, 1, v4
v_and_b32 v6, 4, v6
v_xor_b32 v6, v5, v6
v_lshlrev_b32 v6, 4, v6
v_lshl_add_u32 v6, v4, 10, v6
s_lshl_b32 s{T0}, s{DQ}, 7
v_add_u32 v{DF}, s{T0}, v6
s_mul_i32 s{F0}, s{TQ}, 22
s_cmp_eq_u32 s{TQ}, 3
s_cselect_b32 s{T0}, 1, 0
s_sub_u32 s{F0}, s{F0}, s{T0}
s_lshl_b32 s{FB}, s{F0}, 14
s_lshl_b32 s{CB}, s{TQ}, 8
{rots}
s_lshl_b32 s{WQ}, s{TQ}, 12
s_lshl_b32 s{T0}, s{T0}, 11
s_sub_u32 s{V14}, s{WQ}, s{T0}
s_add_u32 s{V14}, s{V14}, {SCR}
s_add_u32 s{WQ}, s{WQ}, {WB}
s_lshl_b32 s{HA}, s{HB}, 2
s_lshr_b32 s{T0}, s{CT}, 3
s_add_u32 s{HA}, s{HA}, s{T0}
s_lshl_b32 s{HA}, s{HA}, 8
s_add_u32 s{HA}, s{HA}, {FLG}
v_and_b32 v2, 15, v1
v_lshrrev_b32 v3, 4, v1
v_bfe_u32 v6, v1, 1, 3
v_xor_b32 v6, v3, v6
v_lshlrev_b32 v6, 4, v6
v_lshl_add_u32 v6, v2, 7, v6
v_add_u32 v{XA}, s{XR}, v6
v_xor_b32 v{XA+1}, 64, v{XA}
v_bfe_u32 v10, v1, 2, 3
v_lshrrev_b32 v11, 5, v1
v_lshl_add_u32 v10, v11, 4, v10
v_mul_u32_u24 v10, 96, v10
v_and_b32 v11, 3, v1
v_lshl_add_u32 v10, v11, 3, v10
v_add_u32 v{TA}, {WB+GOFF}, v10
s_lshr_b32 s{T0}, s{TQ}, 1
s_and_b32 s{T1}, s{TQ}, 1
s_mul_i32 s{T2}, s{T0}, 3072
s_mul_i32 s{SPIN}, s{T1}, {UOFF-GOFF}
s_add_u32 s{T2}, s{T2}, s{SPIN}''')
        if nh==0:
            e(f'''v_add_u32 v{S2}, s{T2}, v{TA}
v_add_u32 v{SA}, {WB}, v6
v_xor_b32 v{SA+1}, 64, v{SA}
s_lshl_b32 s{T0}, s{T0}, 6
s_lshl_b32 s{T1}, s{T1}, 11
v_xor_b32 v{S1}, s{T0}, v{SA}
v_add_u32 v{S1}, s{T1}, v{S1}''')
        if nh==0:
            e('v_mov_b32 v3, 0x3f803f80')
            for f_ in range(4):
                e(f'v_cmp_eq_u32 vcc, {f_}, v2')
                for k in range(4): e(f'v_cndmask_b32 v{SELS+4*f_+k}, 0, v3, vcc')
        else:
            e(traddr(0,3)+[f'v_add_u32 v{PTX}, s{XR}, v0',f'v_add_u32 v{PTX+1}, s{XR}, v3',f'v_add_u32 v{PTW}, s{WQ}, v0',f'v_add_u32 v{PTW+1}, s{WQ}, v3'])
        e(f'v_and_b32 v29, 12, v1\nv_lshlrev_b32 v29, 2, v29\nv_and_or_b32 v29, v1, 3, v29\nv_lshl_add_u32 v29, v29, 4, s{V14}\nv_and_b32 v30, 48, v1\nv_lshl_add_u32 v31, v30, 2, s{V14}\nv_add_u32 v30, {SP}, v30')
        e('v_lshlrev_b32 v15, 4, v1')
        if opt.get('stamps'):
            for r in G.POOL: e(f's_mov_b64 s[{r}:{r+1}], 0')
    def vgroup(m0, vregs, sr, sb, imm, n):
        L=[]
        for j in range(n):
            t=f's_add_u32 m0, {m0}\n' if j==0 else ''
            t+=f's_add_u32 s{T0}, s{sb}, {imm+j*(8192-1024)}\nbuffer_load_dwordx4 v{vregs[j%len(vregs)]}, {srd(sr)}, s{T0} offen'+(f' offset:{1024*j}' if j else '')+' lds'
            L.append(t)
        return L
    def vx(vs,half):
        st=vs%3; m0=f's{XR}, {st*8192+half*4096}'
        if vs>=11:
            b=vs-11; return vgroup(m0,[DC,DC+1],sCI if b&1 else sCR,CB2 if b>>1 else CB,half*32768,4)
        return vgroup(m0,[DF],sDN,FBR[vs-8],half*32768,4)
    def vw(vs,half=None):
        st=vs%3
        if vs>=12: return vgroup(f's{WQ}, {st*WSS}',[DC,DC+1],sCI,CB2,(vs-12)*32768,4)
        fs,fb=(4,FBR[vs-8]) if vs<11 else (18,FB)
        if half is None: return vgroup(f's{WQ}, {st*WSS}',[DF],sDN,fb,fs*16384,4)
        return vgroup(f's{WQ}, {st*WSS+half*2048}',[DF],sDN,fb,(fs+half)*16384,2)
    def vhalf(vs,nh): return vw(vs,nh)+vx(vs,nh)
    def vfull(vs): return vx(vs,0)+vx(vs,1)+vw(vs)
    def traddr(t0,t1):
        return [f'v_bfe_u32 v{t0}, v1, 2, 2',f'v_lshrrev_b32 v{t1}, 5, v1',f'v_lshl_add_u32 v{t0}, v{t1}, 3, v{t0}',f'v_lshlrev_b32 v{t0}, 7, v{t0}',f'v_and_b32 v{t1}, 3, v1',f'v_lshl_add_u32 v{t0}, v{t1}, 3, v{t0}',
            f'v_bfe_u32 v{t1}, v1, 4, 1',f'v_lshl_add_u32 v{t0}, v{t1}, 5, v{t0}',f'v_bfe_u32 v{t1}, v1, 3, 1',f'v_lshl_add_u32 v{t0}, v{t1}, 6, v{t0}',f'v_xor_b32 v{t1}, 64, v{t0}']
    def trstep(base,areg,off):
        return [f'ds_read_b64_tr_b16 {v(base+dh*4+2*j,2)}, v{areg+dh} offset:{off+j*512}' for dh in range(2) for j in range(2)]
    def vread(vs, base):
        st=vs%3; L=[]
        for k in range(4): L+=trstep(base+8*k,PTX,st*8192+k*2048)
        for k in range(2): L+=trstep(base+32+8*k,PTW,st*WSS+k*2048)
        return L
    def gelu(acc, tb, tmp, soff, sg):
        L=[]; t=tmp
        G_=lambda i: v(acc+8*tb+2*i,2); U_=lambda i: v(acc+16+8*tb+2*i,2); T_=lambda i: v(t+2*i,2)
        cp=lambda i: v(GC+4*(2*tb+(i>>1)),2); rp=lambda i: v(GC+4*(2*tb+(i>>1))+2,2); o=acc+16+8*tb
        for i in range(4): L.append(f'v_pk_fma_f32 {G_(i)}, {v(sg+2*(i&1),2)}, {rp(i)}, {G_(i)} op_sel:[0,1,0] op_sel_hi:[1,1,1]')
        for i in range(4): L.append(f'v_pk_mul_f32 {T_(i)}, {G_(i)}, {G_(i)}')
        for i in range(4): L.append(f'v_pk_fma_f32 {T_(i)}, {T_(i)}, {cp(i)}, {cp(i)} op_sel:[0,1,0] op_sel_hi:[1,1,0]')
        for i in range(4): L.append(f'v_pk_mul_f32 {T_(i)}, {T_(i)}, {G_(i)}')
        for i in range(8): L.append(f'v_exp_f32 {v(t+i)}, {v(t+i)}')
        for i in range(4): L.append(f'v_pk_fma_f32 {U_(i)}, {v(sg+4+2*(i&1),2)}, {rp(i)}, {U_(i)} op_sel:[0,1,0] op_sel_hi:[1,1,1]')
        for i in range(4): L.append(f'v_pk_fma_f32 {T_(i)}, {T_(i)}, {rp(i)}, {rp(i)} op_sel_hi:[1,0,0]')
        for i in range(8): L.append(f'v_rcp_f32 {v(t+i)}, {v(t+i)}')
        for i in range(4): L.append(f'v_pk_mul_f32 {G_(i)}, {G_(i)}, {U_(i)}')
        for i in range(4): L.append(f'v_pk_mul_f32 {G_(i)}, {G_(i)}, {T_(i)}')
        for i in (0,2,1,3): L.append(f'v_cvt_pk_bf16_f32 {v(o+i)}, {v(acc+8*tb+2*i)}, {v(acc+8*tb+2*i+1)}')
        L.append(f's_add_u32 s{T1}, s{soff}, {tb*HSTR}\nv_permlane16_swap_b32 v{o}, v{o+2}\nv_permlane16_swap_b32 v{o+1}, v{o+3}\nbuffer_store_dwordx4 {v(o,4)}, v15, {srd(sWS)}, s{T1} offen sc1')
        return L
    def sread(sb, d, t):
        return [f'ds_read_b128 {v((d,t)[q_>>1]+4*(q_&1),4)}, v30 offset:{256*q_+64*(1+sb)}' for q_ in range(4)]
    def sadd(d,t): return [f'v_pk_add_f32 {v(d+2*k,2)}, {v(d+2*k,2)}, {v(t+2*k,2)}' for k in range(4)]
    def setflag(ssm):
        t=f's_add_u32 s{T1}, s{HA}, 128\n'
        if not ssm: t+=f's_and_b32 s{T0}, s{CT}, 7\ns_cmp_lt_u32 s{T0}, 6\ns_cselect_b32 s{T1}, s{HA}, s{T1}\n'
        return t+f'v_mov_b32 v2, 1\nv_mov_b32 v3, 0\ns_mov_b64 exec, 1\nbuffer_atomic_add v2, v3, {srd(sWS)}, s{T1} offen sc1\ns_mov_b64 exec, -1'
    def hb(nh):
        if nh==1: return '\n'.join(f's_lshr_b32 s{FBR[k]}, s{FBR[k]}, 4\ns_add_u32 s{FBR[k]}, s{FBR[k]}, s{SOX}' for k in range(3))
        t=f's_lshl_b32 s{T0}, s{TQ}, 13\ns_add_u32 s{SOX}, s{SOX}, s{T0}'
        for b_,r_ in enumerate(FBR+[CB2]):
            t+=f'\ns_xor_b32 s{T0}, s{R4}, {b_}\ns_and_b32 s{T1}, s{T0}, 1\ns_lshl_b32 s{T1}, s{T1}, 15\ns_and_b32 s{T0}, s{T0}, 2\ns_lshl_b32 s{T0}, s{T0}, 11\ns_add_u32 s{T0}, s{T0}, s{T1}\ns_add_u32 s{r_}, s{SOX}, s{T0}'
        return t
    def p2base(nh):
        return f'''s_lshl_b32 s{T0}, s{RB2}, 2
s_add_u32 s{T0}, s{T0}, s{TQ2}
s_mul_i32 s{SOX}, s{T0}, {2*HSTR}
s_lshl_b32 s{HB}, s{T0}, 2
s_add_u32 s{HB}, s{HB}, s{TQ}
s_lshl_b32 s{HB}, s{HB}, 8
s_add_u32 s{HB}, s{HB}, {FLG+128*(1-nh)}
s_lshl_b32 s{T0}, s{F0}, 10
s_add_u32 s{SOW}, s{SOX}, s{T0}
{hb(nh)}
v_mov_b32 v0, 0'''
    pld=lambda r: f'buffer_load_dword v{r}, v0, {srd(sWS)}, s{HB} offen sc1'
    def pollchk(lbl, r, n):
        g.cold.append(f'''{lbl}:
s_mov_b32 s{SPIN}, 0
{lbl}_1:
s_sleep {opt.get("slp",1)}
{pld(r)}
s_add_u32 s{SPIN}, s{SPIN}, 1
s_waitcnt vmcnt(0)
v_cmp_gt_u32 vcc, 12, v{r}
s_cmp_gt_u32 s{SPIN}, 100000
s_cselect_b64 vcc, 0, vcc
s_cmp_eq_u64 vcc, 0
s_cbranch_scc0 {lbl}_1
s_branch {lbl}_ok''')
        return f's_waitcnt vmcnt({n})\nv_cmp_gt_u32 vcc, 12, v{r}\ns_cmp_eq_u64 vcc, 0\ns_cbranch_scc0 {lbl}\n{lbl}_ok:'

    X=lambda b,t4: FR+32*b+4*t4
    Wf=lambda b,k: FR+32*b+16+4*k
    for nh in range(2):
        ACC1=112 if nh==0 else 80
        if nh==0:
            e(f'''s_lshl_b32 s{T1}, s{CT}, 4
v_add_u32 v6, s{T1}, v4
v_lshlrev_b32 v6, 10, v6
v_lshl_add_u32 v10, v7, 4, v6
v_lshl_add_u32 v11, v8, 4, v6
v_add_u32 v11, 7168, v11
s_cmp_lt_u32 s{W_}, 2
s_cselect_b64 vcc, -1, 0
s_cselect_b32 s{WSTEP}, 128, s{WSTEP}
s_cselect_b32 s{sW+2}, 524288, s{sW+2}
v_cndmask_b32 v{DW}, v{DW}, v10, vcc
v_cndmask_b32 v{DW+1}, v{DW+1}, v11, vcc
s_lshl_b32 s{T0}, s{RB}, 5
s_add_u32 s{T0}, s{T0}, s{CT}
s_lshl_b32 s{T0}, s{T0}, 2
s_add_u32 s{WI}, s{T0}, s{TQ}
s_lshl_b32 s{T2}, s{WI}, 11
v_and_b32 v2, 31, v1
v_lshlrev_b32 v2, 4, v2
v_and_b32 v3, 32, v1
v_lshl_add_u32 v2, v3, 5, v2
v_and_b32 v3, 15, v1
s_lshl_b32 s{T1}, s{CT}, 5
v_lshl_add_u32 v3, v3, 1, s{T1}
s_waitcnt lgkmcnt(0)
s_mov_b32 s{sX}, s36
s_mov_b32 s{sX+1}, s37
s_cmp_eq_u32 s{W_}, 0
s_cselect_b32 s{sW}, s42, s44
s_cselect_b32 s{sW+1}, s43, s45
s_cmp_ge_u32 s{W_}, 2
s_cselect_b32 s{sW}, s56, s{sW}
s_cselect_b32 s{sW+1}, s57, s{sW+1}
buffer_load_dwordx4 v[112:115], v2, {srd(sX)}, s{T2} offen
buffer_load_dwordx4 v[116:119], v2, {srd(sX)}, s{T2} offen offset:512''')
            e(slab(0))
            e('global_load_ushort v244, v3, s[38:39]\nglobal_load_ushort v245, v3, s[40:41]\nglobal_load_ushort v246, v3, s[50:51]')
            setup(0)
            e(f's_lshl_b32 s{T0}, s{TQ}, 2\ns_add_u32 s{T0}, s{T0}, {ZF}\nv_mov_b32 v2, s{T0}\nv_mov_b32 v3, 0\nds_write_b32 v2, v3')
            def allred(r,t):
                for k in (8,4,2,1): e(f'v_add_f32_dpp {v(r)}, {v(r)}, {v(r)} row_ror:{k} row_mask:0xf bank_mask:0xf')
                e(f'v_mov_b32 {v(t)}, {v(r)}\nv_permlane16_swap_b32 {v(t)}, {v(r)}\nv_add_f32 {v(r)}, {v(r)}, {v(t)}')
            e('s_waitcnt vmcnt(9)')
            g.stamp('rowld')
            for i in range(8): e(f'v_lshlrev_b32 v{120+2*i}, 16, v{112+i}\nv_and_b32 v{121+2*i}, 0xffff0000, v{112+i}')
            e('v_pk_add_f32 v[136:137], v[120:121], v[122:123]')
            for i in range(2,8): e(f'v_pk_add_f32 v[136:137], v[136:137], v[{120+2*i}:{121+2*i}]')
            e('v_add_f32 v136, v136, v137')
            allred(136,137)
            e(f'v_mul_f32 v136, {F(1/512)}, v136')
            for i in range(8): e(f'v_pk_add_f32 v[{120+2*i}:{121+2*i}], v[{120+2*i}:{121+2*i}], v[136:137] op_sel_hi:[1,0] neg_lo:[0,1] neg_hi:[0,1]')
            e('v_pk_mul_f32 v[138:139], v[120:121], v[120:121]')
            for i in range(1,8): e(f'v_pk_fma_f32 v[138:139], v[{120+2*i}:{121+2*i}], v[{120+2*i}:{121+2*i}], v[138:139]')
            e('v_add_f32 v138, v138, v139')
            allred(138,139)
            e(f'''v_mul_f32 v138, {F(1/512)}, v138
v_cvt_pk_bf16_f32 v136, v136, v138
v_and_b32 v138, 0xffff0000, v136
v_lshlrev_b32 v136, 16, v136
v_add_f32 v138, {F(1e-5)}, v138
v_cvt_pk_bf16_f32 v138, v138, v138
v_lshlrev_b32 v138, 16, v138
v_sqrt_f32 v138, v138
v_cvt_pk_bf16_f32 v138, v138, v138
v_lshlrev_b32 v138, 16, v138          ; sd
v_mul_f32 v122, v138, v138            ; R = sd^2
v_rcp_f32 v138, v138                  ; r
v_sub_f32 v123, 0, v136               ; -m
v_and_b32 v2, 31, v1
v_mul_f32 v120, {F(-2*math.sqrt(2/math.pi)*LOG2E)}, v138
v_mul_f32 v121, v138, v138
v_mul_f32 v125, v123, v138
v_mul_f32 v121, {F(0.044715)}, v121
v_lshrrev_b32 v3, 5, v1
v_mul_f32 v121, v121, v120
s_lshl_b32 s{T1}, s{CT}, 5
s_sub_u32 s{T1}, s{T1}, s{HB}
s_add_u32 s{T1}, s{T1}, 31
s_lshl_b32 s{T1}, s{T1}, 7
s_add_u32 s{T1}, s{T1}, {EOFF-64}
v_lshl_add_u32 v140, v3, 4, v2
v_lshl_add_u32 v140, v140, 2, s{T1}
v_mov_b32 v141, -1
s_and_b32 s{T1}, s{CT}, 7
s_cselect_b32 s{T1}, {BIG}, s{HA}
v_lshl_add_u32 v142, v3, 7, s{T1}
v_cmp_gt_u32 vcc, 7, v2
v_cndmask_b32 v140, v140, v142, vcc
v_cndmask_b32 v141, v141, 0, vcc
s_lshr_b32 s{T1}, s{WI}, 5
s_lshl_b32 s{T1}, s{T1}, 9
s_and_b32 s{T2}, s{WI}, 31
s_lshl_b32 s{T2}, s{T2}, 3
s_add_u32 s{T1}, s{T1}, s{T2}
s_add_u32 s{T1}, s{T1}, {ST_R-1024}
v_lshl_add_u32 v142, v2, 6, v3
v_lshl_add_u32 v142, v142, 2, s{T1}
v_cmp_gt_u32 vcc, 6, v2
v_cndmask_b32 v140, v140, v142, vcc
v_cndmask_b32 v141, v141, v125, vcc
s_lshl_b32 s{T1}, s{WI}, 5
s_add_u32 s{T1}, s{T1}, {ST_M}
v_lshl_add_u32 v142, v3, 2, v2
v_lshl_add_u32 v142, v142, 2, s{T1}
v_cmp_gt_u32 vcc, 5, v2
v_cndmask_b32 v141, v141, v138, vcc
v_cmp_gt_u32 vcc, 4, v2
v_cndmask_b32 v140, v140, v142, vcc
v_cndmask_b32 v141, v141, v123, vcc
v_cmp_gt_u32 vcc, 3, v2
v_cndmask_b32 v141, v141, v122, vcc
v_cmp_gt_u32 vcc, 2, v2
v_cndmask_b32 v141, v141, v121, vcc
v_cmp_gt_u32 vcc, 1, v2
v_cndmask_b32 v141, v141, v120, vcc
s_mov_b32 exec_lo, 0xffff007f
s_mov_b32 exec_hi, 0xffff007f
buffer_store_dword v141, v140, {srd(sWS)}, 0 offen sc1
s_mov_b64 exec, -1''')
            e(slab(1))
            W2PF=f'''s_cmp_eq_u32 s{TQ}, 0
s_cselect_b32 s{sOUT}, s{sCR}, s{sCI}
s_cselect_b32 s{sOUT+1}, s{sCR+1}, s{sCI+1}
s_lshl_b32 s{T1}, s2, 11
s_mul_i32 s{T2}, s2, {43*128}
s_cmp_ge_u32 s{TQ}, 2
s_cselect_b32 s{sOUT}, s{sDN}, s{sOUT}
s_cselect_b32 s{sOUT+1}, s{sDN+1}, s{sOUT+1}
s_cselect_b32 s{T1}, s{T2}, s{T1}
s_cselect_b32 s{T2}, 21, 15
v_min_u32 v13, s{T2}, v1
s_cmp_eq_u32 s{TQ}, 3
s_cselect_b32 s{T2}, {21*128}, 0
s_add_u32 s{T1}, s{T1}, s{T2}
v_lshlrev_b32 v13, 7, v13
buffer_load_dword v12, v13, {srd(sOUT)}, s{T1} offen'''
            LAM=f'''v_lshlrev_b32 v244, 16, v244
v_lshlrev_b32 v245, 16, v245
v_lshlrev_b32 v246, 16, v246
v_mul_f32 v246, {F(LOG2E)}, v246
v_exp_f32 v246, v246
v_cvt_pk_bf16_f32 v246, v246, v246
v_lshlrev_b32 v246, 16, v246
v_mul_f32 v247, v246, v244
v_mul_f32 v248, v246, v245
v_mul_f32 v247, {F(LOG2E)}, v247
v_mul_f32 v248, 0.15915494, v248'''.split('\n')
            def cpow(dr,di,n):
                LAM.extend([f'v_mul_f32 v249, {n}, v247',f'v_mul_f32 v250, {n}, v248','v_rndne_f32 v251, v250','v_exp_f32 v249, v249','v_sub_f32 v250, v250, v251','v_cos_f32 v251, v250','v_sin_f32 v250, v250',f'v_mul_f32 {v(dr)}, v249, v251',f'v_mul_f32 {v(di)}, v249, v250'])
            cpow(PR,PI,'1.0')
            for j in range(1,16):
                a=(j-1)//2; b=j-1-a
                LAM.extend([f'v_mul_f32 {v(PR+j)}, {v(PR+a)}, {v(PR+b)}',f'v_mul_f32 {v(PI+j)}, {v(PR+a)}, {v(PI+b)}',f'v_fma_f32 {v(PR+j)}, -{v(PI+a)}, {v(PI+b)}, {v(PR+j)}',f'v_fmac_f32 {v(PI+j)}, {v(PI+a)}, {v(PR+b)}'])
            cpow(L32,L32+1,F(32.0)); cpow(L64,L64+1,F(64.0))
            LAM.extend(['v_and_b32 v252, 16, v1','v_cvt_f32_u32 v252, v252']); cpow(WSEL,WSEL+1,'v252')
            LAM.extend(['v_and_b32 v252, 48, v1','v_cvt_f32_u32 v252, v252']); cpow(WG,WG+1,'v252')
            LAM.extend([f'v_mul_f32 v252, {F(32.0)}, v252']); cpow(254,255,'v252')
            LAM.extend(['v_mul_f32 v249, v244, v244','v_fmac_f32 v249, v245, v245','v_rcp_f32 v249, v249',f'v_add_f32 v250, -1.0, v{PR}',f'v_mul_f32 v{KAP}, v250, v244',f'v_fmac_f32 v{KAP}, v{PI}, v245',
                f'v_mul_f32 v{KAP+1}, v{PI}, v244',f'v_fma_f32 v{KAP+1}, -v250, v245, v{KAP+1}','v_add_f32 v249, v249, v249',f'v_mul_f32 v{KAP}, v249, v{KAP}',f'v_mul_f32 v{KAP+1}, v249, v{KAP+1}'])
            LAM.extend(cmul(WH,KAP,254))
            LAM.extend([f'v_and_b32 v{EA}, 15, v1',f'v_lshlrev_b32 v{EA}, 3, v{EA}',f'v_sub_f32 v{NI}, 0, v{PI}'])
            if PF==9: e(W2PF)
            e(f's_waitcnt vmcnt({8 if PF==9 else 7})\ns_barrier')
        else:
            e(f'''.p2align 3
L_role1:
s_waitcnt lgkmcnt(0)
s_mov_b32 s{sX}, s36
s_mov_b32 s{sX+1}, s37
s_cmp_ge_u32 s{W_}, 5
s_cselect_b32 s{sW}, s58, s56
s_cselect_b32 s{sW+1}, s59, s57''')
            e(slab(0)); setup(1); e(slab(1))
            LAM=[]
            e('s_waitcnt vmcnt(6)\ns_barrier')
        e(f's_mul_i32 s{HB}, s{HB}, {2*HSTR}')
        if opt.get('nost'): e(f's_mov_b32 s{HB}, {BIG}')
        if opt.get('prio')==nh: e('s_setprio 1')
        subs=[('S',0,0,ACC0),('S',0,1,ACC0+16),('F',0,0,ACC1),('F',0,1,ACC1+16)] if nh==0 else [('F',1,0,ACC0),('F',1,1,ACC0+16),('F',2,0,ACC1),('F',2,1,ACC1+16)]
        def reads(n):
            i,u=divmod(n,2); st=i%3; b=n&1; L=[]
            def wr(k):
                kind,sb,pt,_=subs[k]
                if kind=='S': L.append(f'ds_read_b128 {v(Wf(b,k),4)}, v{SA+u} offset:{st*WSS+pt*2048}')
                else:
                    for j in range(2): L.append(f'ds_read_b64_tr_b16 {v(Wf(b,k)+2*j,2)}, v{TA} offset:{st*WSS+(32*u+8*j)*96+32*sb+pt*(UOFF-GOFF)}')
            wr(0)
            for t4 in range(4): L.append(f'ds_read_b128 {v(X(b,t4),4)}, v{XA+u} offset:{st*8192+t4*2048}')
            wr(1); wr(2); wr(3)
            if u==0:
                if nh==0:
                    SF=SFS
                    L.append(f'ds_read_b128 {v(SF[0],4)}, v{S1} offset:{st*WSS}')
                    for q_ in range(3):
                        for j in range(2): L.append(f'ds_read_b64_tr_b16 {v(SF[1+q_]+2*j,2)}, v{S2} offset:{st*WSS+8*j*96+32*q_}')

            return L
        def mf(k,t4,xo,wo,first=False):
            a=subs[k][3]+4*t4; c='0' if first else v(a,4)
            if subs[k][0]=='S': return f'v_mfma_f32_16x16x32_bf16 {v(a,4)}, {xo}, {wo}, {c}'
            return f'v_mfma_f32_16x16x32_bf16 {v(a,4)}, {wo}, {xo}, {c}'
        g.stamp('B0')
        e(reads(0))
        slots=[int(x) for x in opt.get(f'ds{nh}','13.15.21.23.29.31').split('.')]
        slots7=[int(x) for x in opt.get(f'dl{nh}',['3.7.11.15.19.23','13.15.21.23.29.31'][nh]).split('.')]
        pend=slab(2); xtra=1 if (PF==9 and nh==0) else 0
        for q_ in slots:
            if q_<16: e(pend.pop(0))
        for n in range(16):
            i,u=divmod(n,2); b=n&1
            post=[]
            if u==1:
                assert not pend
                bi=i+1
                if LAM:
                    k=(len(LAM)+(4-bi))//(5-bi)
                    e(LAM[:k]); del LAM[:k]
                g.stamp(f'p{bi}')
                if bi==6 and nh==0:
                    e(f's_waitcnt vmcnt(6)\nv_cmp_gt_u32 vcc, 4, v2\ns_cmp_eq_u64 vcc, 0\ns_cbranch_scc0 L_poll\nL_pollok:')
                    g.cold.append(f'''L_poll:
s_mov_b32 s{SPIN}, 0
L_poll1:
buffer_load_dword v2, v3, {srd(sDBG)}, 0 offen sc1
s_add_u32 s{SPIN}, s{SPIN}, 1
s_cmp_gt_u32 s{SPIN}, 100000
s_cbranch_scc1 L_pollok
s_waitcnt vmcnt(0)
v_cmp_gt_u32 vcc, 4, v2
s_cmp_eq_u64 vcc, 0
s_cbranch_scc0 L_poll1
s_branch L_pollok''')
                e(f's_waitcnt vmcnt({0 if (bi==8 and nh==0) else 6+xtra}) lgkmcnt(0)')
                g.stamp(f'w{bi}')
                e('s_barrier')
                g.stamp(f'B{bi}')
                xtra=0
                if nh==0:
                    if bi==1:
                        post.append(f's_and_b32 s{T1}, s2, 63\ns_lshl_b32 s{T1}, s{T1}, 2\ns_cmp_eq_u32 s{W_}, 0\ns_cselect_b32 s{T1}, s{T1}, {BIG}\nv_mov_b32 v2, 1\nv_mov_b32 v3, 0\ns_mov_b64 exec, 1\nbuffer_atomic_add v2, v3, {srd(sDBG)}, s{T1} offen sc1\ns_mov_b64 exec, -1'); xtra+=1
                    if PF==bi: post.append(W2PF); xtra+=1
                    l2p=opt.get('l2p',0)
                    if l2p and l2p<=bi<l2p+4:
                        k=bi-l2p
                        post.append(f's_lshr_b32 s{T1}, s2, 3\ns_lshl_b32 s{T1}, s{T1}, 2\ns_add_u32 s{T1}, s{T1}, s{TQ}\ns_lshl_b32 s{T1}, s{T1}, 12\nv_lshlrev_b32 v13, 7, v1\ns_mov_b64 exec, 0xffff\nbuffer_load_dword v12, v13, {srd(sCI if k&1 else sCR)}, s{T1} offen offset:{2048*(k>>1)}\ns_mov_b64 exec, -1'); xtra+=1
                    if l2p and bi==l2p+4:
                        post.append(f's_lshr_b32 s{T1}, s2, 3\ns_lshl_b32 s{T1}, s{T1}, 11\ns_add_u32 s{T1}, s{T1}, s{FB}\ns_add_u32 s{T1}, s{T1}, {18*16384}\nv_lshlrev_b32 v13, 7, v1\ns_mov_b64 exec, 0xffff\nbuffer_load_dword v12, v13, {srd(sDN)}, s{T1} offen\ns_mov_b64 exec, -1'); xtra+=1
                    if bi==5:
                        post.append(f'v_lshlrev_b32 v3, 2, v1\nbuffer_load_dword v2, v3, {srd(sDBG)}, 0 offen sc1'); xtra=0
                lp=opt.get('lp',0)
                if nh==1 and lp and lp<=bi<lp+5:
                    k=bi-lp
                    post.append(f's_cmp_lt_u32 s{FCNT}, 2\ns_cbranch_scc1 L_lp{k}\nL_lpr{k}:')
                    t=f'L_lp{k}:\nv_lshlrev_b32 v2, 7, v1\ns_lshl_b32 s{T1}, s{TQ2}, 2\ns_add_u32 s{T1}, s{T1}, s{TQ}\n'
                    if k<4:
                        t+=f's_lshl_b32 s{T1}, s{T1}, 15\ns_add_u32 s{T1}, s{T1}, {k*8192}\nbuffer_load_dword v3, v2, {srd(sCR)}, s{T1} offen\nbuffer_load_dword v4, v2, {srd(sCI)}, s{T1} offen\n'
                    else:
                        t+=f's_lshl_b32 s{T1}, s{TQ2}, 14\ns_add_u32 s{T1}, s{T1}, s{FB}\ns_add_u32 s{T1}, s{T1}, {18*16384}\nbuffer_load_dword v3, v2, {srd(sDN)}, s{T1} offen\ns_add_u32 s{T1}, s{T1}, 8192\nbuffer_load_dword v4, v2, {srd(sDN)}, s{T1} offen\n'
                    g.cold.append(t+f's_branch L_lpr{k}')
                if bi==6 and nh==0:
                    post.append(f'''s_lshl_b32 s{T2}, s{RB}, 2
s_add_u32 s{T2}, s{T2}, s{TQ}
s_lshl_b32 s{T1}, s{T2}, 10
s_add_u32 s{T1}, s{T1}, {ST_M}
s_mov_b32 m0, s{V14}
s_lshl_b32 s{T2}, s{T2}, 9
buffer_load_dwordx4 v15, {srd(sWS)}, s{T1} offen sc1 lds
s_add_u32 s{T2}, s{T2}, {ST_R-1024}
s_mov_b32 exec_hi, 0
buffer_load_dwordx4 v15, {srd(sWS)}, s{T2} offen offset:1024 sc1 lds
s_mov_b64 exec, -1''')
                if bi+2<8: pend=slab(bi+2)
                elif bi+2<10: pend=vhalf(bi+2,nh)
            else:
                e('s_waitcnt lgkmcnt(0)')
            R=reads(n+1) if n<15 else []
            M=[mf(k,t4,v(X(b,t4),4),v(Wf(b,k),4),n==0) for k in range(4) for t4 in range(4)]
            if n==15: break
            EX=[]
            GCR=[f'ds_read_b128 {v(GC+4*k,4)}, v29 offset:{64*k}' for k in range(4)]
            if n==12 and nh==0:
                EX=['v_and_b32 v0, 3, v1',f'v_lshl_add_u32 v0, v0, 6, v30',f's_lshl_b32 s{T1}, s{TQ}, 8\nv_add_u32 v0, s{T1}, v0']
            if n==14 and nh==0:
                R=['']*6+[f's_mov_b32 exec_lo, 0x000f000f\ns_mov_b32 exec_hi, 0x000f000f\nds_write_b128 v0, {v(SACC,4)}\ns_mov_b64 exec, -1']+R
                R+=[f'ds_read_b128 {v(RS+4*k,4)}, v31 offset:{1024+16*k}' for k in range(4)]+[f'ds_read_b128 {v(MR+4*k,4)}, v31 offset:{1280+16*k}' for k in range(4)]+GCR
            sl_=slots7 if n>=13 else slots
            if u==0 and nh==0:
                e([f'v_mfma_f32_16x16x32_bf16 {v(SACC,4)}, {v(SFS[k],4)}, {v(SELS+4*k,4)}, {"0" if (n==0 and k==0) else v(SACC,4)}' for k in range(4)])
            rp_=2 if len(R)>16 else 1
            for mi in range(16):
                e(M[mi])
                for _ in range(rp_):
                    if R: e(R.pop(0))
                if mi==0: e(post)
                if EX: e(EX.pop(0))
                if (16*(1-u)+mi) in sl_ and pend: e(pend.pop(0))
            assert not R and not EX
        if opt.get('prio')==nh: e('s_setprio 0')
        def foff(reg,sb):
            return f's_add_u32 s{T2}, s{FS}, {sb}\ns_lshl_b32 s{T2}, s{T2}, 10\ns_add_u32 s{T2}, s{T2}, s{HB}\ns_cmp_gt_u32 s{FCNT}, {sb}\ns_cselect_b32 s{reg}, s{T2}, {BIG}'
        def run_groups(groups, loads, ring, areg, hooks, mid=[]):
            NR=len(ring); dest=lambda i_: ring[i_%NR]
            def ld(i_):
                sr,imm=loads[i_]
                return [f's_add_u32 s{T0}, s{sr}, {imm}',f'buffer_load_dwordx4 {v(dest(i_),4)}, v{areg}, {srd(sWS)}, s{T0} offen sc1']
            for i_ in range(NR): e(ld(i_))
            issued=NR
            e(mid)
            il=[]
            for gi,grp in enumerate(groups):
                g.stamp(f'q{gi}')
                h=hooks.get(gi)
                if h:
                    e(h[0]); il=il+list(h[1])
                for k,(a,li,Bq,first) in enumerate(grp):
                    nx=ld(li+NR) if li+NR<len(loads) else ['','']
                    if k%2==0: e(f's_waitcnt vmcnt({issued-1-li})')
                    e(f'v_mfma_f32_32x32x16_bf16 {v(a,16)}, {v(dest(li),4)}, {v(Bq,4)}, {"0" if first else v(a,16)}')
                    e(nx[k%2])
                    if k%2==1 and nx[1]: issued+=1
                    for _ in range(2):
                        if il: e(il.pop(0))
            e(il)
        TILE=lambda mh,dh: ACC0+32*mh+16*dh
        if nh==1:
            TMP=16; SG=4
            v14=vgroup(f's{V14}, 0',[DF],sDN,FB,20*16384,4)
            V=vfull(10); nb=opt.get('nb',5)
            rd=vread(8,B1)
            e(mix(rd[:2*nb],V[:nb],2))
            e(mix(mix(M,V[nb:],2),rd[2*nb:]+GCR+sread(1,SG,TMP),1))
            g.stamp('loopend')
            e(foff(SOX,1)); e(foff(SOW,2))
            e('s_waitcnt vmcnt(12) lgkmcnt(8)')
            g.stamp('w9')
            BASE=f"""s_lshl_b32 s{T0}, s{RB2}, 2
s_add_u32 s{WL}, s{T0}, s{TQ2}
s_and_b32 s{T1}, s{TQ}, 1
s_lshl_b32 s{T1}, s{T1}, 5
s_and_b32 s{T0}, s{TQ}, 2
s_lshl_b32 s{T0}, s{T0}, 1
s_add_u32 s{XL}, s{T0}, s{T1}
s_lshl_b32 s{T0}, s{WL}, 6
s_add_u32 s{T0}, s{T0}, s{XL}
v_lshrrev_b32 v2, 5, v1
v_lshl_add_u32 v26, v2, 4, s{T0}          ; row0 (h)
v_bfe_u32 v3, v1, 3, 2
v_add_u32 v3, v3, v26
v_and_b32 v2, 7, v1
v_lshlrev_b32 v2, 4, v2
v_lshl_add_u32 v2, v3, 10, v2
s_lshl_b32 s{T1}, s{DQ}, 7
s_add_u32 s{T2}, s{T1}, {8192-1024}
s_lshl_b32 s{T0}, s{WL}, 9
s_add_u32 s{T0}, s{T0}, {ST_R-2048}
v_and_b32 v3, 31, v1
v_lshl_add_u32 v3, v3, 1, s{T1}
s_mov_b32 m0, s{XR}
s_waitcnt lgkmcnt(0)
buffer_load_dwordx4 v2, {srd(sX)}, s{T1} offen lds
buffer_load_dwordx4 v2, {srd(sX)}, s{T2} offen offset:1024 lds
s_mov_b32 exec_hi, 0
buffer_load_dwordx4 v15, {srd(sWS)}, s{T0} offen offset:2048 sc1 lds
s_mov_b64 exec, -1
global_load_ushort v29, v3, s[52:53]
global_load_ushort v31, v3, s[52:53] offset:64
v_lshlrev_b32 v3, 1, v3
v_lshl_add_u32 v26, v26, 11, v3"""
            BADDR=f"""v_bfe_u32 v4, v1, 2, 2
v_lshrrev_b32 v5, 5, v1
v_lshl_add_u32 v4, v5, 2, v4
v_lshlrev_b32 v4, 7, v4
v_and_b32 v6, 3, v1
v_lshl_add_u32 v4, v6, 3, v4
v_and_b32 v6, 16, v1
v_lshl_add_u32 v4, v6, 1, v4
v_add_u32 v4, s{XR}, v4
s_lshl_b32 s{T1}, s{XL}, 2
s_add_u32 s{T1}, s{T1}, s{XR}
v_lshl_add_u32 v5, v5, 6, s{T1}
"""
            BR=[f'ds_read_b64_tr_b16 {v(16+2*tl,2)}, v4 offset:{(tl>>1)*1024+(tl&1)*64}' for tl in range(4)]+[f'ds_read_b128 {v(32+8*mh+4*k,4)}, v5 offset:{2048+32*mh+256*k}' for mh in range(2) for k in range(2)]
            V14B=[f's_cmp_ge_u32 s{TQ}, 2\ns_cbranch_scc1 L_no14']+vgroup(f's{V14}, 2048',[DF],sDN,FB,21*16384,2)+['L_no14:']
            S2R=sread(2,SG,ACC0)+['s_waitcnt lgkmcnt(0)']+sadd(SG,ACC0)
            G0,G1,G2,G3=gelu(ACC0,0,TMP,SOX,SG),gelu(ACC0,1,TMP,SOX,SG),gelu(ACC1,0,TMP,SOW,SG),gelu(ACC1,1,TMP,SOW,SG)
            pc=opt.get('pace',6); od=opt.get('ord',1)
            gp=f's_setprio {opt.get("gprio",1)}'
            BO=8192
            BASE=BASE.replace(f's_mov_b32 m0, s{XR}',f's_add_u32 m0, s{XR}, {BO}')
            BR=[f'ds_read_b64_tr_b16 {v(16+2*tl,2)}, v4 offset:{BO+(tl>>1)*1024+(tl&1)*64}' for tl in range(4)]+[f'ds_read_b128 {v(32+8*mh+4*k,4)}, v5 offset:{BO+2048+32*mh+256*k}' for mh in range(2) for k in range(2)]
            V=vfull(11); nq=opt.get('nq',8)
            e(mix(vread(9,B2),V[:nq],3))
            g.stamp('c0')
            e(f's_waitcnt vmcnt({nq})')
            e(mix(vread(10,B3),V[nq:],4))
            g.stamp('ch1')
            e(gp)
            V=vfull(12); n0,n1,n2=[int(x) for x in opt.get('gd','0.0.0').split('.')]
            sp=lambda L,X_: mix(L,X_,max(1,len(L)//(len(X_)+1))) if X_ else L
            e('s_waitcnt lgkmcnt(15)')
            e(sadd(SG,TMP))
            e(sp(G0,V[:n0])); e(sp(G1,V[n0:n0+n1])); e(S2R)
            assert (n0+n1)%4==0
            e(BASE); e(sp(G2,V[n0+n1:n0+n1+n2])); e(G3)
            g.stamp('gdone')
            V=V[n0+n1+n2:]+vx(13,1)+vw(13)+v14[:2]
            e('s_setprio 0'); e(BADDR); e(f's_waitcnt vmcnt({n2+2})'); e(BR)
            ZZ=[f'v_mov_b32 v{ACC0+16*tl+k}, 0' for tl in range(3) for k in range(4,16)]
            nf=opt.get('nf',6)
            e(mix(ZZ,V[:nf],4))
            e(f's_waitcnt vmcnt({nf})'); e(setflag(False))
            g.stamp('flag')
            e(p2base(1))
            BB=[f's_lshl_b32 s{T1}, s{TQ}, 7\nv_xor_b32 v11, s{T1}, v15','v_lshlrev_b32 v8, 16, v29','v_lshlrev_b32 v9, 16, v31','v_mov_b32 v10, v26']+[f'v_mov_b32 v{ACC0+48+k}, 0' for k in range(4,16)]
            for mh in range(2):
                for dh in range(2):
                    for i in range(4):
                        r=TILE(mh,dh)+i; xr=16+2*(2*mh+dh)+(i>>1)
                        BB+=[f'v_lshlrev_b32 v{r}, 16, v{xr}' if i%2==0 else f'v_and_b32 v{r}, 0xffff0000, v{xr}',f'v_fma_f32 v2, v{r}, v{32+8*mh+i}, v{36+8*mh+i}',f'v_fmac_f32 v{r}, v2, v{8+dh}']
            e('s_waitcnt lgkmcnt(0)')
            assert nf%4==0 or True
            V=V[nf:]; npl_=opt.get('pp',8)
            k4=(-(n2+nf))%4
            V=V[:k4]+['\n'.join(V14B)]+V[k4:]+vx(13,0)
            V=V[:len(V)-npl_]+[pld(7)]+V[len(V)-npl_:]
            assert V.index(pld(7))>k4
            e(sp(BB,V))
            g.stamp('chores')
            e(pollchk('L_fp1',7,npl_))
            g.stamp('go')
            e(f's_setprio {opt.get("p2prio",1)}')
            loads=[(FBR[s_//6],(s_%6)*1024+mh*HSTR) for s_ in range(18) for mh in range(2)]
            order=[s_ for s_ in range(18) for mh in range(2)]
            groups=[[(TILE(mh,dh),2*s_+mh,B1+8*s_+4*dh,False) for mh in range(2) for dh in range(2)] for s_ in range(18)]
            run_groups(groups,loads,[16+4*k for k in range(opt.get('nr1',8))],11,{0:([],['',f's_lshl_b32 s{T1}, s{TQ}, 2\ns_add_u32 s{T1}, s{T1}, {ZF}\nv_mov_b32 v2, s{T1}\nv_mov_b32 v3, 1\nds_write_b32 v2, v3'])})
            g.stamp('ph1')
            e('s_setprio 0')
            XS=112
            for j in range(1,4):
                e(f's_xor_b32 s{T1}, s{TQ}, {j}\ns_mul_i32 s{T1}, s{T1}, {XW}\ns_add_u32 s{T1}, s{T1}, {(j-1)*4096}\nv_add_u32 v{3+j}, s{T1}, v15')
            e(f'v_add_u32 v7, s{XR}, v15\nv_add_u32 v8, s{WQ}, v15')
            e('s_barrier')
            g.stamp('Z1')
            for j in range(1,4):
                for tl in range(4): e(f'ds_write_b128 v{3+j}, {v(ACC0+16*tl+4*j,4)} offset:{tl*1024}')
            e('s_waitcnt lgkmcnt(0)\ns_barrier')
            g.stamp('Z23')
            osc=' sc1'
            def addq(r,srcs,pk):
                for q_ in srcs:
                    if pk:
                        for j in range(2): e(f'v_pk_add_f32 {v(r+2*j,2)}, {v(r+2*j,2)}, {v(q_+2*j,2)}')
                    else:
                        for j in range(4): e(f'v_add_f32 v{r+j}, v{r+j}, v{q_+j}')
            def outst(mh,dh):
                for i in range(4):
                    if i%2==0: e(f's_mov_b32 s{T0}, {mh*16384+i*2048}')
                    e(f'buffer_store_dword v{TILE(mh,dh)+i}, v10, {srd(sOUT)}, s{T0} offen offset:{dh*128+(i&1)*2048}{osc}')
            for dh in range(2):
                for j in range(3): e(f'ds_read_b128 {v(XS+28*dh+4*j,4)}, v7 offset:{j*4096+dh*1024}')
                for k in range(4): e(f'ds_read_b128 {v(XS+28*dh+12+4*k,4)}, v7 offset:{16384+k*2048+dh*1024}')
            for dh in range(2):
                e(f's_waitcnt lgkmcnt({7-7*dh})')
                addq(TILE(0,dh),[XS+28*dh+4*k for k in range(7)],False); outst(0,dh)
            for dh in range(2):
                for j in range(3): e(f'ds_read_b128 {v(XS+12*dh+4*j,4)}, v7 offset:{j*4096+(2+dh)*1024}')
            e('s_waitcnt lgkmcnt(0)')
            for dh in range(2): addq(TILE(1,dh),[XS+12*dh+4*k for k in range(3)],False)
            e('s_barrier')
            g.stamp('p2end')
            for dh in range(2):
                for k in range(4): e(f'ds_read_b128 {v(XS+16*dh+4*k,4)}, v8 offset:{dh*WSS+k*1024}')
            for dh in range(2):
                e(f's_waitcnt lgkmcnt({4-4*dh})')
                addq(TILE(1,dh),[XS+16*dh+4*k for k in range(4)],True); outst(1,dh)
        else:
            Xr=ACC0; Yr=ACC0+16
            e('s_setprio 2')
            SG=16; SS=12
            e(f'v_and_b32 v2, 15, v1\nv_lshlrev_b32 v2, 2, v2\nv_add_u32 v2, {SP}, v2')
            rd=[f'ds_read_b32 v{4+q_}, v2 offset:{256*q_}' for q_ in range(4)]+sread(0,SG,24)
            e(mix(M,rd,1))
            g.stamp('loopend')
            Z,T,P,Q=4,6,8,10
            e(foff(SOX,0))
            e(f's_lshl_b32 s{T0}, s{RB}, 2\ns_add_u32 s{T0}, s{T0}, s{TQ}\ns_sub_u32 s{T0}, 31, s{T0}\ns_lshl_b32 s{SOW}, s{T0}, 7')
            e(f's_waitcnt lgkmcnt(0)\nv_add_f32 v{SS}, v4, v6\nv_add_f32 v{SS+1}, v5, v7')
            npl=opt.get('npl',8)
            def scl(j): return f'v_mul_f32 v{Xr+j}, v{Xr+j}, v{RS+j}\nv_mul_f32 v{Yr+j}, v{Yr+j}, v{RS+j}\nv_fmac_f32 v{Xr+j}, v{MR+j}, v{SS}\nv_fmac_f32 v{Yr+j}, v{MR+j}, v{SS+1}'
            for j in range(16):
                if j<npl: e(scl(j))
                elif j==npl:
                    for i in range(npl//2,8):
                        xx=v(Xr+2*i,2); yy=v(Yr+2*i,2)
                        e(f'v_pk_mul_f32 {xx}, {xx}, {v(RS+2*i,2)}\nv_pk_mul_f32 {yy}, {yy}, {v(RS+2*i,2)}\nv_pk_fma_f32 {xx}, {v(MR+2*i,2)}, {v(SS,2)}, {xx} op_sel_hi:[1,0,1]\nv_pk_fma_f32 {yy}, {v(MR+2*i,2)}, {v(SS,2)}, {yy} op_sel:[0,1,0] op_sel_hi:[1,1,1]')
                if j: e(f'v_fmac_f32 v{Xr+j}, v{PR}, v{Xr+j-1}\nv_fmac_f32 v{Yr+j}, v{PR}, v{Yr+j-1}\nv_fmac_f32 v{Xr+j}, v{NI}, v{Yr+j-1}\nv_fmac_f32 v{Yr+j}, v{PI}, v{Xr+j-1}')
            g.stamp('a_scan')
            e(f'v_mov_b32 v{T}, v{Xr+15}\nv_mov_b32 v{T+1}, v{Yr+15}\nv_mov_b32 v{Z}, 0\nv_mov_b32 v{Z+1}, 0\nv_permlane16_swap_b32 v{Z}, v{T}\nv_permlane16_swap_b32 v{Z+1}, v{T+1}')
            e(cfma(P,(PR+15,PI+15),Z,(Xr+15,Yr+15)))
            e(f'v_mov_b32 v{Q}, v{P}\nv_mov_b32 v{Q+1}, v{P+1}\nv_mov_b32 v{T}, 0\nv_mov_b32 v{T+1}, 0\nv_permlane16_swap_b32 v{Q}, v{P}\nv_permlane16_swap_b32 v{Q+1}, v{P+1}')
            e(f'v_permlane32_swap_b32 v{T}, v{P}\nv_permlane32_swap_b32 v{T+1}, v{P+1}')
            e(cfma(P,L32,T,P))
            e(f'''v_min_u32 v{P}, -2, v{P}
v_min_u32 v{P+1}, -2, v{P+1}
s_mov_b32 exec_lo, 0
s_mov_b32 exec_hi, 0xffff0000
buffer_store_dwordx2 {v(P,2)}, v{EA}, {srd(sE)}, s{SOW} offen sc1
s_mov_b64 exec, -1''')
            g.stamp('b_pub')
            e(sadd(SG,24))
            e(gelu(ACC1,0,24,SOX,SG)+gelu(ACC1,1,24,SOX,SG)); g.stamp('gdone')
            e('s_setprio 0')
            ER=[RS+2*k for k in range(8)]
            e(f'v_and_b32 v2, 48, v1\nv_lshl_add_u32 v{EA}, v2, 6, v{EA}\ns_add_u32 s{SOW}, s{SOW}, 128')
            eld='\n'.join(f'buffer_load_dwordx2 {v(ER[u_],2)}, v{EA}, {srd(sE)}, s{SOW} offen offset:{128*u_} sc1' for u_ in range(8))
            e(cfma(Z,WSEL,T,Z)+cmul(CP,KAP,Z))
            kp=v(KAP,2)
            for i in range(8):
                xx=v(Xr+2*i,2); yy=v(Yr+2*i,2); tt=v(4+2*(i&1),2)
                e([f'v_pk_mul_f32 {tt}, {xx}, {kp} op_sel:[0,1] op_sel_hi:[1,1] neg_lo:[0,1] neg_hi:[0,1]',f'v_pk_mul_f32 {xx}, {xx}, {kp} op_sel_hi:[1,0]',
                     f'v_pk_fma_f32 {xx}, {yy}, {kp}, {xx} op_sel:[0,1,0] op_sel_hi:[1,1,1] neg_lo:[0,1,0] neg_hi:[0,1,0]',f'v_pk_fma_f32 {yy}, {yy}, {kp}, {tt} op_sel_hi:[1,0,1] neg_lo:[0,1,0] neg_hi:[0,1,0]'])
            SL=16
            e(f'''v_and_b32 v0, 1, v1
v_lshlrev_b32 v0, 4, v0
v_mov_b32 v2, 0x3f80
v_lshlrev_b32 v0, v0, v2
v_bfe_u32 v2, v1, 2, 2
v_lshrrev_b32 v3, 4, v1
v_cmp_eq_u32 vcc, v2, v3
v_and_b32 v2, 2, v1
v_mov_b32 v{SL}, 0
v_cndmask_b32 v0, 0, v0, vcc
v_cmp_eq_u32 vcc, 0, v2
v_mov_b32 v{SL+1}, 0
v_mov_b32 v{SL+4}, 0
v_cndmask_b32 v{SL+2}, 0, v0, vcc
v_cndmask_b32 v{SL+3}, v0, 0, vcc
v_mov_b32 v{SL+5}, 0
s_add_u32 s{T2}, s{CT}, 86
s_lshl_b32 s{T2}, s{T2}, 10
s_add_u32 s{T2}, s{T2}, s{HB}''')
            chk='\n'.join([f'v_max3_u32 v0, v{ER[0]}, v{ER[0]+1}, v{ER[1]}',f'v_max3_u32 v4, v{ER[1]+1}, v{ER[2]}, v{ER[2]+1}']+[f'v_max3_u32 v{(0,4)[u_&1]}, v{ER[u_]}, v{ER[u_]+1}, v{(0,4)[u_&1]}' for u_ in range(3,8)]+['v_max_u32 v0, v0, v4','v_cmp_eq_u32 vcc, -1, v0','s_cmp_eq_u64 vcc, 0'])
            e(eld)
            e('s_waitcnt vmcnt(8)'); e(setflag(False)); g.stamp('flag0')
            e(f's_waitcnt vmcnt(1)\n{chk}\ns_cbranch_scc0 L_epoll\nL_eok:')
            g.cold.append(f'''L_epoll:
s_mov_b32 s{SPIN}, 0
L_epoll1:
s_sleep {opt.get('eslp',4)}
{eld}
s_add_u32 s{SPIN}, s{SPIN}, 1
s_cmp_gt_u32 s{SPIN}, 100000
s_cbranch_scc1 L_eok
s_waitcnt vmcnt(0)
{chk}
s_cbranch_scc0 L_epoll1
s_branch L_eok''')
            g.stamp('Eok')
            for u_ in range(6,-1,-1): e(cfma(ER[u_],L64,ER[u_+1],ER[u_]))
            e(cmul(4,WH,ER[0]))
            for sw in ('16','32'):
                e(f'v_mov_b32 v6, v4\nv_mov_b32 v7, v5\nv_permlane{sw}_swap_b32 v6, v4\nv_permlane{sw}_swap_b32 v7, v5\nv_add_f32 v4, v6, v4\nv_add_f32 v5, v7, v5')
            e(cfma(CP,WG,4,CP))
            cp=v(CP,2)
            g.stamp('c_carry')
            for comp,R_,D_ in ((0,Xr,112),(1,Yr,128)):
                for i in range(8):
                    rr_=v(R_+2*i,2); pr=v(PR+2*i,2); pi=v(PI+2*i,2)
                    if comp==0: e(f'v_pk_fma_f32 {rr_}, {pr}, {cp}, {rr_} op_sel_hi:[1,0,1]\nv_pk_fma_f32 {rr_}, {pi}, {cp}, {rr_} op_sel:[0,1,0] op_sel_hi:[1,1,1] neg_lo:[0,1,0] neg_hi:[0,1,0]')
                    else: e(f'v_pk_fma_f32 {rr_}, {pr}, {cp}, {rr_} op_sel:[0,1,0] op_sel_hi:[1,1,1] neg_lo:[0,1,0] neg_hi:[0,1,0]\nv_pk_fma_f32 {rr_}, {pi}, {cp}, {rr_} op_sel_hi:[1,0,1] neg_lo:[0,1,0] neg_hi:[0,1,0]')
            for comp,R_,D_ in ((0,Xr,112),(1,Yr,128)):
                for i in range(8): e(f'v_cvt_pk_bf16_f32 v{R_+i}, v{R_+2*i}, v{R_+2*i+1}')
                for tb in range(2):
                    for ab in range(2): e(f'v_mfma_f32_16x16x32_bf16 {v(D_+8*tb+4*ab,4)}, {v(R_+4*tb,4)}, {v(SL+2-2*ab,4)}, 0')
            for comp,R_,D_ in ((0,Xr,112),(1,Yr,128)):
                for i in range(8): e(f'v_cvt_pk_bf16_f32 v{R_+8+i}, v{D_+2*i}, v{D_+2*i+1}')
                for tb in range(2):
                    o=R_+8+4*tb
                    e(f'v_permlane16_swap_b32 v{o}, v{o+2}\nv_permlane16_swap_b32 v{o+1}, v{o+3}')
                    e(f's_add_u32 s{T1}, s{T2}, {comp*32768+tb*HSTR}\nbuffer_store_dwordx4 {v(o,4)}, v15, {srd(sWS)}, s{T1} offen sc1')
            g.stamp('c_st')
            TV=144
            e(['v_and_b32 v2, 31, v1','v_lshrrev_b32 v3, 5, v1','v_bfe_u32 v0, v1, 1, 3','v_xor_b32 v0, v3, v0','v_lshlrev_b32 v0, 4, v0','v_lshl_add_u32 v0, v2, 7, v0',f'v_add_u32 v4, s{XR}, v0',f'v_add_u32 v8, s{WQ}, v0'])
            for k in range(1,4): e(f'v_xor_b32 v{4+k}, {32*k}, v4\nv_xor_b32 v{8+k}, {32*k}, v8')
            e(traddr(0,3)+[f'v_add_u32 v12, s{WQ}, v0',f'v_add_u32 v13, s{WQ}, v3',f'v_add_u32 v{TV}, s{V14}, v0',f'v_add_u32 v{TV+1}, s{V14}, v3'])
            e(p2base(0))
            e(f's_lshl_b32 s{T1}, s{TQ}, 2\ns_add_u32 s{T1}, s{T1}, {ZF}\nv_mov_b32 v14, s{T1}')
            e('s_waitcnt vmcnt(0)'); e(setflag(True))
            g.stamp('flag')
            JB=112; RB_=160
            MID=[f'''s_mov_b32 s{SPIN}, 0
L_z0:
ds_read_b32 v2, v14
s_add_u32 s{SPIN}, s{SPIN}, 1
s_waitcnt lgkmcnt(0)
v_cmp_ne_u32 vcc, 1, v2
s_cmp_gt_u32 s{SPIN}, 1000000
s_cselect_b64 vcc, 0, vcc
s_cmp_eq_u64 vcc, 0
s_cbranch_scc0 L_z0''',g.st('Z0')]
            MID+=[f'ds_read_b128 {v(JB+8*k+4*dh,4)}, v{4+k} offset:{2*8192+dh*4096}' for k in range(4) for dh in range(2)]
            RD2=[f'ds_read_b128 {v(RB_+32*bl+8*k+4*dh,4)}, v{4+k} offset:{bl*8192+dh*4096}' for bl in range(2) for k in range(4) for dh in range(2)]
            RD2+=[f'ds_read_b128 {v(RB_+64+8*k+4*dh,4)}, v{8+k} offset:{dh*WSS}' for k in range(4) for dh in range(2)]
            WA=[f's_lshl_b32 s{T1}, s{TQ}, 11\ns_add_u32 s{T1}, s{T1}, {q_*XW+16384}\nv_add_u32 v{4+q_}, s{T1}, v15' for q_ in range(4)]
            WA+=[f's_lshl_b32 s{T1}, s{TQ}, 10\ns_add_u32 s{T1}, s{T1}, {WB}\nv_add_u32 v8, s{T1}, v15']
            e(pld(3))
            e(f's_cmp_ge_u32 s{TQ}, 2\ns_cselect_b32 s{XL}, {BIG}, s{SOW}\ns_cselect_b32 s{T1}, 0, 2048\nv_add_u32 v{TV+2}, s{T1}, v{TV}\nv_add_u32 v{TV+3}, s{T1}, v{TV+1}')
            e(pollchk('L_fp0',3,0))
            g.stamp('go')
            HS=FBR+[CB2]
            st_=[(HS[0],(86+k)*1024,JB+8*k) for k in range(4)]+[(SOW,(18+k)*1024,JB+8*k) for k in range(3)]+[(XL,21*1024,JB+24)]
            st2=[(HS[1+bl],(86+k)*1024,RB_+32*bl+8*k) for bl in range(3) for k in range(4)]
            loads=[];order=[];groups=[]
            for s_,(sr,im,Bq) in enumerate(st_):
                groups.append([(TILE(mh,dh),len(loads)+mh,Bq+4*dh,s_==0) for mh in range(2) for dh in range(2)])
                for mh in range(2): loads.append((sr,im+mh*HSTR)); order.append(s_)
            for mh in range(2):
                for p_ in range(6):
                    grp=[]
                    for s_ in (2*p_,2*p_+1):
                        sr,im,Bq=st2[s_]
                        grp+=[(TILE(mh,dh),len(loads),Bq+4*dh,False) for dh in range(2)]
                        loads.append((sr,im+mh*HSTR)); order.append(len(groups))
                    groups.append(grp)
            jit=[trstep(JB,12,2*WSS),trstep(JB+8,12,2*WSS+2048),trstep(JB+16,TV,0),trstep(JB+24,TV+2,0)]
            hooks={0:(['s_waitcnt lgkmcnt(0)'],RD2[:8]),1:([],jit[0]+RD2[8:12]),2:([],jit[1]+RD2[12:16]),3:([],jit[2]+RD2[16:20]),
                   4:(['s_waitcnt lgkmcnt(15)'],jit[3]+RD2[20:24]),5:(['s_waitcnt lgkmcnt(15)'],[]),6:(['s_waitcnt lgkmcnt(8)'],[]),7:(['s_waitcnt lgkmcnt(0)'],WA)}
            z1=opt.get('z1',8); z23=opt.get('z23',18)
            h_=hooks.get(z1,([],[])); hooks[z1]=(h_[0]+['s_barrier',g.st('Z1')],h_[1])
            wr0=[]
            for dh in range(2):
                for q_ in range(4): wr0+=[f'ds_write_b128 v{4+q_}, {v(TILE(0,dh)+4*q_,4)} offset:{dh*1024}','']
            hooks[14]=([],['']*6+wr0)
            hooks[z23]=(['s_waitcnt lgkmcnt(0)','s_barrier',g.st('Z23')],[])
            run_groups(groups,loads,([16+4*k for k in range(8)]+[148,152,156])[:opt.get('nr0',8)],15,hooks,MID)
            g.stamp('ph2')
            for dh in range(2):
                for q_ in range(4): e(f'ds_write_b128 v8, {v(TILE(1,dh)+4*q_,4)} offset:{dh*WSS+q_*4096}')
            e('s_waitcnt lgkmcnt(0)\ns_barrier')
            g.stamp('p2end')
            e('s_branch L_fin')
            e(g.cold); g.cold=[]
    e('L_fin:')
    if opt.get('stamps'):
        e('s_waitcnt vmcnt(0)'); g.stamp('done')
        e(f'''s_waitcnt lgkmcnt(0)
s_cmp_eq_u32 s{TQ}, {opt.get('stq',0)}
s_cbranch_scc0 L_end
s_add_u32 s{sX}, s66, {STAMP}
s_addc_u32 s{sX+1}, s67, 0
s_lshl_b32 s{T0}, s2, 1
s_add_u32 s{T0}, s{T0}, s{NH}
s_lshl_b32 s{T0}, s{T0}, 7
v_mov_b32 v2, 0''')
        prs=[100]+G.POOL[:len(g.names())]
        if 'diag' in opt:
            p=prs[(['start']+g.names()).index(opt['diag'])]
            e(f's_cmp_eq_u32 s{NH}, {opt.get("dr",0)}\ns_cbranch_scc0 L_end\nL_dg:\ns_memrealtime s[72:73]\ns_waitcnt lgkmcnt(0)\ns_sub_u32 s72, s72, s{p}\ns_cmp_lt_u32 s72, 6000\ns_cbranch_scc1 L_dg')
            prs=[]
        for i,p in enumerate(prs): e(f'v_mov_b32 v4, s{p}\nv_mov_b32 v5, s{p+1}\nbuffer_store_dwordx2 v[4:5], v2, {srd(sX)}, s{T0} offen offset:{8*i}')
    e('L_end:\ns_endpgm'); e(g.cold)
    if opt.get('stamps'): g.L.insert(0,'; STAMPS start,'+','.join(g.names()))
    if opt.get('plain'):
        pl=opt['plain']
        for i_,l_ in enumerate(g.L):
            if pl&1 and 'buffer_store_dwordx4' in l_ and 's[12:15]' in l_: g.L[i_]=l_.replace(' sc1','')
            if pl&2 and 'buffer_atomic_add' in l_ and 's[12:15]' in l_: g.L[i_]=l_.replace(' sc1','')
            if pl&4 and 'buffer_load_dwordx4 v[' in l_ and 's[12:15]' in l_: g.L[i_]=l_.replace(' sc1','')
    body=hz.fix('\n'.join(g.L), verbose=opt.get('v',0))
    ref=open('parallel_sum__ssm_conv_s5__geglu_ffn__prompt.s.ref').read() if opt.get('final') else ''
    cm_=''.join(l+'\n' for l in ref.split('\n') if l.startswith(';') and '@launch' not in l and 'Override' not in l and 'grid=ceil' not in l)
    return cm_+header([(NAME,256,512,163840)])+kstart(NAME)+body+'\n'+RODATA+kd(NAME,256,256)

if __name__=='__main__':
    out=sys.argv[1]; opt={}
    for a in sys.argv[2:]:
        k,_,val=a.partition('='); opt[k]=int(val) if val.lstrip('-').isdigit() else (val or 1)
    open(out,'w').write(build(opt))
```

```python
import sys, struct, math
from asmlib import *
import hz
from gen_v3 import F, LOG2E, BIG, G, cmul, cfma, mix, mksrd, fsplit, v, srd
XW=24576; WB=98304; WSS=16640; GOFF=4096; UOFF=4096+6144+128
SCR=WB+3*WSS; SP=SCR+12288; RM=SP+1024; ZF=RM+2048
HSTR=150*1024; ST_M=0xA00000; ST_R=0xA08000; FLG=0xA20000; EOFF=0xA60000; WSSZ=0xA80000
STAMP=0x8000000
sX,sW,sWS,sDBG,sCR,sCI,sDN,sE,sOUT=4,8,12,16,20,24,28,32,68
FS=3; WI=72; CB=73; FCNT=74; FB=75
W_,TQ,NH,RB,CT,ROT,WSTEP,XL,WL=76,77,78,79,80,81,82,83,84
RB2,TQ2,DQ,SOX,SOW,T0,T1,T2,F0,HB,XR,WQ=85,86,87,88,89,90,91,92,93,94,95,96
SPIN=97; HA=98; V14=99
FBR=[0,1,54]; CB2=55; R4=60; R3=61
G.POOL=[36,42,44,56,58,38,40,46,48,50,64,62]
DX=16; DW=20; DC=12; DF=14; PTX=24; PTW=27
XA=22; SA=24; TA=26; S1=27; S2=28
GC=32; SFS=[4,8,32,36]; SACC=40; SELS=224
ACC0=48; PR=80; PI=96
B1,B2,B3=112,160,208
FR=160; MR=224; RS=240
L64,WG,WH,L32,WSEL,KAP,CP,EA,NI=144,146,148,150,152,154,156,158,159
G.DEF='B0,B8,b_pub,gdone,Eok,flag,go,ph1,Z1,Z23,p2end,done'

def build(opt):
    g=G(opt); e=g.e
    PF=opt.get('pf',1)
    if opt.get('gk')==2: opt['gk']=(0,2)
    cpf='v_lshlrev_b32 v2, 7, v0' if opt.get('cpf',1)==0 else 's_and_b32 s3, s2, 0xf8\nv_add_lshl_u32 v2, v3, s3, 7'
    WD=F0; XH=HA
    e(f'''s_cmp_ge_u32 s2, 256
s_cbranch_scc1 L_end
s_load_dwordx16 s[36:51], s[0:1], 0
s_load_dwordx16 s[52:67], s[0:1], 64
s_getpc_b64 s[72:73]
L_pc0:
v_lshrrev_b32 v3, 6, v0
{cpf}
v_min_u32 v2, L_end-L_pc0, v2
v_and_b32 v1, 63, v0
v_readfirstlane_b32 s{W_}, v3
global_load_dword v9, v2, s[72:73]
s_and_b32 s{RB2}, s2, 7
s_lshr_b32 s{WI}, s2, 3
s_and_b32 s{TQ2}, s{WI}, 3
s_lshr_b32 s{DQ}, s{WI}, 2''')
    if opt.get('stamps'): e(('s_memtime' if opt['stamps']==2 else 's_memrealtime')+' s[100:101]')
    e(f'''s_and_b32 s{T0}, s2, 1
s_lshl_b32 s{RB}, s{T0}, 2
s_add_u32 s{RB}, s{RB}, s{TQ2}
s_lshr_b32 s{T1}, s{RB2}, 1
s_lshl_b32 s{CT}, s{T1}, 3
s_add_u32 s{CT}, s{CT}, s{DQ}''')
    if opt.setdefault('xm',1): e(f's_xor_b32 s{RB2}, s{T0}, 1\ns_lshl_b32 s{RB2}, s{RB2}, 2\ns_add_u32 s{RB2}, s{RB2}, s{T1}')
    if opt.setdefault('jx',4): e(f's_xor_b32 s{CT}, s{CT}, {opt["jx"]}')
    if opt.get('dx'): e(f's_xor_b32 s{DQ}, s{DQ}, {opt["dx"]}')
    if opt.get('map')=='A':
        e(f's_mov_b32 s{RB}, s{RB2}\ns_lshl_b32 s{CT}, s{TQ2}, 3\ns_add_u32 s{CT}, s{CT}, s{DQ}\ns_xor_b32 s{CT}, s{CT}, {opt.get("jx",0)}')
    oa,ob=opt.get('ord','x01245673.45670123')[1:].split('.')
    e(f's_mov_b32 s{ROT}, 0x{oa[::-1]}\ns_cmp_eq_u32 s{T0}, 1\ns_cselect_b32 s{ROT}, 0x{ob[::-1]}, s{ROT}')
    e(f'''s_and_b32 s{TQ}, s{W_}, 3
s_lshr_b32 s{NH}, s{W_}, 2
s_and_b32 s{T0}, s{CT}, {opt.get('sx',1)}
s_xor_b32 s{XH}, s{NH}, s{T0}
v_lshrrev_b32 v4, 3, v1          ; q
v_and_b32 v5, 7, v1              ; pos
v_lshrrev_b32 v6, 2, v4
v_lshlrev_b32 v6, 4, v6
v_and_or_b32 v6, v4, 3, v6
s_lshl_b32 s{T0}, s{RB}, 2
s_add_u32 s{HB}, s{T0}, s{TQ}        ; rb*4+tq
s_lshl_b32 s{T0}, s{HB}, 6
s_lshl_b32 s{T1}, s{XH}, 3
s_add_u32 s{T1}, s{T1}, s{T0}
v_add_u32 v6, s{T1}, v6
v_lshlrev_b32 v6, 10, v6
v_lshrrev_b32 v7, 1, v4
v_xor_b32 v7, v5, v7
v_xor_b32 v8, 4, v7
v_lshl_add_u32 v{DX}, v7, 4, v6
v_lshl_add_u32 v{DX+1}, v8, 4, v6
v_add_u32 v{DX+1}, {32768-1024}, v{DX+1}
v_add_u32 v{DX+2}, 2048, v{DX}
v_add_u32 v{DX+3}, 2048, v{DX+1}
s_mul_i32 s{XR}, s{TQ}, {XW}
s_lshl_b32 s{T1}, s{XH}, 12
s_add_u32 s{XL}, s{XR}, s{T1}
s_mov_b32 s{sX+2}, 2097152
s_mov_b32 s{sX+3}, 0x20000''')
    XF=opt.get('xf',1)
    X0=[f's_and_b32 s{T0}, s{ROT}, 7\ns_lshl_b32 s{T0}, s{T0}, 7\ns_mov_b32 m0, s{XL}\ns_waitcnt lgkmcnt(0)\ns_mov_b32 s{sX}, s36\ns_mov_b32 s{sX+1}, s37',g.st('e0')]
    X0+=[f'buffer_load_dwordx4 v{DX+j}, {srd(sX)}, s{T0} offen'+(f' offset:{1024*j}' if j else '')+' lds' for j in range(4)]
    if XF: e(X0)
    e(fsplit(CT,FS,FCNT,T0))
    e(f'''s_and_b32 s{T0}, s{RB}, {opt.get('sw',1)}
s_lshl_b32 s{T0}, s{T0}, 2
s_xor_b32 s{WD}, s{W_}, s{T0}
s_cmp_ge_u32 s{WD}, 5
s_cselect_b32 s{T1}, 5, 2
s_cselect_b32 s{T2}, {WB+128}, {0}
s_cselect_b32 s{WL}, 0, {WB}
s_add_u32 s{WL}, s{WL}, s{T2}
s_lshl_b32 s{T2}, s{WD}, 11
s_add_u32 s{WL}, s{WL}, s{T2}
s_sub_u32 s{T1}, s{WD}, s{T1}
s_lshl_b32 s{T1}, s{T1}, 7
s_lshl_b32 s{T2}, s{FS}, 5
s_lshl_b32 s{SOX}, s{FCNT}, 1
v_mov_b32 v0, 0x80000000''')
    for j in range(2):
        e(f'''v_add_u32 v6, s{T1}, v1
v_add_u32 v6, {64*j}, v6
v_mul_u32_u24 v10, 10923, v6
v_lshrrev_b32 v10, 16, v10
v_mul_u32_u24 v11, 6, v10
v_sub_u32 v11, v6, v11           ; c
v_lshrrev_b32 v6, 1, v10
v_xor_b32 v6, v6, v10
v_and_b32 v6, 4, v6
v_mul_u32_u24 v6, 3, v6
v_xor_b32 v10, v10, v6
v_mul_u32_u24 v10, 2752, v10
v_lshl_add_u32 v10, v11, 4, v10
v_add_u32 v10, s{T2}, v10
v_cmp_gt_u32 vcc, s{SOX}, v11
v_subrev_u32 v10, {1024*j}, v10
v_cndmask_b32 v{DW+j}, v0, v10, vcc''')
    e(f'''s_mov_b32 s{WSTEP}, 176128
s_mov_b32 s{sW+2}, 1409024
s_mov_b32 s{sW+3}, 0x20000
s_lshl_b32 s{T1}, s{CT}, 4
v_add_u32 v6, s{T1}, v4
v_lshlrev_b32 v6, 10, v6
v_lshl_add_u32 v10, v7, 4, v6
v_lshl_add_u32 v11, v8, 4, v6
v_add_u32 v11, 7168, v11
s_cmp_lt_u32 s{WD}, 2
s_cselect_b64 vcc, -1, 0
s_cselect_b32 s{WSTEP}, 128, s{WSTEP}
s_cselect_b32 s{sW+2}, 524288, s{sW+2}
v_cndmask_b32 v{DW}, v{DW}, v10, vcc
v_cndmask_b32 v{DW+1}, v{DW+1}, v11, vcc
''')
    if not XF: e(X0)
    e(f'''s_cmp_eq_u32 s{WD}, 0
s_cselect_b32 s{sW}, s42, s44
s_cselect_b32 s{sW+1}, s43, s45
s_cmp_ge_u32 s{WD}, 2
s_cselect_b32 s{sW}, s56, s{sW}
s_cselect_b32 s{sW+1}, s57, s{sW+1}
s_cmp_ge_u32 s{WD}, 5
s_cselect_b32 s{sW}, s58, s{sW}
s_cselect_b32 s{sW+1}, s59, s{sW+1}
s_and_b32 s{T0}, s{ROT}, 7
s_mov_b32 m0, s{WL}
s_mul_i32 s{SOW}, s{T0}, s{WSTEP}
buffer_load_dwordx4 v{DW}, {srd(sW)}, s{SOW} offen lds
buffer_load_dwordx4 v{DW+1}, {srd(sW)}, s{SOW} offen offset:1024 lds''')
    def slab(i):
        st=i%3
        L=[f's_bfe_u32 s{T0}, s{ROT}, {0x30000+4*i}\ns_lshl_b32 s{SOX}, s{T0}, 7\ns_add_u32 m0, s{WL}, {st*WSS}\ns_mul_i32 s{SOW}, s{T0}, s{WSTEP}\nbuffer_load_dwordx4 v{DW}, {srd(sW)}, s{SOW} offen lds']
        L.append(f'buffer_load_dwordx4 v{DW+1}, {srd(sW)}, s{SOW} offen offset:1024 lds\ns_add_u32 m0, s{XL}, {st*8192}')
        for j in range(4): L.append(f'buffer_load_dwordx4 v{DX+j}, {srd(sX)}, s{SOX} offen'+(f' offset:{1024*j}' if j else '')+' lds')
        return L
    N1=opt.get('n1',3)
    g.stamp('e1')
    e(f'''s_cmp_eq_u32 s{NH}, 1
s_cbranch_scc1 L_role1''')

    def setup(nh):
        e(mksrd(sWS,66,67,WSSZ)); nd=0 if opt.get('nodma') else 1; e(mksrd(sCR,46,47,524288*nd)); e(mksrd(sCI,48,49,524288*nd)); e(mksrd(sDN,60,61,1409024*nd)); e(mksrd(sOUT,62,63,4194304))
        if nh==0:
            e(mksrd(sDBG,64,65,256))
            e(f's_lshl_b32 s{T0}, s{CT}, 12\ns_add_u32 s{T0}, s{T0}, {EOFF}\ns_add_u32 s{sE}, s66, s{T0}\ns_addc_u32 s{sE+1}, s67, 0\ns_mov_b32 s{sE+2}, 4096\ns_mov_b32 s{sE+3}, 0x20000')
        else:
            e(f's_lshl_b32 s{T0}, s{DQ}, 6\nv_add_u32 v6, s{T0}, v4\nv_lshlrev_b32 v6, 10, v6\nv_lshl_add_u32 v{DC}, v7, 4, v6\nv_lshl_add_u32 v{DC+1}, v8, 4, v6')
        a3,b3,a4,b4,m4=[int(x) for x in opt.get('rr','0.0.0.0.0').split('.')]
        rots=f'''s_mul_i32 s{R3}, s{DQ}, {a3}
s_mul_i32 s{T1}, s{TQ2}, {b3}
s_add_u32 s{R3}, s{R3}, s{T1}
s_mul_i32 s{T1}, s{R3}, 11
s_lshr_b32 s{T1}, s{T1}, 5
s_mul_i32 s{T1}, s{T1}, 3
s_sub_u32 s{R3}, s{R3}, s{T1}
s_mul_i32 s{R3}, s{R3}, 6
s_lshl_b32 s{T1}, s{R3}, 14
s_add_u32 s{FBR[0]}, s{FB}, s{T1}
s_add_u32 s{FBR[1]}, s{FBR[0]}, {6*16384}
s_cmp_eq_u32 s{R3}, 12
s_cselect_b32 s{FBR[1]}, s{FB}, s{FBR[1]}
s_add_u32 s{FBR[2]}, s{FBR[1]}, {6*16384}
s_cmp_eq_u32 s{R3}, 6
s_cselect_b32 s{FBR[2]}, s{FB}, s{FBR[2]}
s_mul_i32 s{R4}, s{DQ}, {a4}
s_mul_i32 s{T1}, s{TQ2}, {b4}
s_add_u32 s{R4}, s{R4}, s{T1}
s_and_b32 s{R4}, s{R4}, {m4}
s_and_b32 s{T1}, s{R4}, 2
s_lshl_b32 s{T1}, s{T1}, 6
s_add_u32 s{CB}, s{CB}, s{T1}
s_xor_b32 s{CB2}, s{CB}, 128
s_bitcmp1_b32 s{R4}, 0
s_cselect_b32 s{sCR}, s48, s46
s_cselect_b32 s{sCR+1}, s49, s47
s_cselect_b32 s{sCI}, s46, s48
s_cselect_b32 s{sCI+1}, s47, s49'''
        e(f'''v_lshlrev_b32 v6, 1, v4
v_and_b32 v6, 4, v6
v_xor_b32 v6, v5, v6
v_lshlrev_b32 v6, 4, v6
v_lshl_add_u32 v6, v4, 10, v6
s_lshl_b32 s{T0}, s{DQ}, 7
v_add_u32 v{DF}, s{T0}, v6
s_mul_i32 s{F0}, s{TQ}, 22
s_cmp_eq_u32 s{TQ}, 3
s_cselect_b32 s{T0}, 1, 0
s_sub_u32 s{F0}, s{F0}, s{T0}
s_lshl_b32 s{FB}, s{F0}, 14
s_lshl_b32 s{CB}, s{TQ}, 8
{rots}
s_lshl_b32 s{WQ}, s{TQ}, 12
s_lshl_b32 s{T0}, s{T0}, 11
s_sub_u32 s{V14}, s{WQ}, s{T0}
s_add_u32 s{V14}, s{V14}, {SCR}
s_add_u32 s{WQ}, s{WQ}, {WB}
s_lshl_b32 s{HA}, s{HB}, 2
s_lshr_b32 s{T0}, s{CT}, 3
s_add_u32 s{HA}, s{HA}, s{T0}
s_lshl_b32 s{HA}, s{HA}, 8
s_add_u32 s{HA}, s{HA}, {FLG}
v_and_b32 v2, 15, v1
v_lshrrev_b32 v3, 4, v1
v_bfe_u32 v6, v1, 1, 3
v_xor_b32 v6, v3, v6
v_lshlrev_b32 v6, 4, v6
v_lshl_add_u32 v6, v2, 7, v6
v_add_u32 v{XA}, s{XR}, v6
v_xor_b32 v{XA+1}, 64, v{XA}
v_bfe_u32 v10, v1, 2, 3
v_lshrrev_b32 v11, 5, v1
v_lshl_add_u32 v10, v11, 4, v10
v_mul_u32_u24 v10, 96, v10
v_and_b32 v11, 3, v1
v_lshl_add_u32 v10, v11, 3, v10
v_add_u32 v{TA}, {WB+GOFF}, v10
s_lshr_b32 s{T0}, s{TQ}, 1
s_and_b32 s{T1}, s{TQ}, 1
s_mul_i32 s{T2}, s{T0}, 3072
s_mul_i32 s{SPIN}, s{T1}, {UOFF-GOFF}
s_add_u32 s{T2}, s{T2}, s{SPIN}''')
        if nh==0:
            e(f'''v_add_u32 v{S2}, s{T2}, v{TA}
v_add_u32 v{SA}, {WB}, v6
v_xor_b32 v{SA+1}, 64, v{SA}
s_lshl_b32 s{T0}, s{T0}, 6
s_lshl_b32 s{T1}, s{T1}, 11
v_xor_b32 v{S1}, s{T0}, v{SA}
v_add_u32 v{S1}, s{T1}, v{S1}''')
        if nh==0:
            e('v_mov_b32 v3, 0x3f803f80')
            for f_ in range(4):
                e(f'v_cmp_eq_u32 vcc, {f_}, v2')
                for k in range(4): e(f'v_cndmask_b32 v{SELS+4*f_+k}, 0, v3, vcc')
        else:
            e(traddr(0,3)+[f'v_add_u32 v{PTX}, s{XR}, v0',f'v_add_u32 v{PTX+1}, s{XR}, v3',f'v_add_u32 v{PTW}, s{WQ}, v0',f'v_add_u32 v{PTW+1}, s{WQ}, v3'])
        e(f'v_and_b32 v29, 15, v1\nv_lshl_add_u32 v29, v29, 4, s{V14}\nv_and_b32 v30, 48, v1\ns_lshl_b32 s{T0}, s{TQ}, 9\ns_add_u32 s{T0}, s{T0}, {RM}\nv_lshl_add_u32 v31, v30, 2, s{T0}\nv_add_u32 v30, {SP}, v30')
        e('v_lshlrev_b32 v15, 4, v1')
        if opt.get('stamps'):
            for r,nm in zip(G.POOL,g.names()):
                if nm not in ('e0','e1'): e(f's_mov_b64 s[{r}:{r+1}], 0')
    def vgroup(m0, vregs, sr, sb, imm, n):
        L=[]
        for j in range(n):
            t=f's_add_u32 m0, {m0}\n' if j==0 else ''
            t+=f's_add_u32 s{T0}, s{sb}, {imm+j*(8192-1024)}\nbuffer_load_dwordx4 v{vregs[j%len(vregs)]}, {srd(sr)}, s{T0} offen'+(f' offset:{1024*j}' if j else '')+' lds'
            L.append(t)
        return L
    def vx(vs,half):
        st=vs%3; m0=f's{XR}, {st*8192+half*4096}'
        if vs>=11:
            b=vs-11; return vgroup(m0,[DC,DC+1],sCI if b&1 else sCR,CB2 if b>>1 else CB,half*32768,4)
        return vgroup(m0,[DF],sDN,FBR[vs-8],half*32768,4)
    def vw(vs,half=None):
        st=vs%3
        if vs>=12: return vgroup(f's{WQ}, {st*WSS}',[DC,DC+1],sCI,CB2,(vs-12)*32768,4)
        fs,fb=(4,FBR[vs-8]) if vs<11 else (18,FB)
        if half is None: return vgroup(f's{WQ}, {st*WSS}',[DF],sDN,fb,fs*16384,4)
        return vgroup(f's{WQ}, {st*WSS+half*2048}',[DF],sDN,fb,(fs+half)*16384,2)
    def vhalf(vs,nh): return vw(vs,nh)+vx(vs,nh)
    def vfull(vs): return vx(vs,0)+vx(vs,1)+vw(vs)
    def traddr(t0,t1):
        return [f'v_bfe_u32 v{t0}, v1, 2, 2',f'v_lshrrev_b32 v{t1}, 5, v1',f'v_lshl_add_u32 v{t0}, v{t1}, 3, v{t0}',f'v_lshlrev_b32 v{t0}, 7, v{t0}',f'v_and_b32 v{t1}, 3, v1',f'v_lshl_add_u32 v{t0}, v{t1}, 3, v{t0}',
            f'v_bfe_u32 v{t1}, v1, 4, 1',f'v_lshl_add_u32 v{t0}, v{t1}, 5, v{t0}',f'v_bfe_u32 v{t1}, v1, 3, 1',f'v_lshl_add_u32 v{t0}, v{t1}, 6, v{t0}',f'v_xor_b32 v{t1}, 64, v{t0}']
    def trstep(base,areg,off):
        return [f'ds_read_b64_tr_b16 {v(base+dh*4+2*j,2)}, v{areg+dh} offset:{off+j*512}' for dh in range(2) for j in range(2)]
    def vread(vs, base):
        st=vs%3; L=[]
        for k in range(4): L+=trstep(base+8*k,PTX,st*8192+k*2048)
        for k in range(2): L+=trstep(base+32+8*k,PTW,st*WSS+k*2048)
        return L
    def gelu(acc, tb, tmp, soff, sg):
        L=[]; t=tmp
        G_=lambda i: v(acc+8*tb+2*i,2); U_=lambda i: v(acc+16+8*tb+2*i,2); T_=lambda i: v(t+2*i,2)
        cp=lambda i: v(GC+4*(2*tb+(i>>1)),2); rp=lambda i: v(GC+4*(2*tb+(i>>1))+2,2); o=acc+16+8*tb
        for i in range(4): L.append(f'v_pk_fma_f32 {G_(i)}, {v(sg+2*(i&1),2)}, {rp(i)}, {G_(i)} op_sel:[0,1,0] op_sel_hi:[1,1,1]')
        for i in range(4): L.append(f'v_pk_mul_f32 {T_(i)}, {G_(i)}, {G_(i)}')
        for i in range(4): L.append(f'v_pk_fma_f32 {T_(i)}, {T_(i)}, {cp(i)}, {cp(i)} op_sel:[0,1,0] op_sel_hi:[1,1,0]')
        for i in range(4): L.append(f'v_pk_mul_f32 {T_(i)}, {T_(i)}, {G_(i)}')
        for i in range(8): L.append(f'v_exp_f32 {v(t+i)}, {v(t+i)}')
        for i in range(4): L.append(f'v_pk_fma_f32 {U_(i)}, {v(sg+4+2*(i&1),2)}, {rp(i)}, {U_(i)} op_sel:[0,1,0] op_sel_hi:[1,1,1]')
        for i in range(4): L.append(f'v_pk_fma_f32 {T_(i)}, {T_(i)}, {rp(i)}, {rp(i)} op_sel_hi:[1,0,0]')
        for i in range(8): L.append(f'v_rcp_f32 {v(t+i)}, {v(t+i)}')
        for i in range(4): L.append(f'v_pk_mul_f32 {G_(i)}, {G_(i)}, {U_(i)}')
        for i in range(4): L.append(f'v_pk_mul_f32 {G_(i)}, {G_(i)}, {T_(i)}')
        for i in (0,2,1,3): L.append(f'v_cvt_pk_bf16_f32 {v(o+i)}, {v(acc+8*tb+2*i)}, {v(acc+8*tb+2*i+1)}')
        L.append(f's_add_u32 s{T1}, s{soff}, {tb*HSTR}\nv_permlane16_swap_b32 v{o}, v{o+2}\nv_permlane16_swap_b32 v{o+1}, v{o+3}\nbuffer_store_dwordx4 {v(o,4)}, v15, {srd(sWS)}, s{T1} offen sc1')
        return L
    def sread(sb, d, t):
        return [f'ds_read_b128 {v((d,t)[q_>>1]+4*(q_&1),4)}, v30 offset:{256*q_+64*(1+sb)}' for q_ in range(4)]
    def sadd(d,t): return [f'v_pk_add_f32 {v(d+2*k,2)}, {v(d+2*k,2)}, {v(t+2*k,2)}' for k in range(4)]
    def setflag(ssm):
        t=f's_add_u32 s{T1}, s{HA}, 128\n'
        if not ssm: t+=f's_and_b32 s{T0}, s{CT}, 7\ns_cmp_lt_u32 s{T0}, 6\ns_cselect_b32 s{T1}, s{HA}, s{T1}\n'
        return t+f'v_mov_b32 v2, 1\nv_mov_b32 v3, 0\ns_mov_b64 exec, 1\nbuffer_atomic_add v2, v3, {srd(sWS)}, s{T1} offen sc1\ns_mov_b64 exec, -1'
    def hb(nh):
        if nh==1: return '\n'.join(f's_lshr_b32 s{FBR[k]}, s{FBR[k]}, 4\ns_add_u32 s{FBR[k]}, s{FBR[k]}, s{SOX}' for k in range(3))
        t=f's_lshl_b32 s{T0}, s{TQ}, 13\ns_add_u32 s{SOX}, s{SOX}, s{T0}'
        for b_,r_ in enumerate(FBR+[CB2]):
            t+=f'\ns_xor_b32 s{T0}, s{R4}, {b_}\ns_and_b32 s{T1}, s{T0}, 1\ns_lshl_b32 s{T1}, s{T1}, 15\ns_and_b32 s{T0}, s{T0}, 2\ns_lshl_b32 s{T0}, s{T0}, 11\ns_add_u32 s{T0}, s{T0}, s{T1}\ns_add_u32 s{r_}, s{SOX}, s{T0}'
        return t
    def p2base(nh):
        return f'''s_lshl_b32 s{T0}, s{RB2}, 2
s_add_u32 s{T0}, s{T0}, s{TQ2}
s_mul_i32 s{SOX}, s{T0}, {2*HSTR}
s_lshl_b32 s{HB}, s{T0}, 2
s_add_u32 s{HB}, s{HB}, s{TQ}
s_lshl_b32 s{HB}, s{HB}, 8
s_add_u32 s{HB}, s{HB}, {FLG+128*(1-nh)}
s_lshl_b32 s{T0}, s{F0}, 10
s_add_u32 s{SOW}, s{SOX}, s{T0}
{hb(nh)}
v_mov_b32 v0, 0'''
    pld=lambda r: f'buffer_load_dword v{r}, v0, {srd(sWS)}, s{HB} offen sc1'
    def pollchk(lbl, r, n, sl):
        g.cold.append(f'''{lbl}:
s_mov_b32 s{SPIN}, 0
{lbl}_1:
s_sleep {sl}
{pld(r)}
s_add_u32 s{SPIN}, s{SPIN}, 1
s_waitcnt vmcnt(0)
v_cmp_gt_u32 vcc, 12, v{r}
s_cmp_gt_u32 s{SPIN}, 100000
s_cselect_b64 vcc, 0, vcc
s_cmp_eq_u64 vcc, 0
s_cbranch_scc0 {lbl}_1
s_branch {lbl}_ok''')
        return f's_waitcnt vmcnt({n})\nv_cmp_gt_u32 vcc, 12, v{r}\ns_cmp_eq_u64 vcc, 0\ns_cbranch_scc0 {lbl}\n{lbl}_ok:'

    X=lambda b,t4: FR+32*b+4*t4
    Wf=lambda b,k: FR+32*b+16+4*k
    for nh in range(2):
        ACC1=112 if nh==0 else 80
        if nh==0:
            e(f'''s_lshl_b32 s{T0}, s{RB}, 5
s_add_u32 s{T0}, s{T0}, s{CT}
s_lshl_b32 s{T0}, s{T0}, 2
s_add_u32 s{WI}, s{T0}, s{TQ}
s_lshl_b32 s{T2}, s{WI}, 11
v_and_b32 v2, 31, v1
v_lshlrev_b32 v2, 4, v2
v_and_b32 v3, 32, v1
v_lshl_add_u32 v2, v3, 5, v2
v_and_b32 v3, 15, v1
s_lshl_b32 s{T1}, s{CT}, 5
v_lshl_add_u32 v3, v3, 1, s{T1}
''')
            ROWS=f'buffer_load_dwordx4 v[80:83], v2, {srd(sX)}, s{T2} offen\nbuffer_load_dwordx4 v[84:87], v2, {srd(sX)}, s{T2} offen offset:512'
            RP=1
            e(ROWS.replace('v2,','v108,').replace(f's{T2} ',f's{SPIN} ') if False else '')
            e(f's_lshl_b32 s{T0}, s{TQ}, 2\ns_add_u32 s{T0}, s{T0}, {ZF}\nv_mov_b32 v10, s{T0}\nv_mov_b32 v11, 0\nds_write_b32 v10, v11')
            e(ROWS)
            e('global_load_ushort v244, v3, s[38:39]\nglobal_load_ushort v245, v3, s[40:41]\nglobal_load_ushort v246, v3, s[50:51]')
            setup(0)
            def allred(r,t):
                for k in (8,4,2,1): e(f'v_add_f32_dpp {v(r)}, {v(r)}, {v(r)} row_ror:{k} row_mask:0xf bank_mask:0xf')
                e(f'v_mov_b32 {v(t)}, {v(r)}\nv_permlane16_swap_b32 {v(t)}, {v(r)}\nv_add_f32 {v(r)}, {v(r)}, {v(t)}')
            SD=1; SB=opt.get('sb',1)
            if SD:
                g.stamp('s0')
                D2=slab(1)+slab(2); e(D2[:N1]); D2=D2[N1:]; g.stamp('s1')
                mark=len(g.L)
            e(f's_waitcnt vmcnt({3+12+(6 if SB==2 else 0)+(1 if (SB==2 and PF==1) else 0)})')
            g.stamp('rowld')
            for i in range(8): e(f'v_lshlrev_b32 v{88+2*i}, 16, v{80+i}\nv_and_b32 v{89+2*i}, 0xffff0000, v{80+i}')
            e('v_pk_add_f32 v[104:105], v[88:89], v[90:91]')
            for i in range(2,8): e(f'v_pk_add_f32 v[104:105], v[104:105], v[{88+2*i}:{89+2*i}]')
            e('v_add_f32 v104, v104, v105')
            allred(104,105)
            e(f'v_mul_f32 v104, {F(1/512)}, v104')
            for i in range(8): e(f'v_pk_add_f32 v[{88+2*i}:{89+2*i}], v[{88+2*i}:{89+2*i}], v[104:105] op_sel_hi:[1,0] neg_lo:[0,1] neg_hi:[0,1]')
            e('v_pk_mul_f32 v[106:107], v[88:89], v[88:89]')
            for i in range(1,8): e(f'v_pk_fma_f32 v[106:107], v[{88+2*i}:{89+2*i}], v[{88+2*i}:{89+2*i}], v[106:107]')
            e('v_add_f32 v106, v106, v107')
            allred(106,107)
            e(f'''v_mul_f32 v106, {F(1/512)}, v106
v_cvt_pk_bf16_f32 v104, v104, v106
v_and_b32 v106, 0xffff0000, v104
v_lshlrev_b32 v104, 16, v104
v_add_f32 v106, {F(1e-5)}, v106
v_cvt_pk_bf16_f32 v106, v106, v106
v_lshlrev_b32 v106, 16, v106
v_sqrt_f32 v106, v106
v_cvt_pk_bf16_f32 v106, v106, v106
v_lshlrev_b32 v106, 16, v106          ; sd
v_mul_f32 v90, v106, v106            ; R = sd^2
v_rcp_f32 v106, v106                  ; r
v_sub_f32 v91, 0, v104               ; -m
v_and_b32 v2, 31, v1
v_mul_f32 v88, {F(-2*math.sqrt(2/math.pi)*LOG2E)}, v106
v_mul_f32 v89, v106, v106
v_mul_f32 v93, v91, v106
v_mul_f32 v89, {F(0.044715)}, v89
v_lshrrev_b32 v3, 5, v1
v_mul_f32 v89, v89, v88
s_lshl_b32 s{T1}, s{CT}, 5
s_sub_u32 s{T1}, s{T1}, s{HB}
s_add_u32 s{T1}, s{T1}, 31
s_lshl_b32 s{T1}, s{T1}, 7
s_add_u32 s{T1}, s{T1}, {EOFF-64}
v_lshl_add_u32 v108, v3, 4, v2
v_lshl_add_u32 v108, v108, 2, s{T1}
v_mov_b32 v109, -1
s_and_b32 s{T1}, s{CT}, 7
s_cselect_b32 s{T1}, {BIG}, s{HA}
v_lshl_add_u32 v110, v3, 7, s{T1}
v_cmp_gt_u32 vcc, 7, v2
v_cndmask_b32 v108, v108, v110, vcc
v_cndmask_b32 v109, v109, 0, vcc
s_lshr_b32 s{T1}, s{WI}, 5
s_lshl_b32 s{T1}, s{T1}, 9
s_and_b32 s{T2}, s{WI}, 31
s_lshl_b32 s{T2}, s{T2}, 3
s_add_u32 s{T1}, s{T1}, s{T2}
s_add_u32 s{T1}, s{T1}, {ST_R-1024}
v_lshl_add_u32 v110, v2, 6, v3
v_lshl_add_u32 v110, v110, 2, s{T1}
v_cmp_gt_u32 vcc, 6, v2
v_cndmask_b32 v108, v108, v110, vcc
v_cndmask_b32 v109, v109, v93, vcc
s_lshl_b32 s{T1}, s{WI}, 5
s_add_u32 s{T1}, s{T1}, {ST_M}
v_lshl_add_u32 v110, v3, 2, v2
v_lshl_add_u32 v110, v110, 2, s{T1}
v_cmp_gt_u32 vcc, 5, v2
v_cndmask_b32 v109, v109, v106, vcc
v_cmp_gt_u32 vcc, 4, v2
v_cndmask_b32 v108, v108, v110, vcc
v_cndmask_b32 v109, v109, v91, vcc
v_cmp_gt_u32 vcc, 3, v2
v_cndmask_b32 v109, v109, v90, vcc
v_cmp_gt_u32 vcc, 2, v2
v_cndmask_b32 v109, v109, v89, vcc
v_cmp_gt_u32 vcc, 1, v2
v_cndmask_b32 v109, v109, v88, vcc
s_mov_b32 exec_lo, 0xffff007f
s_mov_b32 exec_hi, 0xffff007f
buffer_store_dword v109, v108, {srd(sWS)}, 0 offen sc1
s_mov_b64 exec, -1''')
            if SD:
                STATS=g.L[mark:]; del g.L[mark:]
            else:
                STATS=[]; e(slab(1))
            W2PF=f'''s_cmp_eq_u32 s{TQ}, 0
s_cselect_b32 s{sOUT}, s{sCR}, s{sCI}
s_cselect_b32 s{sOUT+1}, s{sCR+1}, s{sCI+1}
s_lshl_b32 s{T1}, s2, 11
s_mul_i32 s{T2}, s2, {43*128}
s_cmp_ge_u32 s{TQ}, 2
s_cselect_b32 s{sOUT}, s{sDN}, s{sOUT}
s_cselect_b32 s{sOUT+1}, s{sDN+1}, s{sOUT+1}
s_cselect_b32 s{T1}, s{T2}, s{T1}
s_cselect_b32 s{T2}, 21, 15
v_min_u32 v13, s{T2}, v1
s_cmp_eq_u32 s{TQ}, 3
s_cselect_b32 s{T2}, {21*128}, 0
s_add_u32 s{T1}, s{T1}, s{T2}
v_lshlrev_b32 v13, 7, v13
buffer_load_dword v12, v13, {srd(sOUT)}, s{T1} offen'''
            LAM=f'''v_lshlrev_b32 v244, 16, v244
v_lshlrev_b32 v245, 16, v245
v_lshlrev_b32 v246, 16, v246
v_mul_f32 v246, {F(LOG2E)}, v246
v_exp_f32 v246, v246
v_cvt_pk_bf16_f32 v246, v246, v246
v_lshlrev_b32 v246, 16, v246
v_mul_f32 v247, v246, v244
v_mul_f32 v248, v246, v245
v_mul_f32 v247, {F(LOG2E)}, v247
v_mul_f32 v248, 0.15915494, v248'''.split('\n')
            def cpow(dr,di,n):
                LAM.extend([f'v_mul_f32 v249, {n}, v247',f'v_mul_f32 v250, {n}, v248','v_rndne_f32 v251, v250','v_exp_f32 v249, v249','v_sub_f32 v250, v250, v251','v_cos_f32 v251, v250','v_sin_f32 v250, v250',f'v_mul_f32 {v(dr)}, v249, v251',f'v_mul_f32 {v(di)}, v249, v250'])
            cpow(PR,PI,'1.0')
            for j in range(1,16):
                a=(j-1)//2; b=j-1-a
                LAM.extend([f'v_mul_f32 {v(PR+j)}, {v(PR+a)}, {v(PR+b)}',f'v_mul_f32 {v(PI+j)}, {v(PR+a)}, {v(PI+b)}',f'v_fma_f32 {v(PR+j)}, -{v(PI+a)}, {v(PI+b)}, {v(PR+j)}',f'v_fmac_f32 {v(PI+j)}, {v(PI+a)}, {v(PR+b)}'])
            cpow(L32,L32+1,F(32.0)); cpow(L64,L64+1,F(64.0))
            LAM.extend(['v_and_b32 v252, 16, v1','v_cvt_f32_u32 v252, v252']); cpow(WSEL,WSEL+1,'v252')
            LAM.extend(['v_and_b32 v252, 48, v1','v_cvt_f32_u32 v252, v252']); cpow(WG,WG+1,'v252')
            LAM.extend([f'v_mul_f32 v252, {F(32.0)}, v252']); cpow(254,255,'v252')
            LAM.extend(['v_mul_f32 v249, v244, v244','v_fmac_f32 v249, v245, v245','v_rcp_f32 v249, v249',f'v_add_f32 v250, -1.0, v{PR}',f'v_mul_f32 v{KAP}, v250, v244',f'v_fmac_f32 v{KAP}, v{PI}, v245',
                f'v_mul_f32 v{KAP+1}, v{PI}, v244',f'v_fma_f32 v{KAP+1}, -v250, v245, v{KAP+1}','v_add_f32 v249, v249, v249',f'v_mul_f32 v{KAP}, v249, v{KAP}',f'v_mul_f32 v{KAP+1}, v249, v{KAP+1}'])
            LAM.extend(cmul(WH,KAP,254))
            LAM.extend(['v_and_b32 v13, 12, v1','v_lshlrev_b32 v13, 2, v13','v_and_or_b32 v13, v1, 3, v13','v_lshrrev_b32 v252, 4, v1','v_lshl_add_u32 v13, v252, 2, v13','v_lshlrev_b32 v13, 4, v13'])
            LAM.extend([f'v_and_b32 v{EA}, 15, v1',f'v_lshlrev_b32 v{EA}, 3, v{EA}',f'v_sub_f32 v{NI}, 0, v{PI}'])
            if PF==9: e(W2PF)
            e(f's_waitcnt vmcnt({(PF==9)+(N1+5)})\ns_barrier')
        else:
            e(f'''.p2align 3
L_role1:''')
            setup(1)
            e(f'''s_lshl_b32 s{T0}, s{RB2}, 2
s_add_u32 s{sE}, s{T0}, s{TQ2}
s_and_b32 s{T1}, s{TQ}, 1
s_lshl_b32 s{T1}, s{T1}, 5
s_and_b32 s{T0}, s{TQ}, 2
s_lshl_b32 s{T0}, s{T0}, 1
s_add_u32 s{T1}, s{T0}, s{T1}
s_lshl_b32 s{T0}, s{sE}, 6
s_add_u32 s{WI}, s{T0}, s{T1}
s_lshl_b32 s{sE}, s{sE}, 9
s_lshl_b32 s{T1}, s{T1}, 2
s_add_u32 s{sE}, s{sE}, s{T1}
s_add_u32 s{sE}, s{sE}, {ST_R}
v_lshrrev_b32 v2, 5, v1
v_lshl_add_u32 v2, v2, 4, s{WI}
v_and_b32 v3, 3, v4
v_add_u32 v3, v3, v2
v_lshlrev_b32 v2, 4, v5
v_lshl_add_u32 v2, v3, 10, v2
s_lshl_b32 s{sE+1}, s{DQ}, 7
v_and_b32 v3, 31, v1
v_lshl_add_u32 v3, v3, 1, s{sE+1}''')
            g.stamp('s0')
            D2=slab(1)+slab(2); e(D2[:N1]); D2=D2[N1:]; g.stamp('s1')
            LAM=[]; STATS=[]
            e(f's_waitcnt vmcnt({N1})\ns_barrier')
        if opt.get('prio')==nh: e('s_setprio 1')
        subs=[('S',0,0,ACC0),('S',0,1,ACC0+16),('F',0,0,ACC1),('F',0,1,ACC1+16)] if nh==0 else [('F',1,0,ACC0),('F',1,1,ACC0+16),('F',2,0,ACC1),('F',2,1,ACC1+16)]
        def reads(n):
            i,u=divmod(n,2); st=i%3; b=n&1; L=[]
            def wr(k):
                kind,sb,pt,_=subs[k]
                if kind=='S': L.append(f'ds_read_b128 {v(Wf(b,k),4)}, v{SA+u} offset:{st*WSS+pt*2048}')
                else:
                    for j in range(2): L.append(f'ds_read_b64_tr_b16 {v(Wf(b,k)+2*j,2)}, v{TA} offset:{st*WSS+(32*u+8*j)*96+32*sb+pt*(UOFF-GOFF)}')
            wr(0)
            for t4 in range(4): L.append(f'ds_read_b128 {v(X(b,t4),4)}, v{XA+u} offset:{st*8192+t4*2048}')
            wr(1); wr(2); wr(3)
            if u==0:
                if nh==0:
                    SF=SFS
                    L.append(f'ds_read_b128 {v(SF[0],4)}, v{S1} offset:{st*WSS}')
                    for q_ in range(3):
                        for j in range(2): L.append(f'ds_read_b64_tr_b16 {v(SF[1+q_]+2*j,2)}, v{S2} offset:{st*WSS+8*j*96+32*q_}')

            return L
        def mf(k,t4,xo,wo,first=False):
            a=subs[k][3]+4*t4; c='0' if first else v(a,4)
            if subs[k][0]=='S': return f'v_mfma_f32_16x16x32_bf16 {v(a,4)}, {xo}, {wo}, {c}'
            return f'v_mfma_f32_16x16x32_bf16 {v(a,4)}, {wo}, {xo}, {c}'
        g.stamp('B0')
        e(reads(0))
        slots=[int(x) for x in opt.get(f'ds{nh}','13.15.21.23.29.31').split('.')]
        slots7=[int(x) for x in opt.get(f'dl{nh}',['3.7.11.15.19.23','13.15.21.23.29.31'][nh]).split('.')]
        slots6=[int(x) for x in opt.get(f'dm{nh}','13.15.21.23.29.31').split('.')]
        V9=opt.get('v9',0)
        if V9 and nh==1: slots7=[int(x) for x in opt.get('dl1','5.7.9.11.13.15.19.21.23.25.27.29').split('.')]
        pend=D2; xtra=0
        while len(pend)>len([q_ for q_ in slots if q_>=16]): e(pend.pop(0))
        for n in range(16):
            i,u=divmod(n,2); b=n&1
            post=[]
            if u==1:
                assert not pend
                bi=i+1
                if STATS:
                    if bi==SB: e(STATS); STATS=[]; xtra+=1
                elif LAM:
                    lb=5 if SD else 4
                    k=(len(LAM)+(lb-bi))//(lb+1-bi)
                    e(LAM[:k]); del LAM[:k]
                if nh==0 and bi==7:
                    SL=16
                    e(f'''v_and_b32 v12, 1, v1
v_lshlrev_b32 v12, 4, v12
v_mov_b32 v2, 0x3f80
v_lshlrev_b32 v12, v12, v2
v_bfe_u32 v2, v1, 2, 2
v_lshrrev_b32 v3, 4, v1
v_cmp_eq_u32 vcc, v2, v3
v_and_b32 v2, 2, v1
v_mov_b32 v{SL}, 0
v_cndmask_b32 v12, 0, v12, vcc
v_cmp_eq_u32 vcc, 0, v2
v_mov_b32 v{SL+1}, 0
v_mov_b32 v{SL+4}, 0
v_cndmask_b32 v{SL+2}, 0, v12, vcc
v_cndmask_b32 v{SL+3}, v12, 0, vcc
v_mov_b32 v{SL+5}, 0
v_lshrrev_b32 v2, 3, v1
v_and_b32 v3, 7, v1
v_lshrrev_b32 v12, 1, v2
v_xor_b32 v3, v3, v12
s_lshl_b32 s{T1}, s{DQ}, 6
v_add_u32 v2, s{T1}, v2
v_lshlrev_b32 v2, 10, v2
v_lshl_add_u32 v{DC}, v3, 4, v2
v_xor_b32 v{DC+1}, 64, v{DC}
v_and_b32 v2, 15, v1
v_lshlrev_b32 v2, 2, v2
v_add_u32 v2, {SP}, v2''')
                g.stamp(f'p{bi}')
                if bi==6 and nh==0:
                    e(f's_waitcnt vmcnt(6)\nv_cmp_gt_u32 vcc, 4, v2\ns_cmp_eq_u64 vcc, 0\ns_cbranch_scc0 L_poll\nL_pollok:')
                    g.cold.append(f'''L_poll:
s_mov_b32 s{SPIN}, 0
L_poll1:
buffer_load_dword v2, v3, {srd(sDBG)}, 0 offen sc1
s_add_u32 s{SPIN}, s{SPIN}, 1
s_cmp_gt_u32 s{SPIN}, 100000
s_cbranch_scc1 L_pollok
s_waitcnt vmcnt(0)
v_cmp_gt_u32 vcc, 4, v2
s_cmp_eq_u64 vcc, 0
s_cbranch_scc0 L_poll1
s_branch L_pollok''')
                e(f's_waitcnt vmcnt({0 if (bi==8 and nh==0) else 6+xtra}) lgkmcnt(0)')
                g.stamp(f'w{bi}')
                e('s_barrier')
                g.stamp(f'B{bi}')
                xtra=0
                if nh==0:
                    if bi==SB+1:
                        post.append(f's_and_b32 s{T1}, s2, 63\ns_lshl_b32 s{T1}, s{T1}, 2\ns_cmp_eq_u32 s{W_}, 0\ns_cselect_b32 s{T1}, s{T1}, {BIG}\nv_mov_b32 v2, 1\nv_mov_b32 v3, 0\ns_mov_b64 exec, 1\nbuffer_atomic_add v2, v3, {srd(sDBG)}, s{T1} offen sc1\ns_mov_b64 exec, -1'); xtra+=1
                    if PF==bi: post.append(W2PF); xtra+=1
                    l2p=opt.get('l2p',0)
                    if l2p and l2p<=bi<l2p+4:
                        k=bi-l2p
                        post.append(f's_lshr_b32 s{T1}, s2, 3\ns_lshl_b32 s{T1}, s{T1}, 2\ns_add_u32 s{T1}, s{T1}, s{TQ}\ns_lshl_b32 s{T1}, s{T1}, 12\nv_lshlrev_b32 v13, 7, v1\ns_mov_b64 exec, 0xffff\nbuffer_load_dword v12, v13, {srd(sCI if k&1 else sCR)}, s{T1} offen offset:{2048*(k>>1)}\ns_mov_b64 exec, -1'); xtra+=1
                    if l2p and bi==l2p+4:
                        post.append(f's_lshr_b32 s{T1}, s2, 3\ns_lshl_b32 s{T1}, s{T1}, 11\ns_add_u32 s{T1}, s{T1}, s{FB}\ns_add_u32 s{T1}, s{T1}, {18*16384}\nv_lshlrev_b32 v13, 7, v1\ns_mov_b64 exec, 0xffff\nbuffer_load_dword v12, v13, {srd(sDN)}, s{T1} offen\ns_mov_b64 exec, -1'); xtra+=1
                    if bi==5:
                        post.append(f'v_lshlrev_b32 v3, 2, v1\nbuffer_load_dword v2, v3, {srd(sDBG)}, 0 offen sc1'); xtra=0
                lp=opt.get('lp',0)
                if nh==1 and lp and lp<=bi<lp+5:
                    k=bi-lp
                    post.append(f's_cmp_lt_u32 s{FCNT}, 2\ns_cbranch_scc1 L_lp{k}\nL_lpr{k}:')
                    t=f'L_lp{k}:\nv_lshlrev_b32 v2, 7, v1\ns_lshl_b32 s{T1}, s{TQ2}, 2\ns_add_u32 s{T1}, s{T1}, s{TQ}\n'
                    if k<4:
                        t+=f's_lshl_b32 s{T1}, s{T1}, 15\ns_add_u32 s{T1}, s{T1}, {k*8192}\nbuffer_load_dword v3, v2, {srd(sCR)}, s{T1} offen\nbuffer_load_dword v4, v2, {srd(sCI)}, s{T1} offen\n'
                    else:
                        t+=f's_lshl_b32 s{T1}, s{TQ2}, 14\ns_add_u32 s{T1}, s{T1}, s{FB}\ns_add_u32 s{T1}, s{T1}, {18*16384}\nbuffer_load_dword v3, v2, {srd(sDN)}, s{T1} offen\ns_add_u32 s{T1}, s{T1}, 8192\nbuffer_load_dword v4, v2, {srd(sDN)}, s{T1} offen\n'
                    g.cold.append(t+f's_branch L_lpr{k}')
                if bi==6 and nh==0:
                    post.append(f'''s_lshl_b32 s{T2}, s{RB}, 2
s_add_u32 s{T2}, s{T2}, s{TQ}
s_lshl_b32 s{T1}, s{T2}, 10
s_add_u32 s{T1}, s{T1}, {ST_M}
s_mov_b32 m0, s{V14}
s_lshl_b32 s{T2}, s{T2}, 9
buffer_load_dwordx4 v13, {srd(sWS)}, s{T1} offen sc1 lds
s_lshl_b32 s{T1}, s{TQ}, 9
s_add_u32 m0, s{T1}, {RM}
s_add_u32 s{T2}, s{T2}, {ST_R}
s_mov_b32 exec_hi, 0
buffer_load_dwordx4 v15, {srd(sWS)}, s{T2} offen sc1 lds
s_mov_b64 exec, -1''')
                if bi+2<8: pend=slab(bi+2)
                elif bi==7 and V9:
                    pend=vfull(9) if nh==1 else []
                    xtra=6
                elif bi+2<10: pend=vhalf(bi+2,nh)
            else:
                e('s_waitcnt lgkmcnt(0)')
            R=reads(n+1) if n<15 else []
            M=[mf(k,t4,v(X(b,t4),4),v(Wf(b,k),4),n==0) for k in range(4) for t4 in range(4)]
            if n==15: break
            EX=[]
            GCR=[f'ds_read_b128 {v(GC+4*k,4)}, v29 offset:{256*k}' for k in range(4)]
            if n==12 and nh==0:
                EX=['v_and_b32 v0, 3, v1',f'v_lshl_add_u32 v0, v0, 6, v30',f's_lshl_b32 s{T1}, s{TQ}, 8\nv_add_u32 v0, s{T1}, v0']
            if n==14 and nh==0:
                R=['']*opt.get('wpos',6)+[f's_mov_b32 exec_lo, 0x000f000f\ns_mov_b32 exec_hi, 0x000f000f\nds_write_b128 v0, {v(SACC,4)}\ns_mov_b64 exec, -1']+R
                R+=GCR
            sl_=slots7 if n>=13 else slots6 if n>=11 else slots
            if u==0 and nh==0:
                e([f'v_mfma_f32_16x16x32_bf16 {v(SACC,4)}, {v(SFS[k],4)}, {v(SELS+4*k,4)}, {"0" if (n==0 and k==0) else v(SACC,4)}' for k in range(4)])
            rp_=2 if len(R)>16 else 1
            for mi in range(16):
                e(M[mi])
                for _ in range(rp_):
                    if R: e(R.pop(0))
                if mi==0: e(post)
                if EX: e(EX.pop(0))
                if (16*(1-u)+mi) in sl_ and pend: e(pend.pop(0))
            assert not R and not EX
        e(f's_mul_i32 s{HB}, s{HB}, {2*HSTR}')
        if opt.get('nost'): e(f's_mov_b32 s{HB}, {BIG}')
        if opt.get('prio')==nh: e('s_setprio 0')
        def foff(reg,sb):
            return f's_add_u32 s{T2}, s{FS}, {sb}\ns_lshl_b32 s{T2}, s{T2}, 10\ns_add_u32 s{T2}, s{T2}, s{HB}\ns_cmp_gt_u32 s{FCNT}, {sb}\ns_cselect_b32 s{reg}, s{T2}, {BIG}'
        def run_groups(groups, loads, ring, areg, hooks, mid=[], freed={}, depth=0):
            free=list(ring); dest=[]; depth=max(depth,len(ring))
            def ld():
                sr,imm=loads[len(dest)]; dest.append(free.pop(0))
                return [f's_add_u32 s{T0}, s{sr}, {imm}',f'buffer_load_dwordx4 {v(dest[-1],4)}, v{areg}, {srd(sWS)}, s{T0} offen sc1']
            while free: e(ld())
            e(mid)
            il=[]
            for gi,grp in enumerate(groups):
                g.stamp(f'q{gi}')
                h=hooks.get(gi)
                if h:
                    e(h[0]); il=il+list(h[1])
                for k,(a,li,Bq,first) in enumerate(grp):
                    if k%2==0: e(f's_waitcnt vmcnt({len(dest)-1-li})')
                    e(f'v_mfma_f32_32x32x16_bf16 {v(a,16)}, {v(dest[li],4)}, {v(Bq,4)}, {"0" if first else v(a,16)}')
                    if k%2==1: free.append(dest[li])
                    can=free and len(dest)<len(loads)
                    if can and (k%2==1 or (k in opt.get('gk',(0,)) and len(dest)-li<depth)): e(ld())
                    for _ in range(2):
                        if il: e(il.pop(0))
                free+=freed.get(gi,[])
            e(il)
        TILE=lambda mh,dh: ACC0+32*mh+16*dh
        if nh==1:
            TMP=16; SG=4
            v14=vgroup(f's{V14}, 0',[DF],sDN,FB,20*16384,4)
            V=vfull(10); nb=opt.get('nb',5)
            rd=vread(8,B1)
            e(mix(rd[:2*nb],V[:nb],2))
            if opt.get('w3',0):
                e(M); e(mix(rd[2*nb:]+GCR+sread(1,SG,TMP),V[nb:],2))
            else: e(mix(mix(M,V[nb:],2),rd[2*nb:]+GCR+sread(1,SG,TMP),1))
            g.stamp('loopend')
            e(foff(SOX,1)); e(foff(SOW,2))
            e('s_waitcnt vmcnt(12) lgkmcnt(8)')
            g.stamp('w9')
            V14B=[f's_cmp_ge_u32 s{TQ}, 2\ns_cbranch_scc1 L_no14']+vgroup(f's{V14}, 2048',[DF],sDN,FB,21*16384,2)+['L_no14:']
            S2R=sread(2,SG,ACC0)+['s_waitcnt lgkmcnt(0)']+sadd(SG,ACC0)
            G0,G1,G2,G3=gelu(ACC0,0,TMP,SOX,SG),gelu(ACC0,1,TMP,SOX,SG),gelu(ACC1,0,TMP,SOW,SG),gelu(ACC1,1,TMP,SOW,SG)
            pc=opt.get('pace',6)
            gp=f's_setprio {opt.get("gprio",1)}'
            V=vfull(11); nq=opt.get('nq',8)
            e(mix(vread(9,B2),V[:nq],3))
            g.stamp('c0')
            e(f's_waitcnt vmcnt({nq})')
            V=V[nq:]+[f's_mov_b32 m0, s{V14}\ns_add_u32 s{T2}, s{sE+1}, {8192-1024}\nbuffer_load_dwordx4 v2, {srd(sX)}, s{sE+1} offen lds',f'buffer_load_dwordx4 v2, {srd(sX)}, s{T2} offen offset:1024 lds',
                      'global_load_ushort v12, v3, s[52:53]','global_load_ushort v13, v3, s[52:53] offset:64']
            e('s_waitcnt lgkmcnt(15)')
            e(mix(vread(10,B3),V,3))
            g.stamp('ch1')
            e('s_waitcnt lgkmcnt(0)\ns_barrier')
            g.stamp('B9')
            e(sread(2,24,24)[:2][::1] if False else '')
            e(gp); e(sadd(SG,TMP))
            G2,G3=gelu(ACC1,0,TMP,SOW,ACC0),gelu(ACC1,1,TMP,SOW,ACC0)
            e(G0); e(mix(G1,sread(2,ACC0,24),8)); e('s_waitcnt lgkmcnt(0)'); e(sadd(ACC0,24)); e(G2); e(G3)
            g.stamp('gdone')
            e('v_lshrrev_b32 v5, 5, v1\nv_lshlrev_b32 v6, 6, v5')
            e([f'buffer_load_dwordx4 {v(32+8*mh+4*k,4)}, v6, {srd(sWS)}, s{sE} offen offset:{32*mh+256*k} sc1' for mh in range(2) for k in range(2)])
            e(f"""v_bfe_u32 v4, v1, 2, 2
v_lshl_add_u32 v4, v5, 2, v4
v_lshlrev_b32 v4, 7, v4
v_and_b32 v6, 3, v1
v_lshl_add_u32 v4, v6, 3, v4
v_and_b32 v6, 16, v1
v_lshl_add_u32 v4, v6, 1, v4
v_add_u32 v4, s{V14}, v4
v_lshl_add_u32 v10, v5, 4, s{WI}
v_lshlrev_b32 v3, 1, v3
v_lshl_add_u32 v10, v10, 11, v3
s_waitcnt vmcnt(8)""")
            e([f'ds_read_b64_tr_b16 {v(16+2*tl,2)}, v4 offset:{(tl>>1)*1024+(tl&1)*64}' for tl in range(4)])
            e(p2base(1))
            e('s_waitcnt lgkmcnt(0)'); e(v14[:2])
            sf=setflag(False).split('\ns_mov_b64 exec, 1')
            e(sf[0]); e('s_waitcnt vmcnt(6)'); e('s_mov_b64 exec, 1'+sf[1]); g.stamp('flag')
            e(V14B)
            e(f's_setprio {opt.get("bprio",0)}')
            e([f'v_mov_b32 v{ACC0+16*tl+k}, 0' for tl in range(4) for k in range(4,16)])
            e(f's_lshl_b32 s{T1}, s{TQ}, 7\nv_xor_b32 v11, s{T1}, v15\nv_lshlrev_b32 v8, 16, v12\nv_lshlrev_b32 v9, 16, v13\ns_waitcnt vmcnt(3)')
            for mh in range(2):
                for dh in range(2):
                    for i in range(4):
                        r=TILE(mh,dh)+i; xr=16+2*(2*mh+dh)+(i>>1)
                        e([f'v_lshlrev_b32 v{r}, 16, v{xr}' if i%2==0 else f'v_and_b32 v{r}, 0xffff0000, v{xr}',f'v_fma_f32 v4, v{r}, v{32+8*mh+i}, v{36+8*mh+i}',f'v_fmac_f32 v{r}, v4, v{8+dh}'])
            ZE=opt.get('ze',6)
            zfw=f's_lshl_b32 s{T1}, s{TQ}, 2\ns_add_u32 s{T1}, s{T1}, {ZF}\nv_mov_b32 v2, s{T1}\nv_mov_b32 v3, 1\nds_write_b32 v2, v3'
            e('s_waitcnt vmcnt(0)')
            e(pld(7))
            if ZE: e(zfw); hk1={ZE:(['s_barrier',g.st('Z1')],[])}
            else: hk1={0:([],['',zfw])}
            g.stamp('chores')
            e(pollchk('L_fp1',7,0,opt.get('slp1',2)))
            g.stamp('go')
            e(f's_setprio {opt.get("p2prio",1)}')
            loads=[(FBR[s_//6],(s_%6)*1024+mh*HSTR) for s_ in range(18) for mh in range(2)]
            order=[s_ for s_ in range(18) for mh in range(2)]
            groups=[[(TILE(mh,dh),2*s_+mh,B1+8*s_+4*dh,False) for mh in range(2) for dh in range(2)] for s_ in range(18)]
            run_groups(groups,loads,([16+4*k for k in range(8)]+[4])[:opt.get('nr1',9)],11,hk1,[],{s_:[B1+8*s_,B1+8*s_+4] for s_ in range(18)},opt.get('dp1',14))
            g.stamp('ph1')
            e('s_setprio 0')
            XS=112
            for j in range(1,4):
                e(f's_xor_b32 s{T1}, s{TQ}, {j}\ns_mul_i32 s{T1}, s{T1}, {XW}\ns_add_u32 s{T1}, s{T1}, {(j-1)*4096}\nv_add_u32 v{3+j}, s{T1}, v15')
            e(f'v_add_u32 v7, s{XR}, v15\nv_add_u32 v8, s{WQ}, v15')
            if not ZE: e('s_barrier'); g.stamp('Z1')
            for j in range(1,4):
                for tl in range(4): e(f'ds_write_b128 v{3+j}, {v(ACC0+16*tl+4*j,4)} offset:{tl*1024}')
            e('s_waitcnt lgkmcnt(0)\ns_barrier')
            g.stamp('Z2')
            osc=' sc1'
            def addq(r,srcs,pk):
                for q_ in srcs:
                    if pk:
                        for j in range(2): e(f'v_pk_add_f32 {v(r+2*j,2)}, {v(r+2*j,2)}, {v(q_+2*j,2)}')
                    else:
                        for j in range(4): e(f'v_add_f32 v{r+j}, v{r+j}, v{q_+j}')
            def outst(mh,dh):
                for i in range(4):
                    if i%2==0: e(f's_mov_b32 s{T0}, {mh*16384+i*2048}')
                    e(f'buffer_store_dword v{TILE(mh,dh)+i}, v10, {srd(sOUT)}, s{T0} offen offset:{dh*128+(i&1)*2048}{osc}')
            for tl in range(4):
                for j in range(3): e(f'ds_read_b128 {v(XS+12*tl+4*j,4)}, v7 offset:{j*4096+tl*1024}')
            for tl in range(4):
                e(f's_waitcnt lgkmcnt({9-3*tl})')
                addq(ACC0+16*tl,[XS+12*tl+4*k for k in range(3)],False)
            e('s_barrier')
            g.stamp('Z23')
            e(f's_setprio {opt.get("fprio",1)}')
            for dh in range(2):
                for k in range(4): e(f'ds_read_b128 {v(XS+16*dh+4*k,4)}, v7 offset:{16384+k*2048+dh*1024}')
            for dh in range(2):
                e(f's_waitcnt lgkmcnt({4-4*dh})')
                addq(TILE(0,dh),[XS+16*dh+4*k for k in range(4)],False); outst(0,dh)
            e('s_barrier')
            g.stamp('p2end')
            for dh in range(2):
                for k in range(4): e(f'ds_read_b128 {v(XS+16*dh+4*k,4)}, v8 offset:{dh*WSS+k*1024}')
            for dh in range(2):
                e(f's_waitcnt lgkmcnt({4-4*dh})')
                addq(TILE(1,dh),[XS+16*dh+4*k for k in range(4)],True); outst(1,dh)
        else:
            Xr=ACC0; Yr=ACC0+16
            e('s_setprio 2')
            SG=160; SS=176
            rd=[f'ds_read_b32 v{4+q_}, v2 offset:{256*q_}' for q_ in range(4)]+[f'ds_read_b128 {v((RS,MR)[k&1]+4*(k>>1),4)}, v31 offset:{256*(k&1)+16*(k>>1)}' for k in range(8)]+sread(0,SG,168)
            e(mix(M,rd,1))
            g.stamp('loopend')
            Z,T,P,Q=4,6,8,10
            e(foff(SOX,0))
            e(f's_lshl_b32 s{T0}, s{RB}, 2\ns_add_u32 s{T0}, s{T0}, s{TQ}\ns_sub_u32 s{T0}, 31, s{T0}\ns_lshl_b32 s{SOW}, s{T0}, 7')
            e(f's_waitcnt lgkmcnt(0)\nv_add_f32 v{SS}, v4, v6\nv_add_f32 v{SS+1}, v5, v7')
            npl=opt.get('npl',8)
            def scl(j): return f'v_mul_f32 v{Xr+j}, v{Xr+j}, v{RS+j}\nv_mul_f32 v{Yr+j}, v{Yr+j}, v{RS+j}\nv_fmac_f32 v{Xr+j}, v{MR+j}, v{SS}\nv_fmac_f32 v{Yr+j}, v{MR+j}, v{SS+1}'
            for j in range(16):
                if j<npl: e(scl(j))
                elif j==npl:
                    for i in range(npl//2,8):
                        xx=v(Xr+2*i,2); yy=v(Yr+2*i,2)
                        e(f'v_pk_mul_f32 {xx}, {xx}, {v(RS+2*i,2)}\nv_pk_mul_f32 {yy}, {yy}, {v(RS+2*i,2)}\nv_pk_fma_f32 {xx}, {v(MR+2*i,2)}, {v(SS,2)}, {xx} op_sel_hi:[1,0,1]\nv_pk_fma_f32 {yy}, {v(MR+2*i,2)}, {v(SS,2)}, {yy} op_sel:[0,1,0] op_sel_hi:[1,1,1]')
                if j: e(f'v_fmac_f32 v{Xr+j}, v{PR}, v{Xr+j-1}\nv_fmac_f32 v{Yr+j}, v{PR}, v{Yr+j-1}\nv_fmac_f32 v{Xr+j}, v{NI}, v{Yr+j-1}\nv_fmac_f32 v{Yr+j}, v{PI}, v{Xr+j-1}')
            g.stamp('a_scan')
            e(f'v_mov_b32 v{T}, v{Xr+15}\nv_mov_b32 v{T+1}, v{Yr+15}\nv_mov_b32 v{Z}, 0\nv_mov_b32 v{Z+1}, 0\nv_permlane16_swap_b32 v{Z}, v{T}\nv_permlane16_swap_b32 v{Z+1}, v{T+1}')
            e(cfma(P,(PR+15,PI+15),Z,(Xr+15,Yr+15)))
            e(f'v_mov_b32 v{Q}, v{P}\nv_mov_b32 v{Q+1}, v{P+1}\nv_mov_b32 v{T}, 0\nv_mov_b32 v{T+1}, 0\nv_permlane16_swap_b32 v{Q}, v{P}\nv_permlane16_swap_b32 v{Q+1}, v{P+1}')
            e(f'v_permlane32_swap_b32 v{T}, v{P}\nv_permlane32_swap_b32 v{T+1}, v{P+1}')
            e(cfma(P,L32,T,P))
            e(f'''v_min_u32 v{P}, -2, v{P}
v_min_u32 v{P+1}, -2, v{P+1}
s_mov_b32 exec_lo, 0
s_mov_b32 exec_hi, 0xffff0000
buffer_store_dwordx2 {v(P,2)}, v{EA}, {srd(sE)}, s{SOW} offen sc1
s_mov_b64 exec, -1''')
            g.stamp('b_pub')
            e(sadd(SG,168))
            e(gelu(ACC1,0,24,SOX,SG)+gelu(ACC1,1,24,SOX,SG)); g.stamp('gdone')
            D=vfull(12)+vfull(13)
            da,db,dc=[int(x) for x in opt.get('d0','6.4.12').split('.')]
            ER=[RS+2*k for k in range(8)]
            e(f'v_and_b32 v2, 48, v1\nv_lshl_add_u32 v{EA}, v2, 6, v{EA}\ns_add_u32 s{SOW}, s{SOW}, 128')
            eld='\n'.join(f'buffer_load_dwordx2 {v(ER[u_],2)}, v{EA}, {srd(sE)}, s{SOW} offen offset:{128*u_} sc1' for u_ in range(8))
            e('s_setprio 0\ns_barrier')
            g.stamp('B9')
            if db>=da:
                e(D[:da]); e(f's_waitcnt vmcnt({da})'); e(setflag(False)); g.stamp('flag0')
                e(D[da:db]); e(eld); ne=0
            else:
                e(D[:db]); e(eld); e(D[db:da]); e(f's_waitcnt vmcnt({da+8})'); e(setflag(False)); g.stamp('flag0')
                ne=da-db+1; db=da
            mark=len(g.L)
            e(cfma(Z,WSEL,T,Z)+cmul(CP,KAP,Z))
            kp=v(KAP,2)
            for i in range(8):
                xx=v(Xr+2*i,2); yy=v(Yr+2*i,2); tt=v(4+2*(i&1),2)
                e([f'v_pk_mul_f32 {tt}, {xx}, {kp} op_sel:[0,1] op_sel_hi:[1,1] neg_lo:[0,1] neg_hi:[0,1]',f'v_pk_mul_f32 {xx}, {xx}, {kp} op_sel_hi:[1,0]',
                     f'v_pk_fma_f32 {xx}, {yy}, {kp}, {xx} op_sel:[0,1,0] op_sel_hi:[1,1,1] neg_lo:[0,1,0] neg_hi:[0,1,0]',f'v_pk_fma_f32 {yy}, {yy}, {kp}, {tt} op_sel_hi:[1,0,1] neg_lo:[0,1,0] neg_hi:[0,1,0]'])
            SL=16
            e(f'''s_add_u32 s{T2}, s{CT}, 86
s_lshl_b32 s{T2}, s{T2}, 10
s_add_u32 s{T2}, s{T2}, s{HB}''')
            chk='\n'.join([f'v_max3_u32 v0, v{ER[0]}, v{ER[0]+1}, v{ER[1]}',f'v_max3_u32 v4, v{ER[1]+1}, v{ER[2]}, v{ER[2]+1}']+[f'v_max3_u32 v{(0,4)[u_&1]}, v{ER[u_]}, v{ER[u_]+1}, v{(0,4)[u_&1]}' for u_ in range(3,8)]+['v_max_u32 v0, v0, v4','v_cmp_eq_u32 vcc, -1, v0','s_cmp_eq_u64 vcc, 0'])
            KS=g.L[mark:]; del g.L[mark:]
            e(mix(KS,D[db:dc],opt.get('kp',2)))
            e(f's_waitcnt vmcnt({dc-db+ne})\n{chk}\ns_cbranch_scc0 L_epoll\nL_eok:')
            g.cold.append(f'''L_epoll:
s_mov_b32 s{SPIN}, 0
L_epoll1:
s_sleep {opt.get('eslp',4)}
{eld}
s_add_u32 s{SPIN}, s{SPIN}, 1
s_cmp_gt_u32 s{SPIN}, 100000
s_cbranch_scc1 L_eok
s_waitcnt vmcnt(0)
{chk}
s_cbranch_scc0 L_epoll1
s_branch L_eok''')
            g.stamp('Eok')
            e(f's_setprio {opt.get("eprio",2)}')
            for u_ in range(6,-1,-1): e(cfma(ER[u_],L64,ER[u_+1],ER[u_]))
            e(cmul(4,WH,ER[0]))
            for sw in ('16','32'):
                e(f'v_mov_b32 v6, v4\nv_mov_b32 v7, v5\nv_permlane{sw}_swap_b32 v6, v4\nv_permlane{sw}_swap_b32 v7, v5\nv_add_f32 v4, v6, v4\nv_add_f32 v5, v7, v5')
            e(cfma(CP,WG,4,CP))
            cp=v(CP,2)
            g.stamp('c_carry')
            for comp,R_,D_ in ((0,Xr,112),(1,Yr,128)):
                for i in range(8):
                    rr_=v(R_+2*i,2); pr=v(PR+2*i,2); pi=v(PI+2*i,2)
                    if comp==0: e(f'v_pk_fma_f32 {rr_}, {pr}, {cp}, {rr_} op_sel_hi:[1,0,1]\nv_pk_fma_f32 {rr_}, {pi}, {cp}, {rr_} op_sel:[0,1,0] op_sel_hi:[1,1,1] neg_lo:[0,1,0] neg_hi:[0,1,0]')
                    else: e(f'v_pk_fma_f32 {rr_}, {pr}, {cp}, {rr_} op_sel:[0,1,0] op_sel_hi:[1,1,1] neg_lo:[0,1,0] neg_hi:[0,1,0]\nv_pk_fma_f32 {rr_}, {pi}, {cp}, {rr_} op_sel_hi:[1,0,1] neg_lo:[0,1,0] neg_hi:[0,1,0]')
            for comp,R_,D_ in ((0,Xr,112),(1,Yr,128)):
                for i in range(8): e(f'v_cvt_pk_bf16_f32 v{R_+i}, v{R_+2*i}, v{R_+2*i+1}')
                for tb in range(2):
                    for ab in range(2): e(f'v_mfma_f32_16x16x32_bf16 {v(D_+8*tb+4*ab,4)}, {v(R_+4*tb,4)}, {v(SL+2-2*ab,4)}, 0')
            for comp,R_,D_ in ((0,Xr,112),(1,Yr,128)):
                for i in range(8): e(f'v_cvt_pk_bf16_f32 v{R_+8+i}, v{D_+2*i}, v{D_+2*i+1}')
                for tb in range(2):
                    o=R_+8+4*tb
                    e(f'v_permlane16_swap_b32 v{o}, v{o+2}\nv_permlane16_swap_b32 v{o+1}, v{o+3}')
                    e(f's_add_u32 s{T1}, s{T2}, {comp*32768+tb*HSTR}\nbuffer_store_dwordx4 {v(o,4)}, v15, {srd(sWS)}, s{T1} offen sc1')
            g.stamp('c_st')
            dd=min(len(D),dc+opt.get('dd',6))
            e(D[dc:dd])
            TV=144
            e(['v_and_b32 v2, 31, v1','v_lshrrev_b32 v3, 5, v1','v_bfe_u32 v0, v1, 1, 3','v_xor_b32 v0, v3, v0','v_lshlrev_b32 v0, 4, v0','v_lshl_add_u32 v0, v2, 7, v0',f'v_add_u32 v4, s{XR}, v0',f'v_add_u32 v8, s{WQ}, v0'])
            for k in range(1,4): e(f'v_xor_b32 v{4+k}, {32*k}, v4\nv_xor_b32 v{8+k}, {32*k}, v8')
            e(traddr(0,3)+[f'v_add_u32 v{TV+4}, s{WQ}, v0',f'v_add_u32 v{TV+5}, s{WQ}, v3',f'v_add_u32 v{TV}, s{V14}, v0',f'v_add_u32 v{TV+1}, s{V14}, v3'])
            e(f's_lshl_b32 s{T1}, s{TQ}, 2\ns_add_u32 s{T1}, s{T1}, {ZF}\nv_mov_b32 v14, s{T1}')
            e(f's_waitcnt vmcnt({dd-dc})'); e(setflag(True))
            g.stamp('flag')
            e(D[dd:]); e('s_setprio 0'); e(p2base(0))
            g.stamp('dend')
            JB=112; RB_=160
            MID=[f'''s_mov_b32 s{SPIN}, 0
L_z0:
s_sleep 1
ds_read_b32 v2, v14
s_add_u32 s{SPIN}, s{SPIN}, 1
s_waitcnt lgkmcnt(0)
v_cmp_ne_u32 vcc, 1, v2
s_cmp_gt_u32 s{SPIN}, 1000000
s_cselect_b64 vcc, 0, vcc
s_cmp_eq_u64 vcc, 0
s_cbranch_scc0 L_z0''',g.st('Z0')]
            MID+=[f'ds_read_b128 {v(JB+8*k+4*dh,4)}, v{4+k} offset:{2*8192+dh*4096}' for k in range(4) for dh in range(2)]
            RD2=[f'ds_read_b128 {v(RB_+32*bl+8*k+4*dh,4)}, v{4+k} offset:{bl*8192+dh*4096}' for bl in range(2) for k in range(4) for dh in range(2)]
            RD2+=[f'ds_read_b128 {v(RB_+64+8*k+4*dh,4)}, v{8+k} offset:{dh*WSS}' for k in range(4) for dh in range(2)]
            WA=[f's_lshl_b32 s{T1}, s{TQ}, 11\ns_add_u32 s{T1}, s{T1}, {q_*XW+16384}\nv_add_u32 v{4+q_}, s{T1}, v15' for q_ in range(4)]
            WA+=[f's_lshl_b32 s{T1}, s{TQ}, 10\ns_add_u32 s{T1}, s{T1}, {WB}\nv_add_u32 v8, s{T1}, v15']
            ZE=opt.get('ze',6)
            e(MID[:2]); MID=MID[2:]+RD2
            if ZE:
                e('s_waitcnt vmcnt(0)'); e(MID); MID=[]; e('s_waitcnt lgkmcnt(0)\ns_barrier'); g.stamp('Z1')
            e(pld(3))
            e(f's_cmp_ge_u32 s{TQ}, 2\ns_cselect_b32 s{XL}, {BIG}, s{SOW}\ns_cselect_b32 s{T1}, 0, 2048\nv_add_u32 v{TV+2}, s{T1}, v{TV}\nv_add_u32 v{TV+3}, s{T1}, v{TV+1}')
            e(pollchk('L_fp0',3,0,opt.get('slp0',6)))
            g.stamp('go')
            HS=FBR+[CB2]
            st_=[(HS[0],(86+k)*1024,JB+8*k) for k in range(4)]+[(SOW,(18+k)*1024,JB+8*k) for k in range(3)]+[(XL,21*1024,JB+24)]
            st2=[(HS[1+bl],(86+k)*1024,RB_+32*bl+8*k) for bl in range(3) for k in range(4)]
            loads=[];order=[];groups=[]
            for s_,(sr,im,Bq) in enumerate(st_):
                groups.append([(TILE(mh,dh),len(loads)+mh,Bq+4*dh,s_==0) for mh in range(2) for dh in range(2)])
                for mh in range(2): loads.append((sr,im+mh*HSTR)); order.append(s_)
            for mh in range(2):
                for p_ in range(6):
                    grp=[]
                    for s_ in (2*p_,2*p_+1):
                        sr,im,Bq=st2[s_]
                        grp+=[(TILE(mh,dh),len(loads),Bq+4*dh,False) for dh in range(2)]
                        loads.append((sr,im+mh*HSTR)); order.append(len(groups))
                    groups.append(grp)
            jit=[trstep(JB,TV+4,2*WSS),trstep(JB+8,TV+4,2*WSS+2048),trstep(JB+16,TV,0),trstep(JB+24,TV+2,0)]
            hooks={0:(['s_waitcnt lgkmcnt(0)'],[]),1:([],jit[0]),2:([],jit[1]),3:([],jit[2]),
                   4:(['s_waitcnt lgkmcnt(8)'],jit[3]),5:(['s_waitcnt lgkmcnt(8)'],[]),6:(['s_waitcnt lgkmcnt(4)'],[]),7:(['s_waitcnt lgkmcnt(0)'],WA)}
            z1=opt.get('z1',3); z2=opt.get('z2',10); z23=opt.get('z23',17); TM=opt.get('tm',6)
            for zz,nm in ((z1,'Z1'),(z2,'Z2'))[1 if ZE else 0:]:
                h_=hooks.get(zz,([],[])); hooks[zz]=(h_[0]+['s_barrier',g.st(nm)],h_[1])
            wr0=[]
            for dh in range(2):
                for q_ in range(4): wr0+=[f'ds_write_b128 v{4+q_}, {v(TILE(0,dh)+4*q_,4)} offset:{dh*1024}']+['']*opt.get('ws',1)
            hooks[14]=([],['']*6+wr0)
            assert 6+8*(1+opt.get('ws',1))-opt.get('ws',1)<=8*(z23-14)
            hooks[z23]=(['s_waitcnt lgkmcnt(0)','s_barrier',g.st('Z23')],[])
            run_groups(groups,loads,([16+4*k for k in range(8)]+[152,156])[:opt.get('nr0',8)],15,hooks,MID)
            g.stamp('ph2')
            wr1=lambda dh: [f'ds_write_b128 v8, {v(TILE(1,dh)+4*q_,4)} offset:{dh*WSS+q_*4096}' for q_ in range(4)]
            if TM:
                idx=[k for k,l_ in enumerate(g.L) if 'v_mfma_f32_32x32x16' in l_][-2*TM:]
                seg=g.L[idx[0]:]; del g.L[idx[0]:]
                assert not any('buffer_load' in l_ for l_ in seg)
                t1=v(TILE(1,1),16)
                late=[l_ for l_ in seg if 'v_mfma' in l_ and l_.split()[1].rstrip(',')==t1]
                e([l_ for l_ in seg if l_ not in late])
                e([late[0],'s_nop 4',late[1],'s_nop 3']); e(mix(late[2:],wr1(0),1)); e(wr1(1))
            else: e(wr1(0)+wr1(1))
            e('s_waitcnt lgkmcnt(0)\ns_barrier')
            g.stamp('p2end')
            e('s_branch L_fin')
            e(g.cold); g.cold=[]
    e('L_fin:')
    if opt.get('stamps'):
        e('s_waitcnt vmcnt(0)'); g.stamp('done')
        e(f'''s_waitcnt lgkmcnt(0)
s_cmp_eq_u32 s{TQ}, {opt.get('stq',0)}
s_cbranch_scc0 L_end
s_add_u32 s{sX}, s66, {STAMP}
s_addc_u32 s{sX+1}, s67, 0
s_lshl_b32 s{T0}, s2, 1
s_add_u32 s{T0}, s{T0}, s{NH}
s_lshl_b32 s{T0}, s{T0}, 7
v_mov_b32 v2, 0''')
        prs=[100]+G.POOL[:len(g.names())]
        if 'diag' in opt:
            p=prs[(['start']+g.names()).index(opt['diag'])]
            e(f's_cmp_eq_u32 s{NH}, {opt.get("dr",0)}\ns_cbranch_scc0 L_end\nL_dg:\ns_memrealtime s[72:73]\ns_waitcnt lgkmcnt(0)\ns_sub_u32 s72, s72, s{p}\ns_cmp_lt_u32 s72, 6000\ns_cbranch_scc1 L_dg')
            prs=[]
        for i,p in enumerate(prs): e(f'v_mov_b32 v4, s{p}\nv_mov_b32 v5, s{p+1}\nbuffer_store_dwordx2 v[4:5], v2, {srd(sX)}, s{T0} offen offset:{8*i}')
    e('L_end:\ns_endpgm'); e(g.cold)
    if opt.get('stamps'): g.L.insert(0,'; STAMPS start,'+','.join(g.names()))
    if opt.get('plain'):
        pl=opt['plain']
        for i_,l_ in enumerate(g.L):
            if pl&1 and 'buffer_store_dwordx4' in l_ and 's[12:15]' in l_: g.L[i_]=l_.replace(' sc1','')
            if pl&2 and 'buffer_atomic_add' in l_ and 's[12:15]' in l_: g.L[i_]=l_.replace(' sc1','')
            if pl&4 and 'buffer_load_dwordx4 v[' in l_ and 's[12:15]' in l_: g.L[i_]=l_.replace(' sc1','')
    if opt.get('nopoll'):
        for i_,l_ in enumerate(g.L):
            if 'v_cmp_gt_u32 vcc, 12,' in l_: g.L[i_]=l_.replace('12,','0,')
    if opt.get('noe'):
        for i_,l_ in enumerate(g.L):
            if 'v_cmp_eq_u32 vcc, -1, v0' in l_: g.L[i_]='  v_cmp_gt_u32 vcc, 0, v0'
    if opt.get('ahit'):
        for i_,l_ in enumerate(g.L):
            if 'buffer_load_dwordx4 v[' in l_ and 's[12:15]' in l_ and 'offen sc1' in l_:
                g.L[i_-1]=g.L[i_-1]+f'\n  s_and_b32 s{T0}, s{T0}, 0xffff'
                g.L[i_]=l_.replace('s[12:15]','s[28:31]')
    body=hz.fix('\n'.join(g.L), verbose=opt.get('v',0))
    ref=open('parallel_sum__ssm_conv_s5__geglu_ffn__prompt.s.ref').read() if opt.get('final') else ''
    cm_=''.join(l+'\n' for l in ref.split('\n') if l.startswith(';') and '@launch' not in l and 'Override' not in l and 'grid=ceil' not in l)
    return cm_+header([(NAME,256,512,163840)])+kstart(NAME)+body+'\n'+RODATA+kd(NAME,256,256)

if __name__=='__main__':
    out=sys.argv[1]; opt={}
    for a in sys.argv[2:]:
        k,_,val=a.partition('='); opt[k]=int(val) if val.lstrip('-').isdigit() else (val or 1)
    open(out,'w').write(build(opt))
```

```python
import sys, struct, math
from asmlib import *
import hz
from gen_v3 import F, LOG2E, BIG, G, cmul, cfma, mix, mksrd, fsplit, v, srd
XW=24576; WB=98304; WSS=16640; GOFF=4096; UOFF=4096+6144+128
SCR=WB+3*WSS; SP=SCR+12288; RM=SP+1024; ZF=RM+2048
HSTR=150*1024; ST_M=0xA00000; ST_R=0xA08000; FLG=0xA20000; EOFF=0xA60000; WSSZ=0xA80000
STAMP=0x8000000
sX,sW,sWS,sDBG,sCR,sCI,sDN,sE,sOUT=4,8,12,16,20,24,28,32,68
FS=3; WI=72; CB=73; FCNT=74; FB=75
W_,TQ,NH,RB,CT,ROT,WSTEP,XL,WL=76,77,78,79,80,81,82,83,84
RB2,TQ2,DQ,SOX,SOW,T0,T1,T2,F0,HB,XR,WQ=85,86,87,88,89,90,91,92,93,94,95,96
SPIN=97; HA=98; V14=99
FBR=[0,1,54]; CB2=55; R4=60; R3=61
G.POOL=[36,42,44,56,58,38,40,46,48,50,64,62]
DX=16; DW=20; DC=12; DF=14; PTX=24; PTW=27
XA=22; SA=24; TA=26; S1=27; S2=28
GC=32; SFS=[4,8,32,36]; SACC=40; SELS=224
ACC0=48; PR=80; PI=96
B1,B2,B3=112,160,208
FR=160; MR=224; RS=240
L64,WG,WH,L32,WSEL,KAP,CP,EA,NI=144,146,148,150,152,154,156,158,159
G.DEF='B0,B8,b_pub,gdone,Eok,flag,go,ph1,Z1,Z23,p2end,done'

def build(opt):
    g=G(opt); e=g.e
    PF=opt.get('pf',1)
    if opt.get('gk')==2: opt['gk']=(0,2)
    cpf='v_lshlrev_b32 v2, 7, v0' if opt.get('cpf',1)==0 else 's_and_b32 s3, s2, 0xf8\nv_add_lshl_u32 v2, v3, s3, 7'
    WD=F0; XH=HA
    e(f'''s_cmp_ge_u32 s2, 256
s_cbranch_scc1 L_end
s_load_dwordx16 s[36:51], s[0:1], 0
s_load_dwordx16 s[52:67], s[0:1], 64
s_getpc_b64 s[72:73]
L_pc0:
v_lshrrev_b32 v3, 6, v0
{cpf}
v_min_u32 v2, L_end-L_pc0, v2
v_and_b32 v1, 63, v0
v_readfirstlane_b32 s{W_}, v3
global_load_dword v9, v2, s[72:73]
s_and_b32 s{RB2}, s2, 7
s_lshr_b32 s{WI}, s2, 3
s_and_b32 s{TQ2}, s{WI}, 3
s_lshr_b32 s{DQ}, s{WI}, 2''')
    if opt.get('stamps'): e(('s_memtime' if opt['stamps']==2 else 's_memrealtime')+' s[100:101]')
    e(f'''s_and_b32 s{T0}, s2, 1
s_lshl_b32 s{RB}, s{T0}, 2
s_add_u32 s{RB}, s{RB}, s{TQ2}
s_lshr_b32 s{T1}, s{RB2}, 1
s_lshl_b32 s{CT}, s{T1}, 3
s_add_u32 s{CT}, s{CT}, s{DQ}''')
    if opt.setdefault('xm',1): e(f's_xor_b32 s{RB2}, s{T0}, 1\ns_lshl_b32 s{RB2}, s{RB2}, 2\ns_add_u32 s{RB2}, s{RB2}, s{T1}')
    if opt.setdefault('jx',4): e(f's_xor_b32 s{CT}, s{CT}, {opt["jx"]}')
    if opt.get('dx'): e(f's_xor_b32 s{DQ}, s{DQ}, {opt["dx"]}')
    if opt.get('map')=='A':
        e(f's_mov_b32 s{RB}, s{RB2}\ns_lshl_b32 s{CT}, s{TQ2}, 3\ns_add_u32 s{CT}, s{CT}, s{DQ}\ns_xor_b32 s{CT}, s{CT}, {opt.get("jx",0)}')
    oa,ob=opt.get('ord','x01245673.45670123')[1:].split('.')
    e(f's_mov_b32 s{ROT}, 0x{oa[::-1]}\ns_cmp_eq_u32 s{T0}, 1\ns_cselect_b32 s{ROT}, 0x{ob[::-1]}, s{ROT}')
    e(f'''s_and_b32 s{TQ}, s{W_}, 3
s_lshr_b32 s{NH}, s{W_}, 2
s_and_b32 s{T0}, s{CT}, {opt.get('sx',1)}
s_xor_b32 s{XH}, s{NH}, s{T0}
v_lshrrev_b32 v4, 3, v1          ; q
v_and_b32 v5, 7, v1              ; pos
v_lshrrev_b32 v6, 2, v4
v_lshlrev_b32 v6, 4, v6
v_and_or_b32 v6, v4, 3, v6
s_lshl_b32 s{T0}, s{RB}, 2
s_add_u32 s{HB}, s{T0}, s{TQ}        ; rb*4+tq
s_lshl_b32 s{T0}, s{HB}, 6
s_lshl_b32 s{T1}, s{XH}, 3
s_add_u32 s{T1}, s{T1}, s{T0}
v_add_u32 v6, s{T1}, v6
v_lshlrev_b32 v6, 10, v6
v_lshrrev_b32 v7, 1, v4
v_xor_b32 v7, v5, v7
v_xor_b32 v8, 4, v7
v_lshl_add_u32 v{DX}, v7, 4, v6
v_lshl_add_u32 v{DX+1}, v8, 4, v6
v_add_u32 v{DX+1}, {32768-1024}, v{DX+1}
v_add_u32 v{DX+2}, 2048, v{DX}
v_add_u32 v{DX+3}, 2048, v{DX+1}
s_mul_i32 s{XR}, s{TQ}, {XW}
s_lshl_b32 s{T1}, s{XH}, 12
s_add_u32 s{XL}, s{XR}, s{T1}
s_mov_b32 s{sX+2}, 2097152
s_mov_b32 s{sX+3}, 0x20000''')
    XF=opt.get('xf',1)
    X0=[f's_and_b32 s{T0}, s{ROT}, 7\ns_lshl_b32 s{T0}, s{T0}, 7\ns_mov_b32 m0, s{XL}\ns_waitcnt lgkmcnt(0)\ns_mov_b32 s{sX}, s36\ns_mov_b32 s{sX+1}, s37',g.st('e0')]
    X0+=[f'buffer_load_dwordx4 v{DX+j}, {srd(sX)}, s{T0} offen'+(f' offset:{1024*j}' if j else '')+' lds' for j in range(4)]
    if XF: e(X0)
    e(fsplit(CT,FS,FCNT,T0))
    e(f'''s_and_b32 s{T0}, s{RB}, {opt.get('sw',1)}
s_lshl_b32 s{T0}, s{T0}, 2
s_xor_b32 s{WD}, s{W_}, s{T0}
s_cmp_ge_u32 s{WD}, 5
s_cselect_b32 s{T1}, 5, 2
s_cselect_b32 s{T2}, {WB+128}, {0}
s_cselect_b32 s{WL}, 0, {WB}
s_add_u32 s{WL}, s{WL}, s{T2}
s_lshl_b32 s{T2}, s{WD}, 11
s_add_u32 s{WL}, s{WL}, s{T2}
s_sub_u32 s{T1}, s{WD}, s{T1}
s_lshl_b32 s{T1}, s{T1}, 7
s_lshl_b32 s{T2}, s{FS}, 5
s_lshl_b32 s{SOX}, s{FCNT}, 1
v_mov_b32 v0, 0x80000000''')
    for j in range(2):
        e(f'''v_add_u32 v6, s{T1}, v1
v_add_u32 v6, {64*j}, v6
v_mul_u32_u24 v10, 10923, v6
v_lshrrev_b32 v10, 16, v10
v_mul_u32_u24 v11, 6, v10
v_sub_u32 v11, v6, v11           ; c
v_lshrrev_b32 v6, 1, v10
v_xor_b32 v6, v6, v10
v_and_b32 v6, 4, v6
v_mul_u32_u24 v6, 3, v6
v_xor_b32 v10, v10, v6
v_mul_u32_u24 v10, 2752, v10
v_lshl_add_u32 v10, v11, 4, v10
v_add_u32 v10, s{T2}, v10
v_cmp_gt_u32 vcc, s{SOX}, v11
v_subrev_u32 v10, {1024*j}, v10
v_cndmask_b32 v{DW+j}, v0, v10, vcc''')
    e(f'''s_mov_b32 s{WSTEP}, 176128
s_mov_b32 s{sW+2}, 1409024
s_mov_b32 s{sW+3}, 0x20000
s_lshl_b32 s{T1}, s{CT}, 4
v_add_u32 v6, s{T1}, v4
v_lshlrev_b32 v6, 10, v6
v_lshl_add_u32 v10, v7, 4, v6
v_lshl_add_u32 v11, v8, 4, v6
v_add_u32 v11, 7168, v11
s_cmp_lt_u32 s{WD}, 2
s_cselect_b64 vcc, -1, 0
s_cselect_b32 s{WSTEP}, 128, s{WSTEP}
s_cselect_b32 s{sW+2}, 524288, s{sW+2}
v_cndmask_b32 v{DW}, v{DW}, v10, vcc
v_cndmask_b32 v{DW+1}, v{DW+1}, v11, vcc
''')
    if not XF: e(X0)
    e(f'''s_cmp_eq_u32 s{WD}, 0
s_cselect_b32 s{sW}, s42, s44
s_cselect_b32 s{sW+1}, s43, s45
s_cmp_ge_u32 s{WD}, 2
s_cselect_b32 s{sW}, s56, s{sW}
s_cselect_b32 s{sW+1}, s57, s{sW+1}
s_cmp_ge_u32 s{WD}, 5
s_cselect_b32 s{sW}, s58, s{sW}
s_cselect_b32 s{sW+1}, s59, s{sW+1}
s_and_b32 s{T0}, s{ROT}, 7
s_mov_b32 m0, s{WL}
s_mul_i32 s{SOW}, s{T0}, s{WSTEP}
buffer_load_dwordx4 v{DW}, {srd(sW)}, s{SOW} offen lds
buffer_load_dwordx4 v{DW+1}, {srd(sW)}, s{SOW} offen offset:1024 lds''')
    def slab(i):
        st=i%3
        L=[f's_bfe_u32 s{T0}, s{ROT}, {0x30000+4*i}\ns_lshl_b32 s{SOX}, s{T0}, 7\ns_add_u32 m0, s{WL}, {st*WSS}\ns_mul_i32 s{SOW}, s{T0}, s{WSTEP}\nbuffer_load_dwordx4 v{DW}, {srd(sW)}, s{SOW} offen lds']
        L.append(f'buffer_load_dwordx4 v{DW+1}, {srd(sW)}, s{SOW} offen offset:1024 lds\ns_add_u32 m0, s{XL}, {st*8192}')
        for j in range(4): L.append(f'buffer_load_dwordx4 v{DX+j}, {srd(sX)}, s{SOX} offen'+(f' offset:{1024*j}' if j else '')+' lds')
        return L
    N1=opt.get('n1',3)
    g.stamp('e1')
    e(f'''s_cmp_eq_u32 s{NH}, 1
s_cbranch_scc1 L_role1''')

    def setup(nh):
        e(mksrd(sWS,66,67,WSSZ)); nd=0 if opt.get('nodma') else 1; e(mksrd(sCR,46,47,524288*nd)); e(mksrd(sCI,48,49,524288*nd)); e(mksrd(sDN,60,61,1409024*nd)); e(mksrd(sOUT,62,63,4194304))
        if nh==0:
            e(mksrd(sDBG,64,65,256))
            e(f's_lshl_b32 s{T0}, s{CT}, 12\ns_add_u32 s{T0}, s{T0}, {EOFF}\ns_add_u32 s{sE}, s66, s{T0}\ns_addc_u32 s{sE+1}, s67, 0\ns_mov_b32 s{sE+2}, 4096\ns_mov_b32 s{sE+3}, 0x20000')
        else:
            e(f's_lshl_b32 s{T0}, s{DQ}, 6\nv_add_u32 v6, s{T0}, v4\nv_lshlrev_b32 v6, 10, v6\nv_lshl_add_u32 v{DC}, v7, 4, v6\nv_lshl_add_u32 v{DC+1}, v8, 4, v6')
        a3,b3,a4,b4,m4=[int(x) for x in opt.get('rr','0.0.0.0.0').split('.')]
        rots=f'''s_mul_i32 s{R3}, s{DQ}, {a3}
s_mul_i32 s{T1}, s{TQ2}, {b3}
s_add_u32 s{R3}, s{R3}, s{T1}
s_mul_i32 s{T1}, s{R3}, 11
s_lshr_b32 s{T1}, s{T1}, 5
s_mul_i32 s{T1}, s{T1}, 3
s_sub_u32 s{R3}, s{R3}, s{T1}
s_mul_i32 s{R3}, s{R3}, 6
s_lshl_b32 s{T1}, s{R3}, 14
s_add_u32 s{FBR[0]}, s{FB}, s{T1}
s_add_u32 s{FBR[1]}, s{FBR[0]}, {6*16384}
s_cmp_eq_u32 s{R3}, 12
s_cselect_b32 s{FBR[1]}, s{FB}, s{FBR[1]}
s_add_u32 s{FBR[2]}, s{FBR[1]}, {6*16384}
s_cmp_eq_u32 s{R3}, 6
s_cselect_b32 s{FBR[2]}, s{FB}, s{FBR[2]}
s_mul_i32 s{R4}, s{DQ}, {a4}
s_mul_i32 s{T1}, s{TQ2}, {b4}
s_add_u32 s{R4}, s{R4}, s{T1}
s_and_b32 s{R4}, s{R4}, {m4}
s_and_b32 s{T1}, s{R4}, 2
s_lshl_b32 s{T1}, s{T1}, 6
s_add_u32 s{CB}, s{CB}, s{T1}
s_xor_b32 s{CB2}, s{CB}, 128
s_bitcmp1_b32 s{R4}, 0
s_cselect_b32 s{sCR}, s48, s46
s_cselect_b32 s{sCR+1}, s49, s47
s_cselect_b32 s{sCI}, s46, s48
s_cselect_b32 s{sCI+1}, s47, s49'''
        e(f'''v_lshlrev_b32 v6, 1, v4
v_and_b32 v6, 4, v6
v_xor_b32 v6, v5, v6
v_lshlrev_b32 v6, 4, v6
v_lshl_add_u32 v6, v4, 10, v6
s_lshl_b32 s{T0}, s{DQ}, 7
v_add_u32 v{DF}, s{T0}, v6
s_mul_i32 s{F0}, s{TQ}, 22
s_cmp_eq_u32 s{TQ}, 3
s_cselect_b32 s{T0}, 1, 0
s_sub_u32 s{F0}, s{F0}, s{T0}
s_lshl_b32 s{FB}, s{F0}, 14
s_lshl_b32 s{CB}, s{TQ}, 8
{rots}
s_lshl_b32 s{WQ}, s{TQ}, 12
s_lshl_b32 s{T0}, s{T0}, 11
s_sub_u32 s{V14}, s{WQ}, s{T0}
s_add_u32 s{V14}, s{V14}, {SCR}
s_add_u32 s{WQ}, s{WQ}, {WB}
s_lshl_b32 s{HA}, s{HB}, 2
s_lshr_b32 s{T0}, s{CT}, 3
s_add_u32 s{HA}, s{HA}, s{T0}
s_lshl_b32 s{HA}, s{HA}, 8
s_add_u32 s{HA}, s{HA}, {FLG}
v_and_b32 v2, 15, v1
v_lshrrev_b32 v3, 4, v1
v_bfe_u32 v6, v1, 1, 3
v_xor_b32 v6, v3, v6
v_lshlrev_b32 v6, 4, v6
v_lshl_add_u32 v6, v2, 7, v6
v_add_u32 v{XA}, s{XR}, v6
v_xor_b32 v{XA+1}, 64, v{XA}
v_bfe_u32 v10, v1, 2, 3
v_lshrrev_b32 v11, 5, v1
v_lshl_add_u32 v10, v11, 4, v10
v_mul_u32_u24 v10, 96, v10
v_and_b32 v11, 3, v1
v_lshl_add_u32 v10, v11, 3, v10
v_add_u32 v{TA}, {WB+GOFF}, v10
s_lshr_b32 s{T0}, s{TQ}, 1
s_and_b32 s{T1}, s{TQ}, 1
s_mul_i32 s{T2}, s{T0}, 3072
s_mul_i32 s{SPIN}, s{T1}, {UOFF-GOFF}
s_add_u32 s{T2}, s{T2}, s{SPIN}''')
        if nh==0:
            e(f'''v_add_u32 v{S2}, s{T2}, v{TA}
v_add_u32 v{SA}, {WB}, v6
v_xor_b32 v{SA+1}, 64, v{SA}
s_lshl_b32 s{T0}, s{T0}, 6
s_lshl_b32 s{T1}, s{T1}, 11
v_xor_b32 v{S1}, s{T0}, v{SA}
v_add_u32 v{S1}, s{T1}, v{S1}''')
        if nh==0:
            e('v_mov_b32 v3, 0x3f803f80')
            for f_ in range(4):
                e(f'v_cmp_eq_u32 vcc, {f_}, v2')
                for k in range(4): e(f'v_cndmask_b32 v{SELS+4*f_+k}, 0, v3, vcc')
        else:
            e(traddr(0,3)+[f'v_add_u32 v{PTX}, s{XR}, v0',f'v_add_u32 v{PTX+1}, s{XR}, v3',f'v_add_u32 v{PTW}, s{WQ}, v0',f'v_add_u32 v{PTW+1}, s{WQ}, v3'])
        e(f'v_and_b32 v29, 15, v1\nv_lshl_add_u32 v29, v29, 4, s{V14}\nv_and_b32 v30, 48, v1\ns_lshl_b32 s{T0}, s{TQ}, 9\ns_add_u32 s{T0}, s{T0}, {RM}\nv_lshl_add_u32 v31, v30, 2, s{T0}\nv_add_u32 v30, {SP}, v30')
        e('v_lshlrev_b32 v15, 4, v1')
        if opt.get('stamps'):
            for r,nm in zip(G.POOL,g.names()):
                if nm not in ('e0','e1'): e(f's_mov_b64 s[{r}:{r+1}], 0')
    def vgroup(m0, vregs, sr, sb, imm, n):
        L=[]
        for j in range(n):
            t=f's_add_u32 m0, {m0}\n' if j==0 else ''
            t+=f's_add_u32 s{T0}, s{sb}, {imm+j*(8192-1024)}\nbuffer_load_dwordx4 v{vregs[j%len(vregs)]}, {srd(sr)}, s{T0} offen'+(f' offset:{1024*j}' if j else '')+' lds'
            L.append(t)
        return L
    def vx(vs,half):
        st=vs%3; m0=f's{XR}, {st*8192+half*4096}'
        if vs>=11:
            b=vs-11; return vgroup(m0,[DC,DC+1],sCI if b&1 else sCR,CB2 if b>>1 else CB,half*32768,4)
        return vgroup(m0,[DF],sDN,FBR[vs-8],half*32768,4)
    def vw(vs,half=None):
        st=vs%3
        if vs>=12: return vgroup(f's{WQ}, {st*WSS}',[DC,DC+1],sCI,CB2,(vs-12)*32768,4)
        fs,fb=(4,FBR[vs-8]) if vs<11 else (18,FB)
        if half is None: return vgroup(f's{WQ}, {st*WSS}',[DF],sDN,fb,fs*16384,4)
        return vgroup(f's{WQ}, {st*WSS+half*2048}',[DF],sDN,fb,(fs+half)*16384,2)
    def vhalf(vs,nh): return vw(vs,nh)+vx(vs,nh)
    def vfull(vs): return vx(vs,0)+vx(vs,1)+vw(vs)
    def traddr(t0,t1):
        return [f'v_bfe_u32 v{t0}, v1, 2, 2',f'v_lshrrev_b32 v{t1}, 5, v1',f'v_lshl_add_u32 v{t0}, v{t1}, 3, v{t0}',f'v_lshlrev_b32 v{t0}, 7, v{t0}',f'v_and_b32 v{t1}, 3, v1',f'v_lshl_add_u32 v{t0}, v{t1}, 3, v{t0}',
            f'v_bfe_u32 v{t1}, v1, 4, 1',f'v_lshl_add_u32 v{t0}, v{t1}, 5, v{t0}',f'v_bfe_u32 v{t1}, v1, 3, 1',f'v_lshl_add_u32 v{t0}, v{t1}, 6, v{t0}',f'v_xor_b32 v{t1}, 64, v{t0}']
    def trstep(base,areg,off):
        return [f'ds_read_b64_tr_b16 {v(base+dh*4+2*j,2)}, v{areg+dh} offset:{off+j*512}' for dh in range(2) for j in range(2)]
    def vread(vs, base):
        st=vs%3; L=[]
        for k in range(4): L+=trstep(base+8*k,PTX,st*8192+k*2048)
        for k in range(2): L+=trstep(base+32+8*k,PTW,st*WSS+k*2048)
        return L
    def gelu(acc, tb, tmp, soff, sg):
        L=[]; t=tmp
        G_=lambda i: v(acc+8*tb+2*i,2); U_=lambda i: v(acc+16+8*tb+2*i,2); T_=lambda i: v(t+2*i,2)
        cp=lambda i: v(GC+4*(2*tb+(i>>1)),2); rp=lambda i: v(GC+4*(2*tb+(i>>1))+2,2); o=acc+16+8*tb
        for i in range(4): L.append(f'v_pk_fma_f32 {G_(i)}, {v(sg+2*(i&1),2)}, {rp(i)}, {G_(i)} op_sel:[0,1,0] op_sel_hi:[1,1,1]')
        for i in range(4): L.append(f'v_pk_mul_f32 {T_(i)}, {G_(i)}, {G_(i)}')
        for i in range(4): L.append(f'v_pk_fma_f32 {T_(i)}, {T_(i)}, {cp(i)}, {cp(i)} op_sel:[0,1,0] op_sel_hi:[1,1,0]')
        for i in range(4): L.append(f'v_pk_mul_f32 {T_(i)}, {T_(i)}, {G_(i)}')
        for i in range(8): L.append(f'v_exp_f32 {v(t+i)}, {v(t+i)}')
        for i in range(4): L.append(f'v_pk_fma_f32 {U_(i)}, {v(sg+4+2*(i&1),2)}, {rp(i)}, {U_(i)} op_sel:[0,1,0] op_sel_hi:[1,1,1]')
        for i in range(4): L.append(f'v_pk_fma_f32 {T_(i)}, {T_(i)}, {rp(i)}, {rp(i)} op_sel_hi:[1,0,0]')
        for i in range(8): L.append(f'v_rcp_f32 {v(t+i)}, {v(t+i)}')
        for i in range(4): L.append(f'v_pk_mul_f32 {G_(i)}, {G_(i)}, {U_(i)}')
        for i in range(4): L.append(f'v_pk_mul_f32 {G_(i)}, {G_(i)}, {T_(i)}')
        for i in (0,2,1,3): L.append(f'v_cvt_pk_bf16_f32 {v(o+i)}, {v(acc+8*tb+2*i)}, {v(acc+8*tb+2*i+1)}')
        L.append(f's_add_u32 s{T1}, s{soff}, {tb*HSTR}\nv_permlane16_swap_b32 v{o}, v{o+2}\nv_permlane16_swap_b32 v{o+1}, v{o+3}\nbuffer_store_dwordx4 {v(o,4)}, v15, {srd(sWS)}, s{T1} offen sc1')
        return L
    def sread(sb, d, t):
        return [f'ds_read_b128 {v((d,t)[q_>>1]+4*(q_&1),4)}, v30 offset:{256*q_+64*(1+sb)}' for q_ in range(4)]
    def sadd(d,t): return [f'v_pk_add_f32 {v(d+2*k,2)}, {v(d+2*k,2)}, {v(t+2*k,2)}' for k in range(4)]
    def setflag(ssm):
        t=f's_add_u32 s{T1}, s{HA}, 128\n'
        if not ssm: t+=f's_and_b32 s{T0}, s{CT}, 7\ns_cmp_lt_u32 s{T0}, 6\ns_cselect_b32 s{T1}, s{HA}, s{T1}\n'
        return t+f'v_mov_b32 v2, 1\nv_mov_b32 v3, 0\ns_mov_b64 exec, 1\nbuffer_atomic_add v2, v3, {srd(sWS)}, s{T1} offen sc1\ns_mov_b64 exec, -1'
    def hb(nh):
        if nh==1: return '\n'.join(f's_lshr_b32 s{FBR[k]}, s{FBR[k]}, 4\ns_add_u32 s{FBR[k]}, s{FBR[k]}, s{SOX}' for k in range(3))
        t=f's_lshl_b32 s{T0}, s{TQ}, 13\ns_add_u32 s{SOX}, s{SOX}, s{T0}'
        for b_,r_ in enumerate(FBR+[CB2]):
            t+=f'\ns_xor_b32 s{T0}, s{R4}, {b_}\ns_and_b32 s{T1}, s{T0}, 1\ns_lshl_b32 s{T1}, s{T1}, 15\ns_and_b32 s{T0}, s{T0}, 2\ns_lshl_b32 s{T0}, s{T0}, 11\ns_add_u32 s{T0}, s{T0}, s{T1}\ns_add_u32 s{r_}, s{SOX}, s{T0}'
        return t
    def p2base(nh):
        return f'''s_lshl_b32 s{T0}, s{RB2}, 2
s_add_u32 s{T0}, s{T0}, s{TQ2}
s_mul_i32 s{SOX}, s{T0}, {2*HSTR}
s_lshl_b32 s{HB}, s{T0}, 2
s_add_u32 s{HB}, s{HB}, s{TQ}
s_lshl_b32 s{HB}, s{HB}, 8
s_add_u32 s{HB}, s{HB}, {FLG+128*(1-nh)}
s_lshl_b32 s{T0}, s{F0}, 10
s_add_u32 s{SOW}, s{SOX}, s{T0}
{hb(nh)}
v_mov_b32 v0, 0'''
    pld=lambda r: f'buffer_load_dword v{r}, v0, {srd(sWS)}, s{HB} offen sc1'
    def pollchk(lbl, r, n, sl):
        g.cold.append(f'''{lbl}:
s_mov_b32 s{SPIN}, 0
{lbl}_1:
s_sleep {sl}
{pld(r)}
s_add_u32 s{SPIN}, s{SPIN}, 1
s_waitcnt vmcnt(0)
v_cmp_gt_u32 vcc, 12, v{r}
s_cmp_gt_u32 s{SPIN}, 100000
s_cselect_b64 vcc, 0, vcc
s_cmp_eq_u64 vcc, 0
s_cbranch_scc0 {lbl}_1
s_branch {lbl}_ok''')
        return f's_waitcnt vmcnt({n})\nv_cmp_gt_u32 vcc, 12, v{r}\ns_cmp_eq_u64 vcc, 0\ns_cbranch_scc0 {lbl}\n{lbl}_ok:'

    X=lambda b,t4: FR+32*b+4*t4
    Wf=lambda b,k: FR+32*b+16+4*k
    for nh in range(2):
        ACC1=112 if nh==0 else 80
        if nh==0:
            e(f'''s_lshl_b32 s{T0}, s{RB}, 5
s_add_u32 s{T0}, s{T0}, s{CT}
s_lshl_b32 s{T0}, s{T0}, 2
s_add_u32 s{WI}, s{T0}, s{TQ}
s_lshl_b32 s{T2}, s{WI}, 11
v_and_b32 v2, 31, v1
v_lshlrev_b32 v2, 4, v2
v_and_b32 v3, 32, v1
v_lshl_add_u32 v2, v3, 5, v2
v_and_b32 v3, 15, v1
s_lshl_b32 s{T1}, s{CT}, 5
v_lshl_add_u32 v3, v3, 1, s{T1}
''')
            ROWS=f'buffer_load_dwordx4 v[80:83], v2, {srd(sX)}, s{T2} offen\nbuffer_load_dwordx4 v[84:87], v2, {srd(sX)}, s{T2} offen offset:512'
            RP=1
            e(ROWS.replace('v2,','v108,').replace(f's{T2} ',f's{SPIN} ') if False else '')
            e(f's_lshl_b32 s{T0}, s{TQ}, 2\ns_add_u32 s{T0}, s{T0}, {ZF}\nv_mov_b32 v10, s{T0}\nv_mov_b32 v11, 0\nds_write_b32 v10, v11')
            e(ROWS)
            e('global_load_ushort v244, v3, s[38:39]\nglobal_load_ushort v245, v3, s[40:41]\nglobal_load_ushort v246, v3, s[50:51]')
            setup(0)
            def allred(r,t):
                for k in (8,4,2,1): e(f'v_add_f32_dpp {v(r)}, {v(r)}, {v(r)} row_ror:{k} row_mask:0xf bank_mask:0xf')
                e(f'v_mov_b32 {v(t)}, {v(r)}\nv_permlane16_swap_b32 {v(t)}, {v(r)}\nv_add_f32 {v(r)}, {v(r)}, {v(t)}')
            SD=1; SB=opt.get('sb',1)
            if SD:
                g.stamp('s0')
                D2=slab(1)+slab(2); e(D2[:N1]); D2=D2[N1:]; g.stamp('s1')
                mark=len(g.L)
            e(f's_waitcnt vmcnt({3+12+(6 if SB==2 else 0)+(1 if (SB==2 and PF==1) else 0)})')
            g.stamp('rowld')
            for i in range(8): e(f'v_lshlrev_b32 v{88+2*i}, 16, v{80+i}\nv_and_b32 v{89+2*i}, 0xffff0000, v{80+i}')
            e('v_pk_add_f32 v[104:105], v[88:89], v[90:91]')
            for i in range(2,8): e(f'v_pk_add_f32 v[104:105], v[104:105], v[{88+2*i}:{89+2*i}]')
            e('v_add_f32 v104, v104, v105')
            allred(104,105)
            e(f'v_mul_f32 v104, {F(1/512)}, v104')
            for i in range(8): e(f'v_pk_add_f32 v[{88+2*i}:{89+2*i}], v[{88+2*i}:{89+2*i}], v[104:105] op_sel_hi:[1,0] neg_lo:[0,1] neg_hi:[0,1]')
            e('v_pk_mul_f32 v[106:107], v[88:89], v[88:89]')
            for i in range(1,8): e(f'v_pk_fma_f32 v[106:107], v[{88+2*i}:{89+2*i}], v[{88+2*i}:{89+2*i}], v[106:107]')
            e('v_add_f32 v106, v106, v107')
            allred(106,107)
            e(f'''v_mul_f32 v106, {F(1/512)}, v106
v_cvt_pk_bf16_f32 v104, v104, v106
v_and_b32 v106, 0xffff0000, v104
v_lshlrev_b32 v104, 16, v104
v_add_f32 v106, {F(1e-5)}, v106
v_cvt_pk_bf16_f32 v106, v106, v106
v_lshlrev_b32 v106, 16, v106
v_sqrt_f32 v106, v106
v_cvt_pk_bf16_f32 v106, v106, v106
v_lshlrev_b32 v106, 16, v106          ; sd
v_mul_f32 v90, v106, v106            ; R = sd^2
v_rcp_f32 v106, v106                  ; r
v_sub_f32 v91, 0, v104               ; -m
v_and_b32 v2, 31, v1
v_mul_f32 v88, {F(-2*math.sqrt(2/math.pi)*LOG2E)}, v106
v_mul_f32 v89, v106, v106
v_mul_f32 v93, v91, v106
v_mul_f32 v89, {F(0.044715)}, v89
v_lshrrev_b32 v3, 5, v1
v_mul_f32 v89, v89, v88
s_lshl_b32 s{T1}, s{CT}, 5
s_sub_u32 s{T1}, s{T1}, s{HB}
s_add_u32 s{T1}, s{T1}, 31
s_lshl_b32 s{T1}, s{T1}, 7
s_add_u32 s{T1}, s{T1}, {EOFF-64}
v_lshl_add_u32 v108, v3, 4, v2
v_lshl_add_u32 v108, v108, 2, s{T1}
v_mov_b32 v109, -1
s_and_b32 s{T1}, s{CT}, 7
s_cselect_b32 s{T1}, {BIG}, s{HA}
v_lshl_add_u32 v110, v3, 7, s{T1}
v_cmp_gt_u32 vcc, 7, v2
v_cndmask_b32 v108, v108, v110, vcc
v_cndmask_b32 v109, v109, 0, vcc
s_lshr_b32 s{T1}, s{WI}, 5
s_lshl_b32 s{T1}, s{T1}, 9
s_and_b32 s{T2}, s{WI}, 31
s_lshl_b32 s{T2}, s{T2}, 3
s_add_u32 s{T1}, s{T1}, s{T2}
s_add_u32 s{T1}, s{T1}, {ST_R-1024}
v_lshl_add_u32 v110, v2, 6, v3
v_lshl_add_u32 v110, v110, 2, s{T1}
v_cmp_gt_u32 vcc, 6, v2
v_cndmask_b32 v108, v108, v110, vcc
v_cndmask_b32 v109, v109, v93, vcc
s_lshl_b32 s{T1}, s{WI}, 5
s_add_u32 s{T1}, s{T1}, {ST_M}
v_lshl_add_u32 v110, v3, 2, v2
v_lshl_add_u32 v110, v110, 2, s{T1}
v_cmp_gt_u32 vcc, 5, v2
v_cndmask_b32 v109, v109, v106, vcc
v_cmp_gt_u32 vcc, 4, v2
v_cndmask_b32 v108, v108, v110, vcc
v_cndmask_b32 v109, v109, v91, vcc
v_cmp_gt_u32 vcc, 3, v2
v_cndmask_b32 v109, v109, v90, vcc
v_cmp_gt_u32 vcc, 2, v2
v_cndmask_b32 v109, v109, v89, vcc
v_cmp_gt_u32 vcc, 1, v2
v_cndmask_b32 v109, v109, v88, vcc
s_mov_b32 exec_lo, 0xffff007f
s_mov_b32 exec_hi, 0xffff007f
buffer_store_dword v109, v108, {srd(sWS)}, 0 offen sc1
s_mov_b64 exec, -1''')
            if SD:
                STATS=g.L[mark:]; del g.L[mark:]
            else:
                STATS=[]; e(slab(1))
            W2PF=f'''s_cmp_eq_u32 s{TQ}, 0
s_cselect_b32 s{sOUT}, s{sCR}, s{sCI}
s_cselect_b32 s{sOUT+1}, s{sCR+1}, s{sCI+1}
s_lshl_b32 s{T1}, s2, 11
s_mul_i32 s{T2}, s2, {43*128}
s_cmp_ge_u32 s{TQ}, 2
s_cselect_b32 s{sOUT}, s{sDN}, s{sOUT}
s_cselect_b32 s{sOUT+1}, s{sDN+1}, s{sOUT+1}
s_cselect_b32 s{T1}, s{T2}, s{T1}
s_cselect_b32 s{T2}, 21, 15
v_min_u32 v13, s{T2}, v1
s_cmp_eq_u32 s{TQ}, 3
s_cselect_b32 s{T2}, {21*128}, 0
s_add_u32 s{T1}, s{T1}, s{T2}
v_lshlrev_b32 v13, 7, v13
buffer_load_dword v12, v13, {srd(sOUT)}, s{T1} offen'''
            LAM=f'''v_lshlrev_b32 v244, 16, v244
v_lshlrev_b32 v245, 16, v245
v_lshlrev_b32 v246, 16, v246
v_mul_f32 v246, {F(LOG2E)}, v246
v_exp_f32 v246, v246
v_cvt_pk_bf16_f32 v246, v246, v246
v_lshlrev_b32 v246, 16, v246
v_mul_f32 v247, v246, v244
v_mul_f32 v248, v246, v245
v_mul_f32 v247, {F(LOG2E)}, v247
v_mul_f32 v248, 0.15915494, v248'''.split('\n')
            def cpow(dr,di,n):
                LAM.extend([f'v_mul_f32 v249, {n}, v247',f'v_mul_f32 v250, {n}, v248','v_rndne_f32 v251, v250','v_exp_f32 v249, v249','v_sub_f32 v250, v250, v251','v_cos_f32 v251, v250','v_sin_f32 v250, v250',f'v_mul_f32 {v(dr)}, v249, v251',f'v_mul_f32 {v(di)}, v249, v250'])
            cpow(PR,PI,'1.0')
            for j in range(1,16):
                a=(j-1)//2; b=j-1-a
                LAM.extend([f'v_mul_f32 {v(PR+j)}, {v(PR+a)}, {v(PR+b)}',f'v_mul_f32 {v(PI+j)}, {v(PR+a)}, {v(PI+b)}',f'v_fma_f32 {v(PR+j)}, -{v(PI+a)}, {v(PI+b)}, {v(PR+j)}',f'v_fmac_f32 {v(PI+j)}, {v(PI+a)}, {v(PR+b)}'])
            cpow(L32,L32+1,F(32.0)); cpow(L64,L64+1,F(64.0))
            LAM.extend(['v_and_b32 v252, 16, v1','v_cvt_f32_u32 v252, v252']); cpow(WSEL,WSEL+1,'v252')
            LAM.extend(['v_and_b32 v252, 48, v1','v_cvt_f32_u32 v252, v252']); cpow(WG,WG+1,'v252')
            LAM.extend([f'v_mul_f32 v252, {F(32.0)}, v252']); cpow(254,255,'v252')
            LAM.extend(['v_mul_f32 v249, v244, v244','v_fmac_f32 v249, v245, v245','v_rcp_f32 v249, v249',f'v_add_f32 v250, -1.0, v{PR}',f'v_mul_f32 v{KAP}, v250, v244',f'v_fmac_f32 v{KAP}, v{PI}, v245',
                f'v_mul_f32 v{KAP+1}, v{PI}, v244',f'v_fma_f32 v{KAP+1}, -v250, v245, v{KAP+1}','v_add_f32 v249, v249, v249',f'v_mul_f32 v{KAP}, v249, v{KAP}',f'v_mul_f32 v{KAP+1}, v249, v{KAP+1}'])
            LAM.extend(cmul(WH,KAP,254))
            LAM.extend(['v_and_b32 v13, 12, v1','v_lshlrev_b32 v13, 2, v13','v_and_or_b32 v13, v1, 3, v13','v_lshrrev_b32 v252, 4, v1','v_lshl_add_u32 v13, v252, 2, v13','v_lshlrev_b32 v13, 4, v13'])
            LAM.extend([f'v_and_b32 v{EA}, 15, v1',f'v_lshlrev_b32 v{EA}, 3, v{EA}',f'v_sub_f32 v{NI}, 0, v{PI}'])
            if PF==9: e(W2PF)
            e(f's_waitcnt vmcnt({(PF==9)+(N1+5)})\ns_barrier')
        else:
            e(f'''.p2align 3
L_role1:''')
            setup(1)
            e(f'''s_lshl_b32 s{T0}, s{RB2}, 2
s_add_u32 s{sE}, s{T0}, s{TQ2}
s_and_b32 s{T1}, s{TQ}, 1
s_lshl_b32 s{T1}, s{T1}, 5
s_and_b32 s{T0}, s{TQ}, 2
s_lshl_b32 s{T0}, s{T0}, 1
s_add_u32 s{T1}, s{T0}, s{T1}
s_lshl_b32 s{T0}, s{sE}, 6
s_add_u32 s{WI}, s{T0}, s{T1}
s_lshl_b32 s{sE}, s{sE}, 9
s_lshl_b32 s{T1}, s{T1}, 2
s_add_u32 s{sE}, s{sE}, s{T1}
s_add_u32 s{sE}, s{sE}, {ST_R}
v_lshrrev_b32 v2, 5, v1
v_lshl_add_u32 v2, v2, 4, s{WI}
v_and_b32 v3, 3, v4
v_add_u32 v3, v3, v2
v_lshlrev_b32 v2, 4, v5
v_lshl_add_u32 v2, v3, 10, v2
s_lshl_b32 s{sE+1}, s{DQ}, 7
v_and_b32 v3, 31, v1
v_lshl_add_u32 v3, v3, 1, s{sE+1}''')
            g.stamp('s0')
            D2=slab(1)+slab(2); e(D2[:N1]); D2=D2[N1:]; g.stamp('s1')
            LAM=[]; STATS=[]
            e(f's_waitcnt vmcnt({N1})\ns_barrier')
        if opt.get('prio')==nh: e('s_setprio 1')
        subs=[('S',0,0,ACC0),('S',0,1,ACC0+16),('F',0,0,ACC1),('F',0,1,ACC1+16)] if nh==0 else [('F',1,0,ACC0),('F',1,1,ACC0+16),('F',2,0,ACC1),('F',2,1,ACC1+16)]
        def reads(n):
            i,u=divmod(n,2); st=i%3; b=n&1; L=[]
            def wr(k):
                kind,sb,pt,_=subs[k]
                if kind=='S': L.append(f'ds_read_b128 {v(Wf(b,k),4)}, v{SA+u} offset:{st*WSS+pt*2048}')
                else:
                    for j in range(2): L.append(f'ds_read_b64_tr_b16 {v(Wf(b,k)+2*j,2)}, v{TA} offset:{st*WSS+(32*u+8*j)*96+32*sb+pt*(UOFF-GOFF)}')
            wr(0)
            for t4 in range(4): L.append(f'ds_read_b128 {v(X(b,t4),4)}, v{XA+u} offset:{st*8192+t4*2048}')
            wr(1); wr(2); wr(3)
            if u==0:
                if nh==0:
                    SF=SFS
                    L.append(f'ds_read_b128 {v(SF[0],4)}, v{S1} offset:{st*WSS}')
                    for q_ in range(3):
                        for j in range(2): L.append(f'ds_read_b64_tr_b16 {v(SF[1+q_]+2*j,2)}, v{S2} offset:{st*WSS+8*j*96+32*q_}')

            return L
        def mf(k,t4,xo,wo,first=False):
            a=subs[k][3]+4*t4; c='0' if first else v(a,4)
            if subs[k][0]=='S': return f'v_mfma_f32_16x16x32_bf16 {v(a,4)}, {xo}, {wo}, {c}'
            return f'v_mfma_f32_16x16x32_bf16 {v(a,4)}, {wo}, {xo}, {c}'
        g.stamp('B0')
        e(reads(0))
        slots=[int(x) for x in opt.get(f'ds{nh}','13.15.21.23.29.31').split('.')]
        slots7=[int(x) for x in opt.get(f'dl{nh}',['3.7.11.15.19.23','13.15.21.23.29.31'][nh]).split('.')]
        slots6=[int(x) for x in opt.get(f'dm{nh}','13.15.21.23.29.31').split('.')]
        V9=opt.get('v9',0)
        if V9 and nh==1: slots7=[int(x) for x in opt.get('dl1','5.7.9.11.13.15.19.21.23.25.27.29').split('.')]
        pend=D2; xtra=0
        while len(pend)>len([q_ for q_ in slots if q_>=16]): e(pend.pop(0))
        for n in range(16):
            i,u=divmod(n,2); b=n&1
            post=[]
            if u==1:
                assert not pend
                bi=i+1
                if STATS:
                    if bi==SB: e(STATS); STATS=[]; xtra+=1
                elif LAM:
                    lb=5 if SD else 4
                    k=(len(LAM)+(lb-bi))//(lb+1-bi)
                    e(LAM[:k]); del LAM[:k]
                if nh==0 and bi==7:
                    SL=16
                    e(f'''v_and_b32 v12, 1, v1
v_lshlrev_b32 v12, 4, v12
v_mov_b32 v2, 0x3f80
v_lshlrev_b32 v12, v12, v2
v_bfe_u32 v2, v1, 2, 2
v_lshrrev_b32 v3, 4, v1
v_cmp_eq_u32 vcc, v2, v3
v_and_b32 v2, 2, v1
v_mov_b32 v{SL}, 0
v_cndmask_b32 v12, 0, v12, vcc
v_cmp_eq_u32 vcc, 0, v2
v_mov_b32 v{SL+1}, 0
v_mov_b32 v{SL+4}, 0
v_cndmask_b32 v{SL+2}, 0, v12, vcc
v_cndmask_b32 v{SL+3}, v12, 0, vcc
v_mov_b32 v{SL+5}, 0
v_lshrrev_b32 v2, 3, v1
v_and_b32 v3, 7, v1
v_lshrrev_b32 v12, 1, v2
v_xor_b32 v3, v3, v12
s_lshl_b32 s{T1}, s{DQ}, 6
v_add_u32 v2, s{T1}, v2
v_lshlrev_b32 v2, 10, v2
v_lshl_add_u32 v{DC}, v3, 4, v2
v_xor_b32 v{DC+1}, 64, v{DC}
v_and_b32 v2, 15, v1
v_lshlrev_b32 v2, 2, v2
v_add_u32 v2, {SP}, v2''')
                g.stamp(f'p{bi}')
                if bi==6 and nh==0:
                    e(f's_waitcnt vmcnt(6)\nv_cmp_gt_u32 vcc, 4, v2\ns_cmp_eq_u64 vcc, 0\ns_cbranch_scc0 L_poll\nL_pollok:')
                    g.cold.append(f'''L_poll:
s_mov_b32 s{SPIN}, 0
L_poll1:
buffer_load_dword v2, v3, {srd(sDBG)}, 0 offen sc1
s_add_u32 s{SPIN}, s{SPIN}, 1
s_cmp_gt_u32 s{SPIN}, 100000
s_cbranch_scc1 L_pollok
s_waitcnt vmcnt(0)
v_cmp_gt_u32 vcc, 4, v2
s_cmp_eq_u64 vcc, 0
s_cbranch_scc0 L_poll1
s_branch L_pollok''')
                e(f's_waitcnt vmcnt({0 if (bi==8 and nh==0) else 6+xtra}) lgkmcnt(0)')
                g.stamp(f'w{bi}')
                e('s_barrier')
                g.stamp(f'B{bi}')
                xtra=0
                if nh==0:
                    if bi==SB+1:
                        post.append(f's_and_b32 s{T1}, s2, 63\ns_lshl_b32 s{T1}, s{T1}, 2\ns_cmp_eq_u32 s{W_}, 0\ns_cselect_b32 s{T1}, s{T1}, {BIG}\nv_mov_b32 v2, 1\nv_mov_b32 v3, 0\ns_mov_b64 exec, 1\nbuffer_atomic_add v2, v3, {srd(sDBG)}, s{T1} offen sc1\ns_mov_b64 exec, -1'); xtra+=1
                    if PF==bi: post.append(W2PF); xtra+=1
                    l2p=opt.get('l2p',0)
                    if l2p and l2p<=bi<l2p+4:
                        k=bi-l2p
                        post.append(f's_lshr_b32 s{T1}, s2, 3\ns_lshl_b32 s{T1}, s{T1}, 2\ns_add_u32 s{T1}, s{T1}, s{TQ}\ns_lshl_b32 s{T1}, s{T1}, 12\nv_lshlrev_b32 v13, 7, v1\ns_mov_b64 exec, 0xffff\nbuffer_load_dword v12, v13, {srd(sCI if k&1 else sCR)}, s{T1} offen offset:{2048*(k>>1)}\ns_mov_b64 exec, -1'); xtra+=1
                    if l2p and bi==l2p+4:
                        post.append(f's_lshr_b32 s{T1}, s2, 3\ns_lshl_b32 s{T1}, s{T1}, 11\ns_add_u32 s{T1}, s{T1}, s{FB}\ns_add_u32 s{T1}, s{T1}, {18*16384}\nv_lshlrev_b32 v13, 7, v1\ns_mov_b64 exec, 0xffff\nbuffer_load_dword v12, v13, {srd(sDN)}, s{T1} offen\ns_mov_b64 exec, -1'); xtra+=1
                    if bi==5:
                        post.append(f'v_lshlrev_b32 v3, 2, v1\nbuffer_load_dword v2, v3, {srd(sDBG)}, 0 offen sc1'); xtra=0
                lp=opt.get('lp',0)
                if nh==1 and lp and lp<=bi<lp+5:
                    k=bi-lp
                    post.append(f's_cmp_lt_u32 s{FCNT}, 2\ns_cbranch_scc1 L_lp{k}\nL_lpr{k}:')
                    t=f'L_lp{k}:\nv_lshlrev_b32 v2, 7, v1\ns_lshl_b32 s{T1}, s{TQ2}, 2\ns_add_u32 s{T1}, s{T1}, s{TQ}\n'
                    if k<4:
                        t+=f's_lshl_b32 s{T1}, s{T1}, 15\ns_add_u32 s{T1}, s{T1}, {k*8192}\nbuffer_load_dword v3, v2, {srd(sCR)}, s{T1} offen\nbuffer_load_dword v4, v2, {srd(sCI)}, s{T1} offen\n'
                    else:
                        t+=f's_lshl_b32 s{T1}, s{TQ2}, 14\ns_add_u32 s{T1}, s{T1}, s{FB}\ns_add_u32 s{T1}, s{T1}, {18*16384}\nbuffer_load_dword v3, v2, {srd(sDN)}, s{T1} offen\ns_add_u32 s{T1}, s{T1}, 8192\nbuffer_load_dword v4, v2, {srd(sDN)}, s{T1} offen\n'
                    g.cold.append(t+f's_branch L_lpr{k}')
                if bi==6 and nh==0:
                    post.append(f'''s_lshl_b32 s{T2}, s{RB}, 2
s_add_u32 s{T2}, s{T2}, s{TQ}
s_lshl_b32 s{T1}, s{T2}, 10
s_add_u32 s{T1}, s{T1}, {ST_M}
s_mov_b32 m0, s{V14}
s_lshl_b32 s{T2}, s{T2}, 9
buffer_load_dwordx4 v13, {srd(sWS)}, s{T1} offen sc1 lds
s_lshl_b32 s{T1}, s{TQ}, 9
s_add_u32 m0, s{T1}, {RM}
s_add_u32 s{T2}, s{T2}, {ST_R}
s_mov_b32 exec_hi, 0
buffer_load_dwordx4 v15, {srd(sWS)}, s{T2} offen sc1 lds
s_mov_b64 exec, -1''')
                if bi+2<8: pend=slab(bi+2)
                elif bi==7 and V9:
                    pend=vfull(9) if nh==1 else []
                    xtra=6
                elif bi+2<10: pend=vhalf(bi+2,nh)
            else:
                e('s_waitcnt lgkmcnt(0)')
            R=reads(n+1) if n<15 else []
            M=[mf(k,t4,v(X(b,t4),4),v(Wf(b,k),4),n==0) for k in range(4) for t4 in range(4)]
            if n==15: break
            EX=[]
            GCR=[f'ds_read_b128 {v(GC+4*k,4)}, v29 offset:{256*k}' for k in range(4)]
            if n==12 and nh==0:
                EX=['v_and_b32 v0, 3, v1',f'v_lshl_add_u32 v0, v0, 6, v30',f's_lshl_b32 s{T1}, s{TQ}, 8\nv_add_u32 v0, s{T1}, v0']
            if n==14 and nh==0:
                R=['']*opt.get('wpos',6)+[f's_mov_b32 exec_lo, 0x000f000f\ns_mov_b32 exec_hi, 0x000f000f\nds_write_b128 v0, {v(SACC,4)}\ns_mov_b64 exec, -1']+R
                R+=GCR
            sl_=slots7 if n>=13 else slots6 if n>=11 else slots
            if u==0 and nh==0:
                e([f'v_mfma_f32_16x16x32_bf16 {v(SACC,4)}, {v(SFS[k],4)}, {v(SELS+4*k,4)}, {"0" if (n==0 and k==0) else v(SACC,4)}' for k in range(4)])
            rp_=2 if len(R)>16 else 1
            for mi in range(16):
                e(M[mi])
                for _ in range(rp_):
                    if R: e(R.pop(0))
                if mi==0: e(post)
                if EX: e(EX.pop(0))
                if (16*(1-u)+mi) in sl_ and pend: e(pend.pop(0))
            assert not R and not EX
        e(f's_mul_i32 s{HB}, s{HB}, {2*HSTR}')
        if opt.get('nost'): e(f's_mov_b32 s{HB}, {BIG}')
        if opt.get('prio')==nh: e('s_setprio 0')
        def foff(reg,sb):
            return f's_add_u32 s{T2}, s{FS}, {sb}\ns_lshl_b32 s{T2}, s{T2}, 10\ns_add_u32 s{T2}, s{T2}, s{HB}\ns_cmp_gt_u32 s{FCNT}, {sb}\ns_cselect_b32 s{reg}, s{T2}, {BIG}'
        def run_groups(groups, loads, ring, areg, hooks, mid=[], freed={}, depth=0):
            free=list(ring); dest=[]; depth=max(depth,len(ring))
            def ld():
                sr,imm=loads[len(dest)]; dest.append(free.pop(0))
                return [f's_add_u32 s{T0}, s{sr}, {imm}',f'buffer_load_dwordx4 {v(dest[-1],4)}, v{areg}, {srd(sWS)}, s{T0} offen sc1']
            while free: e(ld())
            e(mid)
            il=[]
            for gi,grp in enumerate(groups):
                g.stamp(f'q{gi}')
                h=hooks.get(gi)
                if h:
                    e(h[0]); il=il+list(h[1])
                for k,(a,li,Bq,first) in enumerate(grp):
                    if k%2==0: e(f's_waitcnt vmcnt({len(dest)-1-li})')
                    e(f'v_mfma_f32_32x32x16_bf16 {v(a,16)}, {v(dest[li],4)}, {v(Bq,4)}, {"0" if first else v(a,16)}')
                    if k%2==1: free.append(dest[li])
                    can=free and len(dest)<len(loads)
                    if can and (k%2==1 or (k in opt.get('gk',(0,)) and len(dest)-li<depth)): e(ld())
                    for _ in range(2):
                        if il: e(il.pop(0))
                free+=freed.get(gi,[])
            e(il)
        TILE=lambda mh,dh: ACC0+32*mh+16*dh
        if nh==1:
            TMP=16; SG=4
            v14=vgroup(f's{V14}, 0',[DF],sDN,FB,20*16384,4)
            V=vfull(10); nb=opt.get('nb',5)
            rd=vread(8,B1)
            e(mix(rd[:2*nb],V[:nb],2))
            if opt.get('w3',0):
                e(M); e(mix(rd[2*nb:]+GCR+sread(1,SG,TMP),V[nb:],2))
            else: e(mix(mix(M,V[nb:],2),rd[2*nb:]+GCR+sread(1,SG,TMP),1))
            g.stamp('loopend')
            e(foff(SOX,1)); e(foff(SOW,2))
            e('s_waitcnt vmcnt(12) lgkmcnt(8)')
            g.stamp('w9')
            V14B=[f's_cmp_ge_u32 s{TQ}, 2\ns_cbranch_scc1 L_no14']+vgroup(f's{V14}, 2048',[DF],sDN,FB,21*16384,2)+['L_no14:']
            S2R=sread(2,SG,ACC0)+['s_waitcnt lgkmcnt(0)']+sadd(SG,ACC0)
            G0,G1,G2,G3=gelu(ACC0,0,TMP,SOX,SG),gelu(ACC0,1,TMP,SOX,SG),gelu(ACC1,0,TMP,SOW,SG),gelu(ACC1,1,TMP,SOW,SG)
            pc=opt.get('pace',6)
            gp=f's_setprio {opt.get("gprio",1)}'
            V=vfull(11); nq=opt.get('nq',8)
            e(mix(vread(9,B2),V[:nq],3))
            g.stamp('c0')
            e(f's_waitcnt vmcnt({nq})')
            V=V[nq:]+[f's_mov_b32 m0, s{V14}\ns_add_u32 s{T2}, s{sE+1}, {8192-1024}\nbuffer_load_dwordx4 v2, {srd(sX)}, s{sE+1} offen lds',f'buffer_load_dwordx4 v2, {srd(sX)}, s{T2} offen offset:1024 lds',
                      'global_load_ushort v12, v3, s[52:53]','global_load_ushort v13, v3, s[52:53] offset:64']
            e('s_waitcnt lgkmcnt(15)')
            e(mix(vread(10,B3),V,3))
            g.stamp('ch1')
            e('s_waitcnt lgkmcnt(0)\ns_barrier')
            g.stamp('B9')
            e(sread(2,24,24)[:2][::1] if False else '')
            e(gp); e(sadd(SG,TMP))
            G2,G3=gelu(ACC1,0,TMP,SOW,ACC0),gelu(ACC1,1,TMP,SOW,ACC0)
            e(G0); e(mix(G1,sread(2,ACC0,24),8)); e('s_waitcnt lgkmcnt(0)'); e(sadd(ACC0,24)); e(G2); e(G3)
            g.stamp('gdone')
            e('v_lshrrev_b32 v5, 5, v1\nv_lshlrev_b32 v6, 6, v5')
            e([f'buffer_load_dwordx4 {v(32+8*mh+4*k,4)}, v6, {srd(sWS)}, s{sE} offen offset:{32*mh+256*k} sc1' for mh in range(2) for k in range(2)])
            e(f"""v_bfe_u32 v4, v1, 2, 2
v_lshl_add_u32 v4, v5, 2, v4
v_lshlrev_b32 v4, 7, v4
v_and_b32 v6, 3, v1
v_lshl_add_u32 v4, v6, 3, v4
v_and_b32 v6, 16, v1
v_lshl_add_u32 v4, v6, 1, v4
v_add_u32 v4, s{V14}, v4
v_lshl_add_u32 v10, v5, 4, s{WI}
v_lshlrev_b32 v3, 1, v3
v_lshl_add_u32 v10, v10, 11, v3
s_waitcnt vmcnt(8)""")
            e([f'ds_read_b64_tr_b16 {v(16+2*tl,2)}, v4 offset:{(tl>>1)*1024+(tl&1)*64}' for tl in range(4)])
            e(p2base(1))
            e('s_waitcnt lgkmcnt(0)'); e(v14[:2])
            sf=setflag(False).split('\ns_mov_b64 exec, 1')
            e(sf[0]); e('s_waitcnt vmcnt(6)'); e('s_mov_b64 exec, 1'+sf[1]); g.stamp('flag')
            e(V14B)
            e(f's_setprio {opt.get("bprio",0)}')
            e([f'v_mov_b32 v{ACC0+16*tl+k}, 0' for tl in range(4) for k in range(4,16)])
            e(f's_lshl_b32 s{T1}, s{TQ}, 7\nv_xor_b32 v11, s{T1}, v15\nv_lshlrev_b32 v8, 16, v12\nv_lshlrev_b32 v9, 16, v13\ns_waitcnt vmcnt(3)')
            for mh in range(2):
                for dh in range(2):
                    for i in range(4):
                        r=TILE(mh,dh)+i; xr=16+2*(2*mh+dh)+(i>>1)
                        e([f'v_lshlrev_b32 v{r}, 16, v{xr}' if i%2==0 else f'v_and_b32 v{r}, 0xffff0000, v{xr}',f'v_fma_f32 v4, v{r}, v{32+8*mh+i}, v{36+8*mh+i}',f'v_fmac_f32 v{r}, v4, v{8+dh}'])
            ZE=opt.get('ze',6)
            zfw=f's_lshl_b32 s{T1}, s{TQ}, 2\ns_add_u32 s{T1}, s{T1}, {ZF}\nv_mov_b32 v2, s{T1}\nv_mov_b32 v3, 1\nds_write_b32 v2, v3'
            e('s_waitcnt vmcnt(0)')
            e(pld(7))
            if ZE: e(zfw); hk1={ZE:(['s_barrier',g.st('Z1')],[])}
            else: hk1={0:([],['',zfw])}
            g.stamp('chores')
            e(pollchk('L_fp1',7,0,opt.get('slp1',2)))
            g.stamp('go')
            e(f's_setprio {opt.get("p2prio",1)}')
            loads=[(FBR[s_//6],(s_%6)*1024+mh*HSTR) for s_ in range(18) for mh in range(2)]
            order=[s_ for s_ in range(18) for mh in range(2)]
            groups=[[(TILE(mh,dh),2*s_+mh,B1+8*s_+4*dh,False) for mh in range(2) for dh in range(2)] for s_ in range(18)]
            run_groups(groups,loads,([16+4*k for k in range(8)]+[4])[:opt.get('nr1',9)],11,hk1,[],{s_:[B1+8*s_,B1+8*s_+4] for s_ in range(18)},opt.get('dp1',14))
            g.stamp('ph1')
            e('s_setprio 0')
            XS=112
            for j in range(1,4):
                e(f's_xor_b32 s{T1}, s{TQ}, {j}\ns_mul_i32 s{T1}, s{T1}, {XW}\ns_add_u32 s{T1}, s{T1}, {(j-1)*4096}\nv_add_u32 v{3+j}, s{T1}, v15')
            e(f'v_add_u32 v7, s{XR}, v15\nv_add_u32 v8, s{WQ}, v15')
            if not ZE: e('s_barrier'); g.stamp('Z1')
            for j in range(1,4):
                for tl in range(4): e(f'ds_write_b128 v{3+j}, {v(ACC0+16*tl+4*j,4)} offset:{tl*1024}')
            e('s_waitcnt lgkmcnt(0)\ns_barrier')
            g.stamp('Z2')
            osc=' sc1'
            def addq(r,srcs,pk):
                for q_ in srcs:
                    if pk:
                        for j in range(2): e(f'v_pk_add_f32 {v(r+2*j,2)}, {v(r+2*j,2)}, {v(q_+2*j,2)}')
                    else:
                        for j in range(4): e(f'v_add_f32 v{r+j}, v{r+j}, v{q_+j}')
            def outst(mh,dh):
                for i in range(4):
                    if i%2==0: e(f's_mov_b32 s{T0}, {mh*16384+i*2048}')
                    e(f'buffer_store_dword v{TILE(mh,dh)+i}, v10, {srd(sOUT)}, s{T0} offen offset:{dh*128+(i&1)*2048}{osc}')
            for tl in range(4):
                for j in range(3): e(f'ds_read_b128 {v(XS+12*tl+4*j,4)}, v7 offset:{j*4096+tl*1024}')
            for tl in range(4):
                e(f's_waitcnt lgkmcnt({9-3*tl})')
                addq(ACC0+16*tl,[XS+12*tl+4*k for k in range(3)],False)
            e('s_barrier')
            g.stamp('Z23')
            e(f's_setprio {opt.get("fprio",1)}')
            for dh in range(2):
                for k in range(4): e(f'ds_read_b128 {v(XS+16*dh+4*k,4)}, v7 offset:{16384+k*2048+dh*1024}')
            for dh in range(2):
                e(f's_waitcnt lgkmcnt({4-4*dh})')
                addq(TILE(0,dh),[XS+16*dh+4*k for k in range(4)],False); outst(0,dh)
            e('s_barrier')
            g.stamp('p2end')
            for dh in range(2):
                for k in range(4): e(f'ds_read_b128 {v(XS+16*dh+4*k,4)}, v8 offset:{dh*WSS+k*1024}')
            for dh in range(2):
                e(f's_waitcnt lgkmcnt({4-4*dh})')
                addq(TILE(1,dh),[XS+16*dh+4*k for k in range(4)],True); outst(1,dh)
        else:
            Xr=ACC0; Yr=ACC0+16
            e('s_setprio 2')
            SG=160; SS=176
            rd=[f'ds_read_b32 v{4+q_}, v2 offset:{256*q_}' for q_ in range(4)]+[f'ds_read_b128 {v((RS,MR)[k&1]+4*(k>>1),4)}, v31 offset:{256*(k&1)+16*(k>>1)}' for k in range(8)]+sread(0,SG,168)
            e(mix(M,rd,1))
            g.stamp('loopend')
            Z,T,P,Q=4,6,8,10
            e(foff(SOX,0))
            e(f's_lshl_b32 s{T0}, s{RB}, 2\ns_add_u32 s{T0}, s{T0}, s{TQ}\ns_sub_u32 s{T0}, 31, s{T0}\ns_lshl_b32 s{SOW}, s{T0}, 7')
            e(f's_waitcnt lgkmcnt(0)\nv_add_f32 v{SS}, v4, v6\nv_add_f32 v{SS+1}, v5, v7')
            npl=opt.get('npl',8)
            def scl(j): return f'v_mul_f32 v{Xr+j}, v{Xr+j}, v{RS+j}\nv_mul_f32 v{Yr+j}, v{Yr+j}, v{RS+j}\nv_fmac_f32 v{Xr+j}, v{MR+j}, v{SS}\nv_fmac_f32 v{Yr+j}, v{MR+j}, v{SS+1}'
            for j in range(16):
                if j<npl: e(scl(j))
                elif j==npl:
                    for i in range(npl//2,8):
                        xx=v(Xr+2*i,2); yy=v(Yr+2*i,2)
                        e(f'v_pk_mul_f32 {xx}, {xx}, {v(RS+2*i,2)}\nv_pk_mul_f32 {yy}, {yy}, {v(RS+2*i,2)}\nv_pk_fma_f32 {xx}, {v(MR+2*i,2)}, {v(SS,2)}, {xx} op_sel_hi:[1,0,1]\nv_pk_fma_f32 {yy}, {v(MR+2*i,2)}, {v(SS,2)}, {yy} op_sel:[0,1,0] op_sel_hi:[1,1,1]')
                if j: e(f'v_fmac_f32 v{Xr+j}, v{PR}, v{Xr+j-1}\nv_fmac_f32 v{Yr+j}, v{PR}, v{Yr+j-1}\nv_fmac_f32 v{Xr+j}, v{NI}, v{Yr+j-1}\nv_fmac_f32 v{Yr+j}, v{PI}, v{Xr+j-1}')
            g.stamp('a_scan')
            e(f'v_mov_b32 v{T}, v{Xr+15}\nv_mov_b32 v{T+1}, v{Yr+15}\nv_mov_b32 v{Z}, 0\nv_mov_b32 v{Z+1}, 0\nv_permlane16_swap_b32 v{Z}, v{T}\nv_permlane16_swap_b32 v{Z+1}, v{T+1}')
            e(cfma(P,(PR+15,PI+15),Z,(Xr+15,Yr+15)))
            e(f'v_mov_b32 v{Q}, v{P}\nv_mov_b32 v{Q+1}, v{P+1}\nv_mov_b32 v{T}, 0\nv_mov_b32 v{T+1}, 0\nv_permlane16_swap_b32 v{Q}, v{P}\nv_permlane16_swap_b32 v{Q+1}, v{P+1}')
            e(f'v_permlane32_swap_b32 v{T}, v{P}\nv_permlane32_swap_b32 v{T+1}, v{P+1}')
            e(cfma(P,L32,T,P))
            e(f'''v_min_u32 v{P}, -2, v{P}
v_min_u32 v{P+1}, -2, v{P+1}
s_mov_b32 exec_lo, 0
s_mov_b32 exec_hi, 0xffff0000
buffer_store_dwordx2 {v(P,2)}, v{EA}, {srd(sE)}, s{SOW} offen sc1
s_mov_b64 exec, -1''')
            g.stamp('b_pub')
            e(sadd(SG,168))
            e(gelu(ACC1,0,24,SOX,SG)+gelu(ACC1,1,24,SOX,SG)); g.stamp('gdone')
            D=vfull(12)+vfull(13)
            da,db,dc=[int(x) for x in opt.get('d0','6.4.12').split('.')]
            ER=[RS+2*k for k in range(8)]
            e(f'v_and_b32 v2, 48, v1\nv_lshl_add_u32 v{EA}, v2, 6, v{EA}\ns_add_u32 s{SOW}, s{SOW}, 128')
            eld='\n'.join(f'buffer_load_dwordx2 {v(ER[u_],2)}, v{EA}, {srd(sE)}, s{SOW} offen offset:{128*u_} sc1' for u_ in range(8))
            e('s_setprio 0\ns_barrier')
            g.stamp('B9')
            if db>=da:
                e(D[:da]); e(f's_waitcnt vmcnt({da})'); e(setflag(False)); g.stamp('flag0')
                e(D[da:db]); e(eld); ne=0
            else:
                e(D[:db]); e(eld); e(D[db:da]); e(f's_waitcnt vmcnt({da+8})'); e(setflag(False)); g.stamp('flag0')
                ne=da-db+1; db=da
            mark=len(g.L)
            e(cfma(Z,WSEL,T,Z)+cmul(CP,KAP,Z))
            kp=v(KAP,2)
            for i in range(8):
                xx=v(Xr+2*i,2); yy=v(Yr+2*i,2); tt=v(4+2*(i&1),2)
                e([f'v_pk_mul_f32 {tt}, {xx}, {kp} op_sel:[0,1] op_sel_hi:[1,1] neg_lo:[0,1] neg_hi:[0,1]',f'v_pk_mul_f32 {xx}, {xx}, {kp} op_sel_hi:[1,0]',
                     f'v_pk_fma_f32 {xx}, {yy}, {kp}, {xx} op_sel:[0,1,0] op_sel_hi:[1,1,1] neg_lo:[0,1,0] neg_hi:[0,1,0]',f'v_pk_fma_f32 {yy}, {yy}, {kp}, {tt} op_sel_hi:[1,0,1] neg_lo:[0,1,0] neg_hi:[0,1,0]'])
            SL=16
            e(f'''s_add_u32 s{T2}, s{CT}, 86
s_lshl_b32 s{T2}, s{T2}, 10
s_add_u32 s{T2}, s{T2}, s{HB}''')
            chk='\n'.join([f'v_max3_u32 v0, v{ER[0]}, v{ER[0]+1}, v{ER[1]}',f'v_max3_u32 v4, v{ER[1]+1}, v{ER[2]}, v{ER[2]+1}']+[f'v_max3_u32 v{(0,4)[u_&1]}, v{ER[u_]}, v{ER[u_]+1}, v{(0,4)[u_&1]}' for u_ in range(3,8)]+['v_max_u32 v0, v0, v4','v_cmp_eq_u32 vcc, -1, v0','s_cmp_eq_u64 vcc, 0'])
            KS=g.L[mark:]; del g.L[mark:]
            e(mix(KS,D[db:dc],opt.get('kp',2)))
            e(f's_waitcnt vmcnt({dc-db+ne})\n{chk}\ns_cbranch_scc0 L_epoll\nL_eok:')
            g.cold.append(f'''L_epoll:
s_mov_b32 s{SPIN}, 0
L_epoll1:
s_sleep {opt.get('eslp',4)}
{eld}
s_add_u32 s{SPIN}, s{SPIN}, 1
s_cmp_gt_u32 s{SPIN}, 100000
s_cbranch_scc1 L_eok
s_waitcnt vmcnt(0)
{chk}
s_cbranch_scc0 L_epoll1
s_branch L_eok''')
            g.stamp('Eok')
            e(f's_setprio {opt.get("eprio",2)}')
            for u_ in range(6,-1,-1): e(cfma(ER[u_],L64,ER[u_+1],ER[u_]))
            e(cmul(4,WH,ER[0]))
            for sw in ('16','32'):
                e(f'v_mov_b32 v6, v4\nv_mov_b32 v7, v5\nv_permlane{sw}_swap_b32 v6, v4\nv_permlane{sw}_swap_b32 v7, v5\nv_add_f32 v4, v6, v4\nv_add_f32 v5, v7, v5')
            e(cfma(CP,WG,4,CP))
            cp=v(CP,2)
            g.stamp('c_carry')
            for comp,R_,D_ in ((0,Xr,112),(1,Yr,128)):
                for i in range(8):
                    rr_=v(R_+2*i,2); pr=v(PR+2*i,2); pi=v(PI+2*i,2)
                    if comp==0: e(f'v_pk_fma_f32 {rr_}, {pr}, {cp}, {rr_} op_sel_hi:[1,0,1]\nv_pk_fma_f32 {rr_}, {pi}, {cp}, {rr_} op_sel:[0,1,0] op_sel_hi:[1,1,1] neg_lo:[0,1,0] neg_hi:[0,1,0]')
                    else: e(f'v_pk_fma_f32 {rr_}, {pr}, {cp}, {rr_} op_sel:[0,1,0] op_sel_hi:[1,1,1] neg_lo:[0,1,0] neg_hi:[0,1,0]\nv_pk_fma_f32 {rr_}, {pi}, {cp}, {rr_} op_sel_hi:[1,0,1] neg_lo:[0,1,0] neg_hi:[0,1,0]')
            for comp,R_,D_ in ((0,Xr,112),(1,Yr,128)):
                for i in range(8): e(f'v_cvt_pk_bf16_f32 v{R_+i}, v{R_+2*i}, v{R_+2*i+1}')
                for tb in range(2):
                    for ab in range(2): e(f'v_mfma_f32_16x16x32_bf16 {v(D_+8*tb+4*ab,4)}, {v(R_+4*tb,4)}, {v(SL+2-2*ab,4)}, 0')
            for comp,R_,D_ in ((0,Xr,112),(1,Yr,128)):
                for i in range(8): e(f'v_cvt_pk_bf16_f32 v{R_+8+i}, v{D_+2*i}, v{D_+2*i+1}')
                for tb in range(2):
                    o=R_+8+4*tb
                    e(f'v_permlane16_swap_b32 v{o}, v{o+2}\nv_permlane16_swap_b32 v{o+1}, v{o+3}')
                    e(f's_add_u32 s{T1}, s{T2}, {comp*32768+tb*HSTR}\nbuffer_store_dwordx4 {v(o,4)}, v15, {srd(sWS)}, s{T1} offen sc1')
            g.stamp('c_st')
            dd=min(len(D),dc+opt.get('dd',6))
            e(D[dc:dd])
            TV=144
            e(['v_and_b32 v2, 31, v1','v_lshrrev_b32 v3, 5, v1','v_bfe_u32 v0, v1, 1, 3','v_xor_b32 v0, v3, v0','v_lshlrev_b32 v0, 4, v0','v_lshl_add_u32 v0, v2, 7, v0',f'v_add_u32 v4, s{XR}, v0',f'v_add_u32 v8, s{WQ}, v0'])
            for k in range(1,4): e(f'v_xor_b32 v{4+k}, {32*k}, v4\nv_xor_b32 v{8+k}, {32*k}, v8')
            e(traddr(0,3)+[f'v_add_u32 v{TV+4}, s{WQ}, v0',f'v_add_u32 v{TV+5}, s{WQ}, v3',f'v_add_u32 v{TV}, s{V14}, v0',f'v_add_u32 v{TV+1}, s{V14}, v3'])
            e(f's_lshl_b32 s{T1}, s{TQ}, 2\ns_add_u32 s{T1}, s{T1}, {ZF}\nv_mov_b32 v14, s{T1}')
            e(f's_waitcnt vmcnt({dd-dc})'); e(setflag(True))
            g.stamp('flag')
            e(D[dd:]); e('s_setprio 0'); e(p2base(0))
            g.stamp('dend')
            JB=112; RB_=160
            MID=[f'''s_mov_b32 s{SPIN}, 0
L_z0:
s_sleep 1
ds_read_b32 v2, v14
s_add_u32 s{SPIN}, s{SPIN}, 1
s_waitcnt lgkmcnt(0)
v_cmp_ne_u32 vcc, 1, v2
s_cmp_gt_u32 s{SPIN}, 1000000
s_cselect_b64 vcc, 0, vcc
s_cmp_eq_u64 vcc, 0
s_cbranch_scc0 L_z0''',g.st('Z0')]
            MID+=[f'ds_read_b128 {v(JB+8*k+4*dh,4)}, v{4+k} offset:{2*8192+dh*4096}' for k in range(4) for dh in range(2)]
            RD2=[f'ds_read_b128 {v(RB_+32*bl+8*k+4*dh,4)}, v{4+k} offset:{bl*8192+dh*4096}' for bl in range(2) for k in range(4) for dh in range(2)]
            RD2+=[f'ds_read_b128 {v(RB_+64+8*k+4*dh,4)}, v{8+k} offset:{dh*WSS}' for k in range(4) for dh in range(2)]
            WA=[f's_lshl_b32 s{T1}, s{TQ}, 11\ns_add_u32 s{T1}, s{T1}, {q_*XW+16384}\nv_add_u32 v{4+q_}, s{T1}, v15' for q_ in range(4)]
            WA+=[f's_lshl_b32 s{T1}, s{TQ}, 10\ns_add_u32 s{T1}, s{T1}, {WB}\nv_add_u32 v8, s{T1}, v15']
            ZE=opt.get('ze',6)
            e(MID[:2]); MID=MID[2:]+RD2
            if ZE:
                e('s_waitcnt vmcnt(0)'); e(MID); MID=[]; e('s_waitcnt lgkmcnt(0)\ns_barrier'); g.stamp('Z1')
            e(pld(3))
            e(f's_cmp_ge_u32 s{TQ}, 2\ns_cselect_b32 s{XL}, {BIG}, s{SOW}\ns_cselect_b32 s{T1}, 0, 2048\nv_add_u32 v{TV+2}, s{T1}, v{TV}\nv_add_u32 v{TV+3}, s{T1}, v{TV+1}')
            e(pollchk('L_fp0',3,0,opt.get('slp0',6)))
            g.stamp('go')
            HS=FBR+[CB2]
            st_=[(HS[0],(86+k)*1024,JB+8*k) for k in range(4)]+[(SOW,(18+k)*1024,JB+8*k) for k in range(3)]+[(XL,21*1024,JB+24)]
            st2=[(HS[1+bl],(86+k)*1024,RB_+32*bl+8*k) for bl in range(3) for k in range(4)]
            loads=[];order=[];groups=[]
            for s_,(sr,im,Bq) in enumerate(st_):
                groups.append([(TILE(mh,dh),len(loads)+mh,Bq+4*dh,s_==0) for mh in range(2) for dh in range(2)])
                for mh in range(2): loads.append((sr,im+mh*HSTR)); order.append(s_)
            for mh in range(2):
                for p_ in range(6):
                    grp=[]
                    for s_ in (2*p_,2*p_+1):
                        sr,im,Bq=st2[s_]
                        grp+=[(TILE(mh,dh),len(loads),Bq+4*dh,False) for dh in range(2)]
                        loads.append((sr,im+mh*HSTR)); order.append(len(groups))
                    groups.append(grp)
            jit=[trstep(JB,TV+4,2*WSS),trstep(JB+8,TV+4,2*WSS+2048),trstep(JB+16,TV,0),trstep(JB+24,TV+2,0)]
            hooks={0:(['s_waitcnt lgkmcnt(0)'],[]),1:([],jit[0]),2:([],jit[1]),3:([],jit[2]),
                   4:(['s_waitcnt lgkmcnt(8)'],jit[3]),5:(['s_waitcnt lgkmcnt(8)'],[]),6:(['s_waitcnt lgkmcnt(4)'],[]),7:(['s_waitcnt lgkmcnt(0)'],WA)}
            z1=opt.get('z1',3); z2=opt.get('z2',10); z23=opt.get('z23',19); TM=opt.get('tm',0)
            for zz,nm in ((z1,'Z1'),(z2,'Z2'))[1 if ZE else 0:]:
                h_=hooks.get(zz,([],[])); hooks[zz]=(h_[0]+['s_barrier',g.st(nm)],h_[1])
            wr0=[]
            for dh in range(2):
                for q_ in range(4): wr0+=[f'ds_write_b128 v{4+q_}, {v(TILE(0,dh)+4*q_,4)} offset:{dh*1024}']+['']*opt.get('ws',3)
            hooks[14]=([],['']*6+wr0)
            assert 6+8*(1+opt.get('ws',3))-opt.get('ws',3)<=8*(z23-14)
            hooks[z23]=(['s_waitcnt lgkmcnt(0)','s_barrier',g.st('Z23')],[])
            run_groups(groups,loads,([16+4*k for k in range(8)]+[152,156])[:opt.get('nr0',8)],15,hooks,MID)
            g.stamp('ph2')
            wr1=lambda dh: [f'ds_write_b128 v8, {v(TILE(1,dh)+4*q_,4)} offset:{dh*WSS+q_*4096}' for q_ in range(4)]
            if TM:
                idx=[k for k,l_ in enumerate(g.L) if 'v_mfma_f32_32x32x16' in l_][-2*TM:]
                seg=g.L[idx[0]:]; del g.L[idx[0]:]
                assert not any('buffer_load' in l_ for l_ in seg)
                t1=v(TILE(1,1),16)
                late=[l_ for l_ in seg if 'v_mfma' in l_ and l_.split()[1].rstrip(',')==t1]
                e([l_ for l_ in seg if l_ not in late])
                e([late[0],'s_nop 4',late[1],'s_nop 3']); e(mix(late[2:],wr1(0),1)); e(wr1(1))
            else: e(wr1(0)+wr1(1))
            e('s_waitcnt lgkmcnt(0)\ns_barrier')
            g.stamp('p2end')
            e('s_branch L_fin')
            e(g.cold); g.cold=[]
    e('L_fin:')
    if opt.get('stamps'):
        e('s_waitcnt vmcnt(0)'); g.stamp('done')
        e(f'''s_waitcnt lgkmcnt(0)
s_cmp_eq_u32 s{TQ}, {opt.get('stq',0)}
s_cbranch_scc0 L_end
s_add_u32 s{sX}, s66, {STAMP}
s_addc_u32 s{sX+1}, s67, 0
s_lshl_b32 s{T0}, s2, 1
s_add_u32 s{T0}, s{T0}, s{NH}
s_lshl_b32 s{T0}, s{T0}, 7
v_mov_b32 v2, 0''')
        prs=[100]+G.POOL[:len(g.names())]
        if 'diag' in opt:
            p=prs[(['start']+g.names()).index(opt['diag'])]
            if 'dwg' in opt: e(f's_cmp_eq_u32 s2, {opt["dwg"]}\ns_cbranch_scc0 L_end')
            e(f's_cmp_eq_u32 s{NH}, {opt.get("dr",0)}\ns_cbranch_scc0 L_end\nL_dg:\ns_memrealtime s[72:73]\ns_waitcnt lgkmcnt(0)\ns_sub_u32 s72, s72, s{p}\ns_cmp_lt_u32 s72, 6000\ns_cbranch_scc1 L_dg')
            prs=[]
        for i,p in enumerate(prs): e(f'v_mov_b32 v4, s{p}\nv_mov_b32 v5, s{p+1}\nbuffer_store_dwordx2 v[4:5], v2, {srd(sX)}, s{T0} offen offset:{8*i}')
    e('L_end:\ns_endpgm'); e(g.cold)
    if opt.get('stamps'): g.L.insert(0,'; STAMPS start,'+','.join(g.names()))
    if opt.get('plain'):
        pl=opt['plain']
        for i_,l_ in enumerate(g.L):
            if pl&1 and 'buffer_store_dwordx4' in l_ and 's[12:15]' in l_: g.L[i_]=l_.replace(' sc1','')
            if pl&2 and 'buffer_atomic_add' in l_ and 's[12:15]' in l_: g.L[i_]=l_.replace(' sc1','')
            if pl&4 and 'buffer_load_dwordx4 v[' in l_ and 's[12:15]' in l_: g.L[i_]=l_.replace(' sc1','')
    if opt.get('nopoll'):
        for i_,l_ in enumerate(g.L):
            if 'v_cmp_gt_u32 vcc, 12,' in l_: g.L[i_]=l_.replace('12,','0,')
    if opt.get('noe'):
        for i_,l_ in enumerate(g.L):
            if 'v_cmp_eq_u32 vcc, -1, v0' in l_: g.L[i_]='  v_cmp_gt_u32 vcc, 0, v0'
    if opt.get('ahit'):
        for i_,l_ in enumerate(g.L):
            if 'buffer_load_dwordx4 v[' in l_ and 's[12:15]' in l_ and 'offen sc1' in l_:
                g.L[i_-1]=g.L[i_-1]+f'\n  s_and_b32 s{T0}, s{T0}, 0xffff'
                g.L[i_]=l_.replace('s[12:15]','s[28:31]')
    body=hz.fix('\n'.join(g.L), verbose=opt.get('v',0))
    ref=open('parallel_sum__ssm_conv_s5__geglu_ffn__prompt.s.ref').read() if opt.get('final') else ''
    cm_=''.join(l+'\n' for l in ref.split('\n') if l.startswith(';') and '@launch' not in l and 'Override' not in l and 'grid=ceil' not in l)
    return cm_+header([(NAME,256,512,163840)])+kstart(NAME)+body+'\n'+RODATA+kd(NAME,256,256)

if __name__=='__main__':
    out=sys.argv[1]; opt={}
    for a in sys.argv[2:]:
        k,_,val=a.partition('='); opt[k]=int(val) if val.lstrip('-').isdigit() else (val or 1)
    open(out,'w').write(build(opt))
```

```python
import sys, struct, math
from asmlib import *
import hz
from gen_v3 import F, LOG2E, BIG, G, cmul, cfma, mix, mksrd, fsplit, v, srd
XW=24576; WB=98304; WSS=16640; GOFF=4096; UOFF=4096+6144+128
SCR=WB+3*WSS; SP=SCR+12288; RM=SP+1024; ZF=RM+2048
HSTR=150*1024; ST_M=0xA00000; ST_R=0xA08000; ARR=0xA10000; FLG=0xA20000; EOFF=0xA60000; WSSZ=0xA80000
STAMP=0x8000000
sX,sW,sWS,sDBG,sCR,sCI,sDN,sE,sOUT=4,8,12,16,20,24,28,32,68
FS=3; WI=72; CB=73; FCNT=74; FB=75
W_,TQ,NH,RB,CT,ROT,WSTEP,XL,WL=76,77,78,79,80,81,82,83,84
RB2,TQ2,DQ,SOX,SOW,T0,T1,T2,F0,HB,XR,WQ=85,86,87,88,89,90,91,92,93,94,95,96
SPIN=97; HA=98; V14=99
TH=0; W0=1
G.POOL=[36,42,44,56,58,38,40,46,48,50,64,62]
DX=16; DW=20; DC=12; DF=14; PTX=24; PTW=27
XA=22; SA=24; TA=26; S1=27; S2=28
GC=32; SFS=[4,8,32,36]; SACC=40; SELS=224
ACC0=48; PR=80; PI=96
B1,B2,B3=112,160,208
FR=160; MR=224; RS=240
L64,WG,WH,L32,WSEL,KAP,CP,EA,NI=144,146,148,150,152,154,156,158,159
G.DEF='B0,B8,b_pub,gdone,Eok,flag,go,ph1,Z1,Z23,p2end,done'

def build(opt):
    g=G(opt); e=g.e
    PF=opt.get('pf',1); NR1=opt.get('r1d',0)
    if opt.get('gk')==2: opt['gk']=(0,2)
    cpf='v_lshlrev_b32 v2, 7, v0' if opt.get('cpf',1)==0 else 's_and_b32 s3, s2, 0xf8\nv_add_lshl_u32 v2, v3, s3, 7'
    WD=F0; XH=HA
    e(f'''s_cmp_ge_u32 s2, 256
s_cbranch_scc1 L_end
s_load_dwordx16 s[36:51], s[0:1], 0
s_load_dwordx16 s[52:67], s[0:1], 64
s_getpc_b64 s[72:73]
L_pc0:
v_lshrrev_b32 v3, 6, v0
{cpf}
v_min_u32 v2, L_last-L_pc0, v2
v_and_b32 v1, 63, v0
v_readfirstlane_b32 s{W_}, v3
global_load_dword v9, v2, s[72:73]
s_and_b32 s{RB2}, s2, 7
s_lshr_b32 s{WI}, s2, 3
s_and_b32 s{TQ2}, s{WI}, 3
s_lshr_b32 s{DQ}, s{WI}, 2''')
    if opt.get('stamps'): e(('s_memtime' if opt['stamps']==2 else 's_memrealtime')+' s[100:101]')
    e(f'''s_and_b32 s{T0}, s2, 1
s_lshl_b32 s{RB}, s{T0}, 2
s_add_u32 s{RB}, s{RB}, s{TQ2}
s_lshr_b32 s{T1}, s{RB2}, 1
s_lshl_b32 s{CT}, s{T1}, 3
s_add_u32 s{CT}, s{CT}, s{DQ}''')
    if opt.setdefault('xm',1): e(f's_xor_b32 s{RB2}, s{T0}, 1\ns_lshl_b32 s{RB2}, s{RB2}, 2\ns_add_u32 s{RB2}, s{RB2}, s{T1}')
    if opt.setdefault('jx',4): e(f's_xor_b32 s{CT}, s{CT}, {opt["jx"]}')
    if opt.get('dx'): e(f's_xor_b32 s{DQ}, s{DQ}, {opt["dx"]}')
    if opt.get('map')=='A':
        e(f's_mov_b32 s{RB}, s{RB2}\ns_lshl_b32 s{CT}, s{TQ2}, 3\ns_add_u32 s{CT}, s{CT}, s{DQ}\ns_xor_b32 s{CT}, s{CT}, {opt.get("jx",0)}')
    oa,ob=opt.get('ord','x01245673.45670123')[1:].split('.')
    e(f's_mov_b32 s{ROT}, 0x{oa[::-1]}\ns_cmp_eq_u32 s{T0}, 1\ns_cselect_b32 s{ROT}, 0x{ob[::-1]}, s{ROT}')
    if opt.get('rg'): e(f's_mov_b32 s{sW}, s{ROT}\ns_mov_b32 s{sW+1}, s{ROT}\ns_lshl_b32 s{T1}, s{T1}, 3\ns_lshr_b64 s[{sW}:{sW+1}], s[{sW}:{sW+1}], s{T1}\ns_mov_b32 s{ROT}, s{sW}')
    e(f'''s_and_b32 s{TQ}, s{W_}, 3
s_lshr_b32 s{NH}, s{W_}, 2
s_and_b32 s{T0}, s{CT}, {opt.get('sx',1)}
s_xor_b32 s{XH}, s{NH}, s{T0}
v_lshrrev_b32 v4, 3, v1          ; q
v_and_b32 v5, 7, v1              ; pos
v_lshrrev_b32 v6, 2, v4
v_lshlrev_b32 v6, 4, v6
v_and_or_b32 v6, v4, 3, v6
s_lshl_b32 s{T0}, s{RB}, 2
s_add_u32 s{HB}, s{T0}, s{TQ}        ; rb*4+tq
s_lshl_b32 s{T0}, s{HB}, 6
s_lshl_b32 s{T1}, s{XH}, 3
s_add_u32 s{T1}, s{T1}, s{T0}
v_add_u32 v6, s{T1}, v6
v_lshlrev_b32 v6, 10, v6
v_lshrrev_b32 v7, 1, v4
v_xor_b32 v7, v5, v7
v_xor_b32 v8, 4, v7
v_lshl_add_u32 v{DX}, v7, 4, v6
v_lshl_add_u32 v{DX+1}, v8, 4, v6
v_add_u32 v{DX+1}, {32768-1024}, v{DX+1}
v_add_u32 v{DX+2}, 2048, v{DX}
v_add_u32 v{DX+3}, 2048, v{DX+1}
s_mul_i32 s{XR}, s{TQ}, {XW}
s_lshl_b32 s{T1}, s{XH}, 12
s_add_u32 s{XL}, s{XR}, s{T1}
s_mov_b32 s{sX+2}, 2097152
s_mov_b32 s{sX+3}, 0x20000''')
    XF=opt.get('xf',1)
    X0=[f's_and_b32 s{T0}, s{ROT}, 7\ns_lshl_b32 s{T0}, s{T0}, 7\ns_mov_b32 m0, s{XL}\ns_waitcnt lgkmcnt(0)\ns_mov_b32 s{sX}, s36\ns_mov_b32 s{sX+1}, s37',g.st('e0')]
    X0+=[f'buffer_load_dwordx4 v{DX+j}, {srd(sX)}, s{T0} offen'+(f' offset:{1024*j}' if j else '')+' lds' for j in range(4)]
    NL=opt.get('nl',16)
    if NL:
        X0.insert(2,f's_lshl_b32 s{T1}, s2, 3\ns_add_u32 s{T1}, s{T1}, s{W_}\ns_cmp_eq_u32 s{T1}, {97*8+7}\ns_cbranch_scc1 L_init\nL_initd:')
        t=f'L_init:\nv_lshlrev_b32 v10, 4, v1\nv_add_u32 v10, {ARR}, v10\nv_mov_b32 v44, 0\nv_mov_b32 v45, 0\nv_mov_b32 v46, 0\nv_mov_b32 v47, 0\nv_mov_b32 v11, 1'
        for k in range((NL+7)//8): t+=f'\nglobal_store_dwordx4 v10, v[44:47], s[66:67] offset:{1024*k} sc1'
        g.cold.append(t+'\ns_waitcnt vmcnt(0)\ns_mov_b64 exec, 1\nglobal_store_dword v44, v11, s[64:65] sc1\ns_mov_b64 exec, -1\ns_branch L_initd')
    UP=opt.get('up',0)
    if UP:
        X0=X0[:2]+[f's_lshl_b32 s{T1}, s{XH}, 2\ns_add_u32 s{T1}, s{T1}, s{TQ}\ns_cmp_eq_u32 s{T1}, s{DQ}\ns_cbranch_scc0 L_nox']+X0[2:]
        for i_ in range(1,UP):
            X0+=[f's_bfe_u32 s{T0}, s{ROT}, {0x30000+4*i_}\ns_add_u32 m0, s{XL}, {i_*8192}\ns_lshl_b32 s{T0}, s{T0}, 7']+X0[3:7]
        X0+=['L_nox:']
    if XF: e(X0)
    e(fsplit(CT,FS,FCNT,T0))
    e(f'''s_and_b32 s{T0}, s{RB}, {opt.get('sw',1)}
s_lshl_b32 s{T0}, s{T0}, 2
s_xor_b32 s{WD}, s{W_}, s{T0}
s_cmp_ge_u32 s{WD}, 5
s_cselect_b32 s{T1}, 5, 2
s_cselect_b32 s{T2}, {WB+128}, {0}
s_cselect_b32 s{WL}, 0, {WB}
s_add_u32 s{WL}, s{WL}, s{T2}
s_lshl_b32 s{T2}, s{WD}, 11
s_add_u32 s{WL}, s{WL}, s{T2}
s_sub_u32 s{T1}, s{WD}, s{T1}
s_lshl_b32 s{T1}, s{T1}, 7
s_lshl_b32 s{T2}, s{FS}, 5
s_lshl_b32 s{SOX}, s{FCNT}, 1
v_mov_b32 v0, 0x80000000''')
    for j in range(2):
        e(f'''v_add_u32 v6, s{T1}, v1
v_add_u32 v6, {64*j}, v6
v_mul_u32_u24 v10, 10923, v6
v_lshrrev_b32 v10, 16, v10
v_mul_u32_u24 v11, 6, v10
v_sub_u32 v11, v6, v11           ; c
v_lshrrev_b32 v6, 1, v10
v_xor_b32 v6, v6, v10
v_and_b32 v6, 4, v6
v_mul_u32_u24 v6, 3, v6
v_xor_b32 v10, v10, v6
v_mul_u32_u24 v10, 2752, v10
v_lshl_add_u32 v10, v11, 4, v10
v_add_u32 v10, s{T2}, v10
v_cmp_gt_u32 vcc, s{SOX}, v11
v_subrev_u32 v10, {1024*j}, v10
v_cndmask_b32 v{DW+j}, v0, v10, vcc''')
    e(f'''s_mov_b32 s{WSTEP}, 176128
s_mov_b32 s{sW+2}, 1409024
s_mov_b32 s{sW+3}, 0x20000
s_lshl_b32 s{T1}, s{CT}, 4
v_add_u32 v6, s{T1}, v4
v_lshlrev_b32 v6, 10, v6
v_lshl_add_u32 v10, v7, 4, v6
v_lshl_add_u32 v11, v8, 4, v6
v_add_u32 v11, 7168, v11
s_cmp_lt_u32 s{WD}, 2
s_cselect_b64 vcc, -1, 0
s_cselect_b32 s{WSTEP}, 128, s{WSTEP}
s_cselect_b32 s{sW+2}, 524288, s{sW+2}
v_cndmask_b32 v{DW}, v{DW}, v10, vcc
v_cndmask_b32 v{DW+1}, v{DW+1}, v11, vcc
''')
    if not XF: e(X0)
    e(f'''s_cmp_eq_u32 s{WD}, 0
s_cselect_b32 s{sW}, s42, s44
s_cselect_b32 s{sW+1}, s43, s45
s_cmp_ge_u32 s{WD}, 2
s_cselect_b32 s{sW}, s56, s{sW}
s_cselect_b32 s{sW+1}, s57, s{sW+1}
s_cmp_ge_u32 s{WD}, 5
s_cselect_b32 s{sW}, s58, s{sW}
s_cselect_b32 s{sW+1}, s59, s{sW+1}
''')
    if UP: e(f's_and_b32 s{T1}, s{WD}, 3\ns_cmp_eq_u32 s{T1}, s{TQ2}\ns_cbranch_scc0 L_now')
    for i_ in range(max(1,UP)):
        e(f's_bfe_u32 s{T0}, s{ROT}, {0x30000+4*i_}\ns_add_u32 m0, s{WL}, {i_*WSS}\ns_mul_i32 s{SOW}, s{T0}, s{WSTEP}\nbuffer_load_dwordx4 v{DW}, {srd(sW)}, s{SOW} offen lds\nbuffer_load_dwordx4 v{DW+1}, {srd(sW)}, s{SOW} offen offset:1024 lds')
    if UP: e('L_now:')
    def slab(i):
        st=i%3
        L=[f's_bfe_u32 s{T0}, s{ROT}, {0x30000+4*i}\ns_lshl_b32 s{SOX}, s{T0}, 7\ns_add_u32 m0, s{WL}, {st*WSS}\ns_mul_i32 s{SOW}, s{T0}, s{WSTEP}\nbuffer_load_dwordx4 v{DW}, {srd(sW)}, s{SOW} offen lds']
        L.append(f'buffer_load_dwordx4 v{DW+1}, {srd(sW)}, s{SOW} offen offset:1024 lds\ns_add_u32 m0, s{XL}, {st*8192}')
        for j in range(4): L.append(f'buffer_load_dwordx4 v{DX+j}, {srd(sX)}, s{SOX} offen'+(f' offset:{1024*j}' if j else '')+' lds')
        return L
    N1=opt.get('n1',3)
    g.stamp('e1')
    e(f'''s_cmp_eq_u32 s{NH}, 1
s_cbranch_scc1 L_role1''')

    def spf(nh):
        if nh==0:
            t=f's_cmp_lt_u32 s{TQ}, 2\ns_cselect_b64 s[0:1], s[46:47], s[48:49]\ns_lshl_b32 s{T0}, s2, 1\ns_and_b32 s{T1}, s{TQ}, 1\ns_add_u32 s{T0}, s{T0}, s{T1}\ns_lshl_b32 s{T0}, s{T0}, 10'; n=8
        else:
            t=f's_mov_b64 s[0:1], s[60:61]\ns_mul_i32 s{T0}, s2, 43\ns_mul_i32 s{T1}, s{TQ}, 11\ns_min_u32 s{T1}, s{T1}, 32\ns_add_u32 s{T0}, s{T0}, s{T1}\ns_lshl_b32 s{T0}, s{T0}, 7'; n=11
        t+=f'\ns_add_u32 s0, s0, s{T0}\ns_addc_u32 s1, s1, 0'
        for k in range(n): t+=f'\ns_load_dword s54, s[0:1], {128*k}'
        return t
    def setup(nh):
        if PF==10: e(spf(nh))
        e(mksrd(sWS,66,67,WSSZ)); nd=0 if opt.get('nodma') else 1; e(mksrd(sCR,46,47,524288*nd)); e(mksrd(sCI,48,49,524288*nd)); e(mksrd(sDN,60,61,1409024*nd)); e(mksrd(sOUT,62,63,4194304))
        if nh==0:
            e(mksrd(sDBG,64,65,256))
            if NL: e(f's_cmp_eq_u32 s{W_}, 0\ns_cselect_b32 s{TH}, 1, 0\ns_cselect_b32 s{W0}, 0, {BIG}')
            e(f's_lshl_b32 s{T0}, s{CT}, 12\ns_add_u32 s{T0}, s{T0}, {EOFF}\ns_add_u32 s{sE}, s66, s{T0}\ns_addc_u32 s{sE+1}, s67, 0\ns_mov_b32 s{sE+2}, 4096\ns_mov_b32 s{sE+3}, 0x20000')
        else:
            e(f's_lshl_b32 s{T0}, s{DQ}, 6\nv_add_u32 v6, s{T0}, v4\nv_lshlrev_b32 v6, 10, v6\nv_lshl_add_u32 v{DC}, v7, 4, v6\nv_lshl_add_u32 v{DC+1}, v8, 4, v6')
        e(f'''v_lshlrev_b32 v6, 1, v4
v_and_b32 v6, 4, v6
v_xor_b32 v6, v5, v6
v_lshlrev_b32 v6, 4, v6
v_lshl_add_u32 v6, v4, 10, v6
s_lshl_b32 s{T0}, s{DQ}, 7
v_add_u32 v{DF}, s{T0}, v6
s_mul_i32 s{F0}, s{TQ}, 22
s_cmp_eq_u32 s{TQ}, 3
s_cselect_b32 s{T0}, 1, 0
s_sub_u32 s{F0}, s{F0}, s{T0}
s_lshl_b32 s{FB}, s{F0}, 14
s_lshl_b32 s{CB}, s{TQ}, 8
s_lshl_b32 s{WQ}, s{TQ}, 12
s_lshl_b32 s{T0}, s{T0}, 11
s_sub_u32 s{V14}, s{WQ}, s{T0}
s_add_u32 s{V14}, s{V14}, {SCR}
s_add_u32 s{WQ}, s{WQ}, {WB}
s_lshl_b32 s{HA}, s{HB}, 2
s_lshr_b32 s{T0}, s{CT}, 3
s_add_u32 s{HA}, s{HA}, s{T0}
s_lshl_b32 s{HA}, s{HA}, 8
s_add_u32 s{HA}, s{HA}, {FLG}
v_and_b32 v2, 15, v1
v_lshrrev_b32 v3, 4, v1
v_bfe_u32 v6, v1, 1, 3
v_xor_b32 v6, v3, v6
v_lshlrev_b32 v6, 4, v6
v_lshl_add_u32 v6, v2, 7, v6
v_add_u32 v{XA}, s{XR}, v6
v_xor_b32 v{XA+1}, 64, v{XA}
v_bfe_u32 v10, v1, 2, 3
v_lshrrev_b32 v11, 5, v1
v_lshl_add_u32 v10, v11, 4, v10
v_mul_u32_u24 v10, 96, v10
v_and_b32 v11, 3, v1
v_lshl_add_u32 v10, v11, 3, v10
v_add_u32 v{TA}, {WB+GOFF}, v10
s_lshr_b32 s{T0}, s{TQ}, 1
s_and_b32 s{T1}, s{TQ}, 1
s_mul_i32 s{T2}, s{T0}, 3072
s_mul_i32 s{SPIN}, s{T1}, {UOFF-GOFF}
s_add_u32 s{T2}, s{T2}, s{SPIN}''')
        if nh==0:
            e(f'''v_add_u32 v{S2}, s{T2}, v{TA}
v_add_u32 v{SA}, {WB}, v6
v_xor_b32 v{SA+1}, 64, v{SA}
s_lshl_b32 s{T0}, s{T0}, 6
s_lshl_b32 s{T1}, s{T1}, 11
v_xor_b32 v{S1}, s{T0}, v{SA}
v_add_u32 v{S1}, s{T1}, v{S1}''')
        if nh==0:
            e('v_mov_b32 v3, 0x3f803f80')
            for f_ in range(4):
                e(f'v_cmp_eq_u32 vcc, {f_}, v2')
                for k in range(4): e(f'v_cndmask_b32 v{SELS+4*f_+k}, 0, v3, vcc')
        else:
            e(traddr(0,3)+[f'v_add_u32 v{PTX}, s{XR}, v0',f'v_add_u32 v{PTX+1}, s{XR}, v3',f'v_add_u32 v{PTW}, s{WQ}, v0',f'v_add_u32 v{PTW+1}, s{WQ}, v3'])
        e(f'v_and_b32 v29, 15, v1\nv_lshl_add_u32 v29, v29, 4, s{V14}\nv_and_b32 v30, 48, v1\ns_lshl_b32 s{T0}, s{TQ}, 9\ns_add_u32 s{T0}, s{T0}, {RM}\nv_lshl_add_u32 v31, v30, 2, s{T0}\nv_add_u32 v30, {SP}, v30')
        e('v_lshlrev_b32 v15, 4, v1')
        if PF==11: e(spf(nh))
        if nh==0 and opt.get('c3'):
            e(f's_lshr_b32 s{T0}, s2, 3\ns_lshl_b32 s{T0}, s{T0}, 2\ns_add_u32 s{T0}, s{T0}, s{TQ}\ns_mul_i32 s{T0}, s{T0}, 11\ns_min_u32 s{T0}, s{T0}, 1365\ns_lshl_b32 s{T0}, s{T0}, 10\ns_add_u32 s0, s60, s{T0}\ns_addc_u32 s1, s61, 0')
        elif nh==0 and opt.get('sp'):
            e(f's_lshr_b32 s{T0}, s2, 3\ns_lshl_b32 s{T0}, s{T0}, 2\ns_add_u32 s{T0}, s{T0}, s{TQ}\ns_lshl_b32 s{T0}, s{T0}, 12\ns_add_u32 s0, s46, s{T0}\ns_addc_u32 s1, s47, 0\ns_add_u32 s60, s48, s{T0}\ns_addc_u32 s61, s49, 0')
        if opt.get('stamps'):
            for r,nm in zip(G.POOL,g.names()):
                if nm not in ('e0','e1'): e(f's_mov_b64 s[{r}:{r+1}], 0')
    def vgroup(m0, vregs, sr, sb, imm, n):
        L=[]
        for j in range(n):
            t=f's_add_u32 m0, {m0}\n' if j==0 else ''
            t+=f's_add_u32 s{T0}, s{sb}, {imm+j*(8192-1024)}\nbuffer_load_dwordx4 v{vregs[j%len(vregs)]}, {srd(sr)}, s{T0} offen'+(f' offset:{1024*j}' if j else '')+' lds'
            L.append(t)
        return L
    def vx(vs,half):
        st=vs%3; m0=f's{XR}, {st*8192+half*4096}'
        if vs>=11:
            b=vs-11; return vgroup(m0,[DC,DC+1],sCI if b&1 else sCR,CB,(b>>1)*128+half*32768,4)
        return vgroup(m0,[DF],sDN,FB,6*(vs-8)*16384+half*32768,4)
    def vw(vs,half=None):
        st=vs%3
        if vs>=12: return vgroup(f's{WQ}, {st*WSS}',[DC,DC+1],sCI,CB,128+(vs-12)*32768,4)
        fs,fb=(6*(vs-8)+4 if vs<11 else 18),FB
        if half is None: return vgroup(f's{WQ}, {st*WSS}',[DF],sDN,fb,fs*16384,4)
        return vgroup(f's{WQ}, {st*WSS+half*2048}',[DF],sDN,fb,(fs+half)*16384,2)
    def vhalf(vs,nh): return vw(vs,nh)+vx(vs,nh)
    def vfull(vs): return vx(vs,0)+vx(vs,1)+vw(vs)
    def traddr(t0,t1):
        return [f'v_bfe_u32 v{t0}, v1, 2, 2',f'v_lshrrev_b32 v{t1}, 5, v1',f'v_lshl_add_u32 v{t0}, v{t1}, 3, v{t0}',f'v_lshlrev_b32 v{t0}, 7, v{t0}',f'v_and_b32 v{t1}, 3, v1',f'v_lshl_add_u32 v{t0}, v{t1}, 3, v{t0}',
            f'v_bfe_u32 v{t1}, v1, 4, 1',f'v_lshl_add_u32 v{t0}, v{t1}, 5, v{t0}',f'v_bfe_u32 v{t1}, v1, 3, 1',f'v_lshl_add_u32 v{t0}, v{t1}, 6, v{t0}',f'v_xor_b32 v{t1}, 64, v{t0}']
    def trstep(base,areg,off):
        return [f'ds_read_b64_tr_b16 {v(base+dh*4+2*j,2)}, v{areg+dh} offset:{off+j*512}' for dh in range(2) for j in range(2)]
    def vread(vs, base):
        st=vs%3; L=[]
        for k in range(4): L+=trstep(base+8*k,PTX,st*8192+k*2048)
        for k in range(2): L+=trstep(base+32+8*k,PTW,st*WSS+k*2048)
        return L
    def gelu(acc, tb, tmp, soff, sg):
        L=[]; t=tmp
        G_=lambda i: v(acc+8*tb+2*i,2); U_=lambda i: v(acc+16+8*tb+2*i,2); T_=lambda i: v(t+2*i,2)
        cp=lambda i: v(GC+4*(2*tb+(i>>1)),2); rp=lambda i: v(GC+4*(2*tb+(i>>1))+2,2); o=acc+16+8*tb
        for i in range(4): L.append(f'v_pk_fma_f32 {G_(i)}, {v(sg+2*(i&1),2)}, {rp(i)}, {G_(i)} op_sel:[0,1,0] op_sel_hi:[1,1,1]')
        for i in range(4): L.append(f'v_pk_mul_f32 {T_(i)}, {G_(i)}, {G_(i)}')
        for i in range(4): L.append(f'v_pk_fma_f32 {T_(i)}, {T_(i)}, {cp(i)}, {cp(i)} op_sel:[0,1,0] op_sel_hi:[1,1,0]')
        for i in range(4): L.append(f'v_pk_mul_f32 {T_(i)}, {T_(i)}, {G_(i)}')
        for i in range(8): L.append(f'v_exp_f32 {v(t+i)}, {v(t+i)}')
        for i in range(4): L.append(f'v_pk_fma_f32 {U_(i)}, {v(sg+4+2*(i&1),2)}, {rp(i)}, {U_(i)} op_sel:[0,1,0] op_sel_hi:[1,1,1]')
        for i in range(4): L.append(f'v_pk_fma_f32 {T_(i)}, {T_(i)}, {rp(i)}, {rp(i)} op_sel_hi:[1,0,0]')
        for i in range(8): L.append(f'v_rcp_f32 {v(t+i)}, {v(t+i)}')
        for i in range(4): L.append(f'v_pk_mul_f32 {G_(i)}, {G_(i)}, {U_(i)}')
        for i in range(4): L.append(f'v_pk_mul_f32 {G_(i)}, {G_(i)}, {T_(i)}')
        for i in (0,2,1,3): L.append(f'v_cvt_pk_bf16_f32 {v(o+i)}, {v(acc+8*tb+2*i)}, {v(acc+8*tb+2*i+1)}')
        L.append(f's_add_u32 s{T1}, s{soff}, {tb*HSTR}\nv_permlane16_swap_b32 v{o}, v{o+2}\nv_permlane16_swap_b32 v{o+1}, v{o+3}\nbuffer_store_dwordx4 {v(o,4)}, v15, {srd(sWS)}, s{T1} offen sc1')
        return L
    def sread(sb, d, t):
        return [f'ds_read_b128 {v((d,t)[q_>>1]+4*(q_&1),4)}, v30 offset:{256*q_+64*(1+sb)}' for q_ in range(4)]
    def sadd(d,t): return [f'v_pk_add_f32 {v(d+2*k,2)}, {v(d+2*k,2)}, {v(t+2*k,2)}' for k in range(4)]
    def setflag(ssm):
        t=f's_add_u32 s{T1}, s{HA}, 128\n'
        if not ssm: t+=f's_and_b32 s{T0}, s{CT}, 7\ns_cmp_lt_u32 s{T0}, 6\ns_cselect_b32 s{T1}, s{HA}, s{T1}\n'
        return t+f'v_mov_b32 v2, 1\nv_mov_b32 v3, 0\ns_mov_b64 exec, 1\nbuffer_atomic_add v2, v3, {srd(sWS)}, s{T1} offen sc1\ns_mov_b64 exec, -1'
    def p2base(nh):
        return f'''s_lshl_b32 s{T0}, s{RB2}, 2
s_add_u32 s{T0}, s{T0}, s{TQ2}
s_mul_i32 s{SOX}, s{T0}, {2*HSTR}
s_lshl_b32 s{HB}, s{T0}, 2
s_add_u32 s{HB}, s{HB}, s{TQ}
s_lshl_b32 s{HB}, s{HB}, 8
s_add_u32 s{HB}, s{HB}, {FLG+128*(1-nh)}
s_lshl_b32 s{T0}, s{F0}, 10
s_add_u32 s{SOW}, s{SOX}, s{T0}
s_lshl_b32 s{T0}, s{TQ}, 13
s_add_u32 s{SOX}, s{SOX}, s{T0}
v_mov_b32 v0, 0'''
    pld=lambda r: f'buffer_load_dword v{r}, v0, {srd(sWS)}, s{HB} offen sc1'
    def pollchk(lbl, r, n, sl):
        g.cold.append(f'''{lbl}:
s_mov_b32 s{SPIN}, 0
{lbl}_1:
s_sleep {sl}
{pld(r)}
s_add_u32 s{SPIN}, s{SPIN}, 1
s_waitcnt vmcnt(0)
v_cmp_gt_u32 vcc, 12, v{r}
s_cmp_gt_u32 s{SPIN}, 100000
s_cselect_b64 vcc, 0, vcc
s_cmp_eq_u64 vcc, 0
s_cbranch_scc0 {lbl}_1
s_branch {lbl}_ok''')
        return f's_waitcnt vmcnt({n})\nv_cmp_gt_u32 vcc, 12, v{r}\ns_cmp_eq_u64 vcc, 0\ns_cbranch_scc0 {lbl}\n{lbl}_ok:'

    sld=f's_load_dword s55, s[66:67], s{HB} glc'
    def spoll(lbl, sl, first=True):
        g.cold.append(f'''{lbl}:
s_mov_b32 s{SPIN}, 0
{lbl}_1:
{sld}
s_add_u32 s{SPIN}, s{SPIN}, 1
s_waitcnt lgkmcnt(0)
s_cmp_gt_u32 s{SPIN}, 100000
s_cselect_b32 s55, 12, s55
s_cmp_lt_u32 s55, 12
s_cbranch_scc0 {lbl}_ok
s_sleep {sl}
s_branch {lbl}_1''')
        return (sld+'\n' if first else '')+f's_waitcnt lgkmcnt(0)\ns_cmp_lt_u32 s55, 12\ns_cbranch_scc1 {lbl}\n{lbl}_ok:'
    X=lambda b,t4: FR+32*b+4*t4
    Wf=lambda b,k: FR+32*b+16+4*k
    for nh in range(2):
        ACC1=112 if nh==0 else 80
        if nh==0:
            e(f'''s_lshl_b32 s{T0}, s{RB}, 5
s_add_u32 s{T0}, s{T0}, s{CT}
s_lshl_b32 s{T0}, s{T0}, 2
s_add_u32 s{WI}, s{T0}, s{TQ}
s_lshl_b32 s{T2}, s{WI}, 11
v_and_b32 v2, 31, v1
v_lshlrev_b32 v2, 4, v2
v_and_b32 v3, 32, v1
v_lshl_add_u32 v2, v3, 5, v2
v_and_b32 v3, 15, v1
s_lshl_b32 s{T1}, s{CT}, 5
v_lshl_add_u32 v3, v3, 1, s{T1}
''')
            ROWS=f'buffer_load_dwordx4 v[80:83], v2, {srd(sX)}, s{T2} offen\nbuffer_load_dwordx4 v[84:87], v2, {srd(sX)}, s{T2} offen offset:512'
            RP=1
            e(ROWS.replace('v2,','v108,').replace(f's{T2} ',f's{SPIN} ') if False else '')
            e(f's_lshl_b32 s{T0}, s{TQ}, 2\ns_add_u32 s{T0}, s{T0}, {ZF}\nv_mov_b32 v10, s{T0}\nv_mov_b32 v11, 0\nds_write_b32 v10, v11')
            RL=opt.get('rl',0)
            if not RL: e(ROWS)
            else: e('v_mov_b32 v110, v2')
            e('global_load_ushort v244, v3, s[38:39]\nglobal_load_ushort v245, v3, s[40:41]\nglobal_load_ushort v246, v3, s[50:51]')
            setup(0)
            if RL: e(f's_lshl_b32 s{sOUT}, s{WI}, 11')
            def allred(r,t):
                for k in (8,4,2,1): e(f'v_add_f32_dpp {v(r)}, {v(r)}, {v(r)} row_ror:{k} row_mask:0xf bank_mask:0xf')
                e(f'v_mov_b32 {v(t)}, {v(r)}\nv_permlane16_swap_b32 {v(t)}, {v(r)}\nv_add_f32 {v(r)}, {v(r)}, {v(t)}')
            SD=1; SB=opt.get('sb',1)
            if SD:
                g.stamp('s0')
                if UP: e(slab(0))
                if RL: e(ROWS.replace('v2,','v110,').replace(f's{T2} ',f's{sOUT} '))
                D2=slab(1)+slab(2)
                if SB: e(D2[:N1]); D2=D2[N1:]; g.stamp('s1')
                mark=len(g.L)
            e(f's_waitcnt vmcnt({(9 if UP else 3) if SB==0 else 12+(6 if SB==2 else 0)+(1 if (SB==2 and PF==1) else 0)})')
            g.stamp('rowld')
            for i in range(8): e(f'v_lshlrev_b32 v{88+2*i}, 16, v{80+i}\nv_and_b32 v{89+2*i}, 0xffff0000, v{80+i}')
            e('v_pk_add_f32 v[104:105], v[88:89], v[90:91]')
            for i in range(2,8): e(f'v_pk_add_f32 v[104:105], v[104:105], v[{88+2*i}:{89+2*i}]')
            e('v_add_f32 v104, v104, v105')
            allred(104,105)
            e(f'v_mul_f32 v104, {F(1/512)}, v104')
            for i in range(8): e(f'v_pk_add_f32 v[{88+2*i}:{89+2*i}], v[{88+2*i}:{89+2*i}], v[104:105] op_sel_hi:[1,0] neg_lo:[0,1] neg_hi:[0,1]')
            e('v_pk_mul_f32 v[106:107], v[88:89], v[88:89]')
            for i in range(1,8): e(f'v_pk_fma_f32 v[106:107], v[{88+2*i}:{89+2*i}], v[{88+2*i}:{89+2*i}], v[106:107]')
            e('v_add_f32 v106, v106, v107')
            allred(106,107)
            e(f'''v_mul_f32 v106, {F(1/512)}, v106
v_cvt_pk_bf16_f32 v104, v104, v106
v_and_b32 v106, 0xffff0000, v104
v_lshlrev_b32 v104, 16, v104
v_add_f32 v106, {F(1e-5)}, v106
v_cvt_pk_bf16_f32 v106, v106, v106
v_lshlrev_b32 v106, 16, v106
v_sqrt_f32 v106, v106
v_cvt_pk_bf16_f32 v106, v106, v106
v_lshlrev_b32 v106, 16, v106          ; sd
v_mul_f32 v90, v106, v106            ; R = sd^2
v_rcp_f32 v106, v106                  ; r
v_sub_f32 v91, 0, v104               ; -m
v_and_b32 v2, 31, v1
v_mul_f32 v88, {F(-2*math.sqrt(2/math.pi)*LOG2E)}, v106
v_mul_f32 v89, v106, v106
v_mul_f32 v93, v91, v106
v_mul_f32 v89, {F(0.044715)}, v89
v_lshrrev_b32 v3, 5, v1
v_mul_f32 v89, v89, v88
s_lshl_b32 s{T1}, s{CT}, 5
s_sub_u32 s{T1}, s{T1}, s{HB}
s_add_u32 s{T1}, s{T1}, 31
s_lshl_b32 s{T1}, s{T1}, 7
s_add_u32 s{T1}, s{T1}, {EOFF-64}
v_lshl_add_u32 v108, v3, 4, v2
v_lshl_add_u32 v108, v108, 2, s{T1}
v_mov_b32 v109, -1
s_and_b32 s{T1}, s{CT}, 7
s_cselect_b32 s{T1}, {BIG}, s{HA}
v_lshl_add_u32 v110, v3, 7, s{T1}
v_cmp_gt_u32 vcc, 7, v2
v_cndmask_b32 v108, v108, v110, vcc
v_cndmask_b32 v109, v109, 0, vcc
s_lshr_b32 s{T1}, s{WI}, 5
s_lshl_b32 s{T1}, s{T1}, 9
s_and_b32 s{T2}, s{WI}, 31
s_lshl_b32 s{T2}, s{T2}, 3
s_add_u32 s{T1}, s{T1}, s{T2}
s_add_u32 s{T1}, s{T1}, {ST_R-1024}
v_lshl_add_u32 v110, v2, 6, v3
v_lshl_add_u32 v110, v110, 2, s{T1}
v_cmp_gt_u32 vcc, 6, v2
v_cndmask_b32 v108, v108, v110, vcc
v_cndmask_b32 v109, v109, v93, vcc
s_lshl_b32 s{T1}, s{WI}, 5
s_add_u32 s{T1}, s{T1}, {ST_M}
v_lshl_add_u32 v110, v3, 2, v2
v_lshl_add_u32 v110, v110, 2, s{T1}
v_cmp_gt_u32 vcc, 5, v2
v_cndmask_b32 v109, v109, v106, vcc
v_cmp_gt_u32 vcc, 4, v2
v_cndmask_b32 v108, v108, v110, vcc
v_cndmask_b32 v109, v109, v91, vcc
v_cmp_gt_u32 vcc, 3, v2
v_cndmask_b32 v109, v109, v90, vcc
v_cmp_gt_u32 vcc, 2, v2
v_cndmask_b32 v109, v109, v89, vcc
v_cmp_gt_u32 vcc, 1, v2
v_cndmask_b32 v109, v109, v88, vcc
s_mov_b32 exec_lo, 0xffff007f
s_mov_b32 exec_hi, 0xffff007f
buffer_store_dword v109, v108, {srd(sWS)}, 0 offen sc1
s_mov_b64 exec, -1''')
            if SB:
                STATS=g.L[mark:]; del g.L[mark:]
            else:
                assert not RL
                STATS=[]; g.stamp('st'); e(D2[:N1]); D2=D2[N1:]; g.stamp('s1')
            W2PF=f'''s_cmp_eq_u32 s{TQ}, 0
s_cselect_b32 s{sOUT}, s{sCR}, s{sCI}
s_cselect_b32 s{sOUT+1}, s{sCR+1}, s{sCI+1}
s_lshl_b32 s{T1}, s2, 11
s_mul_i32 s{T2}, s2, {43*128}
s_cmp_ge_u32 s{TQ}, 2
s_cselect_b32 s{sOUT}, s{sDN}, s{sOUT}
s_cselect_b32 s{sOUT+1}, s{sDN+1}, s{sOUT+1}
s_cselect_b32 s{T1}, s{T2}, s{T1}
s_cselect_b32 s{T2}, 21, 15
v_min_u32 v13, s{T2}, v1
s_cmp_eq_u32 s{TQ}, 3
s_cselect_b32 s{T2}, {21*128}, 0
s_add_u32 s{T1}, s{T1}, s{T2}
v_lshlrev_b32 v13, 7, v13
buffer_load_dword v12, v13, {srd(sOUT)}, s{T1} offen'''
            LAM=f'''v_lshlrev_b32 v244, 16, v244
v_lshlrev_b32 v245, 16, v245
v_lshlrev_b32 v246, 16, v246
v_mul_f32 v246, {F(LOG2E)}, v246
v_exp_f32 v246, v246
v_cvt_pk_bf16_f32 v246, v246, v246
v_lshlrev_b32 v246, 16, v246
v_mul_f32 v247, v246, v244
v_mul_f32 v248, v246, v245
v_mul_f32 v247, {F(LOG2E)}, v247
v_mul_f32 v248, 0.15915494, v248'''.split('\n')
            def cpow(dr,di,n):
                LAM.extend([f'v_mul_f32 v249, {n}, v247',f'v_mul_f32 v250, {n}, v248','v_rndne_f32 v251, v250','v_exp_f32 v249, v249','v_sub_f32 v250, v250, v251','v_cos_f32 v251, v250','v_sin_f32 v250, v250',f'v_mul_f32 {v(dr)}, v249, v251',f'v_mul_f32 {v(di)}, v249, v250'])
            cpow(PR,PI,'1.0')
            for j in range(1,16):
                a=(j-1)//2; b=j-1-a
                LAM.extend([f'v_mul_f32 {v(PR+j)}, {v(PR+a)}, {v(PR+b)}',f'v_mul_f32 {v(PI+j)}, {v(PR+a)}, {v(PI+b)}',f'v_fma_f32 {v(PR+j)}, -{v(PI+a)}, {v(PI+b)}, {v(PR+j)}',f'v_fmac_f32 {v(PI+j)}, {v(PI+a)}, {v(PR+b)}'])
            cpow(L32,L32+1,F(32.0)); cpow(L64,L64+1,F(64.0))
            LAM.extend(['v_and_b32 v252, 16, v1','v_cvt_f32_u32 v252, v252']); cpow(WSEL,WSEL+1,'v252')
            LAM.extend(['v_and_b32 v252, 48, v1','v_cvt_f32_u32 v252, v252']); cpow(WG,WG+1,'v252')
            LAM.extend([f'v_mul_f32 v252, {F(32.0)}, v252']); cpow(254,255,'v252')
            LAM.extend(['v_mul_f32 v249, v244, v244','v_fmac_f32 v249, v245, v245','v_rcp_f32 v249, v249',f'v_add_f32 v250, -1.0, v{PR}',f'v_mul_f32 v{KAP}, v250, v244',f'v_fmac_f32 v{KAP}, v{PI}, v245',
                f'v_mul_f32 v{KAP+1}, v{PI}, v244',f'v_fma_f32 v{KAP+1}, -v250, v245, v{KAP+1}','v_add_f32 v249, v249, v249',f'v_mul_f32 v{KAP}, v249, v{KAP}',f'v_mul_f32 v{KAP+1}, v249, v{KAP+1}'])
            LAM.extend(cmul(WH,KAP,254))
            LAM.extend(['v_and_b32 v13, 12, v1','v_lshlrev_b32 v13, 2, v13','v_and_or_b32 v13, v1, 3, v13','v_lshrrev_b32 v252, 4, v1','v_lshl_add_u32 v13, v252, 2, v13','v_lshlrev_b32 v13, 4, v13'])
            LAM.extend([f'v_and_b32 v{EA}, 15, v1',f'v_lshlrev_b32 v{EA}, 3, v{EA}',f'v_sub_f32 v{NI}, 0, v{PI}'])
            if PF==9: e(W2PF)
            e(f's_waitcnt vmcnt({N1+(SB==0)+(2*RL if UP else 5)})\ns_barrier')
        else:
            e(f'''.p2align 3
L_role1:''')
            setup(1)
            e(f'''s_lshl_b32 s{T0}, s{RB2}, 2
s_add_u32 s{sE}, s{T0}, s{TQ2}
s_and_b32 s{T1}, s{TQ}, 1
s_lshl_b32 s{T1}, s{T1}, 5
s_and_b32 s{T0}, s{TQ}, 2
s_lshl_b32 s{T0}, s{T0}, 1
s_add_u32 s{T1}, s{T0}, s{T1}
s_lshl_b32 s{T0}, s{sE}, 6
s_add_u32 s{WI}, s{T0}, s{T1}
s_lshl_b32 s{sE}, s{sE}, 9
s_lshl_b32 s{T1}, s{T1}, 2
s_add_u32 s{sE}, s{sE}, s{T1}
s_add_u32 s{sE}, s{sE}, {ST_R}
v_lshrrev_b32 v2, 5, v1
v_lshl_add_u32 v2, v2, 4, s{WI}
v_and_b32 v3, 3, v4
v_add_u32 v3, v3, v2
v_lshlrev_b32 v2, 4, v5
v_lshl_add_u32 v2, v3, 10, v2
s_lshl_b32 s{sE+1}, s{DQ}, 7
v_and_b32 v3, 31, v1
v_lshl_add_u32 v3, v3, 1, s{sE+1}''')
            g.stamp('s0')
            if UP: e(slab(0))
            D2=slab(1)+slab(2); e(D2[:N1]); D2=D2[N1:]; g.stamp('s1')
            LAM=[]; STATS=[]
            e(f's_waitcnt vmcnt({N1})\ns_barrier')
        if opt.get('prio')==nh: e('s_setprio 1')
        subs=[('S',0,0,ACC0),('S',0,1,ACC0+16),('F',0,0,ACC1),('F',0,1,ACC1+16)] if nh==0 else [('F',1,0,ACC0),('F',1,1,ACC0+16),('F',2,0,ACC1),('F',2,1,ACC1+16)]
        def reads(n):
            i,u=divmod(n,2); st=i%3; b=n&1; L=[]
            def wr(k):
                kind,sb,pt,_=subs[k]
                if kind=='S': L.append(f'ds_read_b128 {v(Wf(b,k),4)}, v{SA+u} offset:{st*WSS+pt*2048}')
                else:
                    for j in range(2): L.append(f'ds_read_b64_tr_b16 {v(Wf(b,k)+2*j,2)}, v{TA} offset:{st*WSS+(32*u+8*j)*96+32*sb+pt*(UOFF-GOFF)}')
            wr(0)
            for t4 in range(4): L.append(f'ds_read_b128 {v(X(b,t4),4)}, v{XA+u} offset:{st*8192+t4*2048}')
            wr(1); wr(2); wr(3)
            if u==0:
                if nh==0 and not (opt.get('nos') and n>0):
                    SF=SFS
                    L.append(f'ds_read_b128 {v(SF[0],4)}, v{S1} offset:{st*WSS}')
                    for q_ in range(3):
                        for j in range(2): L.append(f'ds_read_b64_tr_b16 {v(SF[1+q_]+2*j,2)}, v{S2} offset:{st*WSS+8*j*96+32*q_}')

            return L
        def mf(k,t4,xo,wo,first=False):
            a=subs[k][3]+4*t4; c='0' if first else v(a,4)
            if subs[k][0]=='S': return f'v_mfma_f32_16x16x32_bf16 {v(a,4)}, {xo}, {wo}, {c}'
            return f'v_mfma_f32_16x16x32_bf16 {v(a,4)}, {wo}, {xo}, {c}'
        g.stamp('B0')
        LT=opt.get('lt',0)
        if nh==1 and LT:
            e(f's_cmp_lt_u32 s{FCNT}, 2\ns_cbranch_scc1 L_light')
            C=['L_light:']+list(D2)
            ix=f's_and_b32 s{T1}, s2, 31\ns_lshl_b32 s{T1}, s{T1}, 2\ns_add_u32 s{T1}, s{T1}, s{TQ}'
            pf1=f'{ix}\ns_mul_i32 s{T1}, s{T1}, {86*128}\nv_min_u32 v5, 42, v1\nv_lshlrev_b32 v5, 7, v5\nbuffer_load_dword v6, v5, {srd(sDN)}, s{T1} offen\ns_add_u32 s{T1}, s{T1}, {43*128}\nbuffer_load_dword v7, v5, {srd(sDN)}, s{T1} offen'
            pf2=f'{ix}\ns_lshl_b32 s{T1}, s{T1}, 12\nv_min_u32 v5, 31, v1\nv_lshlrev_b32 v5, 7, v5\nbuffer_load_dword v8, v5, {srd(sCR)}, s{T1} offen\nbuffer_load_dword v9, v5, {srd(sCI)}, s{T1} offen'
            l2=[]
            for k in range(opt.get('ll',0)):
                l2.append(f's_lshl_b32 s{T1}, s{TQ2}, 2\ns_add_u32 s{T1}, s{T1}, s{TQ}\ns_lshl_b32 s{T1}, s{T1}, 15\ns_add_u32 s{T1}, s{T1}, {(k>>1)*8192}\nv_lshlrev_b32 v5, 7, v1\nbuffer_load_dword v10, v5, {srd(sCI if k&1 else sCR)}, s{T1} offen')
            for bi in range(1,9):
                C.append('s_waitcnt vmcnt(6)\ns_barrier')
                if bi==LT: C.append(pf1)
                if bi==LT+1: C.append(pf2)
                if bi>=LT+3:
                    k=(len(l2)+7-bi)//max(1,8-bi); C+=l2[:k]; del l2[:k]
                if bi+2<8: C+=slab(bi+2)
                elif bi+2<10: C+=vhalf(bi+2,1)
            C.append('s_branch L_postB8')
            g.cold+=C
        e(reads(0))
        slots=[int(x) for x in opt.get(f'ds{nh}','13.15.21.23.29.31').split('.')]
        slots7=[int(x) for x in opt.get(f'dl{nh}',['3.7.11.15.19.23','13.15.21.23.29.31'][nh]).split('.')]
        slots6=[int(x) for x in opt.get(f'dm{nh}',['9.13.17.21.25.29','3.9.15.19.25.29'][nh]).split('.')]
        V9=opt.get('v9',0)
        if V9 and nh==1: slots7=[int(x) for x in opt.get('dl1','5.7.9.11.13.15.19.21.23.25.27.29').split('.')]
        pend=D2; xtra=0; late=None
        while len(pend)>len([q_ for q_ in slots if q_>=16]): e(pend.pop(0))
        for n in range(16):
            i,u=divmod(n,2); b=n&1
            post=[]
            if u==1:
                assert not pend
                bi=i+1
                if late: e(late); late=None
                if STATS:
                    if bi==SB: e(STATS); STATS=[]; xtra+=1
                elif LAM and bi>=opt.get('lb',1):
                    lb=5 if SD else 4
                    k=(len(LAM)+(lb-bi))//(lb+1-bi)
                    e(LAM[:k]); del LAM[:k]
                if nh==0 and bi==7:
                    SL=16
                    e(f'''v_and_b32 v12, 1, v1
v_lshlrev_b32 v12, 4, v12
v_mov_b32 v2, 0x3f80
v_lshlrev_b32 v12, v12, v2
v_bfe_u32 v2, v1, 2, 2
v_lshrrev_b32 v3, 4, v1
v_cmp_eq_u32 vcc, v2, v3
v_and_b32 v2, 2, v1
v_mov_b32 v{SL}, 0
v_cndmask_b32 v12, 0, v12, vcc
v_cmp_eq_u32 vcc, 0, v2
v_mov_b32 v{SL+1}, 0
v_mov_b32 v{SL+4}, 0
v_cndmask_b32 v{SL+2}, 0, v12, vcc
v_cndmask_b32 v{SL+3}, v12, 0, vcc
v_mov_b32 v{SL+5}, 0
v_lshrrev_b32 v2, 3, v1
v_and_b32 v3, 7, v1
v_lshrrev_b32 v12, 1, v2
v_xor_b32 v3, v3, v12
s_lshl_b32 s{T1}, s{DQ}, 6
v_add_u32 v2, s{T1}, v2
v_lshlrev_b32 v2, 10, v2
v_lshl_add_u32 v{DC}, v3, 4, v2
v_xor_b32 v{DC+1}, 64, v{DC}
v_and_b32 v2, 15, v1
v_lshlrev_b32 v2, 2, v2
v_add_u32 v2, {SP}, v2''')
                g.stamp(f'p{bi}')
                def vchk(lbl,ld,th,n):
                    e(f's_waitcnt vmcnt({n})\nv_cmp_gt_u32 vcc, {th}, v2\ns_cmp_eq_u64 vcc, 0\ns_cbranch_scc0 {lbl}\n{lbl}ok:')
                    g.cold.append(f'''{lbl}:
s_mov_b32 s{SPIN}, 0
{lbl}1:
s_sleep {opt.get('dslp',8)}
{ld}
s_add_u32 s{SPIN}, s{SPIN}, 1
s_cmp_gt_u32 s{SPIN}, 100000
s_cbranch_scc1 {lbl}ok
s_waitcnt vmcnt(0)
v_cmp_gt_u32 vcc, {th}, v2
s_cmp_eq_u64 vcc, 0
s_cbranch_scc0 {lbl}1
s_branch {lbl}ok''')
                gold=f'buffer_load_dword v2, v3, {srd(sDBG)}, s{W0} offen sc1'
                arld=f'buffer_load_dword v2, v3, {srd(sWS)}, s{W0} offen sc1' if NL else f'buffer_load_dword v2, v3, {srd(sDBG)}, 0 offen sc1'
                if bi==SB+1 and nh==0 and NL: vchk('L_go',gold,f's{TH}',6+xtra)
                if bi==6 and nh==0: vchk('L_poll',arld,f's{TH}' if NL else '4',6)
                e(f's_waitcnt vmcnt({0 if (bi==8 and nh==0) else 6+xtra}) lgkmcnt(0)')
                g.stamp(f'w{bi}')
                e('s_barrier')
                g.stamp(f'B{bi}')
                xtra=0
                if nh==0:
                    if bi==SB and NL: post.append('v_mov_b32 v3, 0\n'+gold)
                    if bi==SB+1:
                        if NL: post.append(f's_lshr_b32 s{T1}, s2, {opt.get("nsh",3)}\ns_and_b32 s{T1}, s{T1}, {NL-1}\ns_lshl_b32 s{T1}, s{T1}, 7\ns_add_u32 s{W0}, s{W0}, {ARR}\ns_add_u32 s{T1}, s{T1}, s{W0}\ns_mul_i32 s{TH}, s{TH}, {256//NL}\nv_mov_b32 v2, 1\ns_mov_b64 exec, 1\nbuffer_atomic_add v2, v3, {srd(sWS)}, s{T1} offen sc1\ns_mov_b64 exec, -1')
                        else: post.append(f's_and_b32 s{T1}, s2, 63\ns_lshl_b32 s{T1}, s{T1}, 2\ns_cmp_eq_u32 s{W_}, 0\ns_cselect_b32 s{T1}, s{T1}, {BIG}\nv_mov_b32 v2, 1\nv_mov_b32 v3, 0\ns_mov_b64 exec, 1\nbuffer_atomic_add v2, v3, {srd(sDBG)}, s{T1} offen sc1\ns_mov_b64 exec, -1')
                        xtra+=1
                    if PF==bi: post.append(W2PF); xtra+=1
                    l2p=opt.get('l2p',0)
                    if l2p and l2p<=bi<l2p+4:
                        k=bi-l2p
                        post.append(f's_lshr_b32 s{T1}, s2, 3\ns_lshl_b32 s{T1}, s{T1}, 2\ns_add_u32 s{T1}, s{T1}, s{TQ}\ns_lshl_b32 s{T1}, s{T1}, 12\nv_lshlrev_b32 v13, 7, v1\ns_mov_b64 exec, 0xffff\nbuffer_load_dword v12, v13, {srd(sCI if k&1 else sCR)}, s{T1} offen offset:{2048*(k>>1)}\ns_mov_b64 exec, -1'); xtra+=1
                    if l2p and bi==l2p+4:
                        post.append(f's_lshr_b32 s{T1}, s2, 3\ns_lshl_b32 s{T1}, s{T1}, 11\ns_add_u32 s{T1}, s{T1}, s{FB}\ns_add_u32 s{T1}, s{T1}, {18*16384}\nv_lshlrev_b32 v13, 7, v1\ns_mov_b64 exec, 0xffff\nbuffer_load_dword v12, v13, {srd(sDN)}, s{T1} offen\ns_mov_b64 exec, -1'); xtra+=1
                    if bi==5:
                        post.append((f'v_min_u32 v3, {NL-1}, v1\nv_lshlrev_b32 v3, 7, v3\n' if NL else 'v_lshlrev_b32 v3, 2, v1\n')+arld); xtra=0
                lp=opt.get('lp',0)
                if nh==1 and lp and lp<=bi<lp+5:
                    k=bi-lp
                    post.append(f's_cmp_lt_u32 s{FCNT}, 2\ns_cbranch_scc1 L_lp{k}\nL_lpr{k}:')
                    t=f'L_lp{k}:\nv_lshlrev_b32 v2, 7, v1\ns_lshl_b32 s{T1}, s{TQ2}, 2\ns_add_u32 s{T1}, s{T1}, s{TQ}\n'
                    if k<4:
                        t+=f's_lshl_b32 s{T1}, s{T1}, 15\ns_add_u32 s{T1}, s{T1}, {k*8192}\nbuffer_load_dword v3, v2, {srd(sCR)}, s{T1} offen\nbuffer_load_dword v4, v2, {srd(sCI)}, s{T1} offen\n'
                    else:
                        t+=f's_lshl_b32 s{T1}, s{TQ2}, 14\ns_add_u32 s{T1}, s{T1}, s{FB}\ns_add_u32 s{T1}, s{T1}, {18*16384}\nbuffer_load_dword v3, v2, {srd(sDN)}, s{T1} offen\ns_add_u32 s{T1}, s{T1}, 8192\nbuffer_load_dword v4, v2, {srd(sDN)}, s{T1} offen\n'
                    g.cold.append(t+f's_branch L_lpr{k}')
                if bi==6 and nh==0:
                    post.append(f'''s_lshl_b32 s{T2}, s{RB}, 2
s_add_u32 s{T2}, s{T2}, s{TQ}
s_lshl_b32 s{T1}, s{T2}, 10
s_add_u32 s{T1}, s{T1}, {ST_M}
s_mov_b32 m0, s{V14}
s_lshl_b32 s{T2}, s{T2}, 9
buffer_load_dwordx4 v13, {srd(sWS)}, s{T1} offen sc1 lds
s_lshl_b32 s{T1}, s{TQ}, 9
s_add_u32 m0, s{T1}, {RM}
s_add_u32 s{T2}, s{T2}, {ST_R}
s_mov_b32 exec_hi, 0
buffer_load_dwordx4 v15, {srd(sWS)}, s{T2} offen sc1 lds
s_mov_b64 exec, -1''')
                if bi+2<8: pend=slab(bi+2)
                elif bi==7 and V9:
                    pend=vfull(9) if nh==1 else []
                    xtra=6
                elif bi+2<10: pend=vhalf(bi+2,nh)
            else:
                e('s_waitcnt lgkmcnt(0)')
            R=reads(n+1) if n<15 else []
            M=[mf(k,t4,v(X(b,t4),4),v(Wf(b,k),4),n==0) for k in range(4) for t4 in range(4)]
            if n==15: break
            EX=[]
            GCR=[f'ds_read_b128 {v(GC+4*k,4)}, v29 offset:{256*k}' for k in range(4)]
            if n==12 and nh==0:
                EX=['v_and_b32 v0, 3, v1',f'v_lshl_add_u32 v0, v0, 6, v30',f's_lshl_b32 s{T1}, s{TQ}, 8\nv_add_u32 v0, s{T1}, v0']
            if n==14 and nh==0:
                R=['']*opt.get('wpos',14)+[f's_mov_b32 exec_lo, 0x000f000f\ns_mov_b32 exec_hi, 0x000f000f\nds_write_b128 v0, {v(SACC,4)}\ns_mov_b64 exec, -1']+R
                R+=GCR
            if nh==0 and opt.get('sp') and u==0 and i>=opt.get('sp0',2):
                if i==opt.get('sp0',2): SPL=[f's_load_dword s54, s[{(0,60)[k&1]}:{(1,61)[k&1]}], {128*(k>>1)}' for k in range(64)]
                if i==opt.get('sp0',2) and opt.get('c3'): SPL=[f's_load_dword s54, s[0:1], {1024*k+384}' for k in range(11)]
                k=opt['sp']; mine=SPL[:k]; del SPL[:k]
                EX=[ '\n'.join([x for x in ([EX[q_]] if q_<len(EX) else [])+mine[2*q_:2*q_+2]]) for q_ in range(max(len(EX),(len(mine)+1)//2))]
            sl_=slots7 if n>=13 else slots6 if n>=opt.get('dn',5) else slots
            if u==0 and nh==0 and not (opt.get('nos') and n>0):
                e([f'v_mfma_f32_16x16x32_bf16 {v(SACC,4)}, {v(SFS[k],4)}, {v(SELS+4*k,4)}, {"0" if (n==0 and k==0) else v(SACC,4)}' for k in range(4)])
            rp_=2 if len(R)>16 else 1
            for mi in range(16):
                e(M[mi])
                for _ in range(rp_):
                    if R: e(R.pop(0))
                if mi==0: e(post)
                if EX: e(EX.pop(0))
                if (16*(1-u)+mi) in sl_ and pend: e(pend.pop(0))
            assert not R and not EX
        if nh==1 and LT: e('L_postB8:')
        e(f's_mul_i32 s{HB}, s{HB}, {2*HSTR}')
        if opt.get('nost'): e(f's_mov_b32 s{HB}, {BIG}')
        if opt.get('prio')==nh: e('s_setprio 0')
        def foff(reg,sb):
            return f's_add_u32 s{T2}, s{FS}, {sb}\ns_lshl_b32 s{T2}, s{T2}, 10\ns_add_u32 s{T2}, s{T2}, s{HB}\ns_cmp_gt_u32 s{FCNT}, {sb}\ns_cselect_b32 s{reg}, s{T2}, {BIG}'
        def run_groups(groups, loads, ring, areg, hooks, mid=[], freed={}, depth=0):
            free=list(ring); dest=[]; depth=max(depth,len(ring))
            def ld():
                sr,imm=loads[len(dest)]; dest.append(free.pop(0))
                return [f's_add_u32 s{T0}, s{sr}, {imm}',f'buffer_load_dwordx4 {v(dest[-1],4)}, v{areg}, {srd(sWS)}, s{T0} offen sc1']
            while free: e(ld())
            e(mid)
            il=[]
            for gi,grp in enumerate(groups):
                g.stamp(f'q{gi}')
                h=hooks.get(gi)
                if h:
                    e(h[0]); il=il+list(h[1])
                for k,(a,li,Bq,first) in enumerate(grp):
                    if k%2==0: e(f's_waitcnt vmcnt({len(dest)-1-li})')
                    e(f'v_mfma_f32_32x32x16_bf16 {v(a,16)}, {v(dest[li],4)}, {v(Bq,4)}, {"0" if first else v(a,16)}')
                    if k%2==1: free.append(dest[li])
                    can=free and len(dest)<len(loads)
                    if can and (k%2==1 or (k in opt.get('gk',(0,)) and len(dest)-li<depth)): e(ld())
                    for _ in range(2):
                        if il: e(il.pop(0))
                free+=freed.get(gi,[])
            e(il)
        TILE=lambda mh,dh: ACC0+32*mh+16*dh
        if nh==1:
            TMP=16; SG=4
            v14=vgroup(f's{V14}, 0',[DF],sDN,FB,20*16384,4)
            V=vfull(10); nb=opt.get('nb',5)
            rd=vread(8,B1)
            e(mix(rd[:2*nb],V[:nb],2))
            if opt.get('w3',0):
                e(M); e(mix(rd[2*nb:]+GCR+sread(1,SG,TMP),V[nb:],2))
            else: e(mix(mix(M,V[nb:],2),rd[2*nb:]+GCR+sread(1,SG,TMP),1))
            g.stamp('loopend')
            e(foff(SOX,1)); e(foff(SOW,2))
            e('s_waitcnt vmcnt(12) lgkmcnt(8)')
            g.stamp('w9')
            V14B=[f's_cmp_ge_u32 s{TQ}, 2\ns_cbranch_scc1 L_no14']+vgroup(f's{V14}, 2048',[DF],sDN,FB,21*16384,2)+['L_no14:']
            S2R=sread(2,SG,ACC0)+['s_waitcnt lgkmcnt(0)']+sadd(SG,ACC0)
            G0,G1,G2,G3=gelu(ACC0,0,TMP,SOX,SG),gelu(ACC0,1,TMP,SOX,SG),gelu(ACC1,0,TMP,SOW,SG),gelu(ACC1,1,TMP,SOW,SG)
            pc=opt.get('pace',6)
            gp=f's_setprio {opt.get("gprio",1)}'
            V=vfull(11); nq=opt.get('nq',8)
            e(mix(vread(9,B2),V[:nq],3))
            g.stamp('c0')
            e(f's_waitcnt vmcnt({nq})')
            V=V[nq:]+[f's_mov_b32 m0, s{V14}\ns_add_u32 s{T2}, s{sE+1}, {8192-1024}\nbuffer_load_dwordx4 v2, {srd(sX)}, s{sE+1} offen lds',f'buffer_load_dwordx4 v2, {srd(sX)}, s{T2} offen offset:1024 lds']
            e('s_waitcnt lgkmcnt(15)')
            e(mix(vread(10,B3),V,3))
            g.stamp('ch1')
            e('s_waitcnt lgkmcnt(0)\ns_barrier')
            g.stamp('B9')
            e(sread(2,24,24)[:2][::1] if False else '')
            e(gp); e(sadd(SG,TMP))
            G2,G3=gelu(ACC1,0,TMP,SOW,ACC0),gelu(ACC1,1,TMP,SOW,ACC0)
            if LT and opt.get('sk',1): e(f's_cmp_lt_u32 s{FCNT}, 2\ns_cbranch_scc1 L_nogelu')
            e(G0); e(mix(G1,sread(2,ACC0,24),8)); e('s_waitcnt lgkmcnt(0)'); e(sadd(ACC0,24)); e(G2); e(G3)
            if LT and opt.get('sk',1):
                e('L_gelud:'); g.cold.append('L_nogelu:\ns_waitcnt vmcnt(0)\ns_branch L_gelud')
            g.stamp('gdone')
            RD_=opt.get('rd',1); nx=3 if RD_ else 6
            e('v_lshrrev_b32 v5, 5, v1\nv_lshlrev_b32 v6, 6, v5')
            if RD_:
                e(f's_lshl_b32 s{T1}, s{TQ}, 9\ns_add_u32 s{T1}, s{T1}, {RM}\ns_mov_b32 m0, s{T1}\ns_and_b32 s{T0}, s{sE}, 0xfffffe00\ns_mov_b32 exec_hi, 0\nbuffer_load_dwordx4 v15, {srd(sWS)}, s{T0} offen sc1 lds\ns_mov_b64 exec, -1\ns_and_b32 s{T0}, s{sE}, 0x1ff\ns_add_u32 s{T1}, s{T1}, s{T0}\nv_add_u32 v7, s{T1}, v6')
            else: e([f'buffer_load_dwordx4 {v(32+8*mh+4*k,4)}, v6, {srd(sWS)}, s{sE} offen offset:{32*mh+256*k} sc1' for mh in range(2) for k in range(2)])
            e('global_load_ushort v8, v3, s[52:53]\nglobal_load_ushort v9, v3, s[52:53] offset:64')
            e(f"""v_bfe_u32 v4, v1, 2, 2
v_lshl_add_u32 v4, v5, 2, v4
v_lshlrev_b32 v4, 7, v4
v_and_b32 v6, 3, v1
v_lshl_add_u32 v4, v6, 3, v4
v_and_b32 v6, 16, v1
v_lshl_add_u32 v4, v6, 1, v4
v_add_u32 v4, s{V14}, v4
v_lshl_add_u32 v10, v5, 4, s{WI}
v_lshlrev_b32 v3, 1, v3
v_lshl_add_u32 v10, v10, 11, v3
s_waitcnt vmcnt({4+nx})""")
            e([f'ds_read_b64_tr_b16 {v(16+2*tl,2)}, v4 offset:{(tl>>1)*1024+(tl&1)*64}' for tl in range(4)])
            e(p2base(1))
            D1_=(vfull(12)+vfull(13))[24-NR1:]; npre=min(len(D1_),opt.get('npre',0))
            e('s_waitcnt lgkmcnt(0)'); e(v14[:2]); e(D1_[:npre])
            assert npre%4==0
            sf=setflag(False).split('\ns_mov_b64 exec, 1')
            e(sf[0]); e(f's_waitcnt vmcnt({2+nx+npre})'); e('s_mov_b64 exec, 1'+sf[1]); g.stamp('flag')
            e(f's_waitcnt vmcnt({3+npre})')
            if RD_: e([f'ds_read_b128 {v(32+8*mh+4*k,4)}, v7 offset:{32*mh+256*k}' for mh in range(2) for k in range(2)])
            e(V14B)
            e(f's_setprio {opt.get("bprio",0)}')
            BB=[f'v_mov_b32 v{ACC0+16*tl+k}, 0' for tl in range(4) for k in range(4,16)]
            BB+=[f's_lshl_b32 s{T1}, s{TQ}, 7\nv_xor_b32 v11, s{T1}, v15','v_lshlrev_b32 v8, 16, v8','v_lshlrev_b32 v9, 16, v9\ns_waitcnt lgkmcnt(0)']
            for mh in range(2):
                for dh in range(2):
                    for i in range(4):
                        r=TILE(mh,dh)+i; xr=16+2*(2*mh+dh)+(i>>1)
                        BB+=[f'v_lshlrev_b32 v{r}, 16, v{xr}' if i%2==0 else f'v_and_b32 v{r}, 0xffff0000, v{xr}',f'v_fma_f32 v4, v{r}, v{32+8*mh+i}, v{36+8*mh+i}',f'v_fmac_f32 v{r}, v4, v{8+dh}']
            ap=opt.get('ap',48)
            if ap: BB.insert(len(BB)-ap,sld)
            bm=opt.get('bm',0)
            if bm: e(mix(BB,D1_[npre:],bm))
            else: e(D1_[npre:]); e(BB)
            ZE=opt.get('ze',8)
            zfw=f's_lshl_b32 s{T1}, s{TQ}, 2\ns_add_u32 s{T1}, s{T1}, {ZF}\nv_mov_b32 v2, s{T1}\nv_mov_b32 v3, 1\nds_write_b32 v2, v3'
            SPO=opt.get('spo',3)
            hk1={ZE:(['s_barrier',g.st('Z1')],[])}; mid1=[]
            if SPO&1:
                if SPO&4: e('s_waitcnt vmcnt(0)')
                g.stamp('chores')
                e(spoll('L_fp1',opt.get('slp1',4),not ap))
                mid1=['s_waitcnt vmcnt(0)',zfw]
                if not SPO&8: mid1[0]=f's_waitcnt vmcnt({opt.get("nr1",9)})'
                else: e(mid1); mid1=[]
            else:
                e('s_waitcnt vmcnt(0)')
                e(pld(7)); e(zfw)
                g.stamp('chores')
                e(pollchk('L_fp1',7,0,opt.get('slp1',2)))
            g.stamp('go')
            e(f's_setprio {opt.get("p2prio",1)}')
            loads=[(SOW,s_*1024+mh*HSTR) for s_ in range(18) for mh in range(2)]
            order=[s_ for s_ in range(18) for mh in range(2)]
            groups=[[(TILE(mh,dh),2*s_+mh,B1+8*s_+4*dh,False) for mh in range(2) for dh in range(2)] for s_ in range(18)]
            run_groups(groups,loads,([16+4*k for k in range(8)]+[4])[:opt.get('nr1',9)],11,hk1,mid1,{s_:[B1+8*s_,B1+8*s_+4] for s_ in range(18)},opt.get('dp1',14))
            g.stamp('ph1')
            e('s_setprio 0')
            XS=112
            for j in range(1,4):
                e(f's_xor_b32 s{T1}, s{TQ}, {j}\ns_mul_i32 s{T1}, s{T1}, {XW}\ns_add_u32 s{T1}, s{T1}, {(j-1)*4096}\nv_add_u32 v{3+j}, s{T1}, v15')
            e(f'v_add_u32 v7, s{XR}, v15\nv_add_u32 v8, s{WQ}, v15')
            if not ZE: e('s_barrier'); g.stamp('Z1')
            for j in range(1,4):
                for tl in range(4): e(f'ds_write_b128 v{3+j}, {v(ACC0+16*tl+4*j,4)} offset:{tl*1024}')
            e('s_waitcnt lgkmcnt(0)\ns_barrier')
            g.stamp('Z2')
            osc=' sc1'
            def addq(r,srcs,pk):
                for q_ in srcs:
                    if pk:
                        for j in range(2): e(f'v_pk_add_f32 {v(r+2*j,2)}, {v(r+2*j,2)}, {v(q_+2*j,2)}')
                    else:
                        for j in range(4): e(f'v_add_f32 v{r+j}, v{r+j}, v{q_+j}')
            def outst(mh,dh):
                for i in range(4):
                    if i%2==0: e(f's_mov_b32 s{T0}, {mh*16384+i*2048}')
                    e(f'buffer_store_dword v{TILE(mh,dh)+i}, v10, {srd(sOUT)}, s{T0} offen offset:{dh*128+(i&1)*2048}{osc}')
            for tl in range(4):
                for j in range(3): e(f'ds_read_b128 {v(XS+12*tl+4*j,4)}, v7 offset:{j*4096+tl*1024}')
            for tl in range(4):
                e(f's_waitcnt lgkmcnt({9-3*tl})')
                addq(ACC0+16*tl,[XS+12*tl+4*k for k in range(3)],False)
            e('s_barrier')
            g.stamp('Z23')
            e(f's_setprio {opt.get("fprio",1)}')
            for dh in range(2):
                for k in range(4): e(f'ds_read_b128 {v(XS+16*dh+4*k,4)}, v7 offset:{16384+k*2048+dh*1024}')
            for dh in range(2):
                e(f's_waitcnt lgkmcnt({4-4*dh})')
                addq(TILE(0,dh),[XS+16*dh+4*k for k in range(4)],False); outst(0,dh)
            e('s_barrier')
            g.stamp('p2end')
            for dh in range(2):
                for k in range(4): e(f'ds_read_b128 {v(XS+16*dh+4*k,4)}, v8 offset:{dh*WSS+k*1024}')
            for dh in range(2):
                e(f's_waitcnt lgkmcnt({4-4*dh})')
                addq(TILE(1,dh),[XS+16*dh+4*k for k in range(4)],True); outst(1,dh)
        else:
            Xr=ACC0; Yr=ACC0+16
            e('s_setprio 2')
            SG=160; SS=176
            rd=[f'ds_read_b32 v{4+q_}, v2 offset:{256*q_}' for q_ in range(4)]+[f'ds_read_b128 {v((RS,MR)[k&1]+4*(k>>1),4)}, v31 offset:{256*(k&1)+16*(k>>1)}' for k in range(8)]+sread(0,SG,168)
            e(mix(M,rd,1))
            g.stamp('loopend')
            Z,T,P,Q=4,6,8,10
            e(foff(SOX,0))
            e(f's_lshl_b32 s{T0}, s{RB}, 2\ns_add_u32 s{T0}, s{T0}, s{TQ}\ns_sub_u32 s{T0}, 31, s{T0}\ns_lshl_b32 s{SOW}, s{T0}, 7')
            e(f's_waitcnt lgkmcnt(0)\nv_add_f32 v{SS}, v4, v6\nv_add_f32 v{SS+1}, v5, v7')
            npl=opt.get('npl',8)
            def scl(j): return f'v_mul_f32 v{Xr+j}, v{Xr+j}, v{RS+j}\nv_mul_f32 v{Yr+j}, v{Yr+j}, v{RS+j}\nv_fmac_f32 v{Xr+j}, v{MR+j}, v{SS}\nv_fmac_f32 v{Yr+j}, v{MR+j}, v{SS+1}'
            for j in range(16):
                if j<npl: e(scl(j))
                elif j==npl:
                    for i in range(npl//2,8):
                        xx=v(Xr+2*i,2); yy=v(Yr+2*i,2)
                        e(f'v_pk_mul_f32 {xx}, {xx}, {v(RS+2*i,2)}\nv_pk_mul_f32 {yy}, {yy}, {v(RS+2*i,2)}\nv_pk_fma_f32 {xx}, {v(MR+2*i,2)}, {v(SS,2)}, {xx} op_sel_hi:[1,0,1]\nv_pk_fma_f32 {yy}, {v(MR+2*i,2)}, {v(SS,2)}, {yy} op_sel:[0,1,0] op_sel_hi:[1,1,1]')
                if j: e(f'v_fmac_f32 v{Xr+j}, v{PR}, v{Xr+j-1}\nv_fmac_f32 v{Yr+j}, v{PR}, v{Yr+j-1}\nv_fmac_f32 v{Xr+j}, v{NI}, v{Yr+j-1}\nv_fmac_f32 v{Yr+j}, v{PI}, v{Xr+j-1}')
            g.stamp('a_scan')
            e(f'v_mov_b32 v{T}, v{Xr+15}\nv_mov_b32 v{T+1}, v{Yr+15}\nv_mov_b32 v{Z}, 0\nv_mov_b32 v{Z+1}, 0\nv_permlane16_swap_b32 v{Z}, v{T}\nv_permlane16_swap_b32 v{Z+1}, v{T+1}')
            e(cfma(P,(PR+15,PI+15),Z,(Xr+15,Yr+15)))
            e(f'v_mov_b32 v{Q}, v{P}\nv_mov_b32 v{Q+1}, v{P+1}\nv_mov_b32 v{T}, 0\nv_mov_b32 v{T+1}, 0\nv_permlane16_swap_b32 v{Q}, v{P}\nv_permlane16_swap_b32 v{Q+1}, v{P+1}')
            e(f'v_permlane32_swap_b32 v{T}, v{P}\nv_permlane32_swap_b32 v{T+1}, v{P+1}')
            e(cfma(P,L32,T,P))
            e(f'''v_min_u32 v{P}, -2, v{P}
v_min_u32 v{P+1}, -2, v{P+1}
s_mov_b32 exec_lo, 0
s_mov_b32 exec_hi, 0xffff0000
buffer_store_dwordx2 {v(P,2)}, v{EA}, {srd(sE)}, s{SOW} offen sc1
s_mov_b64 exec, -1''')
            g.stamp('b_pub')
            e(sadd(SG,168))
            e(gelu(ACC1,0,24,SOX,SG)+gelu(ACC1,1,24,SOX,SG)); g.stamp('gdone')
            D=(vfull(12)+vfull(13))[:24-NR1]
            da,db,dc=[int(x) for x in opt.get('d0','6.4.16').split('.')]
            ER=[RS+2*k for k in range(8)]
            e(f'v_and_b32 v2, 48, v1\nv_lshl_add_u32 v{EA}, v2, 6, v{EA}\ns_add_u32 s{SOW}, s{SOW}, 128')
            eld='\n'.join(f'buffer_load_dwordx2 {v(ER[u_],2)}, v{EA}, {srd(sE)}, s{SOW} offen offset:{128*u_} sc1' for u_ in range(8))
            HP=opt.get('hp',0)
            e('s_barrier' if HP==1 else 's_setprio 0\ns_barrier')
            g.stamp('B9')
            if db>=da:
                e(D[:da]); e(f's_waitcnt vmcnt({da})'); e(setflag(False)); g.stamp('flag0')
                e(D[da:db]); e(eld); ne=0
            else:
                e(D[:db]); e(eld); e(D[db:da]); e(f's_waitcnt vmcnt({da+8})'); e(setflag(False)); g.stamp('flag0')
                ne=da-db+1; db=da
            mark=len(g.L)
            e(cfma(Z,WSEL,T,Z)+cmul(CP,KAP,Z))
            kp=v(KAP,2)
            for i in range(8):
                xx=v(Xr+2*i,2); yy=v(Yr+2*i,2); tt=v(4+2*(i&1),2)
                e([f'v_pk_mul_f32 {tt}, {xx}, {kp} op_sel:[0,1] op_sel_hi:[1,1] neg_lo:[0,1] neg_hi:[0,1]',f'v_pk_mul_f32 {xx}, {xx}, {kp} op_sel_hi:[1,0]',
                     f'v_pk_fma_f32 {xx}, {yy}, {kp}, {xx} op_sel:[0,1,0] op_sel_hi:[1,1,1] neg_lo:[0,1,0] neg_hi:[0,1,0]',f'v_pk_fma_f32 {yy}, {yy}, {kp}, {tt} op_sel_hi:[1,0,1] neg_lo:[0,1,0] neg_hi:[0,1,0]'])
            SL=16
            e(f'''s_add_u32 s{T2}, s{CT}, 86
s_lshl_b32 s{T2}, s{T2}, 10
s_add_u32 s{T2}, s{T2}, s{HB}''')
            chk='\n'.join([f'v_max3_u32 v0, v{ER[0]}, v{ER[0]+1}, v{ER[1]}',f'v_max3_u32 v4, v{ER[1]+1}, v{ER[2]}, v{ER[2]+1}']+[f'v_max3_u32 v{(0,4)[u_&1]}, v{ER[u_]}, v{ER[u_]+1}, v{(0,4)[u_&1]}' for u_ in range(3,8)]+['v_max_u32 v0, v0, v4','v_cmp_eq_u32 vcc, -1, v0','s_cmp_eq_u64 vcc, 0'])
            KS=g.L[mark:]; del g.L[mark:]
            if HP: e(D[db:dc]); g.stamp('dm'); e('s_setprio 0'); e(KS)
            else: e(mix(KS,D[db:dc],opt.get('kp',2)))
            e(f's_waitcnt vmcnt({dc-db+ne})\n{chk}\ns_cbranch_scc0 L_epoll\nL_eok:')
            g.cold.append(f'''L_epoll:
s_mov_b32 s{SPIN}, 0
L_epoll1:
s_sleep {opt.get('eslp',4)}
{eld}
s_add_u32 s{SPIN}, s{SPIN}, 1
s_cmp_gt_u32 s{SPIN}, 100000
s_cbranch_scc1 L_eok
s_waitcnt vmcnt(0)
{chk}
s_cbranch_scc0 L_epoll1
s_branch L_eok''')
            g.stamp('Eok')
            e(f's_setprio {opt.get("eprio",2)}')
            for u_ in range(6,-1,-1): e(cfma(ER[u_],L64,ER[u_+1],ER[u_]))
            e(cmul(4,WH,ER[0]))
            for sw in ('16','32'):
                e(f'v_mov_b32 v6, v4\nv_mov_b32 v7, v5\nv_permlane{sw}_swap_b32 v6, v4\nv_permlane{sw}_swap_b32 v7, v5\nv_add_f32 v4, v6, v4\nv_add_f32 v5, v7, v5')
            e(cfma(CP,WG,4,CP))
            cp=v(CP,2)
            g.stamp('c_carry')
            for comp,R_,D_ in ((0,Xr,112),(1,Yr,128)):
                for i in range(8):
                    rr_=v(R_+2*i,2); pr=v(PR+2*i,2); pi=v(PI+2*i,2)
                    if comp==0: e(f'v_pk_fma_f32 {rr_}, {pr}, {cp}, {rr_} op_sel_hi:[1,0,1]\nv_pk_fma_f32 {rr_}, {pi}, {cp}, {rr_} op_sel:[0,1,0] op_sel_hi:[1,1,1] neg_lo:[0,1,0] neg_hi:[0,1,0]')
                    else: e(f'v_pk_fma_f32 {rr_}, {pr}, {cp}, {rr_} op_sel:[0,1,0] op_sel_hi:[1,1,1] neg_lo:[0,1,0] neg_hi:[0,1,0]\nv_pk_fma_f32 {rr_}, {pi}, {cp}, {rr_} op_sel_hi:[1,0,1] neg_lo:[0,1,0] neg_hi:[0,1,0]')
            for comp,R_,D_ in ((0,Xr,112),(1,Yr,128)):
                for i in range(8): e(f'v_cvt_pk_bf16_f32 v{R_+i}, v{R_+2*i}, v{R_+2*i+1}')
                for tb in range(2):
                    for ab in range(2): e(f'v_mfma_f32_16x16x32_bf16 {v(D_+8*tb+4*ab,4)}, {v(R_+4*tb,4)}, {v(SL+2-2*ab,4)}, 0')
            for comp,R_,D_ in ((0,Xr,112),(1,Yr,128)):
                for i in range(8): e(f'v_cvt_pk_bf16_f32 v{R_+8+i}, v{D_+2*i}, v{D_+2*i+1}')
                for tb in range(2):
                    o=R_+8+4*tb
                    e(f'v_permlane16_swap_b32 v{o}, v{o+2}\nv_permlane16_swap_b32 v{o+1}, v{o+3}')
                    e(f's_add_u32 s{T1}, s{T2}, {comp*32768+tb*HSTR}\nbuffer_store_dwordx4 {v(o,4)}, v15, {srd(sWS)}, s{T1} offen sc1')
            g.stamp('c_st')
            dd=min(len(D),dc+opt.get('dd',8))
            e(D[dc:dd])
            TV=144
            e(['v_and_b32 v2, 31, v1','v_lshrrev_b32 v3, 5, v1','v_bfe_u32 v0, v1, 1, 3','v_xor_b32 v0, v3, v0','v_lshlrev_b32 v0, 4, v0','v_lshl_add_u32 v0, v2, 7, v0',f'v_add_u32 v4, s{XR}, v0',f'v_add_u32 v8, s{WQ}, v0'])
            for k in range(1,4): e(f'v_xor_b32 v{4+k}, {32*k}, v4\nv_xor_b32 v{8+k}, {32*k}, v8')
            e(traddr(0,3)+[f'v_add_u32 v{TV+4}, s{WQ}, v0',f'v_add_u32 v{TV+5}, s{WQ}, v3',f'v_add_u32 v{TV}, s{V14}, v0',f'v_add_u32 v{TV+1}, s{V14}, v3'])
            e(f's_lshl_b32 s{T1}, s{TQ}, 2\ns_add_u32 s{T1}, s{T1}, {ZF}\nv_mov_b32 v14, s{T1}')
            e(f's_waitcnt vmcnt({dd-dc})'); e(setflag(True))
            g.stamp('flag')
            e(D[dd:]); e('s_setprio 0'); e(p2base(0))
            g.stamp('dend')
            JB=112; RB_=160
            MID=[f'''s_mov_b32 s{SPIN}, 0
L_z0:
s_sleep 1
ds_read_b32 v2, v14
s_add_u32 s{SPIN}, s{SPIN}, 1
s_waitcnt lgkmcnt(0)
v_cmp_ne_u32 vcc, 1, v2
s_cmp_gt_u32 s{SPIN}, 1000000
s_cselect_b64 vcc, 0, vcc
s_cmp_eq_u64 vcc, 0
s_cbranch_scc0 L_z0''',g.st('Z0')]
            MID+=[f'ds_read_b128 {v(JB+8*k+4*dh,4)}, v{4+k} offset:{2*8192+dh*4096}' for k in range(4) for dh in range(2)]
            RD2=[f'ds_read_b128 {v(RB_+32*bl+8*k+4*dh,4)}, v{4+k} offset:{bl*8192+dh*4096}' for bl in range(2) for k in range(4) for dh in range(2)]
            RD2+=[f'ds_read_b128 {v(RB_+64+8*k+4*dh,4)}, v{8+k} offset:{dh*WSS}' for k in range(4) for dh in range(2)]
            WA=[f's_lshl_b32 s{T1}, s{TQ}, 11\ns_add_u32 s{T1}, s{T1}, {q_*XW+16384}\nv_add_u32 v{4+q_}, s{T1}, v15' for q_ in range(4)]
            WA+=[f's_lshl_b32 s{T1}, s{TQ}, 10\ns_add_u32 s{T1}, s{T1}, {WB}\nv_add_u32 v8, s{T1}, v15']
            ZE=opt.get('ze',8)
            e(MID[:2]); MID=MID[2:]+RD2
            if ZE:
                e('s_waitcnt vmcnt(0)'); e(MID); MID=[]; e('s_waitcnt lgkmcnt(0)'); e(sld if opt.get('ap0',0) else ''); e('s_barrier'); g.stamp('Z1')
            if not opt.get('spo',3)&2: e(pld(3))
            e(f's_cmp_ge_u32 s{TQ}, 2\ns_cselect_b32 s{XL}, {BIG}, s{SOW}\ns_cselect_b32 s{T1}, 0, 2048\nv_add_u32 v{TV+2}, s{T1}, v{TV}\nv_add_u32 v{TV+3}, s{T1}, v{TV+1}')
            e(spoll('L_fp0',opt.get('slp0',4),not opt.get('ap0',0)) if opt.get('spo',3)&2 else pollchk('L_fp0',3,0,opt.get('slp0',6)))
            g.stamp('go')
            blkoff=lambda b_,k: (86+32*(b_&1)+4*(b_>>1)+k)*1024
            st_=[(SOX,blkoff(0,k),JB+8*k) for k in range(4)]+[(SOW,(18+k)*1024,JB+8*k) for k in range(3)]+[(XL,21*1024,JB+24)]
            st2=[(SOX,blkoff(1+bl,k),RB_+32*bl+8*k) for bl in range(3) for k in range(4)]
            loads=[];order=[];groups=[]
            for s_,(sr,im,Bq) in enumerate(st_):
                groups.append([(TILE(mh,dh),len(loads)+mh,Bq+4*dh,s_==0) for mh in range(2) for dh in range(2)])
                for mh in range(2): loads.append((sr,im+mh*HSTR)); order.append(s_)
            for mh in range(2):
                for p_ in range(6):
                    grp=[]
                    for s_ in (2*p_,2*p_+1):
                        sr,im,Bq=st2[s_]
                        grp+=[(TILE(mh,dh),len(loads),Bq+4*dh,False) for dh in range(2)]
                        loads.append((sr,im+mh*HSTR)); order.append(len(groups))
                    groups.append(grp)
            jit=[trstep(JB,TV+4,2*WSS),trstep(JB+8,TV+4,2*WSS+2048),trstep(JB+16,TV,0),trstep(JB+24,TV+2,0)]
            hooks={0:(['s_waitcnt lgkmcnt(0)'],[]),1:([],jit[0]),2:([],jit[1]),3:([],jit[2]),
                   4:(['s_waitcnt lgkmcnt(8)'],jit[3]),5:(['s_waitcnt lgkmcnt(8)'],[]),6:(['s_waitcnt lgkmcnt(4)'],[]),7:(['s_waitcnt lgkmcnt(0)'],WA)}
            z1=opt.get('z1',3); z2=opt.get('z2',10); z23=opt.get('z23',17); TM=opt.get('tm',6)
            for zz,nm in ((z1,'Z1'),(z2,'Z2'))[1 if ZE else 0:]:
                h_=hooks.get(zz,([],[])); hooks[zz]=(h_[0]+['s_barrier',g.st(nm)],h_[1])
            wr0=[]
            for dh in range(2):
                for q_ in range(4): wr0+=[f'ds_write_b128 v{4+q_}, {v(TILE(0,dh)+4*q_,4)} offset:{dh*1024}']+['']*opt.get('ws',1)
            hooks[14]=([],['']*6+wr0)
            assert 6+8*(1+opt.get('ws',1))-opt.get('ws',1)<=8*(z23-14)
            hooks[z23]=(['s_waitcnt lgkmcnt(0)','s_barrier',g.st('Z23')],[])
            run_groups(groups,loads,([16+4*k for k in range(8)]+[152,156])[:opt.get('nr0',10)],15,hooks,MID)
            g.stamp('ph2')
            wr1=lambda dh: [f'ds_write_b128 v8, {v(TILE(1,dh)+4*q_,4)} offset:{dh*WSS+q_*4096}' for q_ in range(4)]
            if TM:
                idx=[k for k,l_ in enumerate(g.L) if 'v_mfma_f32_32x32x16' in l_][-2*TM:]
                seg=g.L[idx[0]:]; del g.L[idx[0]:]
                assert not any('buffer_load' in l_ for l_ in seg)
                t1=v(TILE(1,1),16)
                late=[l_ for l_ in seg if 'v_mfma' in l_ and l_.split()[1].rstrip(',')==t1]
                e([l_ for l_ in seg if l_ not in late])
                e([late[0],'s_nop 4',late[1],'s_nop 3']); e(mix(late[2:],wr1(0),1)); e(wr1(1))
            else: e(wr1(0)+wr1(1))
            e('s_waitcnt lgkmcnt(0)\ns_barrier')
            g.stamp('p2end')
            e('s_branch L_fin')
            e(g.cold); g.cold=[]
    e('L_fin:')
    if opt.get('stamps'):
        e('s_waitcnt vmcnt(0)'); g.stamp('done')
        e(f'''s_waitcnt lgkmcnt(0)
s_cmp_eq_u32 s{TQ}, {opt.get('stq',0)}
s_cbranch_scc0 L_end
s_add_u32 s{sX}, s66, {STAMP}
s_addc_u32 s{sX+1}, s67, 0
s_lshl_b32 s{T0}, s2, 1
s_add_u32 s{T0}, s{T0}, s{NH}
s_lshl_b32 s{T0}, s{T0}, 7
v_mov_b32 v2, 0''')
        prs=[100]+G.POOL[:len(g.names())]
        if 'diag' in opt:
            p=prs[(['start']+g.names()).index(opt['diag'])]
            if 'dwg' in opt: e(f's_cmp_eq_u32 s2, {opt["dwg"]}\ns_cbranch_scc0 L_end')
            e(f's_cmp_eq_u32 s{NH}, {opt.get("dr",0)}\ns_cbranch_scc0 L_end\nL_dg:\ns_memrealtime s[72:73]\ns_waitcnt lgkmcnt(0)\ns_sub_u32 s72, s72, s{p}\ns_cmp_lt_u32 s72, 6000\ns_cbranch_scc1 L_dg')
            prs=[]
        for i,p in enumerate(prs): e(f'v_mov_b32 v4, s{p}\nv_mov_b32 v5, s{p+1}\nbuffer_store_dwordx2 v[4:5], v2, {srd(sX)}, s{T0} offen offset:{8*i}')
    e('L_end:\ns_endpgm'); e(g.cold); e('L_last:\ns_endpgm')
    if opt.get('stamps'): g.L.insert(0,'; STAMPS start,'+','.join(g.names()))
    if opt.get('plain'):
        pl=opt['plain']
        for i_,l_ in enumerate(g.L):
            if pl&1 and 'buffer_store_dwordx4' in l_ and 's[12:15]' in l_: g.L[i_]=l_.replace(' sc1','')
            if pl&2 and 'buffer_atomic_add' in l_ and 's[12:15]' in l_: g.L[i_]=l_.replace(' sc1','')
            if pl&4 and 'buffer_load_dwordx4 v[' in l_ and 's[12:15]' in l_: g.L[i_]=l_.replace(' sc1','')
    if opt.get('nopoll'):
        for i_,l_ in enumerate(g.L):
            if 'v_cmp_gt_u32 vcc, 12,' in l_: g.L[i_]=l_.replace('12,','0,')
    if opt.get('noe'):
        for i_,l_ in enumerate(g.L):
            if 'v_cmp_eq_u32 vcc, -1, v0' in l_: g.L[i_]='  v_cmp_gt_u32 vcc, 0, v0'
    if opt.get('ahit'):
        for i_,l_ in enumerate(g.L):
            if 'buffer_load_dwordx4 v[' in l_ and 's[12:15]' in l_ and 'offen sc1' in l_:
                g.L[i_-1]=g.L[i_-1]+f'\n  s_and_b32 s{T0}, s{T0}, 0xffff'
                g.L[i_]=l_.replace('s[12:15]','s[28:31]')
    ab=opt.get('ab',0)
    if ab&16:
        seen=0
        for i_,l_ in enumerate(g.L):
            if 'buffer_load_dwordx2' in l_ and 's[32:35]' in l_:
                g.L[i_]=l_.replace('buffer_load_dwordx2','buffer_load_dword').replace('s89','s1')
                import re
                g.L[i_]=re.sub(r'v\[(\d+):\d+\]',r'v\1',g.L[i_],1)
    if ab&32:
        for i_,l_ in enumerate(g.L):
            if 's_cmp_lt_u32 s55, 12' in l_: g.L[i_]='  s_cmp_lt_u32 s55, 0'
    for i_,l_ in enumerate(g.L):
        if ab&1 and 'ds_write_b128 v0,' in l_: g.L[i_]='  s_nop 0'
        if ab&2 and 's_waitcnt vmcnt(0) lgkmcnt(0)' in l_ and 'setprio 2' in ''.join(g.L[i_:i_+6]): g.L[i_]='  s_waitcnt vmcnt(6) lgkmcnt(0)'
        if ab&4 and 'buffer_atomic_add' in l_ and 's[16:19]' in l_: g.L[i_]=f'  s_mov_b32 s{T1}, {BIG}\n'+l_
        if ab&12 and 'v_cmp_gt_u32 vcc, 4, v2' in l_ and 's_cmp_eq_u64' in g.L[i_+1]: g.L[i_]='  v_cmp_gt_u32 vcc, 0, v2'
        if ab&8 and 'buffer_load_dword v2, v3, s[16:19]' in l_: g.L[i_]='  s_nop 0'
    body=hz.fix('\n'.join(g.L), verbose=opt.get('v',0))
    ref=open('parallel_sum__ssm_conv_s5__geglu_ffn__prompt.s.ref').read() if opt.get('final') else ''
    cm_=''.join(l+'\n' for l in ref.split('\n') if l.startswith(';') and '@launch' not in l and 'Override' not in l and 'grid=ceil' not in l)
    return cm_+header([(NAME,256,512,163840)])+kstart(NAME)+body+'\n'+RODATA+kd(NAME,256,256)

if __name__=='__main__':
    out=sys.argv[1]; opt={}
    for a in sys.argv[2:]:
        k,_,val=a.partition('='); opt[k]=int(val) if val.lstrip('-').isdigit() else (val or 1)
    open(out,'w').write(build(opt))
```

```python
import sys, struct, math
from asmlib import *
import hz
from gen_v3 import F, LOG2E, BIG, G, cmul, cfma, mix, mksrd, fsplit, v, srd
XW=24576; WB=98304; WSS=16640; GOFF=4096; UOFF=4096+6144+128
SCR=WB+3*WSS; SP=SCR+12288; RM=SP+1024; ZF=RM+2048
HSTR=150*1024; ST_M=0xA00000; ST_R=0xA08000; ARR=0xA10000; FLG=0xA20000; EOFF=0xA60000; WSSZ=0xA80000
STAMP=0x8000000
sX,sW,sWS,sDBG,sCR,sCI,sDN,sE,sOUT=4,8,12,16,20,24,28,32,68
FS=3; WI=72; CB=73; FCNT=74; FB=75
W_,TQ,NH,RB,CT,ROT,WSTEP,XL,WL=76,77,78,79,80,81,82,83,84
RB2,TQ2,DQ,SOX,SOW,T0,T1,T2,F0,HB,XR,WQ=85,86,87,88,89,90,91,92,93,94,95,96
SPIN=97; HA=98; V14=99
TH=0; W0=1
G.POOL=[36,42,44,56,58,38,40,46,48,50,64,62]
DX=16; DW=20; DC=12; DF=14; PTX=24; PTW=27
XA=22; SA=24; TA=26; S1=27; S2=28
GC=32; SFS=[4,8,32,36]; SACC=40; SELS=224
ACC0=48; PR=80; PI=96
B1,B2,B3=112,160,208
FR=160; MR=224; RS=240
L64,WG,WH,L32,WSEL,KAP,CP,EA,NI=144,146,148,150,152,154,156,158,159
G.DEF='B0,B8,b_pub,gdone,Eok,flag,go,ph1,Z1,Z23,p2end,done'

def build(opt):
    g=G(opt); e=g.e
    PF=opt.get('pf',1); NR1=opt.get('r1d',0)
    if opt.get('gk')==2: opt['gk']=(0,2)
    cpf='v_lshlrev_b32 v2, 7, v0' if opt.get('cpf',1)==0 else 's_and_b32 s3, s2, 0xf8\nv_add_lshl_u32 v2, v3, s3, 7'
    WD=F0; XH=HA
    e(f'''s_cmp_ge_u32 s2, 256
s_cbranch_scc1 L_end
s_load_dwordx16 s[36:51], s[0:1], 0
s_load_dwordx16 s[52:67], s[0:1], 64
s_getpc_b64 s[72:73]
L_pc0:
v_lshrrev_b32 v3, 6, v0
{cpf}
v_min_u32 v2, L_last-L_pc0, v2
v_and_b32 v1, 63, v0
v_readfirstlane_b32 s{W_}, v3
global_load_dword v9, v2, s[72:73]
s_and_b32 s{RB2}, s2, 7
s_lshr_b32 s{WI}, s2, 3
s_and_b32 s{TQ2}, s{WI}, 3
s_lshr_b32 s{DQ}, s{WI}, 2''')
    if opt.get('stamps'): e(('s_memtime' if opt['stamps']==2 else 's_memrealtime')+' s[100:101]')
    e(f'''s_and_b32 s{T0}, s2, 1
s_lshl_b32 s{RB}, s{T0}, 2
s_add_u32 s{RB}, s{RB}, s{TQ2}
s_lshr_b32 s{T1}, s{RB2}, 1
s_lshl_b32 s{CT}, s{T1}, 3
s_add_u32 s{CT}, s{CT}, s{DQ}''')
    if opt.setdefault('xm',1): e(f's_xor_b32 s{RB2}, s{T0}, 1\ns_lshl_b32 s{RB2}, s{RB2}, 2\ns_add_u32 s{RB2}, s{RB2}, s{T1}')
    if opt.setdefault('jx',4): e(f's_xor_b32 s{CT}, s{CT}, {opt["jx"]}')
    if opt.get('dx'): e(f's_xor_b32 s{DQ}, s{DQ}, {opt["dx"]}')
    if opt.get('map')=='A':
        e(f's_mov_b32 s{RB}, s{RB2}\ns_lshl_b32 s{CT}, s{TQ2}, 3\ns_add_u32 s{CT}, s{CT}, s{DQ}\ns_xor_b32 s{CT}, s{CT}, {opt.get("jx",0)}')
    oa,ob=opt.get('ord','x01245673.45670123')[1:].split('.')
    e(f's_mov_b32 s{ROT}, 0x{oa[::-1]}\ns_cmp_eq_u32 s{T0}, 1\ns_cselect_b32 s{ROT}, 0x{ob[::-1]}, s{ROT}')
    if opt.get('rg'): e(f's_mov_b32 s{sW}, s{ROT}\ns_mov_b32 s{sW+1}, s{ROT}\ns_lshl_b32 s{T1}, s{T1}, 3\ns_lshr_b64 s[{sW}:{sW+1}], s[{sW}:{sW+1}], s{T1}\ns_mov_b32 s{ROT}, s{sW}')
    e(f'''s_and_b32 s{TQ}, s{W_}, 3
s_lshr_b32 s{NH}, s{W_}, 2
s_and_b32 s{T0}, s{CT}, {opt.get('sx',1)}
s_xor_b32 s{XH}, s{NH}, s{T0}
v_lshrrev_b32 v4, 3, v1          ; q
v_and_b32 v5, 7, v1              ; pos
v_lshrrev_b32 v6, 2, v4
v_lshlrev_b32 v6, 4, v6
v_and_or_b32 v6, v4, 3, v6
s_lshl_b32 s{T0}, s{RB}, 2
s_add_u32 s{HB}, s{T0}, s{TQ}        ; rb*4+tq
s_lshl_b32 s{T0}, s{HB}, 6
s_lshl_b32 s{T1}, s{XH}, 3
s_add_u32 s{T1}, s{T1}, s{T0}
v_add_u32 v6, s{T1}, v6
v_lshlrev_b32 v6, 10, v6
v_lshrrev_b32 v7, 1, v4
v_xor_b32 v7, v5, v7
v_xor_b32 v8, 4, v7
v_lshl_add_u32 v{DX}, v7, 4, v6
v_lshl_add_u32 v{DX+1}, v8, 4, v6
v_add_u32 v{DX+1}, {32768-1024}, v{DX+1}
v_add_u32 v{DX+2}, 2048, v{DX}
v_add_u32 v{DX+3}, 2048, v{DX+1}
s_mul_i32 s{XR}, s{TQ}, {XW}
s_lshl_b32 s{T1}, s{XH}, 12
s_add_u32 s{XL}, s{XR}, s{T1}
s_mov_b32 s{sX+2}, 2097152
s_mov_b32 s{sX+3}, 0x20000''')
    XF=opt.get('xf',1)
    X0=[f's_and_b32 s{T0}, s{ROT}, 7\ns_lshl_b32 s{T0}, s{T0}, 7\ns_mov_b32 m0, s{XL}\ns_waitcnt lgkmcnt(0)\ns_mov_b32 s{sX}, s36\ns_mov_b32 s{sX+1}, s37',g.st('e0')]
    X0+=[f'buffer_load_dwordx4 v{DX+j}, {srd(sX)}, s{T0} offen'+(f' offset:{1024*j}' if j else '')+' lds' for j in range(4)]
    NL=opt.get('nl',16)
    UP=opt.get('up',0)
    if UP:
        X0=X0[:2]+[f's_lshl_b32 s{T1}, s{XH}, 2\ns_add_u32 s{T1}, s{T1}, s{TQ}\ns_cmp_eq_u32 s{T1}, s{DQ}\ns_cbranch_scc0 L_nox']+X0[2:]
        for i_ in range(1,UP):
            X0+=[f's_bfe_u32 s{T0}, s{ROT}, {0x30000+4*i_}\ns_add_u32 m0, s{XL}, {i_*8192}\ns_lshl_b32 s{T0}, s{T0}, 7']+X0[3:7]
        X0+=['L_nox:']
    if XF: e(X0)
    e(fsplit(CT,FS,FCNT,T0))
    e(f'''s_and_b32 s{T0}, s{RB}, {opt.get('sw',1)}
s_lshl_b32 s{T0}, s{T0}, 2
s_xor_b32 s{WD}, s{W_}, s{T0}
s_cmp_ge_u32 s{WD}, 5
s_cselect_b32 s{T1}, 5, 2
s_cselect_b32 s{T2}, {WB+128}, {0}
s_cselect_b32 s{WL}, 0, {WB}
s_add_u32 s{WL}, s{WL}, s{T2}
s_lshl_b32 s{T2}, s{WD}, 11
s_add_u32 s{WL}, s{WL}, s{T2}
s_sub_u32 s{T1}, s{WD}, s{T1}
s_lshl_b32 s{T1}, s{T1}, 7
s_lshl_b32 s{T2}, s{FS}, 5
s_lshl_b32 s{SOX}, s{FCNT}, 1
v_mov_b32 v0, 0x80000000''')
    for j in range(2):
        e(f'''v_add_u32 v6, s{T1}, v1
v_add_u32 v6, {64*j}, v6
v_mul_u32_u24 v10, 10923, v6
v_lshrrev_b32 v10, 16, v10
v_mul_u32_u24 v11, 6, v10
v_sub_u32 v11, v6, v11           ; c
v_lshrrev_b32 v6, 1, v10
v_xor_b32 v6, v6, v10
v_and_b32 v6, 4, v6
v_mul_u32_u24 v6, 3, v6
v_xor_b32 v10, v10, v6
v_mul_u32_u24 v10, 2752, v10
v_lshl_add_u32 v10, v11, 4, v10
v_add_u32 v10, s{T2}, v10
v_cmp_gt_u32 vcc, s{SOX}, v11
v_subrev_u32 v10, {1024*j}, v10
v_cndmask_b32 v{DW+j}, v0, v10, vcc''')
    e(f'''s_mov_b32 s{WSTEP}, 176128
s_mov_b32 s{sW+2}, 1409024
s_mov_b32 s{sW+3}, 0x20000
s_lshl_b32 s{T1}, s{CT}, 4
v_add_u32 v6, s{T1}, v4
v_lshlrev_b32 v6, 10, v6
v_lshl_add_u32 v10, v7, 4, v6
v_lshl_add_u32 v11, v8, 4, v6
v_add_u32 v11, 7168, v11
s_cmp_lt_u32 s{WD}, 2
s_cselect_b64 vcc, -1, 0
s_cselect_b32 s{WSTEP}, 128, s{WSTEP}
s_cselect_b32 s{sW+2}, 524288, s{sW+2}
v_cndmask_b32 v{DW}, v{DW}, v10, vcc
v_cndmask_b32 v{DW+1}, v{DW+1}, v11, vcc
''')
    if not XF: e(X0)
    e(f'''s_cmp_eq_u32 s{WD}, 0
s_cselect_b32 s{sW}, s42, s44
s_cselect_b32 s{sW+1}, s43, s45
s_cmp_ge_u32 s{WD}, 2
s_cselect_b32 s{sW}, s56, s{sW}
s_cselect_b32 s{sW+1}, s57, s{sW+1}
s_cmp_ge_u32 s{WD}, 5
s_cselect_b32 s{sW}, s58, s{sW}
s_cselect_b32 s{sW+1}, s59, s{sW+1}
''')
    if UP: e(f's_and_b32 s{T1}, s{WD}, 3\ns_cmp_eq_u32 s{T1}, s{TQ2}\ns_cbranch_scc0 L_now')
    for i_ in range(max(1,UP)):
        e(f's_bfe_u32 s{T0}, s{ROT}, {0x30000+4*i_}\ns_add_u32 m0, s{WL}, {i_*WSS}\ns_mul_i32 s{SOW}, s{T0}, s{WSTEP}\nbuffer_load_dwordx4 v{DW}, {srd(sW)}, s{SOW} offen lds\nbuffer_load_dwordx4 v{DW+1}, {srd(sW)}, s{SOW} offen offset:1024 lds')
    if UP: e('L_now:')
    def slab(i):
        st=i%3
        L=[f's_bfe_u32 s{T0}, s{ROT}, {0x30000+4*i}\ns_lshl_b32 s{SOX}, s{T0}, 7\ns_add_u32 m0, s{WL}, {st*WSS}\ns_mul_i32 s{SOW}, s{T0}, s{WSTEP}\nbuffer_load_dwordx4 v{DW}, {srd(sW)}, s{SOW} offen lds']
        L.append(f'buffer_load_dwordx4 v{DW+1}, {srd(sW)}, s{SOW} offen offset:1024 lds\ns_add_u32 m0, s{XL}, {st*8192}')
        for j in range(4): L.append(f'buffer_load_dwordx4 v{DX+j}, {srd(sX)}, s{SOX} offen'+(f' offset:{1024*j}' if j else '')+' lds')
        return L
    N1=opt.get('n1',3)
    g.stamp('e1')
    e(f'''s_cmp_eq_u32 s{NH}, 1
s_cbranch_scc1 L_role1''')

    def spf(nh):
        if nh==0:
            t=f's_cmp_lt_u32 s{TQ}, 2\ns_cselect_b64 s[0:1], s[46:47], s[48:49]\ns_lshl_b32 s{T0}, s2, 1\ns_and_b32 s{T1}, s{TQ}, 1\ns_add_u32 s{T0}, s{T0}, s{T1}\ns_lshl_b32 s{T0}, s{T0}, 10'; n=8
        else:
            t=f's_mov_b64 s[0:1], s[60:61]\ns_mul_i32 s{T0}, s2, 43\ns_mul_i32 s{T1}, s{TQ}, 11\ns_min_u32 s{T1}, s{T1}, 32\ns_add_u32 s{T0}, s{T0}, s{T1}\ns_lshl_b32 s{T0}, s{T0}, 7'; n=11
        t+=f'\ns_add_u32 s0, s0, s{T0}\ns_addc_u32 s1, s1, 0'
        for k in range(n): t+=f'\ns_load_dword s54, s[0:1], {128*k}'
        return t
    def setup(nh):
        if PF==10: e(spf(nh))
        e(mksrd(sWS,66,67,WSSZ)); nd=0 if opt.get('nodma') else 1; e(mksrd(sCR,46,47,524288*nd)); e(mksrd(sCI,48,49,524288*nd)); e(mksrd(sDN,60,61,1409024*nd)); e(mksrd(sOUT,62,63,4194304))
        if nh==0:
            e(mksrd(sDBG,64,65,256))
            if NL: e(f's_cmp_eq_u32 s{W_}, 0\ns_cselect_b32 s{TH}, 1, 0\ns_cselect_b32 s{W0}, 0, {BIG}')
            e(f's_lshl_b32 s{T0}, s{CT}, 12\ns_add_u32 s{T0}, s{T0}, {EOFF}\ns_add_u32 s{sE}, s66, s{T0}\ns_addc_u32 s{sE+1}, s67, 0\ns_mov_b32 s{sE+2}, 4096\ns_mov_b32 s{sE+3}, 0x20000')
        else:
            e(f's_lshl_b32 s{T0}, s{DQ}, 6\nv_add_u32 v6, s{T0}, v4\nv_lshlrev_b32 v6, 10, v6\nv_lshl_add_u32 v{DC}, v7, 4, v6\nv_lshl_add_u32 v{DC+1}, v8, 4, v6')
        e(f'''v_lshlrev_b32 v6, 1, v4
v_and_b32 v6, 4, v6
v_xor_b32 v6, v5, v6
v_lshlrev_b32 v6, 4, v6
v_lshl_add_u32 v6, v4, 10, v6
s_lshl_b32 s{T0}, s{DQ}, 7
v_add_u32 v{DF}, s{T0}, v6
s_mul_i32 s{F0}, s{TQ}, 22
s_cmp_eq_u32 s{TQ}, 3
s_cselect_b32 s{T0}, 1, 0
s_sub_u32 s{F0}, s{F0}, s{T0}
s_lshl_b32 s{FB}, s{F0}, 14
s_lshl_b32 s{CB}, s{TQ}, 8
s_lshl_b32 s{WQ}, s{TQ}, 12
s_lshl_b32 s{T0}, s{T0}, 11
s_sub_u32 s{V14}, s{WQ}, s{T0}
s_add_u32 s{V14}, s{V14}, {SCR}
s_add_u32 s{WQ}, s{WQ}, {WB}
s_lshl_b32 s{HA}, s{HB}, 2
s_lshr_b32 s{T0}, s{CT}, 3
s_add_u32 s{HA}, s{HA}, s{T0}
s_lshl_b32 s{HA}, s{HA}, 8
s_add_u32 s{HA}, s{HA}, {FLG}
v_and_b32 v2, 15, v1
v_lshrrev_b32 v3, 4, v1
v_bfe_u32 v6, v1, 1, 3
v_xor_b32 v6, v3, v6
v_lshlrev_b32 v6, 4, v6
v_lshl_add_u32 v6, v2, 7, v6
v_add_u32 v{XA}, s{XR}, v6
v_xor_b32 v{XA+1}, 64, v{XA}
v_bfe_u32 v10, v1, 2, 3
v_lshrrev_b32 v11, 5, v1
v_lshl_add_u32 v10, v11, 4, v10
v_mul_u32_u24 v10, 96, v10
v_and_b32 v11, 3, v1
v_lshl_add_u32 v10, v11, 3, v10
v_add_u32 v{TA}, {WB+GOFF}, v10
s_lshr_b32 s{T0}, s{TQ}, 1
s_and_b32 s{T1}, s{TQ}, 1
s_mul_i32 s{T2}, s{T0}, 3072
s_mul_i32 s{SPIN}, s{T1}, {UOFF-GOFF}
s_add_u32 s{T2}, s{T2}, s{SPIN}''')
        if nh==0:
            e(f'''v_add_u32 v{S2}, s{T2}, v{TA}
v_add_u32 v{SA}, {WB}, v6
v_xor_b32 v{SA+1}, 64, v{SA}
s_lshl_b32 s{T0}, s{T0}, 6
s_lshl_b32 s{T1}, s{T1}, 11
v_xor_b32 v{S1}, s{T0}, v{SA}
v_add_u32 v{S1}, s{T1}, v{S1}''')
        if nh==0:
            e('v_mov_b32 v3, 0x3f803f80')
            for f_ in range(4):
                e(f'v_cmp_eq_u32 vcc, {f_}, v2')
                for k in range(4): e(f'v_cndmask_b32 v{SELS+4*f_+k}, 0, v3, vcc')
        else:
            e(traddr(0,3)+[f'v_add_u32 v{PTX}, s{XR}, v0',f'v_add_u32 v{PTX+1}, s{XR}, v3',f'v_add_u32 v{PTW}, s{WQ}, v0',f'v_add_u32 v{PTW+1}, s{WQ}, v3'])
        e(f'v_and_b32 v29, 15, v1\nv_lshl_add_u32 v29, v29, 4, s{V14}\nv_and_b32 v30, 48, v1\ns_lshl_b32 s{T0}, s{TQ}, 9\ns_add_u32 s{T0}, s{T0}, {RM}\nv_lshl_add_u32 v31, v30, 2, s{T0}\nv_add_u32 v30, {SP}, v30')
        e('v_lshlrev_b32 v15, 4, v1')
        if PF==11: e(spf(nh))
        if nh==0 and opt.get('c3'):
            e(f's_lshr_b32 s{T0}, s2, 3\ns_lshl_b32 s{T0}, s{T0}, 2\ns_add_u32 s{T0}, s{T0}, s{TQ}\ns_mul_i32 s{T0}, s{T0}, 11\ns_min_u32 s{T0}, s{T0}, 1365\ns_lshl_b32 s{T0}, s{T0}, 10\ns_add_u32 s0, s60, s{T0}\ns_addc_u32 s1, s61, 0')
        elif nh==0 and opt.get('sp'):
            e(f's_lshr_b32 s{T0}, s2, 3\ns_lshl_b32 s{T0}, s{T0}, 2\ns_add_u32 s{T0}, s{T0}, s{TQ}\ns_lshl_b32 s{T0}, s{T0}, 12\ns_add_u32 s0, s46, s{T0}\ns_addc_u32 s1, s47, 0\ns_add_u32 s60, s48, s{T0}\ns_addc_u32 s61, s49, 0')
        if opt.get('stamps'):
            for r,nm in zip(G.POOL,g.names()):
                if nm not in ('e0','e1'): e(f's_mov_b64 s[{r}:{r+1}], 0')
    def vgroup(m0, vregs, sr, sb, imm, n):
        L=[]
        for j in range(n):
            t=f's_add_u32 m0, {m0}\n' if j==0 else ''
            t+=f's_add_u32 s{T0}, s{sb}, {imm+j*(8192-1024)}\nbuffer_load_dwordx4 v{vregs[j%len(vregs)]}, {srd(sr)}, s{T0} offen'+(f' offset:{1024*j}' if j else '')+' lds'
            L.append(t)
        return L
    def vx(vs,half):
        st=vs%3; m0=f's{XR}, {st*8192+half*4096}'
        if vs>=11:
            b=vs-11; return vgroup(m0,[DC,DC+1],sCI if b&1 else sCR,CB,(b>>1)*128+half*32768,4)
        return vgroup(m0,[DF],sDN,FB,6*(vs-8)*16384+half*32768,4)
    def vw(vs,half=None):
        st=vs%3
        if vs>=12: return vgroup(f's{WQ}, {st*WSS}',[DC,DC+1],sCI,CB,128+(vs-12)*32768,4)
        fs,fb=(6*(vs-8)+4 if vs<11 else 18),FB
        if half is None: return vgroup(f's{WQ}, {st*WSS}',[DF],sDN,fb,fs*16384,4)
        return vgroup(f's{WQ}, {st*WSS+half*2048}',[DF],sDN,fb,(fs+half)*16384,2)
    def vhalf(vs,nh): return vw(vs,nh)+vx(vs,nh)
    def vfull(vs): return vx(vs,0)+vx(vs,1)+vw(vs)
    def traddr(t0,t1):
        return [f'v_bfe_u32 v{t0}, v1, 2, 2',f'v_lshrrev_b32 v{t1}, 5, v1',f'v_lshl_add_u32 v{t0}, v{t1}, 3, v{t0}',f'v_lshlrev_b32 v{t0}, 7, v{t0}',f'v_and_b32 v{t1}, 3, v1',f'v_lshl_add_u32 v{t0}, v{t1}, 3, v{t0}',
            f'v_bfe_u32 v{t1}, v1, 4, 1',f'v_lshl_add_u32 v{t0}, v{t1}, 5, v{t0}',f'v_bfe_u32 v{t1}, v1, 3, 1',f'v_lshl_add_u32 v{t0}, v{t1}, 6, v{t0}',f'v_xor_b32 v{t1}, 64, v{t0}']
    def trstep(base,areg,off):
        return [f'ds_read_b64_tr_b16 {v(base+dh*4+2*j,2)}, v{areg+dh} offset:{off+j*512}' for dh in range(2) for j in range(2)]
    def vread(vs, base):
        st=vs%3; L=[]
        for k in range(4): L+=trstep(base+8*k,PTX,st*8192+k*2048)
        for k in range(2): L+=trstep(base+32+8*k,PTW,st*WSS+k*2048)
        return L
    def gelu(acc, tb, tmp, soff, sg):
        L=[]; t=tmp
        G_=lambda i: v(acc+8*tb+2*i,2); U_=lambda i: v(acc+16+8*tb+2*i,2); T_=lambda i: v(t+2*i,2)
        cp=lambda i: v(GC+4*(2*tb+(i>>1)),2); rp=lambda i: v(GC+4*(2*tb+(i>>1))+2,2); o=acc+16+8*tb
        for i in range(4): L.append(f'v_pk_fma_f32 {G_(i)}, {v(sg+2*(i&1),2)}, {rp(i)}, {G_(i)} op_sel:[0,1,0] op_sel_hi:[1,1,1]')
        for i in range(4): L.append(f'v_pk_mul_f32 {T_(i)}, {G_(i)}, {G_(i)}')
        for i in range(4): L.append(f'v_pk_fma_f32 {T_(i)}, {T_(i)}, {cp(i)}, {cp(i)} op_sel:[0,1,0] op_sel_hi:[1,1,0]')
        for i in range(4): L.append(f'v_pk_mul_f32 {T_(i)}, {T_(i)}, {G_(i)}')
        for i in range(8): L.append(f'v_exp_f32 {v(t+i)}, {v(t+i)}')
        for i in range(4): L.append(f'v_pk_fma_f32 {U_(i)}, {v(sg+4+2*(i&1),2)}, {rp(i)}, {U_(i)} op_sel:[0,1,0] op_sel_hi:[1,1,1]')
        for i in range(4): L.append(f'v_pk_fma_f32 {T_(i)}, {T_(i)}, {rp(i)}, {rp(i)} op_sel_hi:[1,0,0]')
        for i in range(8): L.append(f'v_rcp_f32 {v(t+i)}, {v(t+i)}')
        for i in range(4): L.append(f'v_pk_mul_f32 {G_(i)}, {G_(i)}, {U_(i)}')
        for i in range(4): L.append(f'v_pk_mul_f32 {G_(i)}, {G_(i)}, {T_(i)}')
        for i in (0,2,1,3): L.append(f'v_cvt_pk_bf16_f32 {v(o+i)}, {v(acc+8*tb+2*i)}, {v(acc+8*tb+2*i+1)}')
        L.append(f's_add_u32 s{T1}, s{soff}, {tb*HSTR}\nv_permlane16_swap_b32 v{o}, v{o+2}\nv_permlane16_swap_b32 v{o+1}, v{o+3}\nbuffer_store_dwordx4 {v(o,4)}, v15, {srd(sWS)}, s{T1} offen sc1')
        return L
    def sread(sb, d, t):
        return [f'ds_read_b128 {v((d,t)[q_>>1]+4*(q_&1),4)}, v30 offset:{256*q_+64*(1+sb)}' for q_ in range(4)]
    def sadd(d,t): return [f'v_pk_add_f32 {v(d+2*k,2)}, {v(d+2*k,2)}, {v(t+2*k,2)}' for k in range(4)]
    def setflag(ssm):
        t=f's_add_u32 s{T1}, s{HA}, 128\n'
        if not ssm: t+=f's_and_b32 s{T0}, s{CT}, 7\ns_cmp_lt_u32 s{T0}, 6\ns_cselect_b32 s{T1}, s{HA}, s{T1}\n'
        return t+f'v_mov_b32 v2, 1\nv_mov_b32 v3, 0\ns_mov_b64 exec, 1\nbuffer_atomic_add v2, v3, {srd(sWS)}, s{T1} offen sc1\ns_mov_b64 exec, -1'
    def p2base(nh):
        return f'''s_lshl_b32 s{T0}, s{RB2}, 2
s_add_u32 s{T0}, s{T0}, s{TQ2}
s_mul_i32 s{SOX}, s{T0}, {2*HSTR}
s_lshl_b32 s{HB}, s{T0}, 2
s_add_u32 s{HB}, s{HB}, s{TQ}
s_lshl_b32 s{HB}, s{HB}, 8
s_add_u32 s{HB}, s{HB}, {FLG+128*(1-nh)}
s_lshl_b32 s{T0}, s{F0}, 10
s_add_u32 s{SOW}, s{SOX}, s{T0}
s_lshl_b32 s{T0}, s{TQ}, 13
s_add_u32 s{SOX}, s{SOX}, s{T0}
v_mov_b32 v0, 0'''
    pld=lambda r: f'buffer_load_dword v{r}, v0, {srd(sWS)}, s{HB} offen sc1'
    def pollchk(lbl, r, n, sl):
        g.cold.append(f'''{lbl}:
s_mov_b32 s{SPIN}, 0
{lbl}_1:
s_sleep {sl}
{pld(r)}
s_add_u32 s{SPIN}, s{SPIN}, 1
s_waitcnt vmcnt(0)
v_cmp_gt_u32 vcc, 12, v{r}
s_cmp_gt_u32 s{SPIN}, 100000
s_cselect_b64 vcc, 0, vcc
s_cmp_eq_u64 vcc, 0
s_cbranch_scc0 {lbl}_1
s_branch {lbl}_ok''')
        return f's_waitcnt vmcnt({n})\nv_cmp_gt_u32 vcc, 12, v{r}\ns_cmp_eq_u64 vcc, 0\ns_cbranch_scc0 {lbl}\n{lbl}_ok:'

    sld=f's_load_dword s55, s[66:67], s{HB} glc'
    def spoll(lbl, sl, first=True):
        g.cold.append(f'''{lbl}:
s_mov_b32 s{SPIN}, 0
{lbl}_1:
{sld}
s_add_u32 s{SPIN}, s{SPIN}, 1
s_waitcnt lgkmcnt(0)
s_cmp_gt_u32 s{SPIN}, 100000
s_cselect_b32 s55, 12, s55
s_cmp_lt_u32 s55, 12
s_cbranch_scc0 {lbl}_ok
s_sleep {sl}
s_branch {lbl}_1''')
        return (sld+'\n' if first else '')+f's_waitcnt lgkmcnt(0)\ns_cmp_lt_u32 s55, 12\ns_cbranch_scc1 {lbl}\n{lbl}_ok:'
    X=lambda b,t4: FR+32*b+4*t4
    Wf=lambda b,k: FR+32*b+16+4*k
    for nh in range(2):
        ACC1=112 if nh==0 else 80
        if nh==0:
            e(f'''s_lshl_b32 s{T0}, s{RB}, 5
s_add_u32 s{T0}, s{T0}, s{CT}
s_lshl_b32 s{T0}, s{T0}, 2
s_add_u32 s{WI}, s{T0}, s{TQ}
s_lshl_b32 s{T2}, s{WI}, 11
v_and_b32 v2, 31, v1
v_lshlrev_b32 v2, 4, v2
v_and_b32 v3, 32, v1
v_lshl_add_u32 v2, v3, 5, v2
v_and_b32 v3, 15, v1
s_lshl_b32 s{T1}, s{CT}, 5
v_lshl_add_u32 v3, v3, 1, s{T1}
''')
            ROWS=f'buffer_load_dwordx4 v[80:83], v2, {srd(sX)}, s{T2} offen\nbuffer_load_dwordx4 v[84:87], v2, {srd(sX)}, s{T2} offen offset:512'
            RP=1
            e(ROWS.replace('v2,','v108,').replace(f's{T2} ',f's{SPIN} ') if False else '')
            e(f's_lshl_b32 s{T0}, s{TQ}, 2\ns_add_u32 s{T0}, s{T0}, {ZF}\nv_mov_b32 v10, s{T0}\nv_mov_b32 v11, 0\nds_write_b32 v10, v11')
            RL=opt.get('rl',0)
            if not RL: e(ROWS)
            else: e('v_mov_b32 v110, v2')
            e('global_load_ushort v244, v3, s[38:39]\nglobal_load_ushort v245, v3, s[40:41]\nglobal_load_ushort v246, v3, s[50:51]')
            setup(0)
            if RL: e(f's_lshl_b32 s{sOUT}, s{WI}, 11')
            def allred(r,t):
                for k in (8,4,2,1): e(f'v_add_f32_dpp {v(r)}, {v(r)}, {v(r)} row_ror:{k} row_mask:0xf bank_mask:0xf')
                e(f'v_mov_b32 {v(t)}, {v(r)}\nv_permlane16_swap_b32 {v(t)}, {v(r)}\nv_add_f32 {v(r)}, {v(r)}, {v(t)}')
            SD=1; SB=opt.get('sb',1)
            if SD:
                g.stamp('s0')
                if UP: e(slab(0))
                if RL: e(ROWS.replace('v2,','v110,').replace(f's{T2} ',f's{sOUT} '))
                D2=slab(1)+slab(2)
                if SB: e(D2[:N1]); D2=D2[N1:]; g.stamp('s1')
                mark=len(g.L)
            e(f's_waitcnt vmcnt({(9 if UP else 3) if SB==0 else 12+(6 if SB==2 else 0)+(1 if (SB==2 and PF==1) else 0)})')
            g.stamp('rowld')
            for i in range(8): e(f'v_lshlrev_b32 v{88+2*i}, 16, v{80+i}\nv_and_b32 v{89+2*i}, 0xffff0000, v{80+i}')
            e('v_pk_add_f32 v[104:105], v[88:89], v[90:91]')
            for i in range(2,8): e(f'v_pk_add_f32 v[104:105], v[104:105], v[{88+2*i}:{89+2*i}]')
            e('v_add_f32 v104, v104, v105')
            allred(104,105)
            e(f'v_mul_f32 v104, {F(1/512)}, v104')
            for i in range(8): e(f'v_pk_add_f32 v[{88+2*i}:{89+2*i}], v[{88+2*i}:{89+2*i}], v[104:105] op_sel_hi:[1,0] neg_lo:[0,1] neg_hi:[0,1]')
            e('v_pk_mul_f32 v[106:107], v[88:89], v[88:89]')
            for i in range(1,8): e(f'v_pk_fma_f32 v[106:107], v[{88+2*i}:{89+2*i}], v[{88+2*i}:{89+2*i}], v[106:107]')
            e('v_add_f32 v106, v106, v107')
            allred(106,107)
            e(f'''v_mul_f32 v106, {F(1/512)}, v106
v_cvt_pk_bf16_f32 v104, v104, v106
v_and_b32 v106, 0xffff0000, v104
v_lshlrev_b32 v104, 16, v104
v_add_f32 v106, {F(1e-5)}, v106
v_cvt_pk_bf16_f32 v106, v106, v106
v_lshlrev_b32 v106, 16, v106
v_sqrt_f32 v106, v106
v_cvt_pk_bf16_f32 v106, v106, v106
v_lshlrev_b32 v106, 16, v106          ; sd
v_mul_f32 v90, v106, v106            ; R = sd^2
v_rcp_f32 v106, v106                  ; r
v_sub_f32 v91, 0, v104               ; -m
v_and_b32 v2, 31, v1
v_mul_f32 v88, {F(-2*math.sqrt(2/math.pi)*LOG2E)}, v106
v_mul_f32 v89, v106, v106
v_mul_f32 v93, v91, v106
v_mul_f32 v89, {F(0.044715)}, v89
v_lshrrev_b32 v3, 5, v1
v_mul_f32 v89, v89, v88
s_lshl_b32 s{T1}, s{CT}, 5
s_sub_u32 s{T1}, s{T1}, s{HB}
s_add_u32 s{T1}, s{T1}, 31
s_lshl_b32 s{T1}, s{T1}, 7
s_add_u32 s{T1}, s{T1}, {EOFF-64}
v_lshl_add_u32 v108, v3, 4, v2
v_lshl_add_u32 v108, v108, 2, s{T1}
v_mov_b32 v109, -1
s_and_b32 s{T1}, s{CT}, 7
s_cselect_b32 s{T1}, {BIG}, s{HA}
v_lshl_add_u32 v110, v3, 7, s{T1}
v_cmp_gt_u32 vcc, 7, v2
v_cndmask_b32 v108, v108, v110, vcc
v_cndmask_b32 v109, v109, 0, vcc
s_lshr_b32 s{T1}, s{WI}, 5
s_lshl_b32 s{T1}, s{T1}, 9
s_and_b32 s{T2}, s{WI}, 31
s_lshl_b32 s{T2}, s{T2}, 3
s_add_u32 s{T1}, s{T1}, s{T2}
s_add_u32 s{T1}, s{T1}, {ST_R-1024}
v_lshl_add_u32 v110, v2, 6, v3
v_lshl_add_u32 v110, v110, 2, s{T1}
v_cmp_gt_u32 vcc, 6, v2
v_cndmask_b32 v108, v108, v110, vcc
v_cndmask_b32 v109, v109, v93, vcc
s_lshl_b32 s{T1}, s{WI}, 5
s_add_u32 s{T1}, s{T1}, {ST_M}
v_lshl_add_u32 v110, v3, 2, v2
v_lshl_add_u32 v110, v110, 2, s{T1}
v_cmp_gt_u32 vcc, 5, v2
v_cndmask_b32 v109, v109, v106, vcc
v_cmp_gt_u32 vcc, 4, v2
v_cndmask_b32 v108, v108, v110, vcc
v_cndmask_b32 v109, v109, v91, vcc
v_cmp_gt_u32 vcc, 3, v2
v_cndmask_b32 v109, v109, v90, vcc
v_cmp_gt_u32 vcc, 2, v2
v_cndmask_b32 v109, v109, v89, vcc
v_cmp_gt_u32 vcc, 1, v2
v_cndmask_b32 v109, v109, v88, vcc
s_mov_b32 exec_lo, 0xffff007f
s_mov_b32 exec_hi, 0xffff007f
buffer_store_dword v109, v108, {srd(sWS)}, 0 offen sc1
s_mov_b64 exec, -1''')
            if SB:
                STATS=g.L[mark:]; del g.L[mark:]
            else:
                assert not RL
                STATS=[]; g.stamp('st'); e(D2[:N1]); D2=D2[N1:]; g.stamp('s1')
            W2PF=f'''s_cmp_eq_u32 s{TQ}, 0
s_cselect_b32 s{sOUT}, s{sCR}, s{sCI}
s_cselect_b32 s{sOUT+1}, s{sCR+1}, s{sCI+1}
s_lshl_b32 s{T1}, s2, 11
s_mul_i32 s{T2}, s2, {43*128}
s_cmp_ge_u32 s{TQ}, 2
s_cselect_b32 s{sOUT}, s{sDN}, s{sOUT}
s_cselect_b32 s{sOUT+1}, s{sDN+1}, s{sOUT+1}
s_cselect_b32 s{T1}, s{T2}, s{T1}
s_cselect_b32 s{T2}, 21, 15
v_min_u32 v13, s{T2}, v1
s_cmp_eq_u32 s{TQ}, 3
s_cselect_b32 s{T2}, {21*128}, 0
s_add_u32 s{T1}, s{T1}, s{T2}
v_lshlrev_b32 v13, 7, v13
buffer_load_dword v12, v13, {srd(sOUT)}, s{T1} offen'''
            LAM=f'''v_lshlrev_b32 v244, 16, v244
v_lshlrev_b32 v245, 16, v245
v_lshlrev_b32 v246, 16, v246
v_mul_f32 v246, {F(LOG2E)}, v246
v_exp_f32 v246, v246
v_cvt_pk_bf16_f32 v246, v246, v246
v_lshlrev_b32 v246, 16, v246
v_mul_f32 v247, v246, v244
v_mul_f32 v248, v246, v245
v_mul_f32 v247, {F(LOG2E)}, v247
v_mul_f32 v248, 0.15915494, v248'''.split('\n')
            def cpow(dr,di,n):
                LAM.extend([f'v_mul_f32 v249, {n}, v247',f'v_mul_f32 v250, {n}, v248','v_rndne_f32 v251, v250','v_exp_f32 v249, v249','v_sub_f32 v250, v250, v251','v_cos_f32 v251, v250','v_sin_f32 v250, v250',f'v_mul_f32 {v(dr)}, v249, v251',f'v_mul_f32 {v(di)}, v249, v250'])
            cpow(PR,PI,'1.0')
            for j in range(1,16):
                a=(j-1)//2; b=j-1-a
                LAM.extend([f'v_mul_f32 {v(PR+j)}, {v(PR+a)}, {v(PR+b)}',f'v_mul_f32 {v(PI+j)}, {v(PR+a)}, {v(PI+b)}',f'v_fma_f32 {v(PR+j)}, -{v(PI+a)}, {v(PI+b)}, {v(PR+j)}',f'v_fmac_f32 {v(PI+j)}, {v(PI+a)}, {v(PR+b)}'])
            cpow(L32,L32+1,F(32.0)); cpow(L64,L64+1,F(64.0))
            LAM.extend(['v_and_b32 v252, 16, v1','v_cvt_f32_u32 v252, v252']); cpow(WSEL,WSEL+1,'v252')
            LAM.extend(['v_and_b32 v252, 48, v1','v_cvt_f32_u32 v252, v252']); cpow(WG,WG+1,'v252')
            LAM.extend([f'v_mul_f32 v252, {F(32.0)}, v252']); cpow(254,255,'v252')
            LAM.extend(['v_mul_f32 v249, v244, v244','v_fmac_f32 v249, v245, v245','v_rcp_f32 v249, v249',f'v_add_f32 v250, -1.0, v{PR}',f'v_mul_f32 v{KAP}, v250, v244',f'v_fmac_f32 v{KAP}, v{PI}, v245',
                f'v_mul_f32 v{KAP+1}, v{PI}, v244',f'v_fma_f32 v{KAP+1}, -v250, v245, v{KAP+1}','v_add_f32 v249, v249, v249',f'v_mul_f32 v{KAP}, v249, v{KAP}',f'v_mul_f32 v{KAP+1}, v249, v{KAP+1}'])
            LAM.extend(cmul(WH,KAP,254))
            LAM.extend(['v_and_b32 v13, 12, v1','v_lshlrev_b32 v13, 2, v13','v_and_or_b32 v13, v1, 3, v13','v_lshrrev_b32 v252, 4, v1','v_lshl_add_u32 v13, v252, 2, v13','v_lshlrev_b32 v13, 4, v13'])
            LAM.extend([f'v_and_b32 v{EA}, 15, v1',f'v_lshlrev_b32 v{EA}, 3, v{EA}',f'v_sub_f32 v{NI}, 0, v{PI}'])
            if PF==9: e(W2PF)
            e(f's_waitcnt vmcnt({N1+(SB==0)+(2*RL if UP else 5)})\ns_barrier')
        else:
            if NL:
                e(f'L_init:\nv_lshlrev_b32 v10, 4, v1\nv_add_u32 v10, {ARR}, v10\nv_mov_b32 v44, 0\nv_mov_b32 v45, 0\nv_mov_b32 v46, 0\nv_mov_b32 v47, 0\nv_mov_b32 v43, 1')
                for k in range((NL+7)//8): e(f'global_store_dwordx4 v10, v[44:47], s[66:67] offset:{1024*k} sc1')
                e('s_branch L_initd\nL_init2:\ns_waitcnt vmcnt(0)\nv_mov_b32 v44, 0\ns_mov_b64 exec, 1\nglobal_store_dword v44, v43, s[0:1] sc1\ns_mov_b64 exec, -1\ns_branch L_init2d')
            e('L_role1:')
            isin=f's_lshl_b32 s{T1}, s2, 2\ns_add_u32 s{T1}, s{T1}, s{TQ}\ns_cmp_eq_u32 s{T1}, {97*4+3}'
            if NL: e(f's_mov_b64 s[0:1], s[64:65]\n{isin}\ns_cbranch_scc1 L_init\nL_initd:')
            setup(1)
            e(f'''s_lshl_b32 s{T0}, s{RB2}, 2
s_add_u32 s{sE}, s{T0}, s{TQ2}
s_and_b32 s{T1}, s{TQ}, 1
s_lshl_b32 s{T1}, s{T1}, 5
s_and_b32 s{T0}, s{TQ}, 2
s_lshl_b32 s{T0}, s{T0}, 1
s_add_u32 s{T1}, s{T0}, s{T1}
s_lshl_b32 s{T0}, s{sE}, 6
s_add_u32 s{WI}, s{T0}, s{T1}
s_lshl_b32 s{sE}, s{sE}, 9
s_lshl_b32 s{T1}, s{T1}, 2
s_add_u32 s{sE}, s{sE}, s{T1}
s_add_u32 s{sE}, s{sE}, {ST_R}
v_lshrrev_b32 v2, 5, v1
v_lshl_add_u32 v2, v2, 4, s{WI}
v_and_b32 v3, 3, v4
v_add_u32 v3, v3, v2
v_lshlrev_b32 v2, 4, v5
v_lshl_add_u32 v2, v3, 10, v2
s_lshl_b32 s{sE+1}, s{DQ}, 7
v_and_b32 v3, 31, v1
v_lshl_add_u32 v3, v3, 1, s{sE+1}''')
            g.stamp('s0')
            if NL: e(f'{isin}\ns_cbranch_scc1 L_init2\nL_init2d:')
            if UP: e(slab(0))
            D2=slab(1)+slab(2); e(D2[:N1]); D2=D2[N1:]; g.stamp('s1')
            LAM=[]; STATS=[]
            e(f's_waitcnt vmcnt({N1})\ns_barrier')
        if opt.get('prio')==nh: e('s_setprio 1')
        subs=[('S',0,0,ACC0),('S',0,1,ACC0+16),('F',0,0,ACC1),('F',0,1,ACC1+16)] if nh==0 else [('F',1,0,ACC0),('F',1,1,ACC0+16),('F',2,0,ACC1),('F',2,1,ACC1+16)]
        def reads(n):
            i,u=divmod(n,2); st=i%3; b=n&1; L=[]
            def wr(k):
                kind,sb,pt,_=subs[k]
                if kind=='S': L.append(f'ds_read_b128 {v(Wf(b,k),4)}, v{SA+u} offset:{st*WSS+pt*2048}')
                else:
                    for j in range(2): L.append(f'ds_read_b64_tr_b16 {v(Wf(b,k)+2*j,2)}, v{TA} offset:{st*WSS+(32*u+8*j)*96+32*sb+pt*(UOFF-GOFF)}')
            wr(0)
            for t4 in range(4): L.append(f'ds_read_b128 {v(X(b,t4),4)}, v{XA+u} offset:{st*8192+t4*2048}')
            wr(1); wr(2); wr(3)
            if u==0:
                if nh==0 and not (opt.get('nos') and n>0):
                    SF=SFS
                    L.append(f'ds_read_b128 {v(SF[0],4)}, v{S1} offset:{st*WSS}')
                    for q_ in range(3):
                        for j in range(2): L.append(f'ds_read_b64_tr_b16 {v(SF[1+q_]+2*j,2)}, v{S2} offset:{st*WSS+8*j*96+32*q_}')

            return L
        def mf(k,t4,xo,wo,first=False):
            a=subs[k][3]+4*t4; c='0' if first else v(a,4)
            if subs[k][0]=='S': return f'v_mfma_f32_16x16x32_bf16 {v(a,4)}, {xo}, {wo}, {c}'
            return f'v_mfma_f32_16x16x32_bf16 {v(a,4)}, {wo}, {xo}, {c}'
        g.stamp('B0')
        LT=opt.get('lt',0)
        if nh==1 and LT:
            e(f's_cmp_lt_u32 s{FCNT}, 2\ns_cbranch_scc1 L_light')
            C=['L_light:']+list(D2)
            ix=f's_and_b32 s{T1}, s2, 31\ns_lshl_b32 s{T1}, s{T1}, 2\ns_add_u32 s{T1}, s{T1}, s{TQ}'
            pf1=f'{ix}\ns_mul_i32 s{T1}, s{T1}, {86*128}\nv_min_u32 v5, 42, v1\nv_lshlrev_b32 v5, 7, v5\nbuffer_load_dword v6, v5, {srd(sDN)}, s{T1} offen\ns_add_u32 s{T1}, s{T1}, {43*128}\nbuffer_load_dword v7, v5, {srd(sDN)}, s{T1} offen'
            pf2=f'{ix}\ns_lshl_b32 s{T1}, s{T1}, 12\nv_min_u32 v5, 31, v1\nv_lshlrev_b32 v5, 7, v5\nbuffer_load_dword v8, v5, {srd(sCR)}, s{T1} offen\nbuffer_load_dword v9, v5, {srd(sCI)}, s{T1} offen'
            l2=[]
            for k in range(opt.get('ll',0)):
                l2.append(f's_lshl_b32 s{T1}, s{TQ2}, 2\ns_add_u32 s{T1}, s{T1}, s{TQ}\ns_lshl_b32 s{T1}, s{T1}, 15\ns_add_u32 s{T1}, s{T1}, {(k>>1)*8192}\nv_lshlrev_b32 v5, 7, v1\nbuffer_load_dword v10, v5, {srd(sCI if k&1 else sCR)}, s{T1} offen')
            for bi in range(1,9):
                C.append('s_waitcnt vmcnt(6)\ns_barrier')
                if bi==LT: C.append(pf1)
                if bi==LT+1: C.append(pf2)
                if bi>=LT+3:
                    k=(len(l2)+7-bi)//max(1,8-bi); C+=l2[:k]; del l2[:k]
                if bi+2<8: C+=slab(bi+2)
                elif bi+2<10: C+=vhalf(bi+2,1)
            C.append('s_branch L_postB8')
            g.cold+=C
        e(reads(0))
        slots=[int(x) for x in opt.get(f'ds{nh}','13.15.21.23.29.31').split('.')]
        slots7=[int(x) for x in opt.get(f'dl{nh}',['3.7.11.15.19.23','13.15.21.23.29.31'][nh]).split('.')]
        slots6=[int(x) for x in opt.get(f'dm{nh}',['9.13.17.21.25.29','3.9.15.19.25.29'][nh]).split('.')]
        V9=opt.get('v9',0)
        if V9 and nh==1: slots7=[int(x) for x in opt.get('dl1','5.7.9.11.13.15.19.21.23.25.27.29').split('.')]
        pend=D2; xtra=0; late=None
        while len(pend)>len([q_ for q_ in slots if q_>=16]): e(pend.pop(0))
        for n in range(16):
            i,u=divmod(n,2); b=n&1
            post=[]
            if u==1:
                assert not pend
                bi=i+1
                if late: e(late); late=None
                if STATS:
                    if bi==SB: e(STATS); STATS=[]; xtra+=1
                elif LAM and bi>=opt.get('lb',1):
                    lb=5 if SD else 4
                    k=(len(LAM)+(lb-bi))//(lb+1-bi)
                    e(LAM[:k]); del LAM[:k]
                if nh==0 and bi==7:
                    SL=16
                    e(f'''v_and_b32 v12, 1, v1
v_lshlrev_b32 v12, 4, v12
v_mov_b32 v2, 0x3f80
v_lshlrev_b32 v12, v12, v2
v_bfe_u32 v2, v1, 2, 2
v_lshrrev_b32 v3, 4, v1
v_cmp_eq_u32 vcc, v2, v3
v_and_b32 v2, 2, v1
v_mov_b32 v{SL}, 0
v_cndmask_b32 v12, 0, v12, vcc
v_cmp_eq_u32 vcc, 0, v2
v_mov_b32 v{SL+1}, 0
v_mov_b32 v{SL+4}, 0
v_cndmask_b32 v{SL+2}, 0, v12, vcc
v_cndmask_b32 v{SL+3}, v12, 0, vcc
v_mov_b32 v{SL+5}, 0
v_lshrrev_b32 v2, 3, v1
v_and_b32 v3, 7, v1
v_lshrrev_b32 v12, 1, v2
v_xor_b32 v3, v3, v12
s_lshl_b32 s{T1}, s{DQ}, 6
v_add_u32 v2, s{T1}, v2
v_lshlrev_b32 v2, 10, v2
v_lshl_add_u32 v{DC}, v3, 4, v2
v_xor_b32 v{DC+1}, 64, v{DC}
v_and_b32 v2, 15, v1
v_lshlrev_b32 v2, 2, v2
v_add_u32 v2, {SP}, v2''')
                g.stamp(f'p{bi}')
                def vchk(lbl,ld,th,n):
                    e(f's_waitcnt vmcnt({n})\nv_cmp_gt_u32 vcc, {th}, v2\ns_cmp_eq_u64 vcc, 0\ns_cbranch_scc0 {lbl}\n{lbl}ok:')
                    g.cold.append(f'''{lbl}:
s_mov_b32 s{SPIN}, 0
{lbl}1:
s_sleep {opt.get('dslp',8)}
{ld}
s_add_u32 s{SPIN}, s{SPIN}, 1
s_cmp_gt_u32 s{SPIN}, 100000
s_cbranch_scc1 {lbl}ok
s_waitcnt vmcnt(0)
v_cmp_gt_u32 vcc, {th}, v2
s_cmp_eq_u64 vcc, 0
s_cbranch_scc0 {lbl}1
s_branch {lbl}ok''')
                gold=f'buffer_load_dword v2, v3, {srd(sDBG)}, s{W0} offen sc1'
                arld=f'buffer_load_dword v2, v3, {srd(sWS)}, s{W0} offen sc1' if NL else f'buffer_load_dword v2, v3, {srd(sDBG)}, 0 offen sc1'
                if bi==SB+1 and nh==0 and NL: vchk('L_go',gold,f's{TH}',6+xtra)
                if bi==6 and nh==0: vchk('L_poll',arld,f's{TH}' if NL else '4',6)
                e(f's_waitcnt vmcnt({0 if (bi==8 and nh==0) else 6+xtra}) lgkmcnt(0)')
                g.stamp(f'w{bi}')
                e('s_barrier')
                g.stamp(f'B{bi}')
                xtra=0
                if nh==0:
                    if bi==SB and NL: post.append('v_mov_b32 v3, 0\n'+gold)
                    if bi==SB+1:
                        if NL: post.append(f's_lshr_b32 s{T1}, s2, {opt.get("nsh",3)}\ns_and_b32 s{T1}, s{T1}, {NL-1}\ns_lshl_b32 s{T1}, s{T1}, 7\ns_add_u32 s{W0}, s{W0}, {ARR}\ns_add_u32 s{T1}, s{T1}, s{W0}\ns_mul_i32 s{TH}, s{TH}, {256//NL}\nv_mov_b32 v2, 1\ns_mov_b64 exec, 1\nbuffer_atomic_add v2, v3, {srd(sWS)}, s{T1} offen sc1\ns_mov_b64 exec, -1')
                        else: post.append(f's_and_b32 s{T1}, s2, 63\ns_lshl_b32 s{T1}, s{T1}, 2\ns_cmp_eq_u32 s{W_}, 0\ns_cselect_b32 s{T1}, s{T1}, {BIG}\nv_mov_b32 v2, 1\nv_mov_b32 v3, 0\ns_mov_b64 exec, 1\nbuffer_atomic_add v2, v3, {srd(sDBG)}, s{T1} offen sc1\ns_mov_b64 exec, -1')
                        xtra+=1
                    if PF==bi: post.append(W2PF); xtra+=1
                    l2p=opt.get('l2p',0)
                    if l2p and l2p<=bi<l2p+4:
                        k=bi-l2p
                        post.append(f's_lshr_b32 s{T1}, s2, 3\ns_lshl_b32 s{T1}, s{T1}, 2\ns_add_u32 s{T1}, s{T1}, s{TQ}\ns_lshl_b32 s{T1}, s{T1}, 12\nv_lshlrev_b32 v13, 7, v1\ns_mov_b64 exec, 0xffff\nbuffer_load_dword v12, v13, {srd(sCI if k&1 else sCR)}, s{T1} offen offset:{2048*(k>>1)}\ns_mov_b64 exec, -1'); xtra+=1
                    if l2p and bi==l2p+4:
                        post.append(f's_lshr_b32 s{T1}, s2, 3\ns_lshl_b32 s{T1}, s{T1}, 11\ns_add_u32 s{T1}, s{T1}, s{FB}\ns_add_u32 s{T1}, s{T1}, {18*16384}\nv_lshlrev_b32 v13, 7, v1\ns_mov_b64 exec, 0xffff\nbuffer_load_dword v12, v13, {srd(sDN)}, s{T1} offen\ns_mov_b64 exec, -1'); xtra+=1
                    if bi==5:
                        post.append((f'v_min_u32 v3, {NL-1}, v1\nv_lshlrev_b32 v3, 7, v3\n' if NL else 'v_lshlrev_b32 v3, 2, v1\n')+arld); xtra=0
                lp=opt.get('lp',0)
                if nh==1 and lp and lp<=bi<lp+5:
                    k=bi-lp
                    post.append(f's_cmp_lt_u32 s{FCNT}, 2\ns_cbranch_scc1 L_lp{k}\nL_lpr{k}:')
                    t=f'L_lp{k}:\nv_lshlrev_b32 v2, 7, v1\ns_lshl_b32 s{T1}, s{TQ2}, 2\ns_add_u32 s{T1}, s{T1}, s{TQ}\n'
                    if k<4:
                        t+=f's_lshl_b32 s{T1}, s{T1}, 15\ns_add_u32 s{T1}, s{T1}, {k*8192}\nbuffer_load_dword v3, v2, {srd(sCR)}, s{T1} offen\nbuffer_load_dword v4, v2, {srd(sCI)}, s{T1} offen\n'
                    else:
                        t+=f's_lshl_b32 s{T1}, s{TQ2}, 14\ns_add_u32 s{T1}, s{T1}, s{FB}\ns_add_u32 s{T1}, s{T1}, {18*16384}\nbuffer_load_dword v3, v2, {srd(sDN)}, s{T1} offen\ns_add_u32 s{T1}, s{T1}, 8192\nbuffer_load_dword v4, v2, {srd(sDN)}, s{T1} offen\n'
                    g.cold.append(t+f's_branch L_lpr{k}')
                if bi==6 and nh==0:
                    post.append(f'''s_lshl_b32 s{T2}, s{RB}, 2
s_add_u32 s{T2}, s{T2}, s{TQ}
s_lshl_b32 s{T1}, s{T2}, 10
s_add_u32 s{T1}, s{T1}, {ST_M}
s_mov_b32 m0, s{V14}
s_lshl_b32 s{T2}, s{T2}, 9
buffer_load_dwordx4 v13, {srd(sWS)}, s{T1} offen sc1 lds
s_lshl_b32 s{T1}, s{TQ}, 9
s_add_u32 m0, s{T1}, {RM}
s_add_u32 s{T2}, s{T2}, {ST_R}
s_mov_b32 exec_hi, 0
buffer_load_dwordx4 v15, {srd(sWS)}, s{T2} offen sc1 lds
s_mov_b64 exec, -1''')
                if bi+2<8: pend=slab(bi+2)
                elif bi==7 and V9:
                    pend=vfull(9) if nh==1 else []
                    xtra=6
                elif bi+2<10: pend=vhalf(bi+2,nh)
            else:
                e('s_waitcnt lgkmcnt(0)')
            R=reads(n+1) if n<15 else []
            M=[mf(k,t4,v(X(b,t4),4),v(Wf(b,k),4),n==0) for k in range(4) for t4 in range(4)]
            if n==15: break
            EX=[]
            GCR=[f'ds_read_b128 {v(GC+4*k,4)}, v29 offset:{256*k}' for k in range(4)]
            if n==12 and nh==0:
                EX=['v_and_b32 v0, 3, v1',f'v_lshl_add_u32 v0, v0, 6, v30',f's_lshl_b32 s{T1}, s{TQ}, 8\nv_add_u32 v0, s{T1}, v0']
            if n==14 and nh==0:
                R=['']*opt.get('wpos',14)+[f's_mov_b32 exec_lo, 0x000f000f\ns_mov_b32 exec_hi, 0x000f000f\nds_write_b128 v0, {v(SACC,4)}\ns_mov_b64 exec, -1']+R
                R+=GCR
            if nh==0 and opt.get('sp') and u==0 and i>=opt.get('sp0',2):
                if i==opt.get('sp0',2): SPL=[f's_load_dword s54, s[{(0,60)[k&1]}:{(1,61)[k&1]}], {128*(k>>1)}' for k in range(64)]
                if i==opt.get('sp0',2) and opt.get('c3'): SPL=[f's_load_dword s54, s[0:1], {1024*k+384}' for k in range(11)]
                k=opt['sp']; mine=SPL[:k]; del SPL[:k]
                EX=[ '\n'.join([x for x in ([EX[q_]] if q_<len(EX) else [])+mine[2*q_:2*q_+2]]) for q_ in range(max(len(EX),(len(mine)+1)//2))]
            sl_=slots7 if n>=13 else slots6 if n>=opt.get('dn',5) else slots
            if u==0 and nh==0 and not (opt.get('nos') and n>0):
                e([f'v_mfma_f32_16x16x32_bf16 {v(SACC,4)}, {v(SFS[k],4)}, {v(SELS+4*k,4)}, {"0" if (n==0 and k==0) else v(SACC,4)}' for k in range(4)])
            rp_=2 if len(R)>16 else 1
            for mi in range(16):
                e(M[mi])
                for _ in range(rp_):
                    if R: e(R.pop(0))
                if mi==0: e(post)
                if EX: e(EX.pop(0))
                if (16*(1-u)+mi) in sl_ and pend: e(pend.pop(0))
            assert not R and not EX
        if nh==1 and LT: e('L_postB8:')
        e(f's_mul_i32 s{HB}, s{HB}, {2*HSTR}')
        if opt.get('nost'): e(f's_mov_b32 s{HB}, {BIG}')
        if opt.get('prio')==nh: e('s_setprio 0')
        def foff(reg,sb):
            return f's_add_u32 s{T2}, s{FS}, {sb}\ns_lshl_b32 s{T2}, s{T2}, 10\ns_add_u32 s{T2}, s{T2}, s{HB}\ns_cmp_gt_u32 s{FCNT}, {sb}\ns_cselect_b32 s{reg}, s{T2}, {BIG}'
        def run_groups(groups, loads, ring, areg, hooks, mid=[], freed={}, depth=0):
            free=list(ring); dest=[]; depth=max(depth,len(ring))
            def ld():
                sr,imm=loads[len(dest)]; dest.append(free.pop(0))
                return [f's_add_u32 s{T0}, s{sr}, {imm}',f'buffer_load_dwordx4 {v(dest[-1],4)}, v{areg}, {srd(sWS)}, s{T0} offen sc1']
            while free: e(ld())
            e(mid)
            il=[]
            for gi,grp in enumerate(groups):
                g.stamp(f'q{gi}')
                h=hooks.get(gi)
                if h:
                    e(h[0]); il=il+list(h[1])
                for k,(a,li,Bq,first) in enumerate(grp):
                    if k%2==0: e(f's_waitcnt vmcnt({len(dest)-1-li})')
                    e(f'v_mfma_f32_32x32x16_bf16 {v(a,16)}, {v(dest[li],4)}, {v(Bq,4)}, {"0" if first else v(a,16)}')
                    if k%2==1: free.append(dest[li])
                    can=free and len(dest)<len(loads)
                    if can and (k%2==1 or (k in opt.get('gk',(0,)) and len(dest)-li<depth)): e(ld())
                    for _ in range(2):
                        if il: e(il.pop(0))
                free+=freed.get(gi,[])
            e(il)
        TILE=lambda mh,dh: ACC0+32*mh+16*dh
        if nh==1:
            TMP=16; SG=4
            v14=vgroup(f's{V14}, 0',[DF],sDN,FB,20*16384,4)
            V=vfull(10); nb=opt.get('nb',5)
            rd=vread(8,B1)
            e(mix(rd[:2*nb],V[:nb],2))
            if opt.get('w3',0):
                e(M); e(mix(rd[2*nb:]+GCR+sread(1,SG,TMP),V[nb:],2))
            else: e(mix(mix(M,V[nb:],2),rd[2*nb:]+GCR+sread(1,SG,TMP),1))
            g.stamp('loopend')
            e(foff(SOX,1)); e(foff(SOW,2))
            e('s_waitcnt vmcnt(12) lgkmcnt(8)')
            g.stamp('w9')
            V14B=[f's_cmp_ge_u32 s{TQ}, 2\ns_cbranch_scc1 L_no14']+vgroup(f's{V14}, 2048',[DF],sDN,FB,21*16384,2)+['L_no14:']
            S2R=sread(2,SG,ACC0)+['s_waitcnt lgkmcnt(0)']+sadd(SG,ACC0)
            G0,G1,G2,G3=gelu(ACC0,0,TMP,SOX,SG),gelu(ACC0,1,TMP,SOX,SG),gelu(ACC1,0,TMP,SOW,SG),gelu(ACC1,1,TMP,SOW,SG)
            pc=opt.get('pace',6)
            gp=f's_setprio {opt.get("gprio",1)}'
            V=vfull(11); nq=opt.get('nq',8)
            e(mix(vread(9,B2),V[:nq],3))
            g.stamp('c0')
            e(f's_waitcnt vmcnt({nq})')
            V=V[nq:]+[f's_mov_b32 m0, s{V14}\ns_add_u32 s{T2}, s{sE+1}, {8192-1024}\nbuffer_load_dwordx4 v2, {srd(sX)}, s{sE+1} offen lds',f'buffer_load_dwordx4 v2, {srd(sX)}, s{T2} offen offset:1024 lds']
            e('s_waitcnt lgkmcnt(15)')
            e(mix(vread(10,B3),V,3))
            g.stamp('ch1')
            e('s_waitcnt lgkmcnt(0)\ns_barrier')
            g.stamp('B9')
            e(sread(2,24,24)[:2][::1] if False else '')
            e(gp); e(sadd(SG,TMP))
            G2,G3=gelu(ACC1,0,TMP,SOW,ACC0),gelu(ACC1,1,TMP,SOW,ACC0)
            if LT and opt.get('sk',1): e(f's_cmp_lt_u32 s{FCNT}, 2\ns_cbranch_scc1 L_nogelu')
            e(G0); e(mix(G1,sread(2,ACC0,24),8)); e('s_waitcnt lgkmcnt(0)'); e(sadd(ACC0,24)); e(G2); e(G3)
            if LT and opt.get('sk',1):
                e('L_gelud:'); g.cold.append('L_nogelu:\ns_waitcnt vmcnt(0)\ns_branch L_gelud')
            g.stamp('gdone')
            RD_=opt.get('rd',1); nx=3 if RD_ else 6
            e('v_lshrrev_b32 v5, 5, v1\nv_lshlrev_b32 v6, 6, v5')
            if RD_:
                e(f's_lshl_b32 s{T1}, s{TQ}, 9\ns_add_u32 s{T1}, s{T1}, {RM}\ns_mov_b32 m0, s{T1}\ns_and_b32 s{T0}, s{sE}, 0xfffffe00\ns_mov_b32 exec_hi, 0\nbuffer_load_dwordx4 v15, {srd(sWS)}, s{T0} offen sc1 lds\ns_mov_b64 exec, -1\ns_and_b32 s{T0}, s{sE}, 0x1ff\ns_add_u32 s{T1}, s{T1}, s{T0}\nv_add_u32 v7, s{T1}, v6')
            else: e([f'buffer_load_dwordx4 {v(32+8*mh+4*k,4)}, v6, {srd(sWS)}, s{sE} offen offset:{32*mh+256*k} sc1' for mh in range(2) for k in range(2)])
            e('global_load_ushort v8, v3, s[52:53]\nglobal_load_ushort v9, v3, s[52:53] offset:64')
            e(f"""v_bfe_u32 v4, v1, 2, 2
v_lshl_add_u32 v4, v5, 2, v4
v_lshlrev_b32 v4, 7, v4
v_and_b32 v6, 3, v1
v_lshl_add_u32 v4, v6, 3, v4
v_and_b32 v6, 16, v1
v_lshl_add_u32 v4, v6, 1, v4
v_add_u32 v4, s{V14}, v4
v_lshl_add_u32 v10, v5, 4, s{WI}
v_lshlrev_b32 v3, 1, v3
v_lshl_add_u32 v10, v10, 11, v3
s_waitcnt vmcnt({4+nx})""")
            e([f'ds_read_b64_tr_b16 {v(16+2*tl,2)}, v4 offset:{(tl>>1)*1024+(tl&1)*64}' for tl in range(4)])
            e(p2base(1))
            D1_=(vfull(12)+vfull(13))[24-NR1:]; npre=min(len(D1_),opt.get('npre',0))
            e('s_waitcnt lgkmcnt(0)'); e(v14[:2]); e(D1_[:npre])
            assert npre%4==0
            sf=setflag(False).split('\ns_mov_b64 exec, 1')
            e(sf[0]); e(f's_waitcnt vmcnt({2+nx+npre})'); e('s_mov_b64 exec, 1'+sf[1]); g.stamp('flag')
            e(f's_waitcnt vmcnt({3+npre})')
            if RD_: e([f'ds_read_b128 {v(32+8*mh+4*k,4)}, v7 offset:{32*mh+256*k}' for mh in range(2) for k in range(2)])
            e(V14B)
            e(f's_setprio {opt.get("bprio",0)}')
            BB=[f'v_mov_b32 v{ACC0+16*tl+k}, 0' for tl in range(4) for k in range(4,16)]
            BB+=[f's_lshl_b32 s{T1}, s{TQ}, 7\nv_xor_b32 v11, s{T1}, v15','v_lshlrev_b32 v8, 16, v8','v_lshlrev_b32 v9, 16, v9\ns_waitcnt lgkmcnt(0)']
            for mh in range(2):
                for dh in range(2):
                    for i in range(4):
                        r=TILE(mh,dh)+i; xr=16+2*(2*mh+dh)+(i>>1)
                        BB+=[f'v_lshlrev_b32 v{r}, 16, v{xr}' if i%2==0 else f'v_and_b32 v{r}, 0xffff0000, v{xr}',f'v_fma_f32 v4, v{r}, v{32+8*mh+i}, v{36+8*mh+i}',f'v_fmac_f32 v{r}, v4, v{8+dh}']
            ap=opt.get('ap',48)
            if ap: BB.insert(len(BB)-ap,sld)
            bm=opt.get('bm',0)
            if bm: e(mix(BB,D1_[npre:],bm))
            else: e(D1_[npre:]); e(BB)
            ZE=opt.get('ze',8)
            zfw=f's_lshl_b32 s{T1}, s{TQ}, 2\ns_add_u32 s{T1}, s{T1}, {ZF}\nv_mov_b32 v2, s{T1}\nv_mov_b32 v3, 1\nds_write_b32 v2, v3'
            SPO=opt.get('spo',3)
            hk1={ZE:(['s_barrier',g.st('Z1')],[])}; mid1=[]
            if SPO&1:
                if SPO&4: e('s_waitcnt vmcnt(0)')
                g.stamp('chores')
                e(spoll('L_fp1',opt.get('slp1',4),not ap))
                mid1=['s_waitcnt vmcnt(0)',zfw]
                if not SPO&8: mid1[0]=f's_waitcnt vmcnt({opt.get("nr1",9)})'
                else: e(mid1); mid1=[]
            else:
                e('s_waitcnt vmcnt(0)')
                e(pld(7)); e(zfw)
                g.stamp('chores')
                e(pollchk('L_fp1',7,0,opt.get('slp1',2)))
            g.stamp('go')
            e(f's_setprio {opt.get("p2prio",1)}')
            loads=[(SOW,s_*1024+mh*HSTR) for s_ in range(18) for mh in range(2)]
            order=[s_ for s_ in range(18) for mh in range(2)]
            groups=[[(TILE(mh,dh),2*s_+mh,B1+8*s_+4*dh,False) for mh in range(2) for dh in range(2)] for s_ in range(18)]
            run_groups(groups,loads,([16+4*k for k in range(8)]+[4])[:opt.get('nr1',9)],11,hk1,mid1,{s_:[B1+8*s_,B1+8*s_+4] for s_ in range(18)},opt.get('dp1',14))
            g.stamp('ph1')
            e('s_setprio 0')
            XS=112
            for j in range(1,4):
                e(f's_xor_b32 s{T1}, s{TQ}, {j}\ns_mul_i32 s{T1}, s{T1}, {XW}\ns_add_u32 s{T1}, s{T1}, {(j-1)*4096}\nv_add_u32 v{3+j}, s{T1}, v15')
            e(f'v_add_u32 v7, s{XR}, v15\nv_add_u32 v8, s{WQ}, v15')
            if not ZE: e('s_barrier'); g.stamp('Z1')
            for j in range(1,4):
                for tl in range(4): e(f'ds_write_b128 v{3+j}, {v(ACC0+16*tl+4*j,4)} offset:{tl*1024}')
            e('s_waitcnt lgkmcnt(0)\ns_barrier')
            g.stamp('Z2')
            osc=' sc1'
            def addq(r,srcs,pk):
                for q_ in srcs:
                    if pk:
                        for j in range(2): e(f'v_pk_add_f32 {v(r+2*j,2)}, {v(r+2*j,2)}, {v(q_+2*j,2)}')
                    else:
                        for j in range(4): e(f'v_add_f32 v{r+j}, v{r+j}, v{q_+j}')
            def outst(mh,dh):
                for i in range(4):
                    if i%2==0: e(f's_mov_b32 s{T0}, {mh*16384+i*2048}')
                    e(f'buffer_store_dword v{TILE(mh,dh)+i}, v10, {srd(sOUT)}, s{T0} offen offset:{dh*128+(i&1)*2048}{osc}')
            for tl in range(4):
                for j in range(3): e(f'ds_read_b128 {v(XS+12*tl+4*j,4)}, v7 offset:{j*4096+tl*1024}')
            for tl in range(4):
                e(f's_waitcnt lgkmcnt({9-3*tl})')
                addq(ACC0+16*tl,[XS+12*tl+4*k for k in range(3)],False)
            e('s_barrier')
            g.stamp('Z23')
            e(f's_setprio {opt.get("fprio",1)}')
            for dh in range(2):
                for k in range(4): e(f'ds_read_b128 {v(XS+16*dh+4*k,4)}, v7 offset:{16384+k*2048+dh*1024}')
            for dh in range(2):
                e(f's_waitcnt lgkmcnt({4-4*dh})')
                addq(TILE(0,dh),[XS+16*dh+4*k for k in range(4)],False); outst(0,dh)
            e('s_barrier')
            g.stamp('p2end')
            for dh in range(2):
                for k in range(4): e(f'ds_read_b128 {v(XS+16*dh+4*k,4)}, v8 offset:{dh*WSS+k*1024}')
            for dh in range(2):
                e(f's_waitcnt lgkmcnt({4-4*dh})')
                addq(TILE(1,dh),[XS+16*dh+4*k for k in range(4)],True); outst(1,dh)
        else:
            Xr=ACC0; Yr=ACC0+16
            e('s_setprio 2')
            SG=160; SS=176
            rd=[f'ds_read_b32 v{4+q_}, v2 offset:{256*q_}' for q_ in range(4)]+[f'ds_read_b128 {v((RS,MR)[k&1]+4*(k>>1),4)}, v31 offset:{256*(k&1)+16*(k>>1)}' for k in range(8)]+sread(0,SG,168)
            e(mix(M,rd,1))
            g.stamp('loopend')
            Z,T,P,Q=4,6,8,10
            e(foff(SOX,0))
            e(f's_lshl_b32 s{T0}, s{RB}, 2\ns_add_u32 s{T0}, s{T0}, s{TQ}\ns_sub_u32 s{T0}, 31, s{T0}\ns_lshl_b32 s{SOW}, s{T0}, 7')
            e(f's_waitcnt lgkmcnt(0)\nv_add_f32 v{SS}, v4, v6\nv_add_f32 v{SS+1}, v5, v7')
            npl=opt.get('npl',8)
            def scl(j): return f'v_mul_f32 v{Xr+j}, v{Xr+j}, v{RS+j}\nv_mul_f32 v{Yr+j}, v{Yr+j}, v{RS+j}\nv_fmac_f32 v{Xr+j}, v{MR+j}, v{SS}\nv_fmac_f32 v{Yr+j}, v{MR+j}, v{SS+1}'
            for j in range(16):
                if j<npl: e(scl(j))
                elif j==npl:
                    for i in range(npl//2,8):
                        xx=v(Xr+2*i,2); yy=v(Yr+2*i,2)
                        e(f'v_pk_mul_f32 {xx}, {xx}, {v(RS+2*i,2)}\nv_pk_mul_f32 {yy}, {yy}, {v(RS+2*i,2)}\nv_pk_fma_f32 {xx}, {v(MR+2*i,2)}, {v(SS,2)}, {xx} op_sel_hi:[1,0,1]\nv_pk_fma_f32 {yy}, {v(MR+2*i,2)}, {v(SS,2)}, {yy} op_sel:[0,1,0] op_sel_hi:[1,1,1]')
                if j: e(f'v_fmac_f32 v{Xr+j}, v{PR}, v{Xr+j-1}\nv_fmac_f32 v{Yr+j}, v{PR}, v{Yr+j-1}\nv_fmac_f32 v{Xr+j}, v{NI}, v{Yr+j-1}\nv_fmac_f32 v{Yr+j}, v{PI}, v{Xr+j-1}')
            g.stamp('a_scan')
            e(f'v_mov_b32 v{T}, v{Xr+15}\nv_mov_b32 v{T+1}, v{Yr+15}\nv_mov_b32 v{Z}, 0\nv_mov_b32 v{Z+1}, 0\nv_permlane16_swap_b32 v{Z}, v{T}\nv_permlane16_swap_b32 v{Z+1}, v{T+1}')
            e(cfma(P,(PR+15,PI+15),Z,(Xr+15,Yr+15)))
            e(f'v_mov_b32 v{Q}, v{P}\nv_mov_b32 v{Q+1}, v{P+1}\nv_mov_b32 v{T}, 0\nv_mov_b32 v{T+1}, 0\nv_permlane16_swap_b32 v{Q}, v{P}\nv_permlane16_swap_b32 v{Q+1}, v{P+1}')
            e(f'v_permlane32_swap_b32 v{T}, v{P}\nv_permlane32_swap_b32 v{T+1}, v{P+1}')
            e(cfma(P,L32,T,P))
            e(f'''v_min_u32 v{P}, -2, v{P}
v_min_u32 v{P+1}, -2, v{P+1}
s_mov_b32 exec_lo, 0
s_mov_b32 exec_hi, 0xffff0000
buffer_store_dwordx2 {v(P,2)}, v{EA}, {srd(sE)}, s{SOW} offen sc1
s_mov_b64 exec, -1''')
            g.stamp('b_pub')
            e(sadd(SG,168))
            e(gelu(ACC1,0,24,SOX,SG)+gelu(ACC1,1,24,SOX,SG)); g.stamp('gdone')
            D=(vfull(12)+vfull(13))[:24-NR1]
            da,db,dc=[int(x) for x in opt.get('d0','6.4.16').split('.')]
            ER=[RS+2*k for k in range(8)]
            e(f'v_and_b32 v2, 48, v1\nv_lshl_add_u32 v{EA}, v2, 6, v{EA}\ns_add_u32 s{SOW}, s{SOW}, 128')
            eld='\n'.join(f'buffer_load_dwordx2 {v(ER[u_],2)}, v{EA}, {srd(sE)}, s{SOW} offen offset:{128*u_} sc1' for u_ in range(8))
            HP=opt.get('hp',0)
            e('s_barrier' if HP==1 else 's_setprio 0\ns_barrier')
            g.stamp('B9')
            if db>=da:
                e(D[:da]); e(f's_waitcnt vmcnt({da})'); e(setflag(False)); g.stamp('flag0')
                e(D[da:db]); e(eld); ne=0
            else:
                e(D[:db]); e(eld); e(D[db:da]); e(f's_waitcnt vmcnt({da+8})'); e(setflag(False)); g.stamp('flag0')
                ne=da-db+1; db=da
            mark=len(g.L)
            e(cfma(Z,WSEL,T,Z)+cmul(CP,KAP,Z))
            kp=v(KAP,2)
            for i in range(8):
                xx=v(Xr+2*i,2); yy=v(Yr+2*i,2); tt=v(4+2*(i&1),2)
                e([f'v_pk_mul_f32 {tt}, {xx}, {kp} op_sel:[0,1] op_sel_hi:[1,1] neg_lo:[0,1] neg_hi:[0,1]',f'v_pk_mul_f32 {xx}, {xx}, {kp} op_sel_hi:[1,0]',
                     f'v_pk_fma_f32 {xx}, {yy}, {kp}, {xx} op_sel:[0,1,0] op_sel_hi:[1,1,1] neg_lo:[0,1,0] neg_hi:[0,1,0]',f'v_pk_fma_f32 {yy}, {yy}, {kp}, {tt} op_sel_hi:[1,0,1] neg_lo:[0,1,0] neg_hi:[0,1,0]'])
            SL=16
            e(f'''s_add_u32 s{T2}, s{CT}, 86
s_lshl_b32 s{T2}, s{T2}, 10
s_add_u32 s{T2}, s{T2}, s{HB}''')
            chk='\n'.join([f'v_max3_u32 v0, v{ER[0]}, v{ER[0]+1}, v{ER[1]}',f'v_max3_u32 v4, v{ER[1]+1}, v{ER[2]}, v{ER[2]+1}']+[f'v_max3_u32 v{(0,4)[u_&1]}, v{ER[u_]}, v{ER[u_]+1}, v{(0,4)[u_&1]}' for u_ in range(3,8)]+['v_max_u32 v0, v0, v4','v_cmp_eq_u32 vcc, -1, v0','s_cmp_eq_u64 vcc, 0'])
            KS=g.L[mark:]; del g.L[mark:]
            if HP: e(D[db:dc]); g.stamp('dm'); e('s_setprio 0'); e(KS)
            else: e(mix(KS,D[db:dc],opt.get('kp',2)))
            e(f's_waitcnt vmcnt({dc-db+ne})\n{chk}\ns_cbranch_scc0 L_epoll\nL_eok:')
            g.cold.append(f'''L_epoll:
s_mov_b32 s{SPIN}, 0
L_epoll1:
s_sleep {opt.get('eslp',4)}
{eld}
s_add_u32 s{SPIN}, s{SPIN}, 1
s_cmp_gt_u32 s{SPIN}, 100000
s_cbranch_scc1 L_eok
s_waitcnt vmcnt(0)
{chk}
s_cbranch_scc0 L_epoll1
s_branch L_eok''')
            g.stamp('Eok')
            e(f's_setprio {opt.get("eprio",2)}')
            for u_ in range(6,-1,-1): e(cfma(ER[u_],L64,ER[u_+1],ER[u_]))
            e(cmul(4,WH,ER[0]))
            for sw in ('16','32'):
                e(f'v_mov_b32 v6, v4\nv_mov_b32 v7, v5\nv_permlane{sw}_swap_b32 v6, v4\nv_permlane{sw}_swap_b32 v7, v5\nv_add_f32 v4, v6, v4\nv_add_f32 v5, v7, v5')
            e(cfma(CP,WG,4,CP))
            cp=v(CP,2)
            g.stamp('c_carry')
            for comp,R_,D_ in ((0,Xr,112),(1,Yr,128)):
                for i in range(8):
                    rr_=v(R_+2*i,2); pr=v(PR+2*i,2); pi=v(PI+2*i,2)
                    if comp==0: e(f'v_pk_fma_f32 {rr_}, {pr}, {cp}, {rr_} op_sel_hi:[1,0,1]\nv_pk_fma_f32 {rr_}, {pi}, {cp}, {rr_} op_sel:[0,1,0] op_sel_hi:[1,1,1] neg_lo:[0,1,0] neg_hi:[0,1,0]')
                    else: e(f'v_pk_fma_f32 {rr_}, {pr}, {cp}, {rr_} op_sel:[0,1,0] op_sel_hi:[1,1,1] neg_lo:[0,1,0] neg_hi:[0,1,0]\nv_pk_fma_f32 {rr_}, {pi}, {cp}, {rr_} op_sel_hi:[1,0,1] neg_lo:[0,1,0] neg_hi:[0,1,0]')
            for comp,R_,D_ in ((0,Xr,112),(1,Yr,128)):
                for i in range(8): e(f'v_cvt_pk_bf16_f32 v{R_+i}, v{R_+2*i}, v{R_+2*i+1}')
                for tb in range(2):
                    for ab in range(2): e(f'v_mfma_f32_16x16x32_bf16 {v(D_+8*tb+4*ab,4)}, {v(R_+4*tb,4)}, {v(SL+2-2*ab,4)}, 0')
            for comp,R_,D_ in ((0,Xr,112),(1,Yr,128)):
                for i in range(8): e(f'v_cvt_pk_bf16_f32 v{R_+8+i}, v{D_+2*i}, v{D_+2*i+1}')
                for tb in range(2):
                    o=R_+8+4*tb
                    e(f'v_permlane16_swap_b32 v{o}, v{o+2}\nv_permlane16_swap_b32 v{o+1}, v{o+3}')
                    e(f's_add_u32 s{T1}, s{T2}, {comp*32768+tb*HSTR}\nbuffer_store_dwordx4 {v(o,4)}, v15, {srd(sWS)}, s{T1} offen sc1')
            g.stamp('c_st')
            dd=min(len(D),dc+opt.get('dd',8))
            e(D[dc:dd])
            TV=144
            e(['v_and_b32 v2, 31, v1','v_lshrrev_b32 v3, 5, v1','v_bfe_u32 v0, v1, 1, 3','v_xor_b32 v0, v3, v0','v_lshlrev_b32 v0, 4, v0','v_lshl_add_u32 v0, v2, 7, v0',f'v_add_u32 v4, s{XR}, v0',f'v_add_u32 v8, s{WQ}, v0'])
            for k in range(1,4): e(f'v_xor_b32 v{4+k}, {32*k}, v4\nv_xor_b32 v{8+k}, {32*k}, v8')
            e(traddr(0,3)+[f'v_add_u32 v{TV+4}, s{WQ}, v0',f'v_add_u32 v{TV+5}, s{WQ}, v3',f'v_add_u32 v{TV}, s{V14}, v0',f'v_add_u32 v{TV+1}, s{V14}, v3'])
            e(f's_lshl_b32 s{T1}, s{TQ}, 2\ns_add_u32 s{T1}, s{T1}, {ZF}\nv_mov_b32 v14, s{T1}')
            e(f's_waitcnt vmcnt({dd-dc})'); e(setflag(True))
            g.stamp('flag')
            e(D[dd:]); e('s_setprio 0'); e(p2base(0))
            g.stamp('dend')
            JB=112; RB_=160
            MID=[f'''s_mov_b32 s{SPIN}, 0
L_z0:
s_sleep 1
ds_read_b32 v2, v14
s_add_u32 s{SPIN}, s{SPIN}, 1
s_waitcnt lgkmcnt(0)
v_cmp_ne_u32 vcc, 1, v2
s_cmp_gt_u32 s{SPIN}, 1000000
s_cselect_b64 vcc, 0, vcc
s_cmp_eq_u64 vcc, 0
s_cbranch_scc0 L_z0''',g.st('Z0')]
            MID+=[f'ds_read_b128 {v(JB+8*k+4*dh,4)}, v{4+k} offset:{2*8192+dh*4096}' for k in range(4) for dh in range(2)]
            RD2=[f'ds_read_b128 {v(RB_+32*bl+8*k+4*dh,4)}, v{4+k} offset:{bl*8192+dh*4096}' for bl in range(2) for k in range(4) for dh in range(2)]
            RD2+=[f'ds_read_b128 {v(RB_+64+8*k+4*dh,4)}, v{8+k} offset:{dh*WSS}' for k in range(4) for dh in range(2)]
            WA=[f's_lshl_b32 s{T1}, s{TQ}, 11\ns_add_u32 s{T1}, s{T1}, {q_*XW+16384}\nv_add_u32 v{4+q_}, s{T1}, v15' for q_ in range(4)]
            WA+=[f's_lshl_b32 s{T1}, s{TQ}, 10\ns_add_u32 s{T1}, s{T1}, {WB}\nv_add_u32 v8, s{T1}, v15']
            ZE=opt.get('ze',8)
            e(MID[:2]); MID=MID[2:]+RD2
            if ZE:
                e('s_waitcnt vmcnt(0)'); e(MID); MID=[]; e('s_waitcnt lgkmcnt(0)'); e(sld if opt.get('ap0',0) else ''); e('s_barrier'); g.stamp('Z1')
            if not opt.get('spo',3)&2: e(pld(3))
            e(f's_cmp_ge_u32 s{TQ}, 2\ns_cselect_b32 s{XL}, {BIG}, s{SOW}\ns_cselect_b32 s{T1}, 0, 2048\nv_add_u32 v{TV+2}, s{T1}, v{TV}\nv_add_u32 v{TV+3}, s{T1}, v{TV+1}')
            e(spoll('L_fp0',opt.get('slp0',4),not opt.get('ap0',0)) if opt.get('spo',3)&2 else pollchk('L_fp0',3,0,opt.get('slp0',6)))
            g.stamp('go')
            blkoff=lambda b_,k: (86+32*(b_&1)+4*(b_>>1)+k)*1024
            st_=[(SOX,blkoff(0,k),JB+8*k) for k in range(4)]+[(SOW,(18+k)*1024,JB+8*k) for k in range(3)]+[(XL,21*1024,JB+24)]
            st2=[(SOX,blkoff(1+bl,k),RB_+32*bl+8*k) for bl in range(3) for k in range(4)]
            loads=[];order=[];groups=[]
            for s_,(sr,im,Bq) in enumerate(st_):
                groups.append([(TILE(mh,dh),len(loads)+mh,Bq+4*dh,s_==0) for mh in range(2) for dh in range(2)])
                for mh in range(2): loads.append((sr,im+mh*HSTR)); order.append(s_)
            for mh in range(2):
                for p_ in range(6):
                    grp=[]
                    for s_ in (2*p_,2*p_+1):
                        sr,im,Bq=st2[s_]
                        grp+=[(TILE(mh,dh),len(loads),Bq+4*dh,False) for dh in range(2)]
                        loads.append((sr,im+mh*HSTR)); order.append(len(groups))
                    groups.append(grp)
            jit=[trstep(JB,TV+4,2*WSS),trstep(JB+8,TV+4,2*WSS+2048),trstep(JB+16,TV,0),trstep(JB+24,TV+2,0)]
            hooks={0:(['s_waitcnt lgkmcnt(0)'],[]),1:([],jit[0]),2:([],jit[1]),3:([],jit[2]),
                   4:(['s_waitcnt lgkmcnt(8)'],jit[3]),5:(['s_waitcnt lgkmcnt(8)'],[]),6:(['s_waitcnt lgkmcnt(4)'],[]),7:(['s_waitcnt lgkmcnt(0)'],WA)}
            z1=opt.get('z1',3); z2=opt.get('z2',10); z23=opt.get('z23',17); TM=opt.get('tm',6)
            for zz,nm in ((z1,'Z1'),(z2,'Z2'))[1 if ZE else 0:]:
                h_=hooks.get(zz,([],[])); hooks[zz]=(h_[0]+['s_barrier',g.st(nm)],h_[1])
            wr0=[]
            for dh in range(2):
                for q_ in range(4): wr0+=[f'ds_write_b128 v{4+q_}, {v(TILE(0,dh)+4*q_,4)} offset:{dh*1024}']+['']*opt.get('ws',1)
            hooks[14]=([],['']*6+wr0)
            assert 6+8*(1+opt.get('ws',1))-opt.get('ws',1)<=8*(z23-14)
            hooks[z23]=(['s_waitcnt lgkmcnt(0)','s_barrier',g.st('Z23')],[])
            run_groups(groups,loads,([16+4*k for k in range(8)]+[152,156])[:opt.get('nr0',10)],15,hooks,MID)
            g.stamp('ph2')
            wr1=lambda dh: [f'ds_write_b128 v8, {v(TILE(1,dh)+4*q_,4)} offset:{dh*WSS+q_*4096}' for q_ in range(4)]
            if TM:
                idx=[k for k,l_ in enumerate(g.L) if 'v_mfma_f32_32x32x16' in l_][-2*TM:]
                seg=g.L[idx[0]:]; del g.L[idx[0]:]
                assert not any('buffer_load' in l_ for l_ in seg)
                t1=v(TILE(1,1),16)
                late=[l_ for l_ in seg if 'v_mfma' in l_ and l_.split()[1].rstrip(',')==t1]
                e([l_ for l_ in seg if l_ not in late])
                e([late[0],'s_nop 4',late[1],'s_nop 3']); e(mix(late[2:],wr1(0),1)); e(wr1(1))
            else: e(wr1(0)+wr1(1))
            e('s_waitcnt lgkmcnt(0)\ns_barrier')
            g.stamp('p2end')
            e('s_branch L_fin')
            e(g.cold); g.cold=[]
    e('L_fin:')
    if opt.get('stamps'):
        e('s_waitcnt vmcnt(0)'); g.stamp('done')
        e(f'''s_waitcnt lgkmcnt(0)
s_cmp_eq_u32 s{TQ}, {opt.get('stq',0)}
s_cbranch_scc0 L_end
s_add_u32 s{sX}, s66, {STAMP}
s_addc_u32 s{sX+1}, s67, 0
s_lshl_b32 s{T0}, s2, 1
s_add_u32 s{T0}, s{T0}, s{NH}
s_lshl_b32 s{T0}, s{T0}, 7
v_mov_b32 v2, 0''')
        prs=[100]+G.POOL[:len(g.names())]
        if 'diag' in opt:
            p=prs[(['start']+g.names()).index(opt['diag'])]
            if 'dwg' in opt: e(f's_cmp_eq_u32 s2, {opt["dwg"]}\ns_cbranch_scc0 L_end')
            e(f's_cmp_eq_u32 s{NH}, {opt.get("dr",0)}\ns_cbranch_scc0 L_end\nL_dg:\ns_memrealtime s[72:73]\ns_waitcnt lgkmcnt(0)\ns_sub_u32 s72, s72, s{p}\ns_cmp_lt_u32 s72, 6000\ns_cbranch_scc1 L_dg')
            prs=[]
        for i,p in enumerate(prs): e(f'v_mov_b32 v4, s{p}\nv_mov_b32 v5, s{p+1}\nbuffer_store_dwordx2 v[4:5], v2, {srd(sX)}, s{T0} offen offset:{8*i}')
    e('L_end:\ns_endpgm'); e(g.cold); e('L_last:\ns_endpgm')
    if opt.get('stamps'): g.L.insert(0,'; STAMPS start,'+','.join(g.names()))
    if opt.get('plain'):
        pl=opt['plain']
        for i_,l_ in enumerate(g.L):
            if pl&1 and 'buffer_store_dwordx4' in l_ and 's[12:15]' in l_: g.L[i_]=l_.replace(' sc1','')
            if pl&2 and 'buffer_atomic_add' in l_ and 's[12:15]' in l_: g.L[i_]=l_.replace(' sc1','')
            if pl&4 and 'buffer_load_dwordx4 v[' in l_ and 's[12:15]' in l_: g.L[i_]=l_.replace(' sc1','')
    if opt.get('nopoll'):
        for i_,l_ in enumerate(g.L):
            if 'v_cmp_gt_u32 vcc, 12,' in l_: g.L[i_]=l_.replace('12,','0,')
    if opt.get('noe'):
        for i_,l_ in enumerate(g.L):
            if 'v_cmp_eq_u32 vcc, -1, v0' in l_: g.L[i_]='  v_cmp_gt_u32 vcc, 0, v0'
    if opt.get('ahit'):
        for i_,l_ in enumerate(g.L):
            if 'buffer_load_dwordx4 v[' in l_ and 's[12:15]' in l_ and 'offen sc1' in l_:
                g.L[i_-1]=g.L[i_-1]+f'\n  s_and_b32 s{T0}, s{T0}, 0xffff'
                g.L[i_]=l_.replace('s[12:15]','s[28:31]')
    ab=opt.get('ab',0)
    if ab&16:
        seen=0
        for i_,l_ in enumerate(g.L):
            if 'buffer_load_dwordx2' in l_ and 's[32:35]' in l_:
                g.L[i_]=l_.replace('buffer_load_dwordx2','buffer_load_dword').replace('s89','s1')
                import re
                g.L[i_]=re.sub(r'v\[(\d+):\d+\]',r'v\1',g.L[i_],1)
    if ab&32:
        for i_,l_ in enumerate(g.L):
            if 's_cmp_lt_u32 s55, 12' in l_: g.L[i_]='  s_cmp_lt_u32 s55, 0'
    for i_,l_ in enumerate(g.L):
        if ab&1 and 'ds_write_b128 v0,' in l_: g.L[i_]='  s_nop 0'
        if ab&2 and 's_waitcnt vmcnt(0) lgkmcnt(0)' in l_ and 'setprio 2' in ''.join(g.L[i_:i_+6]): g.L[i_]='  s_waitcnt vmcnt(6) lgkmcnt(0)'
        if ab&4 and 'buffer_atomic_add' in l_ and 's[16:19]' in l_: g.L[i_]=f'  s_mov_b32 s{T1}, {BIG}\n'+l_
        if ab&12 and 'v_cmp_gt_u32 vcc, 4, v2' in l_ and 's_cmp_eq_u64' in g.L[i_+1]: g.L[i_]='  v_cmp_gt_u32 vcc, 0, v2'
        if ab&8 and 'buffer_load_dword v2, v3, s[16:19]' in l_: g.L[i_]='  s_nop 0'
    body=hz.fix('\n'.join(g.L), verbose=opt.get('v',0))
    ref=open('parallel_sum__ssm_conv_s5__geglu_ffn__prompt.s.ref').read() if opt.get('final') else ''
    cm_=''.join(l+'\n' for l in ref.split('\n') if l.startswith(';') and '@launch' not in l and 'Override' not in l and 'grid=ceil' not in l)
    return cm_+header([(NAME,256,512,163840)])+kstart(NAME)+body+'\n'+RODATA+kd(NAME,256,256)

if __name__=='__main__':
    out=sys.argv[1]; opt={}
    for a in sys.argv[2:]:
        k,_,val=a.partition('='); opt[k]=int(val) if val.lstrip('-').isdigit() else (val or 1)
    open(out,'w').write(build(opt))
```

```python
import sys, struct, math
from asmlib import *
import hz
from gen_v3 import F, LOG2E, BIG, G, cmul, cfma, mix, mksrd, fsplit, v, srd
XW=24576; WB=98304; WSS=16640; GOFF=4096; UOFF=4096+6144+128
SCR=WB+3*WSS; SP=SCR+12288; RM=SP+1024; ZF=RM+2048
HSTR=150*1024; ST_M=0xA00000; ST_R=0xA08000; ARR=0xA10000; FLG=0xA20000; EOFF=0xA60000; WSSZ=0xA80000
STAMP=0x8000000
sX,sW,sWS,sDBG,sCR,sCI,sDN,sE,sOUT=4,8,12,16,20,24,28,32,68
FS=3; WI=72; CB=73; FCNT=74; FB=75
W_,TQ,NH,RB,CT,ROT,WSTEP,XL,WL=76,77,78,79,80,81,82,83,84
RB2,TQ2,DQ,SOX,SOW,T0,T1,T2,F0,HB,XR,WQ=85,86,87,88,89,90,91,92,93,94,95,96
SPIN=97; HA=98; V14=99
TH=0; W0=1
G.POOL=[36,42,44,56,58,38,40,46,48,50,64,62]
DX=16; DW=20; DC=12; DF=14; PTX=24; PTW=27
XA=22; SA=24; TA=26; S1=27; S2=28
GC=32; SFS=[4,8,32,36]; SACC=40; SELS=224
ACC0=48; PR=80; PI=96
B1,B2,B3=112,160,208
FR=160; MR=224; RS=240
L64,WG,WH,L32,WSEL,KAP,CP,EA,NI=144,146,148,150,152,154,156,158,159
G.DEF='B0,B8,b_pub,gdone,Eok,flag,go,ph1,Z1,Z23,p2end,done'

def build(opt):
    g=G(opt); e=g.e
    PF=opt.get('pf',1); NR1=opt.get('r1d',0)
    if opt.get('gk')==2: opt['gk']=(0,2)
    cpf='v_lshlrev_b32 v2, 7, v0' if opt.get('cpf',1)==0 else 's_and_b32 s3, s2, 0xf8\nv_add_lshl_u32 v2, v3, s3, 7'
    WD=F0; XH=HA
    e(f'''s_cmp_ge_u32 s2, 256
s_cbranch_scc1 L_end
s_load_dwordx16 s[36:51], s[0:1], 0
s_load_dwordx16 s[52:67], s[0:1], 64
s_getpc_b64 s[72:73]
L_pc0:
v_lshrrev_b32 v3, 6, v0
{cpf}
v_min_u32 v2, L_last-L_pc0, v2
v_and_b32 v1, 63, v0
v_readfirstlane_b32 s{W_}, v3
global_load_dword v9, v2, s[72:73]
s_and_b32 s{RB2}, s2, 7
s_lshr_b32 s{WI}, s2, 3
s_and_b32 s{TQ2}, s{WI}, 3
s_lshr_b32 s{DQ}, s{WI}, 2''')
    if opt.get('stamps'): e(('s_memtime' if opt['stamps']==2 else 's_memrealtime')+' s[100:101]')
    e(f'''s_and_b32 s{T0}, s2, 1
s_lshl_b32 s{RB}, s{T0}, 2
s_add_u32 s{RB}, s{RB}, s{TQ2}
s_lshr_b32 s{T1}, s{RB2}, 1
s_lshl_b32 s{CT}, s{T1}, 3
s_add_u32 s{CT}, s{CT}, s{DQ}''')
    if opt.setdefault('xm',1): e(f's_xor_b32 s{RB2}, s{T0}, 1\ns_lshl_b32 s{RB2}, s{RB2}, 2\ns_add_u32 s{RB2}, s{RB2}, s{T1}')
    if opt.setdefault('jx',4): e(f's_xor_b32 s{CT}, s{CT}, {opt["jx"]}')
    if opt.get('dx'): e(f's_xor_b32 s{DQ}, s{DQ}, {opt["dx"]}')
    if opt.get('map')=='A':
        e(f's_mov_b32 s{RB}, s{RB2}\ns_lshl_b32 s{CT}, s{TQ2}, 3\ns_add_u32 s{CT}, s{CT}, s{DQ}\ns_xor_b32 s{CT}, s{CT}, {opt.get("jx",0)}')
    oa,ob=opt.get('ord','x01245673.45670123')[1:].split('.')
    e(f's_mov_b32 s{ROT}, 0x{oa[::-1]}\ns_cmp_eq_u32 s{T0}, 1\ns_cselect_b32 s{ROT}, 0x{ob[::-1]}, s{ROT}')
    if opt.get('rg'): e(f's_mov_b32 s{sW}, s{ROT}\ns_mov_b32 s{sW+1}, s{ROT}\ns_lshl_b32 s{T1}, s{T1}, 3\ns_lshr_b64 s[{sW}:{sW+1}], s[{sW}:{sW+1}], s{T1}\ns_mov_b32 s{ROT}, s{sW}')
    e(f'''s_and_b32 s{TQ}, s{W_}, 3
s_lshr_b32 s{NH}, s{W_}, 2
s_and_b32 s{T0}, s{CT}, {opt.get('sx',1)}
s_xor_b32 s{XH}, s{NH}, s{T0}
v_lshrrev_b32 v4, 3, v1          ; q
v_and_b32 v5, 7, v1              ; pos
v_lshrrev_b32 v6, 2, v4
v_lshlrev_b32 v6, 4, v6
v_and_or_b32 v6, v4, 3, v6
s_lshl_b32 s{T0}, s{RB}, 2
s_add_u32 s{HB}, s{T0}, s{TQ}        ; rb*4+tq
s_lshl_b32 s{T0}, s{HB}, 6
s_lshl_b32 s{T1}, s{XH}, 3
s_add_u32 s{T1}, s{T1}, s{T0}
v_add_u32 v6, s{T1}, v6
v_lshlrev_b32 v6, 10, v6
v_lshrrev_b32 v7, 1, v4
v_xor_b32 v7, v5, v7
v_xor_b32 v8, 4, v7
v_lshl_add_u32 v{DX}, v7, 4, v6
v_lshl_add_u32 v{DX+1}, v8, 4, v6
v_add_u32 v{DX+1}, {32768-1024}, v{DX+1}
v_add_u32 v{DX+2}, 2048, v{DX}
v_add_u32 v{DX+3}, 2048, v{DX+1}
s_mul_i32 s{XR}, s{TQ}, {XW}
s_lshl_b32 s{T1}, s{XH}, 12
s_add_u32 s{XL}, s{XR}, s{T1}
s_mov_b32 s{sX+2}, 2097152
s_mov_b32 s{sX+3}, 0x20000''')
    XF=opt.get('xf',1)
    X0=[f's_and_b32 s{T0}, s{ROT}, 7\ns_lshl_b32 s{T0}, s{T0}, 7\ns_mov_b32 m0, s{XL}\ns_waitcnt lgkmcnt(0)\ns_mov_b32 s{sX}, s36\ns_mov_b32 s{sX+1}, s37',g.st('e0')]
    X0+=[f'buffer_load_dwordx4 v{DX+j}, {srd(sX)}, s{T0} offen'+(f' offset:{1024*j}' if j else '')+' lds' for j in range(4)]
    NL=opt.get('nl',16)
    UP=opt.get('up',0)
    if UP:
        X0=X0[:2]+[f's_lshl_b32 s{T1}, s{XH}, 2\ns_add_u32 s{T1}, s{T1}, s{TQ}\ns_cmp_eq_u32 s{T1}, s{DQ}\ns_cbranch_scc0 L_nox']+X0[2:]
        for i_ in range(1,UP):
            X0+=[f's_bfe_u32 s{T0}, s{ROT}, {0x30000+4*i_}\ns_add_u32 m0, s{XL}, {i_*8192}\ns_lshl_b32 s{T0}, s{T0}, 7']+X0[3:7]
        X0+=['L_nox:']
    if XF: e(X0)
    e(fsplit(CT,FS,FCNT,T0))
    e(f'''s_and_b32 s{T0}, s{RB}, {opt.get('sw',1)}
s_lshl_b32 s{T0}, s{T0}, 2
s_xor_b32 s{WD}, s{W_}, s{T0}
s_cmp_ge_u32 s{WD}, 5
s_cselect_b32 s{T1}, 5, 2
s_cselect_b32 s{T2}, {WB+128}, {0}
s_cselect_b32 s{WL}, 0, {WB}
s_add_u32 s{WL}, s{WL}, s{T2}
s_lshl_b32 s{T2}, s{WD}, 11
s_add_u32 s{WL}, s{WL}, s{T2}
s_sub_u32 s{T1}, s{WD}, s{T1}
s_lshl_b32 s{T1}, s{T1}, 7
s_lshl_b32 s{T2}, s{FS}, 5
s_lshl_b32 s{SOX}, s{FCNT}, 1
v_mov_b32 v0, 0x80000000''')
    for j in range(2):
        e(f'''v_add_u32 v6, s{T1}, v1
v_add_u32 v6, {64*j}, v6
v_mul_u32_u24 v10, 10923, v6
v_lshrrev_b32 v10, 16, v10
v_mul_u32_u24 v11, 6, v10
v_sub_u32 v11, v6, v11           ; c
v_lshrrev_b32 v6, 1, v10
v_xor_b32 v6, v6, v10
v_and_b32 v6, 4, v6
v_mul_u32_u24 v6, 3, v6
v_xor_b32 v10, v10, v6
v_mul_u32_u24 v10, 2752, v10
v_lshl_add_u32 v10, v11, 4, v10
v_add_u32 v10, s{T2}, v10
v_cmp_gt_u32 vcc, s{SOX}, v11
v_subrev_u32 v10, {1024*j}, v10
v_cndmask_b32 v{DW+j}, v0, v10, vcc''')
    e(f'''s_mov_b32 s{WSTEP}, 176128
s_mov_b32 s{sW+2}, 1409024
s_mov_b32 s{sW+3}, 0x20000
s_lshl_b32 s{T1}, s{CT}, 4
v_add_u32 v6, s{T1}, v4
v_lshlrev_b32 v6, 10, v6
v_lshl_add_u32 v10, v7, 4, v6
v_lshl_add_u32 v11, v8, 4, v6
v_add_u32 v11, 7168, v11
s_cmp_lt_u32 s{WD}, 2
s_cselect_b64 vcc, -1, 0
s_cselect_b32 s{WSTEP}, 128, s{WSTEP}
s_cselect_b32 s{sW+2}, 524288, s{sW+2}
v_cndmask_b32 v{DW}, v{DW}, v10, vcc
v_cndmask_b32 v{DW+1}, v{DW+1}, v11, vcc
''')
    if not XF: e(X0)
    e(f'''s_cmp_eq_u32 s{WD}, 0
s_cselect_b32 s{sW}, s42, s44
s_cselect_b32 s{sW+1}, s43, s45
s_cmp_ge_u32 s{WD}, 2
s_cselect_b32 s{sW}, s56, s{sW}
s_cselect_b32 s{sW+1}, s57, s{sW+1}
s_cmp_ge_u32 s{WD}, 5
s_cselect_b32 s{sW}, s58, s{sW}
s_cselect_b32 s{sW+1}, s59, s{sW+1}
''')
    if UP: e(f's_and_b32 s{T1}, s{WD}, 3\ns_cmp_eq_u32 s{T1}, s{TQ2}\ns_cbranch_scc0 L_now')
    for i_ in range(max(1,UP)):
        e(f's_bfe_u32 s{T0}, s{ROT}, {0x30000+4*i_}\ns_add_u32 m0, s{WL}, {i_*WSS}\ns_mul_i32 s{SOW}, s{T0}, s{WSTEP}\nbuffer_load_dwordx4 v{DW}, {srd(sW)}, s{SOW} offen lds\nbuffer_load_dwordx4 v{DW+1}, {srd(sW)}, s{SOW} offen offset:1024 lds')
    if UP: e('L_now:')
    def slab(i):
        st=i%3
        L=[f's_bfe_u32 s{T0}, s{ROT}, {0x30000+4*i}\ns_lshl_b32 s{SOX}, s{T0}, 7\ns_add_u32 m0, s{WL}, {st*WSS}\ns_mul_i32 s{SOW}, s{T0}, s{WSTEP}\nbuffer_load_dwordx4 v{DW}, {srd(sW)}, s{SOW} offen lds']
        L.append(f'buffer_load_dwordx4 v{DW+1}, {srd(sW)}, s{SOW} offen offset:1024 lds\ns_add_u32 m0, s{XL}, {st*8192}')
        for j in range(4): L.append(f'buffer_load_dwordx4 v{DX+j}, {srd(sX)}, s{SOX} offen'+(f' offset:{1024*j}' if j else '')+' lds')
        return L
    N1=opt.get('n1',3)
    g.stamp('e1')
    e(f'''s_cmp_eq_u32 s{NH}, 1
s_cbranch_scc1 L_role1''')

    def spf(nh):
        if nh==0:
            t=f's_cmp_lt_u32 s{TQ}, 2\ns_cselect_b64 s[0:1], s[46:47], s[48:49]\ns_lshl_b32 s{T0}, s2, 1\ns_and_b32 s{T1}, s{TQ}, 1\ns_add_u32 s{T0}, s{T0}, s{T1}\ns_lshl_b32 s{T0}, s{T0}, 10'; n=8
        else:
            t=f's_mov_b64 s[0:1], s[60:61]\ns_mul_i32 s{T0}, s2, 43\ns_mul_i32 s{T1}, s{TQ}, 11\ns_min_u32 s{T1}, s{T1}, 32\ns_add_u32 s{T0}, s{T0}, s{T1}\ns_lshl_b32 s{T0}, s{T0}, 7'; n=11
        t+=f'\ns_add_u32 s0, s0, s{T0}\ns_addc_u32 s1, s1, 0'
        for k in range(n): t+=f'\ns_load_dword s54, s[0:1], {128*k}'
        return t
    def setup(nh):
        if PF==10: e(spf(nh))
        e(mksrd(sWS,66,67,WSSZ)); nd=0 if opt.get('nodma') else 1; e(mksrd(sCR,46,47,524288*nd)); e(mksrd(sCI,48,49,524288*nd)); e(mksrd(sDN,60,61,1409024*nd)); e(mksrd(sOUT,62,63,4194304))
        if nh==0:
            e(mksrd(sDBG,64,65,256))
            if NL: e(f's_cmp_eq_u32 s{W_}, 0\ns_cselect_b32 s{TH}, 1, 0\ns_cselect_b32 s{W0}, 0, {BIG}')
            e(f's_lshl_b32 s{T0}, s{CT}, 12\ns_add_u32 s{T0}, s{T0}, {EOFF}\ns_add_u32 s{sE}, s66, s{T0}\ns_addc_u32 s{sE+1}, s67, 0\ns_mov_b32 s{sE+2}, 4096\ns_mov_b32 s{sE+3}, 0x20000')
        else:
            e(f's_lshl_b32 s{T0}, s{DQ}, 6\nv_add_u32 v6, s{T0}, v4\nv_lshlrev_b32 v6, 10, v6\nv_lshl_add_u32 v{DC}, v7, 4, v6\nv_lshl_add_u32 v{DC+1}, v8, 4, v6')
        e(f'''v_lshlrev_b32 v6, 1, v4
v_and_b32 v6, 4, v6
v_xor_b32 v6, v5, v6
v_lshlrev_b32 v6, 4, v6
v_lshl_add_u32 v6, v4, 10, v6
s_lshl_b32 s{T0}, s{DQ}, 7
v_add_u32 v{DF}, s{T0}, v6
s_mul_i32 s{F0}, s{TQ}, 22
s_cmp_eq_u32 s{TQ}, 3
s_cselect_b32 s{T0}, 1, 0
s_sub_u32 s{F0}, s{F0}, s{T0}
s_lshl_b32 s{FB}, s{F0}, 14
s_lshl_b32 s{CB}, s{TQ}, 8
s_lshl_b32 s{WQ}, s{TQ}, 12
s_lshl_b32 s{T0}, s{T0}, 11
s_sub_u32 s{V14}, s{WQ}, s{T0}
s_add_u32 s{V14}, s{V14}, {SCR}
s_add_u32 s{WQ}, s{WQ}, {WB}
s_lshl_b32 s{HA}, s{HB}, 2
s_lshr_b32 s{T0}, s{CT}, 3
s_add_u32 s{HA}, s{HA}, s{T0}
s_lshl_b32 s{HA}, s{HA}, 8
s_add_u32 s{HA}, s{HA}, {FLG}
v_and_b32 v2, 15, v1
v_lshrrev_b32 v3, 4, v1
v_bfe_u32 v6, v1, 1, 3
v_xor_b32 v6, v3, v6
v_lshlrev_b32 v6, 4, v6
v_lshl_add_u32 v6, v2, 7, v6
v_add_u32 v{XA}, s{XR}, v6
v_xor_b32 v{XA+1}, 64, v{XA}
v_bfe_u32 v10, v1, 2, 3
v_lshrrev_b32 v11, 5, v1
v_lshl_add_u32 v10, v11, 4, v10
v_mul_u32_u24 v10, 96, v10
v_and_b32 v11, 3, v1
v_lshl_add_u32 v10, v11, 3, v10
v_add_u32 v{TA}, {WB+GOFF}, v10
s_lshr_b32 s{T0}, s{TQ}, 1
s_and_b32 s{T1}, s{TQ}, 1
s_mul_i32 s{T2}, s{T0}, 3072
s_mul_i32 s{SPIN}, s{T1}, {UOFF-GOFF}
s_add_u32 s{T2}, s{T2}, s{SPIN}''')
        if nh==0:
            e(f'''v_add_u32 v{S2}, s{T2}, v{TA}
v_add_u32 v{SA}, {WB}, v6
v_xor_b32 v{SA+1}, 64, v{SA}
s_lshl_b32 s{T0}, s{T0}, 6
s_lshl_b32 s{T1}, s{T1}, 11
v_xor_b32 v{S1}, s{T0}, v{SA}
v_add_u32 v{S1}, s{T1}, v{S1}''')
        if nh==0:
            e('v_mov_b32 v3, 0x3f803f80')
            for f_ in range(4):
                e(f'v_cmp_eq_u32 vcc, {f_}, v2')
                for k in range(4): e(f'v_cndmask_b32 v{SELS+4*f_+k}, 0, v3, vcc')
        else:
            e(traddr(0,3)+[f'v_add_u32 v{PTX}, s{XR}, v0',f'v_add_u32 v{PTX+1}, s{XR}, v3',f'v_add_u32 v{PTW}, s{WQ}, v0',f'v_add_u32 v{PTW+1}, s{WQ}, v3'])
        e(f'v_and_b32 v29, 15, v1\nv_lshl_add_u32 v29, v29, 4, s{V14}\nv_and_b32 v30, 48, v1\ns_lshl_b32 s{T0}, s{TQ}, 9\ns_add_u32 s{T0}, s{T0}, {RM}\nv_lshl_add_u32 v31, v30, 2, s{T0}\nv_add_u32 v30, {SP}, v30')
        e('v_lshlrev_b32 v15, 4, v1')
        if PF==11: e(spf(nh))
        if nh==0 and opt.get('c3'):
            e(f's_lshr_b32 s{T0}, s2, 3\ns_lshl_b32 s{T0}, s{T0}, 2\ns_add_u32 s{T0}, s{T0}, s{TQ}\ns_mul_i32 s{T0}, s{T0}, 11\ns_min_u32 s{T0}, s{T0}, 1365\ns_lshl_b32 s{T0}, s{T0}, 10\ns_add_u32 s0, s60, s{T0}\ns_addc_u32 s1, s61, 0')
        elif nh==0 and opt.get('sp'):
            e(f's_lshr_b32 s{T0}, s2, 3\ns_lshl_b32 s{T0}, s{T0}, 2\ns_add_u32 s{T0}, s{T0}, s{TQ}\ns_lshl_b32 s{T0}, s{T0}, 12\ns_add_u32 s0, s46, s{T0}\ns_addc_u32 s1, s47, 0\ns_add_u32 s60, s48, s{T0}\ns_addc_u32 s61, s49, 0')
        if opt.get('stamps'):
            for r,nm in zip(G.POOL,g.names()):
                if nm not in ('e0','e1'): e(f's_mov_b64 s[{r}:{r+1}], 0')
    def vgroup(m0, vregs, sr, sb, imm, n):
        L=[]
        for j in range(n):
            t=f's_add_u32 m0, {m0}\n' if j==0 else ''
            t+=f's_add_u32 s{T0}, s{sb}, {imm+j*(8192-1024)}\nbuffer_load_dwordx4 v{vregs[j%len(vregs)]}, {srd(sr)}, s{T0} offen'+(f' offset:{1024*j}' if j else '')+' lds'
            L.append(t)
        return L
    def vx(vs,half):
        st=vs%3; m0=f's{XR}, {st*8192+half*4096}'
        if vs>=11:
            b=vs-11; return vgroup(m0,[DC,DC+1],sCI if b&1 else sCR,CB,(b>>1)*128+half*32768,4)
        return vgroup(m0,[DF],sDN,FB,6*(vs-8)*16384+half*32768,4)
    def vw(vs,half=None):
        st=vs%3
        if vs>=12: return vgroup(f's{WQ}, {st*WSS}',[DC,DC+1],sCI,CB,128+(vs-12)*32768,4)
        fs,fb=(6*(vs-8)+4 if vs<11 else 18),FB
        if half is None: return vgroup(f's{WQ}, {st*WSS}',[DF],sDN,fb,fs*16384,4)
        return vgroup(f's{WQ}, {st*WSS+half*2048}',[DF],sDN,fb,(fs+half)*16384,2)
    def vhalf(vs,nh): return vw(vs,nh)+vx(vs,nh)
    def vfull(vs): return vx(vs,0)+vx(vs,1)+vw(vs)
    def traddr(t0,t1):
        return [f'v_bfe_u32 v{t0}, v1, 2, 2',f'v_lshrrev_b32 v{t1}, 5, v1',f'v_lshl_add_u32 v{t0}, v{t1}, 3, v{t0}',f'v_lshlrev_b32 v{t0}, 7, v{t0}',f'v_and_b32 v{t1}, 3, v1',f'v_lshl_add_u32 v{t0}, v{t1}, 3, v{t0}',
            f'v_bfe_u32 v{t1}, v1, 4, 1',f'v_lshl_add_u32 v{t0}, v{t1}, 5, v{t0}',f'v_bfe_u32 v{t1}, v1, 3, 1',f'v_lshl_add_u32 v{t0}, v{t1}, 6, v{t0}',f'v_xor_b32 v{t1}, 64, v{t0}']
    def trstep(base,areg,off):
        return [f'ds_read_b64_tr_b16 {v(base+dh*4+2*j,2)}, v{areg+dh} offset:{off+j*512}' for dh in range(2) for j in range(2)]
    def vread(vs, base):
        st=vs%3; L=[]
        for k in range(4): L+=trstep(base+8*k,PTX,st*8192+k*2048)
        for k in range(2): L+=trstep(base+32+8*k,PTW,st*WSS+k*2048)
        return L
    def gelu(acc, tb, tmp, soff, sg):
        L=[]; t=tmp
        G_=lambda i: v(acc+8*tb+2*i,2); U_=lambda i: v(acc+16+8*tb+2*i,2); T_=lambda i: v(t+2*i,2)
        cp=lambda i: v(GC+4*(2*tb+(i>>1)),2); rp=lambda i: v(GC+4*(2*tb+(i>>1))+2,2); o=acc+16+8*tb
        for i in range(4): L.append(f'v_pk_fma_f32 {G_(i)}, {v(sg+2*(i&1),2)}, {rp(i)}, {G_(i)} op_sel:[0,1,0] op_sel_hi:[1,1,1]')
        for i in range(4): L.append(f'v_pk_mul_f32 {T_(i)}, {G_(i)}, {G_(i)}')
        for i in range(4): L.append(f'v_pk_fma_f32 {T_(i)}, {T_(i)}, {cp(i)}, {cp(i)} op_sel:[0,1,0] op_sel_hi:[1,1,0]')
        for i in range(4): L.append(f'v_pk_mul_f32 {T_(i)}, {T_(i)}, {G_(i)}')
        for i in range(8): L.append(f'v_exp_f32 {v(t+i)}, {v(t+i)}')
        for i in range(4): L.append(f'v_pk_fma_f32 {U_(i)}, {v(sg+4+2*(i&1),2)}, {rp(i)}, {U_(i)} op_sel:[0,1,0] op_sel_hi:[1,1,1]')
        for i in range(4): L.append(f'v_pk_fma_f32 {T_(i)}, {T_(i)}, {rp(i)}, {rp(i)} op_sel_hi:[1,0,0]')
        for i in range(8): L.append(f'v_rcp_f32 {v(t+i)}, {v(t+i)}')
        for i in range(4): L.append(f'v_pk_mul_f32 {G_(i)}, {G_(i)}, {U_(i)}')
        for i in range(4): L.append(f'v_pk_mul_f32 {G_(i)}, {G_(i)}, {T_(i)}')
        for i in (0,2,1,3): L.append(f'v_cvt_pk_bf16_f32 {v(o+i)}, {v(acc+8*tb+2*i)}, {v(acc+8*tb+2*i+1)}')
        L.append(f's_add_u32 s{T1}, s{soff}, {tb*HSTR}\nv_permlane16_swap_b32 v{o}, v{o+2}\nv_permlane16_swap_b32 v{o+1}, v{o+3}\nbuffer_store_dwordx4 {v(o,4)}, v15, {srd(sWS)}, s{T1} offen sc1')
        return L
    def sread(sb, d, t):
        return [f'ds_read_b128 {v((d,t)[q_>>1]+4*(q_&1),4)}, v30 offset:{256*q_+64*(1+sb)}' for q_ in range(4)]
    def sadd(d,t): return [f'v_pk_add_f32 {v(d+2*k,2)}, {v(d+2*k,2)}, {v(t+2*k,2)}' for k in range(4)]
    def setflag(ssm):
        t=f's_add_u32 s{T1}, s{HA}, 128\n'
        if not ssm: t+=f's_and_b32 s{T0}, s{CT}, 7\ns_cmp_lt_u32 s{T0}, 6\ns_cselect_b32 s{T1}, s{HA}, s{T1}\n'
        return t+f'v_mov_b32 v2, 1\nv_mov_b32 v3, 0\ns_mov_b64 exec, 1\nbuffer_atomic_add v2, v3, {srd(sWS)}, s{T1} offen sc1\ns_mov_b64 exec, -1'
    def p2base(nh):
        return f'''s_lshl_b32 s{T0}, s{RB2}, 2
s_add_u32 s{T0}, s{T0}, s{TQ2}
s_mul_i32 s{SOX}, s{T0}, {2*HSTR}
s_lshl_b32 s{HB}, s{T0}, 2
s_add_u32 s{HB}, s{HB}, s{TQ}
s_lshl_b32 s{HB}, s{HB}, 8
s_add_u32 s{HB}, s{HB}, {FLG+128*(1-nh)}
s_lshl_b32 s{T0}, s{F0}, 10
s_add_u32 s{SOW}, s{SOX}, s{T0}
s_lshl_b32 s{T0}, s{TQ}, 13
s_add_u32 s{SOX}, s{SOX}, s{T0}
v_mov_b32 v0, 0'''
    pld=lambda r: f'buffer_load_dword v{r}, v0, {srd(sWS)}, s{HB} offen sc1'
    def pollchk(lbl, r, n, sl):
        g.cold.append(f'''{lbl}:
s_mov_b32 s{SPIN}, 0
{lbl}_1:
s_sleep {sl}
{pld(r)}
s_add_u32 s{SPIN}, s{SPIN}, 1
s_waitcnt vmcnt(0)
v_cmp_gt_u32 vcc, 12, v{r}
s_cmp_gt_u32 s{SPIN}, 100000
s_cselect_b64 vcc, 0, vcc
s_cmp_eq_u64 vcc, 0
s_cbranch_scc0 {lbl}_1
s_branch {lbl}_ok''')
        return f's_waitcnt vmcnt({n})\nv_cmp_gt_u32 vcc, 12, v{r}\ns_cmp_eq_u64 vcc, 0\ns_cbranch_scc0 {lbl}\n{lbl}_ok:'

    sld=f's_load_dword s55, s[66:67], s{HB} glc'
    def spoll(lbl, sl, first=True):
        g.cold.append(f'''{lbl}:
s_mov_b32 s{SPIN}, 0
{lbl}_1:
{sld}
s_add_u32 s{SPIN}, s{SPIN}, 1
s_waitcnt lgkmcnt(0)
s_cmp_gt_u32 s{SPIN}, 100000
s_cselect_b32 s55, 12, s55
s_cmp_lt_u32 s55, 12
s_cbranch_scc0 {lbl}_ok
s_sleep {sl}
s_branch {lbl}_1''')
        return (sld+'\n' if first else '')+f's_waitcnt lgkmcnt(0)\ns_cmp_lt_u32 s55, 12\ns_cbranch_scc1 {lbl}\n{lbl}_ok:'
    X=lambda b,t4: FR+32*b+4*t4
    Wf=lambda b,k: FR+32*b+16+4*k
    for nh in range(2):
        ACC1=112 if nh==0 else 80
        if nh==0:
            e(f'''s_lshl_b32 s{T0}, s{RB}, 5
s_add_u32 s{T0}, s{T0}, s{CT}
s_lshl_b32 s{T0}, s{T0}, 2
s_add_u32 s{WI}, s{T0}, s{TQ}
s_lshl_b32 s{T2}, s{WI}, 11
v_and_b32 v2, 31, v1
v_lshlrev_b32 v2, 4, v2
v_and_b32 v3, 32, v1
v_lshl_add_u32 v2, v3, 5, v2
v_and_b32 v3, 15, v1
s_lshl_b32 s{T1}, s{CT}, 5
v_lshl_add_u32 v3, v3, 1, s{T1}
''')
            ROWS=f'buffer_load_dwordx4 v[80:83], v2, {srd(sX)}, s{T2} offen\nbuffer_load_dwordx4 v[84:87], v2, {srd(sX)}, s{T2} offen offset:512'
            RP=1
            e(ROWS.replace('v2,','v108,').replace(f's{T2} ',f's{SPIN} ') if False else '')
            e(f's_lshl_b32 s{T0}, s{TQ}, 2\ns_add_u32 s{T0}, s{T0}, {ZF}\nv_mov_b32 v10, s{T0}\nv_mov_b32 v11, 0\nds_write_b32 v10, v11')
            RL=opt.get('rl',0)
            if not RL: e(ROWS)
            else: e('v_mov_b32 v110, v2')
            e('global_load_ushort v244, v3, s[38:39]\nglobal_load_ushort v245, v3, s[40:41]\nglobal_load_ushort v246, v3, s[50:51]')
            setup(0)
            if RL: e(f's_lshl_b32 s{sOUT}, s{WI}, 11')
            def allred(r,t):
                for k in (8,4,2,1): e(f'v_add_f32_dpp {v(r)}, {v(r)}, {v(r)} row_ror:{k} row_mask:0xf bank_mask:0xf')
                e(f'v_mov_b32 {v(t)}, {v(r)}\nv_permlane16_swap_b32 {v(t)}, {v(r)}\nv_add_f32 {v(r)}, {v(r)}, {v(t)}')
            SD=1; SB=opt.get('sb',1)
            if SD:
                g.stamp('s0')
                if UP: e(slab(0))
                if RL: e(ROWS.replace('v2,','v110,').replace(f's{T2} ',f's{sOUT} '))
                D2=slab(1)+slab(2)
                if SB: e(D2[:N1]); D2=D2[N1:]; g.stamp('s1')
                mark=len(g.L)
            e(f's_waitcnt vmcnt({(9 if UP else 3) if SB==0 else 12+(6 if SB==2 else 0)+(1 if (SB==2 and PF==1) else 0)})')
            g.stamp('rowld')
            for i in range(8): e(f'v_lshlrev_b32 v{88+2*i}, 16, v{80+i}\nv_and_b32 v{89+2*i}, 0xffff0000, v{80+i}')
            e('v_pk_add_f32 v[104:105], v[88:89], v[90:91]')
            for i in range(2,8): e(f'v_pk_add_f32 v[104:105], v[104:105], v[{88+2*i}:{89+2*i}]')
            e('v_add_f32 v104, v104, v105')
            allred(104,105)
            e(f'v_mul_f32 v104, {F(1/512)}, v104')
            for i in range(8): e(f'v_pk_add_f32 v[{88+2*i}:{89+2*i}], v[{88+2*i}:{89+2*i}], v[104:105] op_sel_hi:[1,0] neg_lo:[0,1] neg_hi:[0,1]')
            e('v_pk_mul_f32 v[106:107], v[88:89], v[88:89]')
            for i in range(1,8): e(f'v_pk_fma_f32 v[106:107], v[{88+2*i}:{89+2*i}], v[{88+2*i}:{89+2*i}], v[106:107]')
            e('v_add_f32 v106, v106, v107')
            allred(106,107)
            e(f'''v_mul_f32 v106, {F(1/512)}, v106
v_cvt_pk_bf16_f32 v104, v104, v106
v_and_b32 v106, 0xffff0000, v104
v_lshlrev_b32 v104, 16, v104
v_add_f32 v106, {F(1e-5)}, v106
v_cvt_pk_bf16_f32 v106, v106, v106
v_lshlrev_b32 v106, 16, v106
v_sqrt_f32 v106, v106
v_cvt_pk_bf16_f32 v106, v106, v106
v_lshlrev_b32 v106, 16, v106          ; sd
v_mul_f32 v90, v106, v106            ; R = sd^2
v_rcp_f32 v106, v106                  ; r
v_sub_f32 v91, 0, v104               ; -m
v_and_b32 v2, 31, v1
v_mul_f32 v88, {F(-2*math.sqrt(2/math.pi)*LOG2E)}, v106
v_mul_f32 v89, v106, v106
v_mul_f32 v93, v91, v106
v_mul_f32 v89, {F(0.044715)}, v89
v_lshrrev_b32 v3, 5, v1
v_mul_f32 v89, v89, v88
s_lshl_b32 s{T1}, s{CT}, 5
s_sub_u32 s{T1}, s{T1}, s{HB}
s_add_u32 s{T1}, s{T1}, 31
s_lshl_b32 s{T1}, s{T1}, 7
s_add_u32 s{T1}, s{T1}, {EOFF-64}
v_lshl_add_u32 v108, v3, 4, v2
v_lshl_add_u32 v108, v108, 2, s{T1}
v_mov_b32 v109, -1
s_and_b32 s{T1}, s{CT}, 7
s_cselect_b32 s{T1}, {BIG}, s{HA}
v_lshl_add_u32 v110, v3, 7, s{T1}
v_cmp_gt_u32 vcc, 7, v2
v_cndmask_b32 v108, v108, v110, vcc
v_cndmask_b32 v109, v109, 0, vcc
s_lshr_b32 s{T1}, s{WI}, 5
s_lshl_b32 s{T1}, s{T1}, 9
s_and_b32 s{T2}, s{WI}, 31
s_lshl_b32 s{T2}, s{T2}, 3
s_add_u32 s{T1}, s{T1}, s{T2}
s_add_u32 s{T1}, s{T1}, {ST_R-1024}
v_lshl_add_u32 v110, v2, 6, v3
v_lshl_add_u32 v110, v110, 2, s{T1}
v_cmp_gt_u32 vcc, 6, v2
v_cndmask_b32 v108, v108, v110, vcc
v_cndmask_b32 v109, v109, v93, vcc
s_lshl_b32 s{T1}, s{WI}, 5
s_add_u32 s{T1}, s{T1}, {ST_M}
v_lshl_add_u32 v110, v3, 2, v2
v_lshl_add_u32 v110, v110, 2, s{T1}
v_cmp_gt_u32 vcc, 5, v2
v_cndmask_b32 v109, v109, v106, vcc
v_cmp_gt_u32 vcc, 4, v2
v_cndmask_b32 v108, v108, v110, vcc
v_cndmask_b32 v109, v109, v91, vcc
v_cmp_gt_u32 vcc, 3, v2
v_cndmask_b32 v109, v109, v90, vcc
v_cmp_gt_u32 vcc, 2, v2
v_cndmask_b32 v109, v109, v89, vcc
v_cmp_gt_u32 vcc, 1, v2
v_cndmask_b32 v109, v109, v88, vcc
s_mov_b32 exec_lo, 0xffff007f
s_mov_b32 exec_hi, 0xffff007f
buffer_store_dword v109, v108, {srd(sWS)}, 0 offen sc1
s_mov_b64 exec, -1''')
            if SB:
                STATS=g.L[mark:]; del g.L[mark:]
            else:
                assert not RL
                STATS=[]; g.stamp('st'); e(D2[:N1]); D2=D2[N1:]; g.stamp('s1')
            PE=opt.get('pe',0)
            k_=2 if PE else 1
            W2PF=f'''s_cmp_eq_u32 s{TQ}, 0
s_cselect_b32 s{sOUT}, s{sCR}, s{sCI}
s_cselect_b32 s{sOUT+1}, s{sCR+1}, s{sCI+1}
s_and_b32 s{T2}, s2, {-k_}
s_lshl_b32 s{T1}, s{T2}, 11
s_mul_i32 s{T2}, s{T2}, {43*128}
s_cmp_ge_u32 s{TQ}, 2
s_cselect_b32 s{sOUT}, s{sDN}, s{sOUT}
s_cselect_b32 s{sOUT+1}, s{sDN+1}, s{sOUT+1}
s_cselect_b32 s{T1}, s{T2}, s{T1}
s_cselect_b32 s{T2}, {42 if PE else 21}, {16*k_-1}
v_min_u32 v13, s{T2}, v1
s_cmp_eq_u32 s{TQ}, 3
s_cselect_b32 s{T2}, {(43 if PE else 21)*128}, 0
s_add_u32 s{T1}, s{T1}, s{T2}
v_lshlrev_b32 v13, 7, v13'''
            if PE: W2PF+=f'\ns_bitcmp{2-PE}_b32 s2, 0\ns_cselect_b32 s{T1}, {BIG}, s{T1}'
            W2PF+=f'\nbuffer_load_dword v12, v13, {srd(sOUT)}, s{T1} offen'
            LAM=f'''v_lshlrev_b32 v244, 16, v244
v_lshlrev_b32 v245, 16, v245
v_lshlrev_b32 v246, 16, v246
v_mul_f32 v246, {F(LOG2E)}, v246
v_exp_f32 v246, v246
v_cvt_pk_bf16_f32 v246, v246, v246
v_lshlrev_b32 v246, 16, v246
v_mul_f32 v247, v246, v244
v_mul_f32 v248, v246, v245
v_mul_f32 v247, {F(LOG2E)}, v247
v_mul_f32 v248, 0.15915494, v248'''.split('\n')
            def cpow(dr,di,n):
                LAM.extend([f'v_mul_f32 v249, {n}, v247',f'v_mul_f32 v250, {n}, v248','v_rndne_f32 v251, v250','v_exp_f32 v249, v249','v_sub_f32 v250, v250, v251','v_cos_f32 v251, v250','v_sin_f32 v250, v250',f'v_mul_f32 {v(dr)}, v249, v251',f'v_mul_f32 {v(di)}, v249, v250'])
            cpow(PR,PI,'1.0')
            for j in range(1,16):
                a=(j-1)//2; b=j-1-a
                LAM.extend([f'v_mul_f32 {v(PR+j)}, {v(PR+a)}, {v(PR+b)}',f'v_mul_f32 {v(PI+j)}, {v(PR+a)}, {v(PI+b)}',f'v_fma_f32 {v(PR+j)}, -{v(PI+a)}, {v(PI+b)}, {v(PR+j)}',f'v_fmac_f32 {v(PI+j)}, {v(PI+a)}, {v(PR+b)}'])
            cpow(L32,L32+1,F(32.0)); cpow(L64,L64+1,F(64.0))
            LAM.extend(['v_and_b32 v252, 16, v1','v_cvt_f32_u32 v252, v252']); cpow(WSEL,WSEL+1,'v252')
            LAM.extend(['v_and_b32 v252, 48, v1','v_cvt_f32_u32 v252, v252']); cpow(WG,WG+1,'v252')
            LAM.extend([f'v_mul_f32 v252, {F(32.0)}, v252']); cpow(254,255,'v252')
            LAM.extend(['v_mul_f32 v249, v244, v244','v_fmac_f32 v249, v245, v245','v_rcp_f32 v249, v249',f'v_add_f32 v250, -1.0, v{PR}',f'v_mul_f32 v{KAP}, v250, v244',f'v_fmac_f32 v{KAP}, v{PI}, v245',
                f'v_mul_f32 v{KAP+1}, v{PI}, v244',f'v_fma_f32 v{KAP+1}, -v250, v245, v{KAP+1}','v_add_f32 v249, v249, v249',f'v_mul_f32 v{KAP}, v249, v{KAP}',f'v_mul_f32 v{KAP+1}, v249, v{KAP+1}'])
            LAM.extend(cmul(WH,KAP,254))
            LAM.extend(['v_and_b32 v13, 12, v1','v_lshlrev_b32 v13, 2, v13','v_and_or_b32 v13, v1, 3, v13','v_lshrrev_b32 v252, 4, v1','v_lshl_add_u32 v13, v252, 2, v13','v_lshlrev_b32 v13, 4, v13'])
            LAM.extend([f'v_and_b32 v{EA}, 15, v1',f'v_lshlrev_b32 v{EA}, 3, v{EA}',f'v_sub_f32 v{NI}, 0, v{PI}'])
            if PF==9: e(W2PF)
            e(f's_waitcnt vmcnt({N1+(SB==0)+(2*RL if UP else 5)})\ns_barrier')
        else:
            if NL:
                e(f'L_init:\nv_lshlrev_b32 v10, 4, v1\nv_add_u32 v10, {ARR}, v10\nv_mov_b32 v44, 0\nv_mov_b32 v45, 0\nv_mov_b32 v46, 0\nv_mov_b32 v47, 0\nv_mov_b32 v43, 1')
                for k in range((NL+7)//8): e(f'global_store_dwordx4 v10, v[44:47], s[66:67] offset:{1024*k} sc1')
                e('s_branch L_initd\nL_init2:\ns_waitcnt vmcnt(0)\nv_mov_b32 v44, 0\ns_mov_b64 exec, 1\nglobal_store_dword v44, v43, s[0:1] sc1\ns_mov_b64 exec, -1\ns_branch L_init2d')
            e('L_role1:')
            isin=f's_lshl_b32 s{T1}, s2, 2\ns_add_u32 s{T1}, s{T1}, s{TQ}\ns_cmp_eq_u32 s{T1}, {97*4+3}'
            if NL: e(f's_mov_b64 s[0:1], s[64:65]\n{isin}\ns_cbranch_scc1 L_init\nL_initd:')
            setup(1)
            e(f'''s_lshl_b32 s{T0}, s{RB2}, 2
s_add_u32 s{sE}, s{T0}, s{TQ2}
s_and_b32 s{T1}, s{TQ}, 1
s_lshl_b32 s{T1}, s{T1}, 5
s_and_b32 s{T0}, s{TQ}, 2
s_lshl_b32 s{T0}, s{T0}, 1
s_add_u32 s{T1}, s{T0}, s{T1}
s_lshl_b32 s{T0}, s{sE}, 6
s_add_u32 s{WI}, s{T0}, s{T1}
s_lshl_b32 s{sE}, s{sE}, 9
s_lshl_b32 s{T1}, s{T1}, 2
s_add_u32 s{sE}, s{sE}, s{T1}
s_add_u32 s{sE}, s{sE}, {ST_R}
v_lshrrev_b32 v2, 5, v1
v_lshl_add_u32 v2, v2, 4, s{WI}
v_and_b32 v3, 3, v4
v_add_u32 v3, v3, v2
v_lshlrev_b32 v2, 4, v5
v_lshl_add_u32 v2, v3, 10, v2
s_lshl_b32 s{sE+1}, s{DQ}, 7
v_and_b32 v3, 31, v1
v_lshl_add_u32 v3, v3, 1, s{sE+1}''')
            g.stamp('s0')
            if NL: e(f'{isin}\ns_cbranch_scc1 L_init2\nL_init2d:')
            if UP: e(slab(0))
            D2=slab(1)+slab(2); e(D2[:N1]); D2=D2[N1:]; g.stamp('s1')
            LAM=[]; STATS=[]
            e(f's_waitcnt vmcnt({N1})\ns_barrier')
        if opt.get('prio')==nh: e('s_setprio 1')
        subs=[('S',0,0,ACC0),('S',0,1,ACC0+16),('F',0,0,ACC1),('F',0,1,ACC1+16)] if nh==0 else [('F',1,0,ACC0),('F',1,1,ACC0+16),('F',2,0,ACC1),('F',2,1,ACC1+16)]
        def reads(n):
            i,u=divmod(n,2); st=i%3; b=n&1; L=[]
            def wr(k):
                kind,sb,pt,_=subs[k]
                if kind=='S': L.append(f'ds_read_b128 {v(Wf(b,k),4)}, v{SA+u} offset:{st*WSS+pt*2048}')
                else:
                    for j in range(2): L.append(f'ds_read_b64_tr_b16 {v(Wf(b,k)+2*j,2)}, v{TA} offset:{st*WSS+(32*u+8*j)*96+32*sb+pt*(UOFF-GOFF)}')
            wr(0)
            for t4 in range(4): L.append(f'ds_read_b128 {v(X(b,t4),4)}, v{XA+u} offset:{st*8192+t4*2048}')
            wr(1); wr(2); wr(3)
            if u==0:
                if nh==0 and not (opt.get('nos') and n>0):
                    SF=SFS
                    L.append(f'ds_read_b128 {v(SF[0],4)}, v{S1} offset:{st*WSS}')
                    for q_ in range(3):
                        for j in range(2): L.append(f'ds_read_b64_tr_b16 {v(SF[1+q_]+2*j,2)}, v{S2} offset:{st*WSS+8*j*96+32*q_}')

            return L
        def mf(k,t4,xo,wo,first=False):
            a=subs[k][3]+4*t4; c='0' if first else v(a,4)
            if subs[k][0]=='S': return f'v_mfma_f32_16x16x32_bf16 {v(a,4)}, {xo}, {wo}, {c}'
            return f'v_mfma_f32_16x16x32_bf16 {v(a,4)}, {wo}, {xo}, {c}'
        g.stamp('B0')
        LT=opt.get('lt',0)
        if nh==1 and LT:
            e(f's_cmp_lt_u32 s{FCNT}, 2\ns_cbranch_scc1 L_light')
            C=['L_light:']+list(D2)
            ix=f's_and_b32 s{T1}, s2, 31\ns_lshl_b32 s{T1}, s{T1}, 2\ns_add_u32 s{T1}, s{T1}, s{TQ}'
            pf1=f'{ix}\ns_mul_i32 s{T1}, s{T1}, {86*128}\nv_min_u32 v5, 42, v1\nv_lshlrev_b32 v5, 7, v5\nbuffer_load_dword v6, v5, {srd(sDN)}, s{T1} offen\ns_add_u32 s{T1}, s{T1}, {43*128}\nbuffer_load_dword v7, v5, {srd(sDN)}, s{T1} offen'
            pf2=f'{ix}\ns_lshl_b32 s{T1}, s{T1}, 12\nv_min_u32 v5, 31, v1\nv_lshlrev_b32 v5, 7, v5\nbuffer_load_dword v8, v5, {srd(sCR)}, s{T1} offen\nbuffer_load_dword v9, v5, {srd(sCI)}, s{T1} offen'
            l2=[]
            for k in range(opt.get('ll',0)):
                l2.append(f's_lshl_b32 s{T1}, s{TQ2}, 2\ns_add_u32 s{T1}, s{T1}, s{TQ}\ns_lshl_b32 s{T1}, s{T1}, 15\ns_add_u32 s{T1}, s{T1}, {(k>>1)*8192}\nv_lshlrev_b32 v5, 7, v1\nbuffer_load_dword v10, v5, {srd(sCI if k&1 else sCR)}, s{T1} offen')
            for bi in range(1,9):
                C.append('s_waitcnt vmcnt(6)\ns_barrier')
                if bi==LT: C.append(pf1)
                if bi==LT+1: C.append(pf2)
                if bi>=LT+3:
                    k=(len(l2)+7-bi)//max(1,8-bi); C+=l2[:k]; del l2[:k]
                if bi+2<8: C+=slab(bi+2)
                elif bi+2<10: C+=vhalf(bi+2,1)
            C.append('s_branch L_postB8')
            g.cold+=C
        e(reads(0))
        slots=[int(x) for x in opt.get(f'ds{nh}','13.15.21.23.29.31').split('.')]
        slots7=[int(x) for x in opt.get(f'dl{nh}',['3.7.11.15.19.23','13.15.21.23.29.31'][nh]).split('.')]
        slots6=[int(x) for x in opt.get(f'dm{nh}',['9.13.17.21.25.29','3.9.15.19.25.29'][nh]).split('.')]
        V9=opt.get('v9',0)
        if V9 and nh==1: slots7=[int(x) for x in opt.get('dl1','5.7.9.11.13.15.19.21.23.25.27.29').split('.')]
        pend=D2; xtra=0; late=None
        while len(pend)>len([q_ for q_ in slots if q_>=16]): e(pend.pop(0))
        for n in range(16):
            i,u=divmod(n,2); b=n&1
            post=[]
            if u==1:
                assert not pend
                bi=i+1
                if late: e(late); late=None
                if STATS:
                    if bi==SB: e(STATS); STATS=[]; xtra+=1
                elif LAM and bi>=opt.get('lb',1):
                    lb=5 if SD else 4
                    k=(len(LAM)+(lb-bi))//(lb+1-bi)
                    e(LAM[:k]); del LAM[:k]
                if nh==0 and bi==7:
                    SL=16
                    e(f'''v_and_b32 v12, 1, v1
v_lshlrev_b32 v12, 4, v12
v_mov_b32 v2, 0x3f80
v_lshlrev_b32 v12, v12, v2
v_bfe_u32 v2, v1, 2, 2
v_lshrrev_b32 v3, 4, v1
v_cmp_eq_u32 vcc, v2, v3
v_and_b32 v2, 2, v1
v_mov_b32 v{SL}, 0
v_cndmask_b32 v12, 0, v12, vcc
v_cmp_eq_u32 vcc, 0, v2
v_mov_b32 v{SL+1}, 0
v_mov_b32 v{SL+4}, 0
v_cndmask_b32 v{SL+2}, 0, v12, vcc
v_cndmask_b32 v{SL+3}, v12, 0, vcc
v_mov_b32 v{SL+5}, 0
v_lshrrev_b32 v2, 3, v1
v_and_b32 v3, 7, v1
v_lshrrev_b32 v12, 1, v2
v_xor_b32 v3, v3, v12
s_lshl_b32 s{T1}, s{DQ}, 6
v_add_u32 v2, s{T1}, v2
v_lshlrev_b32 v2, 10, v2
v_lshl_add_u32 v{DC}, v3, 4, v2
v_xor_b32 v{DC+1}, 64, v{DC}
v_and_b32 v2, 15, v1
v_lshlrev_b32 v2, 2, v2
v_add_u32 v2, {SP}, v2''')
                g.stamp(f'p{bi}')
                def vchk(lbl,ld,th,n):
                    e(f's_waitcnt vmcnt({n})\nv_cmp_gt_u32 vcc, {th}, v2\ns_cmp_eq_u64 vcc, 0\ns_cbranch_scc0 {lbl}\n{lbl}ok:')
                    g.cold.append(f'''{lbl}:
s_mov_b32 s{SPIN}, 0
{lbl}1:
s_sleep {opt.get('dslp',8)}
{ld}
s_add_u32 s{SPIN}, s{SPIN}, 1
s_cmp_gt_u32 s{SPIN}, 100000
s_cbranch_scc1 {lbl}ok
s_waitcnt vmcnt(0)
v_cmp_gt_u32 vcc, {th}, v2
s_cmp_eq_u64 vcc, 0
s_cbranch_scc0 {lbl}1
s_branch {lbl}ok''')
                gold=f'buffer_load_dword v2, v3, {srd(sDBG)}, s{W0} offen sc1'
                arld=f'buffer_load_dword v2, v3, {srd(sWS)}, s{W0} offen sc1' if NL else f'buffer_load_dword v2, v3, {srd(sDBG)}, 0 offen sc1'
                if bi==SB+1 and nh==0 and NL: vchk('L_go',gold,f's{TH}',6+xtra)
                if bi==6 and nh==0: vchk('L_poll',arld,f's{TH}' if NL else '4',6)
                e(f's_waitcnt vmcnt({0 if (bi==8 and nh==0) else 6+xtra}) lgkmcnt(0)')
                g.stamp(f'w{bi}')
                e('s_barrier')
                g.stamp(f'B{bi}')
                xtra=0
                if nh==0:
                    if bi==SB and NL: post.append('v_mov_b32 v3, 0\n'+gold)
                    if bi==SB+1:
                        if NL: post.append(f's_lshr_b32 s{T1}, s2, {opt.get("nsh",3)}\ns_and_b32 s{T1}, s{T1}, {NL-1}\ns_lshl_b32 s{T1}, s{T1}, 7\ns_add_u32 s{W0}, s{W0}, {ARR}\ns_add_u32 s{T1}, s{T1}, s{W0}\ns_mul_i32 s{TH}, s{TH}, {256//NL}\nv_mov_b32 v2, 1\ns_mov_b64 exec, 1\nbuffer_atomic_add v2, v3, {srd(sWS)}, s{T1} offen sc1\ns_mov_b64 exec, -1')
                        else: post.append(f's_and_b32 s{T1}, s2, 63\ns_lshl_b32 s{T1}, s{T1}, 2\ns_cmp_eq_u32 s{W_}, 0\ns_cselect_b32 s{T1}, s{T1}, {BIG}\nv_mov_b32 v2, 1\nv_mov_b32 v3, 0\ns_mov_b64 exec, 1\nbuffer_atomic_add v2, v3, {srd(sDBG)}, s{T1} offen sc1\ns_mov_b64 exec, -1')
                        xtra+=1
                    if PF==bi: post.append(W2PF); xtra+=1
                    l2p=opt.get('l2p',0)
                    if l2p and l2p<=bi<l2p+4:
                        k=bi-l2p
                        post.append(f's_lshr_b32 s{T1}, s2, 3\ns_lshl_b32 s{T1}, s{T1}, 2\ns_add_u32 s{T1}, s{T1}, s{TQ}\ns_lshl_b32 s{T1}, s{T1}, 12\nv_lshlrev_b32 v13, 7, v1\ns_mov_b64 exec, 0xffff\nbuffer_load_dword v12, v13, {srd(sCI if k&1 else sCR)}, s{T1} offen offset:{2048*(k>>1)}\ns_mov_b64 exec, -1'); xtra+=1
                    if l2p and bi==l2p+4:
                        post.append(f's_lshr_b32 s{T1}, s2, 3\ns_lshl_b32 s{T1}, s{T1}, 11\ns_add_u32 s{T1}, s{T1}, s{FB}\ns_add_u32 s{T1}, s{T1}, {18*16384}\nv_lshlrev_b32 v13, 7, v1\ns_mov_b64 exec, 0xffff\nbuffer_load_dword v12, v13, {srd(sDN)}, s{T1} offen\ns_mov_b64 exec, -1'); xtra+=1
                    if bi==5:
                        post.append((f'v_min_u32 v3, {NL-1}, v1\nv_lshlrev_b32 v3, 7, v3\n' if NL else 'v_lshlrev_b32 v3, 2, v1\n')+arld); xtra=0
                lp=opt.get('lp',0)
                if nh==1 and lp and lp<=bi<lp+5:
                    k=bi-lp
                    post.append(f's_cmp_lt_u32 s{FCNT}, 2\ns_cbranch_scc1 L_lp{k}\nL_lpr{k}:')
                    t=f'L_lp{k}:\nv_lshlrev_b32 v2, 7, v1\ns_lshl_b32 s{T1}, s{TQ2}, 2\ns_add_u32 s{T1}, s{T1}, s{TQ}\n'
                    if k<4:
                        t+=f's_lshl_b32 s{T1}, s{T1}, 15\ns_add_u32 s{T1}, s{T1}, {k*8192}\nbuffer_load_dword v3, v2, {srd(sCR)}, s{T1} offen\nbuffer_load_dword v4, v2, {srd(sCI)}, s{T1} offen\n'
                    else:
                        t+=f's_lshl_b32 s{T1}, s{TQ2}, 14\ns_add_u32 s{T1}, s{T1}, s{FB}\ns_add_u32 s{T1}, s{T1}, {18*16384}\nbuffer_load_dword v3, v2, {srd(sDN)}, s{T1} offen\ns_add_u32 s{T1}, s{T1}, 8192\nbuffer_load_dword v4, v2, {srd(sDN)}, s{T1} offen\n'
                    g.cold.append(t+f's_branch L_lpr{k}')
                if bi==6 and nh==0:
                    post.append(f'''s_lshl_b32 s{T2}, s{RB}, 2
s_add_u32 s{T2}, s{T2}, s{TQ}
s_lshl_b32 s{T1}, s{T2}, 10
s_add_u32 s{T1}, s{T1}, {ST_M}
s_mov_b32 m0, s{V14}
s_lshl_b32 s{T2}, s{T2}, 9
buffer_load_dwordx4 v13, {srd(sWS)}, s{T1} offen sc1 lds
s_lshl_b32 s{T1}, s{TQ}, 9
s_add_u32 m0, s{T1}, {RM}
s_add_u32 s{T2}, s{T2}, {ST_R}
s_mov_b32 exec_hi, 0
buffer_load_dwordx4 v15, {srd(sWS)}, s{T2} offen sc1 lds
s_mov_b64 exec, -1''')
                if bi+2<8: pend=slab(bi+2)
                elif bi==7 and V9:
                    pend=vfull(9) if nh==1 else []
                    xtra=6
                elif bi+2<10: pend=vhalf(bi+2,nh)
            else:
                e('s_waitcnt lgkmcnt(0)')
            R=reads(n+1) if n<15 else []
            M=[mf(k,t4,v(X(b,t4),4),v(Wf(b,k),4),n==0) for k in range(4) for t4 in range(4)]
            if n==15: break
            EX=[]
            GCR=[f'ds_read_b128 {v(GC+4*k,4)}, v29 offset:{256*k}' for k in range(4)]
            if n==12 and nh==0:
                EX=['v_and_b32 v0, 3, v1',f'v_lshl_add_u32 v0, v0, 6, v30',f's_lshl_b32 s{T1}, s{TQ}, 8\nv_add_u32 v0, s{T1}, v0']
            if n==14 and nh==0:
                R=['']*opt.get('wpos',14)+[f's_mov_b32 exec_lo, 0x000f000f\ns_mov_b32 exec_hi, 0x000f000f\nds_write_b128 v0, {v(SACC,4)}\ns_mov_b64 exec, -1']+R
                R+=GCR
            if nh==0 and opt.get('sp') and u==0 and i>=opt.get('sp0',2):
                if i==opt.get('sp0',2): SPL=[f's_load_dword s54, s[{(0,60)[k&1]}:{(1,61)[k&1]}], {128*(k>>1)}' for k in range(64)]
                if i==opt.get('sp0',2) and opt.get('c3'): SPL=[f's_load_dword s54, s[0:1], {1024*k+384}' for k in range(11)]
                k=opt['sp']; mine=SPL[:k]; del SPL[:k]
                EX=[ '\n'.join([x for x in ([EX[q_]] if q_<len(EX) else [])+mine[2*q_:2*q_+2]]) for q_ in range(max(len(EX),(len(mine)+1)//2))]
            sl_=slots7 if n>=13 else slots6 if n>=opt.get('dn',5) else slots
            if u==0 and nh==0 and not (opt.get('nos') and n>0):
                e([f'v_mfma_f32_16x16x32_bf16 {v(SACC,4)}, {v(SFS[k],4)}, {v(SELS+4*k,4)}, {"0" if (n==0 and k==0) else v(SACC,4)}' for k in range(4)])
            rp_=2 if len(R)>16 else 1
            for mi in range(16):
                e(M[mi])
                for _ in range(rp_):
                    if R: e(R.pop(0))
                if mi==0: e(post)
                if EX: e(EX.pop(0))
                if (16*(1-u)+mi) in sl_ and pend: e(pend.pop(0))
            assert not R and not EX
        if nh==1 and LT: e('L_postB8:')
        e(f's_mul_i32 s{HB}, s{HB}, {2*HSTR}')
        if opt.get('nost'): e(f's_mov_b32 s{HB}, {BIG}')
        if opt.get('prio')==nh: e('s_setprio 0')
        def foff(reg,sb):
            return f's_add_u32 s{T2}, s{FS}, {sb}\ns_lshl_b32 s{T2}, s{T2}, 10\ns_add_u32 s{T2}, s{T2}, s{HB}\ns_cmp_gt_u32 s{FCNT}, {sb}\ns_cselect_b32 s{reg}, s{T2}, {BIG}'
        def run_groups(groups, loads, ring, areg, hooks, mid=[], freed={}, depth=0):
            free=list(ring); dest=[]; depth=max(depth,len(ring))
            def ld():
                sr,imm=loads[len(dest)]; dest.append(free.pop(0))
                return [f's_add_u32 s{T0}, s{sr}, {imm}',f'buffer_load_dwordx4 {v(dest[-1],4)}, v{areg}, {srd(sWS)}, s{T0} offen sc1']
            while free: e(ld())
            e(mid)
            il=[]
            for gi,grp in enumerate(groups):
                g.stamp(f'q{gi}')
                h=hooks.get(gi)
                if h:
                    e(h[0]); il=il+list(h[1])
                for k,(a,li,Bq,first) in enumerate(grp):
                    if k%2==0: e(f's_waitcnt vmcnt({len(dest)-1-li})')
                    e(f'v_mfma_f32_32x32x16_bf16 {v(a,16)}, {v(dest[li],4)}, {v(Bq,4)}, {"0" if first else v(a,16)}')
                    if k%2==1: free.append(dest[li])
                    can=free and len(dest)<len(loads)
                    if can and (k%2==1 or (k in opt.get('gk',(0,)) and len(dest)-li<depth)): e(ld())
                    for _ in range(2):
                        if il: e(il.pop(0))
                free+=freed.get(gi,[])
            e(il)
        TILE=lambda mh,dh: ACC0+32*mh+16*dh
        if nh==1:
            TMP=16; SG=4
            v14=vgroup(f's{V14}, 0',[DF],sDN,FB,20*16384,4)
            V=vfull(10); nb=opt.get('nb',5)
            rd=vread(8,B1)
            e(mix(rd[:2*nb],V[:nb],2))
            if opt.get('w3',0):
                e(M); e(mix(rd[2*nb:]+GCR+sread(1,SG,TMP),V[nb:],2))
            else: e(mix(mix(M,V[nb:],2),rd[2*nb:]+GCR+sread(1,SG,TMP),1))
            g.stamp('loopend')
            e(foff(SOX,1)); e(foff(SOW,2))
            e('s_waitcnt vmcnt(12) lgkmcnt(8)')
            g.stamp('w9')
            V14B=[f's_cmp_ge_u32 s{TQ}, 2\ns_cbranch_scc1 L_no14']+vgroup(f's{V14}, 2048',[DF],sDN,FB,21*16384,2)+['L_no14:']
            S2R=sread(2,SG,ACC0)+['s_waitcnt lgkmcnt(0)']+sadd(SG,ACC0)
            G0,G1,G2,G3=gelu(ACC0,0,TMP,SOX,SG),gelu(ACC0,1,TMP,SOX,SG),gelu(ACC1,0,TMP,SOW,SG),gelu(ACC1,1,TMP,SOW,SG)
            pc=opt.get('pace',6)
            gp=f's_setprio {opt.get("gprio",1)}'
            V=vfull(11); nq=opt.get('nq',8)
            e(mix(vread(9,B2),V[:nq],3))
            g.stamp('c0')
            e(f's_waitcnt vmcnt({nq})')
            V=V[nq:]+[f's_mov_b32 m0, s{V14}\ns_add_u32 s{T2}, s{sE+1}, {8192-1024}\nbuffer_load_dwordx4 v2, {srd(sX)}, s{sE+1} offen lds',f'buffer_load_dwordx4 v2, {srd(sX)}, s{T2} offen offset:1024 lds']
            e('s_waitcnt lgkmcnt(15)')
            e(mix(vread(10,B3),V,3))
            g.stamp('ch1')
            e('s_waitcnt lgkmcnt(0)\ns_barrier')
            g.stamp('B9')
            e(sread(2,24,24)[:2][::1] if False else '')
            e(gp); e(sadd(SG,TMP))
            G2,G3=gelu(ACC1,0,TMP,SOW,ACC0),gelu(ACC1,1,TMP,SOW,ACC0)
            if LT and opt.get('sk',1): e(f's_cmp_lt_u32 s{FCNT}, 2\ns_cbranch_scc1 L_nogelu')
            e(G0); e(mix(G1,sread(2,ACC0,24),8)); e('s_waitcnt lgkmcnt(0)'); e(sadd(ACC0,24)); e(G2); e(G3)
            if LT and opt.get('sk',1):
                e('L_gelud:'); g.cold.append('L_nogelu:\ns_waitcnt vmcnt(0)\ns_branch L_gelud')
            g.stamp('gdone')
            RD_=opt.get('rd',1); nx=3 if RD_ else 6
            e('v_lshrrev_b32 v5, 5, v1\nv_lshlrev_b32 v6, 6, v5')
            if RD_:
                e(f's_lshl_b32 s{T1}, s{TQ}, 9\ns_add_u32 s{T1}, s{T1}, {RM}\ns_mov_b32 m0, s{T1}\ns_and_b32 s{T0}, s{sE}, 0xfffffe00\ns_mov_b32 exec_hi, 0\nbuffer_load_dwordx4 v15, {srd(sWS)}, s{T0} offen sc1 lds\ns_mov_b64 exec, -1\ns_and_b32 s{T0}, s{sE}, 0x1ff\ns_add_u32 s{T1}, s{T1}, s{T0}\nv_add_u32 v7, s{T1}, v6')
            else: e([f'buffer_load_dwordx4 {v(32+8*mh+4*k,4)}, v6, {srd(sWS)}, s{sE} offen offset:{32*mh+256*k} sc1' for mh in range(2) for k in range(2)])
            e('global_load_ushort v8, v3, s[52:53]\nglobal_load_ushort v9, v3, s[52:53] offset:64')
            e(f"""v_bfe_u32 v4, v1, 2, 2
v_lshl_add_u32 v4, v5, 2, v4
v_lshlrev_b32 v4, 7, v4
v_and_b32 v6, 3, v1
v_lshl_add_u32 v4, v6, 3, v4
v_and_b32 v6, 16, v1
v_lshl_add_u32 v4, v6, 1, v4
v_add_u32 v4, s{V14}, v4
v_lshl_add_u32 v10, v5, 4, s{WI}
v_lshlrev_b32 v3, 1, v3
v_lshl_add_u32 v10, v10, 11, v3
s_waitcnt vmcnt({4+nx})""")
            e([f'ds_read_b64_tr_b16 {v(16+2*tl,2)}, v4 offset:{(tl>>1)*1024+(tl&1)*64}' for tl in range(4)])
            e(p2base(1))
            D1_=(vfull(12)+vfull(13))[24-NR1:]; npre=min(len(D1_),opt.get('npre',0))
            e('s_waitcnt lgkmcnt(0)'); e(v14[:2]); e(D1_[:npre])
            assert npre%4==0
            sf=setflag(False).split('\ns_mov_b64 exec, 1')
            e(sf[0]); e(f's_waitcnt vmcnt({2+nx+npre})'); e('s_mov_b64 exec, 1'+sf[1]); g.stamp('flag')
            e(f's_waitcnt vmcnt({3+npre})')
            if RD_: e([f'ds_read_b128 {v(32+8*mh+4*k,4)}, v7 offset:{32*mh+256*k}' for mh in range(2) for k in range(2)])
            e(V14B)
            e(f's_setprio {opt.get("bprio",0)}')
            BB=[f'v_mov_b32 v{ACC0+16*tl+k}, 0' for tl in range(4) for k in range(4,16)]
            BB+=[f's_lshl_b32 s{T1}, s{TQ}, 7\nv_xor_b32 v11, s{T1}, v15','v_lshlrev_b32 v8, 16, v8','v_lshlrev_b32 v9, 16, v9\ns_waitcnt lgkmcnt(0)']
            for mh in range(2):
                for dh in range(2):
                    for i in range(4):
                        r=TILE(mh,dh)+i; xr=16+2*(2*mh+dh)+(i>>1)
                        BB+=[f'v_lshlrev_b32 v{r}, 16, v{xr}' if i%2==0 else f'v_and_b32 v{r}, 0xffff0000, v{xr}',f'v_fma_f32 v4, v{r}, v{32+8*mh+i}, v{36+8*mh+i}',f'v_fmac_f32 v{r}, v4, v{8+dh}']
            ap=opt.get('ap',48)
            if ap: BB.insert(len(BB)-ap,sld)
            bm=opt.get('bm',0)
            if bm: e(mix(BB,D1_[npre:],bm))
            else: e(D1_[npre:]); e(BB)
            ZE=opt.get('ze',8)
            zfw=f's_lshl_b32 s{T1}, s{TQ}, 2\ns_add_u32 s{T1}, s{T1}, {ZF}\nv_mov_b32 v2, s{T1}\nv_mov_b32 v3, 1\nds_write_b32 v2, v3'
            SPO=opt.get('spo',3)
            hk1={ZE:(['s_barrier',g.st('Z1')],[])}; mid1=[]
            if SPO&1:
                if SPO&4: e('s_waitcnt vmcnt(0)')
                g.stamp('chores')
                e(spoll('L_fp1',opt.get('slp1',4),not ap))
                mid1=['s_waitcnt vmcnt(0)',zfw]
                if not SPO&8: mid1[0]=f's_waitcnt vmcnt({opt.get("nr1",9)})'
                else: e(mid1); mid1=[]
            else:
                e('s_waitcnt vmcnt(0)')
                e(pld(7)); e(zfw)
                g.stamp('chores')
                e(pollchk('L_fp1',7,0,opt.get('slp1',2)))
            g.stamp('go')
            e(f's_setprio {opt.get("p2prio",1)}')
            loads=[(SOW,s_*1024+mh*HSTR) for s_ in range(18) for mh in range(2)]
            order=[s_ for s_ in range(18) for mh in range(2)]
            groups=[[(TILE(mh,dh),2*s_+mh,B1+8*s_+4*dh,False) for mh in range(2) for dh in range(2)] for s_ in range(18)]
            run_groups(groups,loads,([16+4*k for k in range(8)]+[4])[:opt.get('nr1',9)],11,hk1,mid1,{s_:[B1+8*s_,B1+8*s_+4] for s_ in range(18)},opt.get('dp1',14))
            g.stamp('ph1')
            e('s_setprio 0')
            XS=112
            for j in range(1,4):
                e(f's_xor_b32 s{T1}, s{TQ}, {j}\ns_mul_i32 s{T1}, s{T1}, {XW}\ns_add_u32 s{T1}, s{T1}, {(j-1)*4096}\nv_add_u32 v{3+j}, s{T1}, v15')
            e(f'v_add_u32 v7, s{XR}, v15\nv_add_u32 v8, s{WQ}, v15')
            if not ZE: e('s_barrier'); g.stamp('Z1')
            for j in range(1,4):
                for tl in range(4): e(f'ds_write_b128 v{3+j}, {v(ACC0+16*tl+4*j,4)} offset:{tl*1024}')
            e('s_waitcnt lgkmcnt(0)\ns_barrier')
            g.stamp('Z2')
            osc=' sc1'
            def addq(r,srcs,pk):
                for q_ in srcs:
                    if pk:
                        for j in range(2): e(f'v_pk_add_f32 {v(r+2*j,2)}, {v(r+2*j,2)}, {v(q_+2*j,2)}')
                    else:
                        for j in range(4): e(f'v_add_f32 v{r+j}, v{r+j}, v{q_+j}')
            def outst(mh,dh):
                for i in range(4):
                    if i%2==0: e(f's_mov_b32 s{T0}, {mh*16384+i*2048}')
                    e(f'buffer_store_dword v{TILE(mh,dh)+i}, v10, {srd(sOUT)}, s{T0} offen offset:{dh*128+(i&1)*2048}{osc}')
            for tl in range(4):
                for j in range(3): e(f'ds_read_b128 {v(XS+12*tl+4*j,4)}, v7 offset:{j*4096+tl*1024}')
            for tl in range(4):
                e(f's_waitcnt lgkmcnt({9-3*tl})')
                addq(ACC0+16*tl,[XS+12*tl+4*k for k in range(3)],False)
            e('s_barrier')
            g.stamp('Z23')
            e(f's_setprio {opt.get("fprio",1)}')
            for dh in range(2):
                for k in range(4): e(f'ds_read_b128 {v(XS+16*dh+4*k,4)}, v7 offset:{16384+k*2048+dh*1024}')
            for dh in range(2):
                e(f's_waitcnt lgkmcnt({4-4*dh})')
                addq(TILE(0,dh),[XS+16*dh+4*k for k in range(4)],False); outst(0,dh)
            e('s_barrier')
            g.stamp('p2end')
            for dh in range(2):
                for k in range(4): e(f'ds_read_b128 {v(XS+16*dh+4*k,4)}, v8 offset:{dh*WSS+k*1024}')
            for dh in range(2):
                e(f's_waitcnt lgkmcnt({4-4*dh})')
                addq(TILE(1,dh),[XS+16*dh+4*k for k in range(4)],True); outst(1,dh)
        else:
            Xr=ACC0; Yr=ACC0+16
            e('s_setprio 2')
            SG=160; SS=176
            rd=[f'ds_read_b32 v{4+q_}, v2 offset:{256*q_}' for q_ in range(4)]+[f'ds_read_b128 {v((RS,MR)[k&1]+4*(k>>1),4)}, v31 offset:{256*(k&1)+16*(k>>1)}' for k in range(8)]+sread(0,SG,168)
            e(mix(M,rd,1))
            g.stamp('loopend')
            Z,T,P,Q=4,6,8,10
            e(foff(SOX,0))
            e(f's_lshl_b32 s{T0}, s{RB}, 2\ns_add_u32 s{T0}, s{T0}, s{TQ}\ns_sub_u32 s{T0}, 31, s{T0}\ns_lshl_b32 s{SOW}, s{T0}, 7')
            e(f's_waitcnt lgkmcnt(0)\nv_add_f32 v{SS}, v4, v6\nv_add_f32 v{SS+1}, v5, v7')
            npl=opt.get('npl',8)
            def scl(j): return f'v_mul_f32 v{Xr+j}, v{Xr+j}, v{RS+j}\nv_mul_f32 v{Yr+j}, v{Yr+j}, v{RS+j}\nv_fmac_f32 v{Xr+j}, v{MR+j}, v{SS}\nv_fmac_f32 v{Yr+j}, v{MR+j}, v{SS+1}'
            for j in range(16):
                if j<npl: e(scl(j))
                elif j==npl:
                    for i in range(npl//2,8):
                        xx=v(Xr+2*i,2); yy=v(Yr+2*i,2)
                        e(f'v_pk_mul_f32 {xx}, {xx}, {v(RS+2*i,2)}\nv_pk_mul_f32 {yy}, {yy}, {v(RS+2*i,2)}\nv_pk_fma_f32 {xx}, {v(MR+2*i,2)}, {v(SS,2)}, {xx} op_sel_hi:[1,0,1]\nv_pk_fma_f32 {yy}, {v(MR+2*i,2)}, {v(SS,2)}, {yy} op_sel:[0,1,0] op_sel_hi:[1,1,1]')
                if j: e(f'v_fmac_f32 v{Xr+j}, v{PR}, v{Xr+j-1}\nv_fmac_f32 v{Yr+j}, v{PR}, v{Yr+j-1}\nv_fmac_f32 v{Xr+j}, v{NI}, v{Yr+j-1}\nv_fmac_f32 v{Yr+j}, v{PI}, v{Xr+j-1}')
            g.stamp('a_scan')
            e(f'v_mov_b32 v{T}, v{Xr+15}\nv_mov_b32 v{T+1}, v{Yr+15}\nv_mov_b32 v{Z}, 0\nv_mov_b32 v{Z+1}, 0\nv_permlane16_swap_b32 v{Z}, v{T}\nv_permlane16_swap_b32 v{Z+1}, v{T+1}')
            e(cfma(P,(PR+15,PI+15),Z,(Xr+15,Yr+15)))
            e(f'v_mov_b32 v{Q}, v{P}\nv_mov_b32 v{Q+1}, v{P+1}\nv_mov_b32 v{T}, 0\nv_mov_b32 v{T+1}, 0\nv_permlane16_swap_b32 v{Q}, v{P}\nv_permlane16_swap_b32 v{Q+1}, v{P+1}')
            e(f'v_permlane32_swap_b32 v{T}, v{P}\nv_permlane32_swap_b32 v{T+1}, v{P+1}')
            e(cfma(P,L32,T,P))
            e(f'''v_min_u32 v{P}, -2, v{P}
v_min_u32 v{P+1}, -2, v{P+1}
s_mov_b32 exec_lo, 0
s_mov_b32 exec_hi, 0xffff0000
buffer_store_dwordx2 {v(P,2)}, v{EA}, {srd(sE)}, s{SOW} offen sc1
s_mov_b64 exec, -1''')
            g.stamp('b_pub')
            e(sadd(SG,168))
            e(gelu(ACC1,0,24,SOX,SG)+gelu(ACC1,1,24,SOX,SG)); g.stamp('gdone')
            D=(vfull(12)+vfull(13))[:24-NR1]
            da,db,dc=[int(x) for x in opt.get('d0','6.4.16').split('.')]
            ER=[RS+2*k for k in range(8)]
            e(f'v_and_b32 v2, 48, v1\nv_lshl_add_u32 v{EA}, v2, 6, v{EA}\ns_add_u32 s{SOW}, s{SOW}, 128')
            eld='\n'.join(f'buffer_load_dwordx2 {v(ER[u_],2)}, v{EA}, {srd(sE)}, s{SOW} offen offset:{128*u_} sc1' for u_ in range(8))
            HP=opt.get('hp',0)
            e('s_barrier' if HP==1 else 's_setprio 0\ns_barrier')
            g.stamp('B9')
            if db>=da:
                e(D[:da]); e(f's_waitcnt vmcnt({da})'); e(setflag(False)); g.stamp('flag0')
                e(D[da:db]); e(eld); ne=0
            else:
                e(D[:db]); e(eld); e(D[db:da]); e(f's_waitcnt vmcnt({da+8})'); e(setflag(False)); g.stamp('flag0')
                ne=da-db+1; db=da
            mark=len(g.L)
            e(cfma(Z,WSEL,T,Z)+cmul(CP,KAP,Z))
            kp=v(KAP,2)
            for i in range(8):
                xx=v(Xr+2*i,2); yy=v(Yr+2*i,2); tt=v(4+2*(i&1),2)
                e([f'v_pk_mul_f32 {tt}, {xx}, {kp} op_sel:[0,1] op_sel_hi:[1,1] neg_lo:[0,1] neg_hi:[0,1]',f'v_pk_mul_f32 {xx}, {xx}, {kp} op_sel_hi:[1,0]',
                     f'v_pk_fma_f32 {xx}, {yy}, {kp}, {xx} op_sel:[0,1,0] op_sel_hi:[1,1,1] neg_lo:[0,1,0] neg_hi:[0,1,0]',f'v_pk_fma_f32 {yy}, {yy}, {kp}, {tt} op_sel_hi:[1,0,1] neg_lo:[0,1,0] neg_hi:[0,1,0]'])
            SL=16
            e(f'''s_add_u32 s{T2}, s{CT}, 86
s_lshl_b32 s{T2}, s{T2}, 10
s_add_u32 s{T2}, s{T2}, s{HB}''')
            chk='\n'.join([f'v_max3_u32 v0, v{ER[0]}, v{ER[0]+1}, v{ER[1]}',f'v_max3_u32 v4, v{ER[1]+1}, v{ER[2]}, v{ER[2]+1}']+[f'v_max3_u32 v{(0,4)[u_&1]}, v{ER[u_]}, v{ER[u_]+1}, v{(0,4)[u_&1]}' for u_ in range(3,8)]+['v_max_u32 v0, v0, v4','v_cmp_eq_u32 vcc, -1, v0','s_cmp_eq_u64 vcc, 0'])
            KS=g.L[mark:]; del g.L[mark:]
            if HP: e(D[db:dc]); g.stamp('dm'); e('s_setprio 0'); e(KS)
            else: e(mix(KS,D[db:dc],opt.get('kp',2)))
            e(f's_waitcnt vmcnt({dc-db+ne})\n{chk}\ns_cbranch_scc0 L_epoll\nL_eok:')
            g.cold.append(f'''L_epoll:
s_mov_b32 s{SPIN}, 0
L_epoll1:
s_sleep {opt.get('eslp',4)}
{eld}
s_add_u32 s{SPIN}, s{SPIN}, 1
s_cmp_gt_u32 s{SPIN}, 100000
s_cbranch_scc1 L_eok
s_waitcnt vmcnt(0)
{chk}
s_cbranch_scc0 L_epoll1
s_branch L_eok''')
            g.stamp('Eok')
            e(f's_setprio {opt.get("eprio",2)}')
            for u_ in range(6,-1,-1): e(cfma(ER[u_],L64,ER[u_+1],ER[u_]))
            e(cmul(4,WH,ER[0]))
            for sw in ('16','32'):
                e(f'v_mov_b32 v6, v4\nv_mov_b32 v7, v5\nv_permlane{sw}_swap_b32 v6, v4\nv_permlane{sw}_swap_b32 v7, v5\nv_add_f32 v4, v6, v4\nv_add_f32 v5, v7, v5')
            e(cfma(CP,WG,4,CP))
            cp=v(CP,2)
            g.stamp('c_carry')
            for comp,R_,D_ in ((0,Xr,112),(1,Yr,128)):
                for i in range(8):
                    rr_=v(R_+2*i,2); pr=v(PR+2*i,2); pi=v(PI+2*i,2)
                    if comp==0: e(f'v_pk_fma_f32 {rr_}, {pr}, {cp}, {rr_} op_sel_hi:[1,0,1]\nv_pk_fma_f32 {rr_}, {pi}, {cp}, {rr_} op_sel:[0,1,0] op_sel_hi:[1,1,1] neg_lo:[0,1,0] neg_hi:[0,1,0]')
                    else: e(f'v_pk_fma_f32 {rr_}, {pr}, {cp}, {rr_} op_sel:[0,1,0] op_sel_hi:[1,1,1] neg_lo:[0,1,0] neg_hi:[0,1,0]\nv_pk_fma_f32 {rr_}, {pi}, {cp}, {rr_} op_sel_hi:[1,0,1] neg_lo:[0,1,0] neg_hi:[0,1,0]')
            for comp,R_,D_ in ((0,Xr,112),(1,Yr,128)):
                for i in range(8): e(f'v_cvt_pk_bf16_f32 v{R_+i}, v{R_+2*i}, v{R_+2*i+1}')
                for tb in range(2):
                    for ab in range(2): e(f'v_mfma_f32_16x16x32_bf16 {v(D_+8*tb+4*ab,4)}, {v(R_+4*tb,4)}, {v(SL+2-2*ab,4)}, 0')
            for comp,R_,D_ in ((0,Xr,112),(1,Yr,128)):
                for i in range(8): e(f'v_cvt_pk_bf16_f32 v{R_+8+i}, v{D_+2*i}, v{D_+2*i+1}')
                for tb in range(2):
                    o=R_+8+4*tb
                    e(f'v_permlane16_swap_b32 v{o}, v{o+2}\nv_permlane16_swap_b32 v{o+1}, v{o+3}')
                    e(f's_add_u32 s{T1}, s{T2}, {comp*32768+tb*HSTR}\nbuffer_store_dwordx4 {v(o,4)}, v15, {srd(sWS)}, s{T1} offen sc1')
            g.stamp('c_st')
            dd=min(len(D),dc+opt.get('dd',8))
            e(D[dc:dd])
            TV=144
            e(['v_and_b32 v2, 31, v1','v_lshrrev_b32 v3, 5, v1','v_bfe_u32 v0, v1, 1, 3','v_xor_b32 v0, v3, v0','v_lshlrev_b32 v0, 4, v0','v_lshl_add_u32 v0, v2, 7, v0',f'v_add_u32 v4, s{XR}, v0',f'v_add_u32 v8, s{WQ}, v0'])
            for k in range(1,4): e(f'v_xor_b32 v{4+k}, {32*k}, v4\nv_xor_b32 v{8+k}, {32*k}, v8')
            e(traddr(0,3)+[f'v_add_u32 v{TV+4}, s{WQ}, v0',f'v_add_u32 v{TV+5}, s{WQ}, v3',f'v_add_u32 v{TV}, s{V14}, v0',f'v_add_u32 v{TV+1}, s{V14}, v3'])
            e(f's_lshl_b32 s{T1}, s{TQ}, 2\ns_add_u32 s{T1}, s{T1}, {ZF}\nv_mov_b32 v14, s{T1}')
            e(f's_waitcnt vmcnt({dd-dc})'); e(setflag(True))
            g.stamp('flag')
            e(D[dd:]); e('s_setprio 0'); e(p2base(0))
            g.stamp('dend')
            JB=112; RB_=160
            MID=[f'''s_mov_b32 s{SPIN}, 0
L_z0:
s_sleep 1
ds_read_b32 v2, v14
s_add_u32 s{SPIN}, s{SPIN}, 1
s_waitcnt lgkmcnt(0)
v_cmp_ne_u32 vcc, 1, v2
s_cmp_gt_u32 s{SPIN}, 1000000
s_cselect_b64 vcc, 0, vcc
s_cmp_eq_u64 vcc, 0
s_cbranch_scc0 L_z0''',g.st('Z0')]
            MID+=[f'ds_read_b128 {v(JB+8*k+4*dh,4)}, v{4+k} offset:{2*8192+dh*4096}' for k in range(4) for dh in range(2)]
            RD2=[f'ds_read_b128 {v(RB_+32*bl+8*k+4*dh,4)}, v{4+k} offset:{bl*8192+dh*4096}' for bl in range(2) for k in range(4) for dh in range(2)]
            RD2+=[f'ds_read_b128 {v(RB_+64+8*k+4*dh,4)}, v{8+k} offset:{dh*WSS}' for k in range(4) for dh in range(2)]
            WA=[f's_lshl_b32 s{T1}, s{TQ}, 11\ns_add_u32 s{T1}, s{T1}, {q_*XW+16384}\nv_add_u32 v{4+q_}, s{T1}, v15' for q_ in range(4)]
            WA+=[f's_lshl_b32 s{T1}, s{TQ}, 10\ns_add_u32 s{T1}, s{T1}, {WB}\nv_add_u32 v8, s{T1}, v15']
            ZE=opt.get('ze',8)
            e(MID[:2]); MID=MID[2:]+RD2
            if ZE:
                e('s_waitcnt vmcnt(0)'); e(MID); MID=[]; e('s_waitcnt lgkmcnt(0)'); e(sld if opt.get('ap0',0) else ''); e('s_barrier'); g.stamp('Z1')
            if not opt.get('spo',3)&2: e(pld(3))
            e(f's_cmp_ge_u32 s{TQ}, 2\ns_cselect_b32 s{XL}, {BIG}, s{SOW}\ns_cselect_b32 s{T1}, 0, 2048\nv_add_u32 v{TV+2}, s{T1}, v{TV}\nv_add_u32 v{TV+3}, s{T1}, v{TV+1}')
            e(spoll('L_fp0',opt.get('slp0',4),not opt.get('ap0',0)) if opt.get('spo',3)&2 else pollchk('L_fp0',3,0,opt.get('slp0',6)))
            g.stamp('go')
            blkoff=lambda b_,k: (86+32*(b_&1)+4*(b_>>1)+k)*1024
            st_=[(SOX,blkoff(0,k),JB+8*k) for k in range(4)]+[(SOW,(18+k)*1024,JB+8*k) for k in range(3)]+[(XL,21*1024,JB+24)]
            st2=[(SOX,blkoff(1+bl,k),RB_+32*bl+8*k) for bl in range(3) for k in range(4)]
            loads=[];order=[];groups=[]
            for s_,(sr,im,Bq) in enumerate(st_):
                groups.append([(TILE(mh,dh),len(loads)+mh,Bq+4*dh,s_==0) for mh in range(2) for dh in range(2)])
                for mh in range(2): loads.append((sr,im+mh*HSTR)); order.append(s_)
            for mh in range(2):
                for p_ in range(6):
                    grp=[]
                    for s_ in (2*p_,2*p_+1):
                        sr,im,Bq=st2[s_]
                        grp+=[(TILE(mh,dh),len(loads),Bq+4*dh,False) for dh in range(2)]
                        loads.append((sr,im+mh*HSTR)); order.append(len(groups))
                    groups.append(grp)
            jit=[trstep(JB,TV+4,2*WSS),trstep(JB+8,TV+4,2*WSS+2048),trstep(JB+16,TV,0),trstep(JB+24,TV+2,0)]
            hooks={0:(['s_waitcnt lgkmcnt(0)'],[]),1:([],jit[0]),2:([],jit[1]),3:([],jit[2]),
                   4:(['s_waitcnt lgkmcnt(8)'],jit[3]),5:(['s_waitcnt lgkmcnt(8)'],[]),6:(['s_waitcnt lgkmcnt(4)'],[]),7:(['s_waitcnt lgkmcnt(0)'],WA)}
            z1=opt.get('z1',3); z2=opt.get('z2',10); z23=opt.get('z23',17); TM=opt.get('tm',6)
            for zz,nm in ((z1,'Z1'),(z2,'Z2'))[1 if ZE else 0:]:
                h_=hooks.get(zz,([],[])); hooks[zz]=(h_[0]+['s_barrier',g.st(nm)],h_[1])
            wr0=[]
            for dh in range(2):
                for q_ in range(4): wr0+=[f'ds_write_b128 v{4+q_}, {v(TILE(0,dh)+4*q_,4)} offset:{dh*1024}']+['']*opt.get('ws',1)
            hooks[14]=([],['']*6+wr0)
            assert 6+8*(1+opt.get('ws',1))-opt.get('ws',1)<=8*(z23-14)
            hooks[z23]=(['s_waitcnt lgkmcnt(0)','s_barrier',g.st('Z23')],[])
            run_groups(groups,loads,([16+4*k for k in range(8)]+[152,156])[:opt.get('nr0',10)],15,hooks,MID)
            g.stamp('ph2')
            wr1=lambda dh: [f'ds_write_b128 v8, {v(TILE(1,dh)+4*q_,4)} offset:{dh*WSS+q_*4096}' for q_ in range(4)]
            if TM:
                idx=[k for k,l_ in enumerate(g.L) if 'v_mfma_f32_32x32x16' in l_][-2*TM:]
                seg=g.L[idx[0]:]; del g.L[idx[0]:]
                assert not any('buffer_load' in l_ for l_ in seg)
                t1=v(TILE(1,1),16)
                late=[l_ for l_ in seg if 'v_mfma' in l_ and l_.split()[1].rstrip(',')==t1]
                e([l_ for l_ in seg if l_ not in late])
                e([late[0],'s_nop 4',late[1],'s_nop 3']); e(mix(late[2:],wr1(0),1)); e(wr1(1))
            else: e(wr1(0)+wr1(1))
            e('s_waitcnt lgkmcnt(0)\ns_barrier')
            g.stamp('p2end')
            e('s_branch L_fin')
            e(g.cold); g.cold=[]
    e('L_fin:')
    if opt.get('stamps'):
        e('s_waitcnt vmcnt(0)'); g.stamp('done')
        e(f'''s_waitcnt lgkmcnt(0)
s_cmp_eq_u32 s{TQ}, {opt.get('stq',0)}
s_cbranch_scc0 L_end
s_add_u32 s{sX}, s66, {STAMP}
s_addc_u32 s{sX+1}, s67, 0
s_lshl_b32 s{T0}, s2, 1
s_add_u32 s{T0}, s{T0}, s{NH}
s_lshl_b32 s{T0}, s{T0}, 7
v_mov_b32 v2, 0''')
        prs=[100]+G.POOL[:len(g.names())]
        if 'diag' in opt:
            p=prs[(['start']+g.names()).index(opt['diag'])]
            if 'dwg' in opt: e(f's_cmp_eq_u32 s2, {opt["dwg"]}\ns_cbranch_scc0 L_end')
            e(f's_cmp_eq_u32 s{NH}, {opt.get("dr",0)}\ns_cbranch_scc0 L_end\nL_dg:\ns_memrealtime s[72:73]\ns_waitcnt lgkmcnt(0)\ns_sub_u32 s72, s72, s{p}\ns_cmp_lt_u32 s72, 6000\ns_cbranch_scc1 L_dg')
            prs=[]
        for i,p in enumerate(prs): e(f'v_mov_b32 v4, s{p}\nv_mov_b32 v5, s{p+1}\nbuffer_store_dwordx2 v[4:5], v2, {srd(sX)}, s{T0} offen offset:{8*i}')
    e('L_end:\ns_endpgm'); e(g.cold); e('L_last:\ns_endpgm')
    if opt.get('stamps'): g.L.insert(0,'; STAMPS start,'+','.join(g.names()))
    if opt.get('plain'):
        pl=opt['plain']
        for i_,l_ in enumerate(g.L):
            if pl&1 and 'buffer_store_dwordx4' in l_ and 's[12:15]' in l_: g.L[i_]=l_.replace(' sc1','')
            if pl&2 and 'buffer_atomic_add' in l_ and 's[12:15]' in l_: g.L[i_]=l_.replace(' sc1','')
            if pl&4 and 'buffer_load_dwordx4 v[' in l_ and 's[12:15]' in l_: g.L[i_]=l_.replace(' sc1','')
    if opt.get('nopoll'):
        for i_,l_ in enumerate(g.L):
            if 'v_cmp_gt_u32 vcc, 12,' in l_: g.L[i_]=l_.replace('12,','0,')
    if opt.get('noe'):
        for i_,l_ in enumerate(g.L):
            if 'v_cmp_eq_u32 vcc, -1, v0' in l_: g.L[i_]='  v_cmp_gt_u32 vcc, 0, v0'
    if opt.get('ahit'):
        for i_,l_ in enumerate(g.L):
            if 'buffer_load_dwordx4 v[' in l_ and 's[12:15]' in l_ and 'offen sc1' in l_:
                g.L[i_-1]=g.L[i_-1]+f'\n  s_and_b32 s{T0}, s{T0}, 0xffff'
                g.L[i_]=l_.replace('s[12:15]','s[28:31]')
    ab=opt.get('ab',0)
    if ab&16:
        seen=0
        for i_,l_ in enumerate(g.L):
            if 'buffer_load_dwordx2' in l_ and 's[32:35]' in l_:
                g.L[i_]=l_.replace('buffer_load_dwordx2','buffer_load_dword').replace('s89','s1')
                import re
                g.L[i_]=re.sub(r'v\[(\d+):\d+\]',r'v\1',g.L[i_],1)
    if ab&32:
        for i_,l_ in enumerate(g.L):
            if 's_cmp_lt_u32 s55, 12' in l_: g.L[i_]='  s_cmp_lt_u32 s55, 0'
    for i_,l_ in enumerate(g.L):
        if ab&1 and 'ds_write_b128 v0,' in l_: g.L[i_]='  s_nop 0'
        if ab&2 and 's_waitcnt vmcnt(0) lgkmcnt(0)' in l_ and 'setprio 2' in ''.join(g.L[i_:i_+6]): g.L[i_]='  s_waitcnt vmcnt(6) lgkmcnt(0)'
        if ab&4 and 'buffer_atomic_add' in l_ and 's[16:19]' in l_: g.L[i_]=f'  s_mov_b32 s{T1}, {BIG}\n'+l_
        if ab&12 and 'v_cmp_gt_u32 vcc, 4, v2' in l_ and 's_cmp_eq_u64' in g.L[i_+1]: g.L[i_]='  v_cmp_gt_u32 vcc, 0, v2'
        if ab&8 and 'buffer_load_dword v2, v3, s[16:19]' in l_: g.L[i_]='  s_nop 0'
    body=hz.fix('\n'.join(g.L), verbose=opt.get('v',0))
    ref=open('parallel_sum__ssm_conv_s5__geglu_ffn__prompt.s.ref').read() if opt.get('final') else ''
    cm_=''.join(l+'\n' for l in ref.split('\n') if l.startswith(';') and '@launch' not in l and 'Override' not in l and 'grid=ceil' not in l)
    return cm_+header([(NAME,256,512,163840)])+kstart(NAME)+body+'\n'+RODATA+kd(NAME,256,256)

if __name__=='__main__':
    out=sys.argv[1]; opt={}
    for a in sys.argv[2:]:
        k,_,val=a.partition('='); opt[k]=int(val) if val.lstrip('-').isdigit() else (val or 1)
    open(out,'w').write(build(opt))
```

```python
import sys, math
from asmlib import *
import hz
from gen_v3 import F, LOG2E, BIG, G, cmul, cfma, mix, mksrd, fsplit, v, srd
XW=24576; WB=98304; WSS=16640; GOFF=4096; UOFF=4096+6144+128
SCR=WB+3*WSS; SP=SCR+12288; RM=SP+1024; ZF=RM+2048
HSTR=150*1024; ST_M=0xA00000; ST_R=0xA08000; ARR=0xA10000; FLG=0xA20000; EOFF=0xA60000; WSSZ=0xA80000
STAMP=0x8000000
sX,sW,sWS,sDBG,sCR,sCI,sDN,sE,sOUT=4,8,12,16,20,24,28,32,68
sW2=sE
TH=0; W0=1; FS=3; WL2=54; WI=72; CB=73; FCNT=74; FB=75
W_,TQ,NH,RB,CT,ROT,WSTEP,XL,WL=76,77,78,79,80,81,82,83,84
RB2,TQ2,DQ,SOX,SOW,T0,T1,T2,F0,HB,XR,WQ=85,86,87,88,89,90,91,92,93,94,95,96
SPIN=97; HA=98; V14=99; XH=W_
G.POOL=[36,42,44,56,58,38,40,46,48,50,64,60]
G.DEF='B0,B1,B4,B8,gdone,flag,go,q1,ph1,p2end,done'
DC=12; DF=14
ACC0=48; B1,B2,B3=112,160,208
TILE=lambda mh,dh: ACC0+32*mh+16*dh

def build(opt):
    g=G(opt); e=g.e
    PF=opt.get('pf',2); NL=opt.get('nl',16)
    e(f'''s_cmp_ge_u32 s2, 256
s_cbranch_scc1 L_end
s_load_dwordx16 s[36:51], s[0:1], 0
s_load_dwordx16 s[52:67], s[0:1], 64
s_getpc_b64 s[72:73]
L_pc0:
v_lshrrev_b32 v3, 6, v0
s_and_b32 s3, s2, 0xf8
v_add_lshl_u32 v2, v3, s3, 7
v_min_u32 v2, L_last-L_pc0, v2
v_and_b32 v1, 63, v0
v_readfirstlane_b32 s{W_}, v3
global_load_dword v9, v2, s[72:73]
s_bfe_u32 s{TQ2}, s2, 0x20003
s_lshr_b32 s{DQ}, s2, 5''')
    if opt.get('stamps'): e(('s_memtime' if opt['stamps']==2 else 's_memrealtime')+' s[100:101]')
    oa,ob=opt.get('ord','x01245673.45670123')[1:].split('.')
    e(f'''s_and_b32 s{T0}, s2, 1
s_lshl_b32 s{RB}, s{T0}, 2
s_bfe_u32 s{T1}, s2, 0x20001
s_xor_b32 s{RB2}, s{RB}, 4
s_add_u32 s{RB2}, s{RB2}, s{T1}
s_add_u32 s{RB}, s{RB}, s{TQ2}
s_lshl_b32 s{CT}, s{T1}, 3
s_add_u32 s{CT}, s{CT}, s{DQ}
s_xor_b32 s{CT}, s{CT}, 4
s_and_b32 s{TQ}, s{W_}, 3
s_lshr_b32 s{NH}, s{W_}, 2
s_lshl_b32 s{HB}, s{RB}, 2
s_add_u32 s{HB}, s{HB}, s{TQ}
s_mul_i32 s{XR}, s{TQ}, {XW}
v_lshrrev_b32 v4, 3, v1          ; q
v_and_b32 v5, 7, v1              ; pos
s_cmp_eq_u32 s{NH}, 0
s_cbranch_scc1 L_comp''')
    def zstamps():
        if opt.get('stamps'):
            for r,nm in zip(G.POOL,g.names()):
                if nm not in ('e0','e1'): e(f's_mov_b64 s[{r}:{r+1}], 0')
    def common(nh):
        e(mksrd(sWS,66,67,WSSZ)); e(mksrd(sDN,60,61,1409024*(0 if opt.get('nodma') else 1)))
        e(f'''v_lshlrev_b32 v6, 1, v4
v_and_b32 v6, 4, v6
v_xor_b32 v6, v5, v6
v_lshlrev_b32 v6, 4, v6
v_lshl_add_u32 v6, v4, 10, v6
s_lshl_b32 s{T0}, s{DQ}, 7
v_add_u32 v{DF}, s{T0}, v6
s_mul_i32 s{F0}, s{TQ}, 22
s_cmp_eq_u32 s{TQ}, 3
s_cselect_b32 s{T0}, 1, 0
s_sub_u32 s{F0}, s{F0}, s{T0}
s_lshl_b32 s{FB}, s{F0}, 14
s_lshl_b32 s{WQ}, s{TQ}, 12
s_lshl_b32 s{T0}, s{T0}, 11
s_sub_u32 s{V14}, s{WQ}, s{T0}
s_add_u32 s{V14}, s{V14}, {SCR}
s_add_u32 s{WQ}, s{WQ}, {WB}
s_lshl_b32 s{HA}, s{HB}, 2
s_lshr_b32 s{T0}, s{CT}, 3
s_add_u32 s{HA}, s{HA}, s{T0}
s_lshl_b32 s{HA}, s{HA}, 8
s_add_u32 s{HA}, s{HA}, {FLG}
v_lshlrev_b32 v15, 4, v1
v_and_b32 v2, 15, v1
v_lshrrev_b32 v3, 4, v1
v_bfe_u32 v6, v1, 1, 3
v_xor_b32 v6, v3, v6
v_lshlrev_b32 v6, 4, v6
v_lshl_add_u32 v6, v2, 7, v6
v_bfe_u32 v10, v1, 2, 3
v_lshrrev_b32 v11, 5, v1
v_lshl_add_u32 v10, v11, 4, v10
v_mul_u32_u24 v10, 96, v10
v_and_b32 v11, 3, v1
v_lshl_add_u32 v10, v11, 3, v10''')
    def vgroup(m0, vregs, sr, sb, imm, n):
        L=[]
        for j in range(n):
            t=f's_add_u32 m0, {m0}\n' if j==0 else ''
            t+=f's_add_u32 s{T0}, s{sb}, {imm+j*(8192-1024)}\nbuffer_load_dwordx4 v{vregs[j%len(vregs)]}, {srd(sr)}, s{T0} offen'+(f' offset:{1024*j}' if j else '')+' lds'
            L.append(t)
        return L
    def vx(vs,half):
        st=vs%3; m0=f's{XR}, {st*8192+half*4096}'
        if vs>=11:
            b=vs-11; return vgroup(m0,[DC,DC+1],sCI if b&1 else sCR,CB,(b>>1)*128+half*32768,4)
        return vgroup(m0,[DF],sDN,FB,6*(vs-8)*16384+half*32768,4)
    def vw(vs):
        st=vs%3
        if vs>=12: return vgroup(f's{WQ}, {st*WSS}',[DC,DC+1],sCI,CB,128+(vs-12)*32768,4)
        return vgroup(f's{WQ}, {st*WSS}',[DF],sDN,FB,(6*(vs-8)+4 if vs<11 else 18)*16384,4)
    def vfull(vs): return vx(vs,0)+vx(vs,1)+vw(vs)
    def traddr(t0,t1):
        return [f'v_bfe_u32 v{t0}, v1, 2, 2',f'v_lshrrev_b32 v{t1}, 5, v1',f'v_lshl_add_u32 v{t0}, v{t1}, 3, v{t0}',f'v_lshlrev_b32 v{t0}, 7, v{t0}',f'v_and_b32 v{t1}, 3, v1',f'v_lshl_add_u32 v{t0}, v{t1}, 3, v{t0}',
            f'v_bfe_u32 v{t1}, v1, 4, 1',f'v_lshl_add_u32 v{t0}, v{t1}, 5, v{t0}',f'v_bfe_u32 v{t1}, v1, 3, 1',f'v_lshl_add_u32 v{t0}, v{t1}, 6, v{t0}',f'v_xor_b32 v{t1}, 64, v{t0}']
    def trstep(base,areg,off):
        return [f'ds_read_b64_tr_b16 {v(base+dh*4+2*j,2)}, v{areg+dh} offset:{off+j*512}' for dh in range(2) for j in range(2)]
    def p2base(nh):
        return f'''s_lshl_b32 s{T0}, s{RB2}, 2
s_add_u32 s{T0}, s{T0}, s{TQ2}
s_mul_i32 s{SOX}, s{T0}, {2*HSTR}
s_lshl_b32 s{HB}, s{T0}, 2
s_add_u32 s{HB}, s{HB}, s{TQ}
s_lshl_b32 s{HB}, s{HB}, 8
s_add_u32 s{HB}, s{HB}, {FLG+128*(1-nh)}
s_lshl_b32 s{T0}, s{F0}, 10
s_add_u32 s{SOW}, s{SOX}, s{T0}
s_lshl_b32 s{T0}, s{TQ}, 13
s_add_u32 s{SOX}, s{SOX}, s{T0}'''
    sld=f's_load_dword s55, s[66:67], s{HB} glc'
    def spoll(lbl, tgt, sl):
        g.cold.append(f'''{lbl}:
s_mov_b32 s{SPIN}, 0
{lbl}_1:
s_sleep {sl}
{sld}
s_add_u32 s{SPIN}, s{SPIN}, 1
s_waitcnt lgkmcnt(0)
s_cmp_gt_u32 s{SPIN}, 100000
s_cselect_b32 s55, {tgt}, s55
s_cmp_lt_u32 s55, {tgt}
s_cbranch_scc1 {lbl}_1
s_branch {lbl}_ok''')
        return f'{sld}\ns_waitcnt lgkmcnt(0)\ns_cmp_lt_u32 s55, {tgt}\ns_cbranch_scc1 {lbl}\n{lbl}_ok:'
    def run_groups(groups, loads, ring, areg, hooks, mid=[], freed={}, depth=0):
        free=list(ring); dest=[]; depth=max(depth,len(ring))
        def ld():
            sr,imm=loads[len(dest)]; dest.append(free.pop(0))
            return [f's_add_u32 s{T0}, s{sr}, {imm}',f'buffer_load_dwordx4 {v(dest[-1],4)}, v{areg}, {srd(sWS)}, s{T0} offen sc1']
        while free: e(ld())
        e(mid)
        il=[]
        for gi,grp in enumerate(groups):
            g.stamp(f'q{gi}')
            h=hooks.get(gi)
            if h:
                e(h[0]); il=il+list(h[1])
            for k,(a,li,Bq,first) in enumerate(grp):
                if k%2==0: e(f's_waitcnt vmcnt({len(dest)-1-li})')
                e(f'v_mfma_f32_32x32x16_bf16 {v(a,16)}, {v(dest[li],4)}, {v(Bq,4)}, {"0" if first else v(a,16)}')
                if k%2==1: free.append(dest[li])
                can=free and len(dest)<len(loads)
                if can and (k%2==1 or (k==0 and len(dest)-li<depth)): e(ld())
                for _ in range(2):
                    if il: e(il.pop(0))
            free+=freed.get(gi,[])
        e(il)
    ZE=opt.get('ze',8)
    def weave(mark, D, first=1, lastfree=2):
        W=g.L[mark:]; del g.L[mark:]
        ch=[]; cur=[]; hold=False
        for k,l_ in enumerate(W):
            cur.append(l_); t=l_.strip()
            if 'exec' in t: hold=not t.endswith('-1')
            nx=W[k+1].strip() if k+1<len(W) else ''
            if not hold and not (t.startswith('s_') and not t.startswith('s_waitcnt')) and not nx.startswith('s_cselect') and f's{T0}' not in nx: ch.append(cur); cur=[]
        if cur: ch.append(cur)
        slots=len(D)-lastfree-first+1
        for k,d in enumerate(D):
            if first<=k<first+slots:
                a=len(ch)*(k-first)//slots; b=len(ch)*(k-first+1)//slots
                for c in ch[a:b]: e(c)
            e(d)

    DX=16; DW=20; PTX=24; PTW=27; S1=29; S2=30; SELS=208; SFS=[224,228,232,236]; SACC=240
    e(f'''s_setprio 1
s_mov_b32 s{ROT}, 0x{oa[::-1]}
s_cmp_eq_u32 s{T0}, 1
s_cselect_b32 s{ROT}, 0x{ob[::-1]}, s{ROT}
v_lshrrev_b32 v6, 2, v4
v_lshlrev_b32 v6, 4, v6
v_and_or_b32 v6, v4, 3, v6
s_lshl_b32 s{T0}, s{HB}, 6
v_add_u32 v6, s{T0}, v6
v_lshlrev_b32 v6, 10, v6
v_lshrrev_b32 v7, 1, v4
v_xor_b32 v7, v5, v7             ; chunk (even j)
v_xor_b32 v8, 4, v7              ; chunk (odd j)
v_lshl_add_u32 v{DX}, v7, 4, v6
v_lshl_add_u32 v{DX+1}, v8, 4, v6
v_add_u32 v{DX+1}, {32768-1024}, v{DX+1}
v_add_u32 v{DX+2}, 2048, v{DX}
v_add_u32 v{DX+3}, 2048, v{DX+1}
s_and_b32 s{XH}, s{CT}, {opt.get('sx',1)}
s_lshl_b32 s{XL}, s{XH}, 12
s_add_u32 s{XL}, s{XL}, s{XR}
s_lshl_b32 s{XH}, s{XH}, 13
s_mov_b32 s{sX+2}, 2097152
s_mov_b32 s{sX+3}, 0x20000''')
    def xs(i,h):
        st=i%3
        if h==0: t=f's_bfe_u32 s{T0}, s{ROT}, {0x30000+4*i}\ns_lshl_b32 s{SOX}, s{T0}, 7\ns_add_u32 m0, s{XL}, {st*8192}\ns_add_u32 s{SOX}, s{SOX}, s{XH}\n'
        else: t=f's_xor_b32 s{T0}, s{XL}, 4096\ns_add_u32 m0, s{T0}, {st*8192}\ns_xor_b32 s{SOX}, s{SOX}, 8192\n'
        return [(t if j==0 else '')+f'buffer_load_dwordx4 v{DX+j}, {srd(sX)}, s{SOX} offen'+(f' offset:{1024*j}' if j else '')+' lds' for j in range(4)]
    def ws(i,h):
        st=i%3; sr=(sW,sW2)[h]
        t=f's_bfe_u32 s{T0}, s{ROT}, {0x30000+4*i}\ns_add_u32 m0, s{(WL,WL2)[h]}, {st*WSS}\ns_mul_i32 s{SOW}, s{T0}, '+(f's{WSTEP}' if h==0 else 's55')+'\n'
        return [t+f'buffer_load_dwordx4 v{DW+2*h}, {srd(sr)}, s{SOW} offen lds',f'buffer_load_dwordx4 v{DW+2*h+1}, {srd(sr)}, s{SOW} offen offset:1024 lds']
    slab=lambda i: xs(i,0)+ws(i,0)+xs(i,1)+ws(i,1)
    e(f's_waitcnt lgkmcnt(0)\ns_mov_b32 s{sX}, s36\ns_mov_b32 s{sX+1}, s37'); g.stamp('e0')
    e(xs(0,0)+xs(0,1))
    e(fsplit(CT,FS,FCNT,T0))
    e(f'''s_lshl_b32 s{WL}, s{TQ}, 11
s_add_u32 s{WL}, s{WL}, {WB}
s_cmp_eq_u32 s{TQ}, 0
s_cselect_b32 s{T1}, 0, 128
s_cselect_b32 s{SPIN}, 3, s{TQ}
s_cselect_b32 s{sW2}, s56, s58
s_cselect_b32 s{sW2+1}, s57, s59
s_cselect_b32 s{sW}, s42, s44
s_cselect_b32 s{sW+1}, s43, s45
s_add_u32 s{WL2}, s{WL}, s{T1}
s_add_u32 s{WL2}, s{WL2}, 8192
s_sub_u32 s{SPIN}, s{SPIN}, 1
s_lshl_b32 s{SPIN}, s{SPIN}, 7
s_lshl_b32 s{T2}, s{FS}, 5
s_lshl_b32 s{F0}, s{FCNT}, 1
s_mov_b32 s{sW2+2}, 1409024
s_mov_b32 s55, 176128
s_mov_b32 s{sW2+3}, 0x20000
v_mov_b32 v0, 0x80000000''')
    def ffo(d,gb,j):
        return f'''v_add_u32 v6, s{gb}, v1
{"v_add_u32 v6, 64, v6" if j else ""}
v_mul_u32_u24 v10, 10923, v6
v_lshrrev_b32 v10, 16, v10
v_mul_u32_u24 v11, 6, v10
v_sub_u32 v11, v6, v11
v_lshrrev_b32 v6, 1, v10
v_xor_b32 v6, v6, v10
v_and_b32 v6, 4, v6
v_mul_u32_u24 v6, 3, v6
v_xor_b32 v10, v10, v6
v_mul_u32_u24 v10, 2752, v10
v_lshl_add_u32 v10, v11, 4, v10
v_cmp_gt_u32 vcc, s{F0}, v11
v_add_u32 v10, s{T2}, v10
{"v_subrev_u32 v10, 1024, v10" if j else ""}
v_cndmask_b32 v{d}, v0, v10, vcc'''
    e(ffo(DW+2,SPIN,0)); e(ffo(DW+3,SPIN,1)); e(ws(0,1))
    e(f's_sub_u32 s{SPIN}, s{TQ}, 2\ns_lshl_b32 s{SPIN}, s{SPIN}, 7')
    e(ffo(DW,SPIN,0)); e(ffo(DW+1,SPIN,1))
    e(f'''s_lshl_b32 s{T1}, s{CT}, 4
v_add_u32 v6, s{T1}, v4
v_lshlrev_b32 v6, 10, v6
v_lshl_add_u32 v10, v7, 4, v6
v_lshl_add_u32 v11, v8, 4, v6
v_add_u32 v11, 7168, v11
s_mov_b32 s{WSTEP}, 176128
s_cmp_lt_u32 s{TQ}, 2
s_cselect_b64 vcc, -1, 0
s_cselect_b32 s{WSTEP}, 128, s{WSTEP}
s_cselect_b32 s{sW}, s{sW}, s56
s_cselect_b32 s{sW+1}, s{sW+1}, s57
s_cselect_b32 s{sW+2}, 524288, s{sW2+2}
s_mov_b32 s{sW+3}, 0x20000
v_cndmask_b32 v{DW}, v{DW}, v10, vcc
v_cndmask_b32 v{DW+1}, v{DW+1}, v11, vcc''')
    e(ws(0,0)); g.stamp('e1')
    if opt.get('sw',1):
        e(f's_bitcmp1_b32 s{RB}, 0\ns_cselect_b64 vcc, -1, 0')
        for a,b in ((sW,sW2),(sW+1,sW2+1),(sW+2,sW2+2),(WL,WL2),(WSTEP,55)):
            e(f's_cselect_b32 s{T0}, s{b}, s{a}\ns_cselect_b32 s{b}, s{a}, s{b}\ns_mov_b32 s{a}, s{T0}')
        for k in range(2): e(f'v_cndmask_b32 v10, v{DW+k}, v{DW+2+k}, vcc\nv_cndmask_b32 v{DW+2+k}, v{DW+2+k}, v{DW+k}, vcc\nv_mov_b32 v{DW+k}, v10')
    R0=160
    e(f'''s_lshl_b32 s{T0}, s{RB}, 5
s_add_u32 s{T0}, s{T0}, s{CT}
s_lshl_b32 s{T0}, s{T0}, 2
s_add_u32 s{WI}, s{T0}, s{TQ}
s_lshl_b32 s{T2}, s{WI}, 11
v_and_b32 v2, 31, v1
v_lshlrev_b32 v2, 4, v2
v_and_b32 v3, 32, v1
v_lshl_add_u32 v2, v3, 5, v2
s_lshl_b32 s{T1}, s2, 2
s_add_u32 s{T1}, s{T1}, s{TQ}
s_cmp_eq_u32 s{T1}, {97*4+3}
s_cbranch_scc1 L_init
L_initd:''')
    t=f'L_init:\nv_lshlrev_b32 v10, 4, v1\nv_add_u32 v10, {ARR}, v10\nv_mov_b32 v44, 0\nv_mov_b32 v45, 0\nv_mov_b32 v46, 0\nv_mov_b32 v47, 0'
    for k in range(NL//8): t+=f'\nglobal_store_dwordx4 v10, v[44:47], s[66:67] offset:{1024*k} sc1'
    g.cold.append(t+'\ns_branch L_initd')
    e(f'buffer_load_dwordx4 {v(R0,4)}, v2, {srd(sX)}, s{T2} offen\nbuffer_load_dwordx4 {v(R0+4,4)}, v2, {srd(sX)}, s{T2} offen offset:512')
    e(f's_lshl_b32 s{T1}, s{DQ}, 7\nv_and_b32 v3, 31, v1\nv_lshl_add_u32 v3, v3, 1, s{T1}\nglobal_load_ushort v40, v3, s[52:53]\nglobal_load_ushort v41, v3, s[52:53] offset:64')
    D=slab(1); n1=opt.get('n1',6)
    e(D[:n1])
    common(1)
    nd=0 if opt.get('nodma') else 1
    e(mksrd(sCR,46,47,524288*nd)); e(mksrd(sCI,48,49,524288*nd)); e(mksrd(sDBG,64,65,256)); e(mksrd(sOUT,62,63,4194304))
    e(f'''s_lshl_b32 s{CB}, s{TQ}, 8
s_cmp_eq_u32 s{TQ}, 0
s_cselect_b32 s{TH}, 1, 0
s_cselect_b32 s{W0}, 0, {BIG}
s_lshr_b32 s{T0}, s{TQ}, 1
s_and_b32 s{T1}, s{TQ}, 1
s_mul_i32 s{T2}, s{T0}, 3072
s_mul_i32 s{SPIN}, s{T1}, {UOFF-GOFF}
s_add_u32 s{T2}, s{T2}, s{SPIN}
s_add_u32 s{T2}, s{T2}, {WB+GOFF}
v_add_u32 v{S2}, s{T2}, v10
s_lshl_b32 s{T0}, s{T0}, 6
s_lshl_b32 s{T1}, s{T1}, 11
s_add_u32 s{T1}, s{T1}, {WB}
v_xor_b32 v{S1}, s{T0}, v6
v_add_u32 v{S1}, s{T1}, v{S1}
v_mov_b32 v3, 0x3f803f80''')
    for f_ in range(4):
        e(f'v_cmp_eq_u32 vcc, {f_}, v2')
        for k in range(4): e(f'v_cndmask_b32 v{SELS+4*f_+k}, 0, v3, vcc')
    zstamps()
    mark=len(g.L)
    if str(opt.get('ch','x1110'))[4]=='0': e([f'v_mov_b64 {v(ACC0+16*tl+k,2)}, 0' for tl in range(4) for k in range(4,16,2)])
    weave(mark,D[n1:],1,1)
    e(f's_setprio {opt.get("lprio",1)}\ns_waitcnt vmcnt(16)\ns_barrier'); g.stamp('B0')
    def ssum(i):
        st=i%3
        L=[f'ds_read_b128 {v(SFS[0],4)}, v{S1} offset:{st*WSS}']+[f'ds_read_b64_tr_b16 {v(SFS[1+q_]+2*j,2)}, v{S2} offset:{st*WSS+8*j*96+32*q_}' for q_ in range(3) for j in range(2)]
        return L+['s_waitcnt lgkmcnt(0)']+[f'v_mfma_f32_16x16x32_bf16 {v(SACC,4)}, {v(SFS[k],4)}, {v(SELS+4*k,4)}, {"0" if (i==0 and k==0) else v(SACC,4)}' for k in range(4)]
    r=lambda k: R0+k
    def allred(a,t):
        for k in (8,4,2,1): e(f'v_add_f32_dpp {v(a)}, {v(a)}, {v(a)} row_ror:{k} row_mask:0xf bank_mask:0xf')
        e(f'v_mov_b32 {v(t)}, {v(a)}\nv_permlane16_swap_b32 {v(t)}, {v(a)}\nv_add_f32 {v(a)}, {v(a)}, {v(t)}')
    e(f's_waitcnt vmcnt(12)\ns_lshl_b32 s{T1}, s2, 2\ns_add_u32 s{T1}, s{T1}, s{TQ}\ns_cmp_eq_u32 s{T1}, {97*4+3}\ns_cbranch_scc1 L_init2\nL_init2d:')
    g.cold.append(f'L_init2:\nv_mov_b32 v44, 0\nv_mov_b32 v45, 1\ns_mov_b64 exec, 1\nbuffer_store_dword v45, v44, {srd(sDBG)}, 0 offen sc1\ns_mov_b64 exec, -1\ns_branch L_init2d')
    D=slab(2); mark=len(g.L)
    for i in range(8): e(f'v_lshlrev_b32 v{r(8+2*i)}, 16, v{r(i)}\nv_and_b32 v{r(9+2*i)}, 0xffff0000, v{r(i)}')
    e(f'v_add_f32 v{r(24)}, v{r(8)}, v{r(9)}\nv_add_f32 v{r(25)}, v{r(10)}, v{r(11)}')
    for i in range(4,16): e(f'v_add_f32 v{r(24+(i&1))}, v{r(24+(i&1))}, v{r(8+i)}')
    e(f'v_add_f32 v{r(24)}, v{r(24)}, v{r(25)}')
    allred(r(24),r(25))
    e(f'v_mul_f32 v{r(24)}, {F(1/512)}, v{r(24)}')
    for i in range(16): e(f'v_sub_f32 v{r(8+i)}, v{r(8+i)}, v{r(24)}')
    e(f'v_mul_f32 v{r(26)}, v{r(8)}, v{r(8)}\nv_mul_f32 v{r(27)}, v{r(9)}, v{r(9)}')
    for i in range(2,16): e(f'v_fmac_f32 v{r(26+(i&1))}, v{r(8+i)}, v{r(8+i)}')
    e(f'v_add_f32 v{r(26)}, v{r(26)}, v{r(27)}')
    allred(r(26),r(27))
    m_,sd,A_,B_,R_,NM,MR_,ad,dt,tp=r(24),r(26),r(8),r(9),r(10),r(11),r(13),r(28),r(29),r(30)
    e(f'''v_mul_f32 v{sd}, {F(1/512)}, v{sd}
v_cvt_pk_bf16_f32 v{m_}, v{m_}, v{sd}
v_and_b32 v{sd}, 0xffff0000, v{m_}
v_lshlrev_b32 v{m_}, 16, v{m_}
v_add_f32 v{sd}, {F(1e-5)}, v{sd}
v_cvt_pk_bf16_f32 v{sd}, v{sd}, v{sd}
v_lshlrev_b32 v{sd}, 16, v{sd}
v_sqrt_f32 v{sd}, v{sd}
v_cvt_pk_bf16_f32 v{sd}, v{sd}, v{sd}
v_lshlrev_b32 v{sd}, 16, v{sd}          ; sd
v_mul_f32 v{R_}, v{sd}, v{sd}
v_rcp_f32 v{sd}, v{sd}                  ; r
v_sub_f32 v{NM}, 0, v{m_}
v_and_b32 v2, 31, v1
v_mul_f32 v{A_}, {F(-2*math.sqrt(2/math.pi)*LOG2E)}, v{sd}
v_mul_f32 v{B_}, v{sd}, v{sd}
v_mul_f32 v{MR_}, v{NM}, v{sd}
v_mul_f32 v{B_}, {F(0.044715)}, v{B_}
v_lshrrev_b32 v3, 5, v1
v_mul_f32 v{B_}, v{B_}, v{A_}
s_lshl_b32 s{T1}, s{CT}, 5
s_sub_u32 s{T1}, s{T1}, s{HB}
s_add_u32 s{T1}, s{T1}, 31
s_lshl_b32 s{T1}, s{T1}, 7
s_add_u32 s{T1}, s{T1}, {EOFF-64}
v_lshl_add_u32 v{ad}, v3, 4, v2
v_lshl_add_u32 v{ad}, v{ad}, 2, s{T1}
v_mov_b32 v{dt}, -1
s_and_b32 s{T1}, s{CT}, 7
s_cselect_b32 s{T1}, {BIG}, s{HA}
v_lshl_add_u32 v{tp}, v3, 7, s{T1}
v_cmp_gt_u32 vcc, 7, v2
v_cndmask_b32 v{ad}, v{ad}, v{tp}, vcc
v_cndmask_b32 v{dt}, v{dt}, 0, vcc
s_lshr_b32 s{T1}, s{WI}, 5
s_lshl_b32 s{T1}, s{T1}, 9
s_and_b32 s{T2}, s{WI}, 31
s_lshl_b32 s{T2}, s{T2}, 3
s_add_u32 s{T1}, s{T1}, s{T2}
s_add_u32 s{T1}, s{T1}, {ST_R-1024}
v_lshl_add_u32 v{tp}, v2, 6, v3
v_lshl_add_u32 v{tp}, v{tp}, 2, s{T1}
v_cmp_gt_u32 vcc, 6, v2
v_cndmask_b32 v{ad}, v{ad}, v{tp}, vcc
v_cndmask_b32 v{dt}, v{dt}, v{MR_}, vcc
s_lshl_b32 s{T1}, s{WI}, 5
s_add_u32 s{T1}, s{T1}, {ST_M}
v_lshl_add_u32 v{tp}, v3, 2, v2
v_lshl_add_u32 v{tp}, v{tp}, 2, s{T1}
v_cmp_gt_u32 vcc, 5, v2
v_cndmask_b32 v{dt}, v{dt}, v{sd}, vcc
v_cmp_gt_u32 vcc, 4, v2
v_cndmask_b32 v{ad}, v{ad}, v{tp}, vcc
v_cndmask_b32 v{dt}, v{dt}, v{NM}, vcc
v_cmp_gt_u32 vcc, 3, v2
v_cndmask_b32 v{dt}, v{dt}, v{R_}, vcc
v_cmp_gt_u32 vcc, 2, v2
v_cndmask_b32 v{dt}, v{dt}, v{B_}, vcc
v_cmp_gt_u32 vcc, 1, v2
v_cndmask_b32 v{dt}, v{dt}, v{A_}, vcc
s_mov_b32 exec_lo, 0xffff007f
s_mov_b32 exec_hi, 0xffff007f
buffer_store_dword v{dt}, v{ad}, {srd(sWS)}, 0 offen sc1
s_mov_b64 exec, -1''')
    e(ssum(0)); weave(mark,D,opt.get('n2',0),opt.get('n2l',2))
    e('s_waitcnt vmcnt(13)\ns_barrier'); g.stamp('B1')
    def vchk(lbl,ld,n):
        e(f's_waitcnt vmcnt({n})\nv_cmp_gt_u32 vcc, s{TH}, v2\ns_cmp_eq_u64 vcc, 0\ns_cbranch_scc0 {lbl}\n{lbl}ok:')
        g.cold.append(f'''{lbl}:
s_mov_b32 s{SPIN}, 0
{lbl}1:
s_sleep 8
{ld}
s_add_u32 s{SPIN}, s{SPIN}, 1
s_cmp_gt_u32 s{SPIN}, 100000
s_cbranch_scc1 {lbl}ok
s_waitcnt vmcnt(0)
v_cmp_gt_u32 vcc, s{TH}, v2
s_cmp_eq_u64 vcc, 0
s_cbranch_scc0 {lbl}1
s_branch {lbl}ok''')
    gold=f'buffer_load_dword v2, v3, {srd(sDBG)}, s{W0} offen sc1'
    arld=f'buffer_load_dword v2, v3, {srd(sWS)}, s{W0} offen sc1'
    W2PF=f'''s_cmp_eq_u32 s{TQ}, 0
s_cselect_b32 s{sOUT}, s{sCR}, s{sCI}
s_cselect_b32 s{sOUT+1}, s{sCR+1}, s{sCI+1}
s_and_b32 s{T2}, s2, -2
s_lshl_b32 s{T1}, s{T2}, 11
s_mul_i32 s{T2}, s{T2}, {43*128}
s_cmp_ge_u32 s{TQ}, 2
s_cselect_b32 s{sOUT}, s{sDN}, s{sOUT}
s_cselect_b32 s{sOUT+1}, s{sDN+1}, s{sOUT+1}
s_cselect_b32 s{T1}, s{T2}, s{T1}
s_cselect_b32 s{T2}, 42, 31
v_min_u32 v10, s{T2}, v1
s_cmp_eq_u32 s{TQ}, 3
s_cselect_b32 s{T2}, {43*128}, 0
s_add_u32 s{T1}, s{T1}, s{T2}
v_lshlrev_b32 v10, 7, v10
s_bitcmp1_b32 s2, 0
s_cselect_b32 s{T1}, {BIG}, s{T1}
buffer_load_dword v11, v10, {srd(sOUT)}, s{T1} offen
s_mov_b32 s{sOUT}, s62
s_mov_b32 s{sOUT+1}, s63'''
    XP=32; RB_=192 if opt.get('bb',0)==0 else ACC0+4; DS=40; OUTO=26
    def vread(vs, base):
        st=vs%3; L=[]
        for k in range(4): L+=trstep(base+8*k,PTX,st*8192+k*2048)
        for k in range(2): L+=trstep(base+32+8*k,PTW,st*WSS+k*2048)
        return L
    carry=0
    for bi in range(1,7):
        pre=0; post=0
        if bi==1: e('v_mov_b32 v3, 0\n'+gold)
        if bi==2:
            e(f's_bfe_u32 s{T1}, s2, {(NL.bit_length()-1)*65536+3}\ns_lshl_b32 s{T1}, s{T1}, 7\ns_add_u32 s{W0}, s{W0}, {ARR}\ns_add_u32 s{T1}, s{T1}, s{W0}\ns_mul_i32 s{TH}, s{TH}, {256//NL}\nv_mov_b32 v2, 1\ns_mov_b64 exec, 1\nbuffer_atomic_add v2, v3, {srd(sWS)}, s{T1} offen sc1\ns_mov_b64 exec, -1'); pre+=1
        if bi==opt.get('xp',3):
            e(f's_mov_b32 m0, s{V14}\ns_lshl_b32 s{T1}, s{DQ}, 7\nbuffer_load_dwordx4 v6, {srd(sX)}, s{T1} offen lds\ns_add_u32 s{T1}, s{T1}, {8192-1024}\nbuffer_load_dwordx4 v6, {srd(sX)}, s{T1} offen offset:1024 lds'); pre+=2
        PP=opt.get('pp',0)
        arp=f'v_min_u32 v3, {NL-1}, v1\nv_lshlrev_b32 v3, 7, v3\n'+arld
        if bi==5 and PP==0: e(arp)
        if bi==5 and PP==9: e('v_mov_b32 v2, 64')
        if bi==6:
            e(f'''s_lshl_b32 s{T1}, s{HB}, 10
s_add_u32 s{T1}, s{T1}, {ST_M}
s_mov_b32 m0, s{V14}
s_lshl_b32 s{T2}, s{HB}, 9
buffer_load_dwordx4 v42, {srd(sWS)}, s{T1} offen sc1 lds
s_lshr_b32 s{T1}, s{WI}, 6
s_lshl_b32 s{T1}, s{T1}, 9
s_add_u32 s{T1}, s{T1}, {ST_R-1024}
s_mov_b32 exec_hi, 0
buffer_load_dwordx4 v15, {srd(sWS)}, s{T1} offen offset:1024 sc1 lds
s_lshl_b32 s{T1}, s{TQ}, 9
s_add_u32 m0, s{T1}, {RM}
s_add_u32 s{T2}, s{T2}, {ST_R}
buffer_load_dwordx4 v15, {srd(sWS)}, s{T2} offen sc1 lds
s_mov_b64 exec, -1''')
        if PF==bi and opt.get('pfp',0)==0: e(W2PF); pre+=1
        if opt.get('tw')==bi:
            e(f'v_min_u32 v10, 4, v1\nv_lshlrev_b32 v10, 21, v10\nbuffer_load_dword v45, v10, {srd(sWS)}, 0 offen\ns_mov_b64 exec, 1\nbuffer_load_dword v46, v{OUTO}, {srd(sOUT)}, 0 offen\ns_mov_b64 exec, -1'); pre+=2
        mark=len(g.L)
        CH=[int(x) for x in str(opt.get('ch','x1110'))[1:]]
        if bi==CH[0]:
            e(f's_lshl_b32 s{T0}, s{DQ}, 6\nv_add_u32 v6, s{T0}, v4\nv_lshlrev_b32 v6, 10, v6\nv_lshl_add_u32 v{DC}, v7, 4, v6\nv_lshl_add_u32 v{DC+1}, v8, 4, v6')
            e(traddr(0,6)+[f'v_add_u32 v{PTX}, s{XR}, v0',f'v_add_u32 v{PTX+1}, s{XR}, v6',f'v_add_u32 v{PTW}, s{WQ}, v0',f'v_add_u32 v{PTW+1}, s{WQ}, v6'])
        if bi==CH[1]:
            e(f'''s_lshl_b32 s{T0}, s{RB2}, 2
s_add_u32 s{T2}, s{T0}, s{TQ2}
s_and_b32 s{T1}, s{TQ}, 1
s_lshl_b32 s{T1}, s{T1}, 5
s_and_b32 s{T0}, s{TQ}, 2
s_lshl_b32 s{T0}, s{T0}, 1
s_add_u32 s{T1}, s{T0}, s{T1}
s_lshl_b32 s{T0}, s{T2}, 6
s_add_u32 s{WI}, s{T0}, s{T1}
v_lshrrev_b32 v0, 5, v1
v_lshl_add_u32 v{OUTO}, v0, 4, s{WI}
v_and_b32 v6, 3, v4
v_add_u32 v6, v6, v{OUTO}
v_lshlrev_b32 v9, 4, v5
v_lshl_add_u32 v6, v6, 10, v9
s_lshl_b32 s{T1}, s{T1}, 2
s_add_u32 s{T1}, s{T1}, s{V14}
v_lshl_add_u32 v43, v0, 6, s{T1}
v_bfe_u32 v31, v1, 2, 2
v_lshl_add_u32 v31, v0, 2, v31
v_lshlrev_b32 v31, 7, v31
v_and_b32 v0, 3, v1
v_lshl_add_u32 v31, v0, 3, v31
v_and_b32 v0, 16, v1
v_lshl_add_u32 v31, v0, 1, v31
v_add_u32 v31, s{V14}, v31
s_lshl_b32 s{T1}, s{DQ}, 7
v_and_b32 v9, 31, v1
v_lshl_add_u32 v9, v9, 1, s{T1}
v_lshlrev_b32 v0, 1, v9
v_lshl_add_u32 v{OUTO}, v{OUTO}, 11, v0''')
        if bi==CH[2]:
            e(f'v_and_b32 v42, 12, v1\nv_lshlrev_b32 v42, 2, v42\nv_and_or_b32 v42, v1, 3, v42\nv_lshrrev_b32 v0, 4, v1\nv_lshl_add_u32 v42, v0, 2, v42\nv_lshlrev_b32 v42, 4, v42')
            e(f'v_and_b32 v0, 3, v1\nv_and_b32 v44, 48, v1\nv_lshl_add_u32 v44, v0, 6, v44\ns_lshl_b32 s{T1}, s{TQ}, 8\ns_add_u32 s{T1}, s{T1}, {SP}\nv_add_u32 v44, s{T1}, v44')
        if bi==CH[3]: e([f'v_mov_b32 v{ACC0+16*tl+k}, 0' for tl in range(4) for k in range(4,16)])
        if bi==opt.get('xq',5): e([f'ds_read_b64_tr_b16 {v(XP+2*tl,2)}, v31 offset:{(tl>>1)*1024+(tl&1)*64}' for tl in range(4)])
        e(ssum(bi))
        weave(mark,slab(bi+2) if bi<6 else vfull(8),opt.get('wf',2),opt.get('wl',3))
        if PF==bi and opt.get('pfp',0)==1: e(W2PF); post+=1
        if bi==4 and PP==1: e(arp); post+=1
        g.stamp(f'p{bi+1}')
        if bi==1: vchk('L_go',gold,12+pre+post)
        elif bi==5: vchk('L_poll',arld,12+post)
        n=12+post+(0 if bi in (5,6) else pre+carry)
        e(f's_waitcnt vmcnt({n}) lgkmcnt(0)\ns_barrier'); g.stamp(f'B{bi+1}')
        carry=post
    RQ=(lambda mh: RB_+8*mh) if opt.get('bb',0)==0 else (lambda mh: [4,16][mh])
    e([f'ds_read_b128 {v(RQ(mh)+4*k,4)}, v43 offset:{1024+32*mh+256*k}' for mh in range(2) for k in range(2)])
    e(ssum(7)); e('s_waitcnt vmcnt(0)')
    e(f's_mov_b32 exec_lo, 0x000f000f\ns_mov_b32 exec_hi, 0x000f000f\nds_write_b128 v44, {v(SACC,4)}\ns_mov_b64 exec, -1')
    if opt.get('ww',1): e('s_waitcnt lgkmcnt(0)')
    V9=vfull(9); R8=vread(8,B1); n9=opt.get('n9',8); r8=opt.get('r8',0)
    e(mix(R8[:r8],V9[:n9],2))
    g.stamp('p8')
    e('s_waitcnt lgkmcnt(15)' if r8>15 else f's_waitcnt lgkmcnt({r8})')
    e('s_setprio 0\ns_barrier'); g.stamp('B8')
    BB=[f'v_lshlrev_b32 v{DS}, 16, v{DS}',f'v_lshlrev_b32 v{DS+1}, 16, v{DS+1}']
    for mh in range(2):
        for dh in range(2):
            for i in range(4):
                a=TILE(mh,dh)+i; xr=XP+2*(2*mh+dh)+(i>>1)
                BB+=[f'v_lshlrev_b32 v{a}, 16, v{xr}' if i%2==0 else f'v_and_b32 v{a}, 0xffff0000, v{xr}',f'v_fma_f32 v0, v{a}, v{RQ(mh)+i}, v{RQ(mh)+4+i}',f'v_fmac_f32 v{a}, v0, v{DS+dh}']
    wstart=len(g.L)
    e(mix(R8[r8:],V9[n9:],3))
    e(mix(BB,vfull(10),4) if opt.get('bb',0)==0 else vfull(10))
    e('s_waitcnt vmcnt(12) lgkmcnt(0)')
    e(mix(vread(9,B2),vfull(11),2))
    e('s_waitcnt vmcnt(12) lgkmcnt(0)')
    e(mix(vread(10,B3),vfull(12),2))
    e('s_waitcnt lgkmcnt(0)'); e(vfull(13))
    if opt.setdefault('th',9):
        W=g.L[wstart:]; del g.L[wstart:]; c=0
        for l_ in W:
            if ' lds' in l_:
                c+=1
                if opt.get('th0',8)<c<=opt.get('th1',99): e(f's_waitcnt vmcnt({opt["th"]})')
            e(l_)
    g.stamp('chores')
    if opt.get('bb',0): e(BB)
    e(p2base(1))
    e(f's_lshl_b32 s{T1}, s{TQ}, 7\nv_xor_b32 v11, s{T1}, v15\nv_mov_b32 v10, v{OUTO}\ns_lshl_b32 s{T1}, s{TQ}, 2\ns_add_u32 s{T1}, s{T1}, {ZF}\nv_mov_b32 v2, s{T1}\nv_mov_b32 v3, 1')
    e(spoll('L_fp1',6,opt.get('slp1',4)))
    g.stamp('go')
    e('s_setprio 1')
    loads=[(SOW,s_*1024+mh*HSTR) for s_ in range(18) for mh in range(2)]
    groups=[[(TILE(mh,dh),2*s_+mh,B1+8*s_+4*dh,False) for mh in range(2) for dh in range(2)] for s_ in range(18)]
    run_groups(groups,loads,[16+4*k for k in range(8)]+[4],11,{ZE:(['s_barrier',g.st('Z1')],[])},['s_waitcnt vmcnt(9)','ds_write_b32 v2, v3'],{s_:[B1+8*s_,B1+8*s_+4] for s_ in range(18)},opt.get('dp1',14))
    g.stamp('ph1')
    e('s_setprio 0')
    XS=112
    for j in range(1,4):
        e(f's_xor_b32 s{T1}, s{TQ}, {j}\ns_mul_i32 s{T1}, s{T1}, {XW}\ns_add_u32 s{T1}, s{T1}, {(j-1)*4096}\nv_add_u32 v{3+j}, s{T1}, v15')
    e(f'v_add_u32 v7, s{XR}, v15\nv_add_u32 v8, s{WQ}, v15')
    for j in range(1,4):
        for tl in range(4): e(f'ds_write_b128 v{3+j}, {v(ACC0+16*tl+4*j,4)} offset:{tl*1024}')
    e('s_waitcnt lgkmcnt(0)\ns_barrier'); g.stamp('Z2')
    def addq(a,srcs,pk):
        for q_ in srcs:
            if pk:
                for j in range(2): e(f'v_pk_add_f32 {v(a+2*j,2)}, {v(a+2*j,2)}, {v(q_+2*j,2)}')
            else:
                for j in range(4): e(f'v_add_f32 v{a+j}, v{a+j}, v{q_+j}')
    def outst(mh,dh):
        for i in range(4):
            if i%2==0: e(f's_mov_b32 s{T0}, {mh*16384+i*2048}')
            e(f'buffer_store_dword v{TILE(mh,dh)+i}, v10, {srd(sOUT)}, s{T0} offen offset:{dh*128+(i&1)*2048} sc1')
    for tl in range(4):
        for j in range(3): e(f'ds_read_b128 {v(XS+12*tl+4*j,4)}, v7 offset:{j*4096+tl*1024}')
    for tl in range(4):
        e(f's_waitcnt lgkmcnt({9-3*tl})')
        addq(ACC0+16*tl,[XS+12*tl+4*k for k in range(3)],False)
    e('s_barrier'); g.stamp('Z23')
    e('s_setprio 1')
    for dh in range(2):
        for k in range(4): e(f'ds_read_b128 {v(XS+16*dh+4*k,4)}, v7 offset:{16384+k*2048+dh*1024}')
    for dh in range(2):
        e(f's_waitcnt lgkmcnt({4-4*dh})')
        addq(TILE(0,dh),[XS+16*dh+4*k for k in range(4)],False); outst(0,dh)
    for dh in range(2):
        e('s_barrier')
        if dh: g.stamp('p2end')
        for k in range(4): e(f'ds_read_b128 {v(XS+16*dh+4*k,4)}, v8 offset:{dh*WSS+k*1024}')
        for k in range(0,4,2):
            e(f's_waitcnt lgkmcnt({2-k})'); addq(TILE(1,dh),[XS+16*dh+4*k,XS+16*dh+4*k+4],True)
        outst(1,dh)
    e('s_branch L_fin' if opt.get('stamps') else 's_endpgm')
    e(g.cold); g.cold=[]

    SL=16; XA=22; SA=24; TA=26; GA=27; SPA=28; RA=29; SSA=30; SS=12
    L64,WG,WH,L32,WSEL,KAP,CP,EA,NI=32,34,36,38,40,42,44,46,47
    PR=80; PI=96; FA=112; XB=208; WR=240
    RS=XB; GC=XB+16; MR=WR
    e(f'''L_comp:
v_and_b32 v3, 15, v1
s_lshl_b32 s{T1}, s{CT}, 5
v_lshl_add_u32 v3, v3, 1, s{T1}
s_lshl_b32 s{T0}, s{TQ}, 2
s_add_u32 s{T0}, s{T0}, {ZF}
v_mov_b32 v10, s{T0}
v_mov_b32 v11, 0
ds_write_b32 v10, v11
s_waitcnt lgkmcnt(0)
global_load_ushort v244, v3, s[38:39]
global_load_ushort v245, v3, s[40:41]
global_load_ushort v246, v3, s[50:51]''')
    e(fsplit(CT,FS,FCNT,T0))
    common(0)
    e(f'''s_lshl_b32 s{T0}, s{CT}, 12
s_add_u32 s{T0}, s{T0}, {EOFF}
s_add_u32 s{sE}, s66, s{T0}
s_addc_u32 s{sE+1}, s67, 0
s_mov_b32 s{sE+2}, 4096
s_mov_b32 s{sE+3}, 0x20000
v_add_u32 v{XA}, s{XR}, v6
v_xor_b32 v{XA+1}, 64, v{XA}
v_add_u32 v{SA}, {WB}, v6
v_xor_b32 v{SA+1}, 64, v{SA}
v_add_u32 v{TA}, {WB+GOFF}, v10
v_lshl_add_u32 v{GA}, v2, 4, s{V14}
v_and_b32 v{SPA}, 48, v1
s_lshl_b32 s{T0}, s{TQ}, 9
s_add_u32 s{T0}, s{T0}, {RM}
v_lshl_add_u32 v{RA}, v{SPA}, 2, s{T0}
v_add_u32 v{SPA}, {SP}, v{SPA}
v_lshlrev_b32 v{SSA}, 2, v2
v_add_u32 v{SSA}, {SP}, v{SSA}
v_lshlrev_b32 v{EA}, 3, v2
v_and_b32 v0, 1, v1
v_lshlrev_b32 v0, 4, v0
v_mov_b32 v6, 0x3f80
v_lshlrev_b32 v0, v0, v6
v_bfe_u32 v6, v1, 2, 2
v_cmp_eq_u32 vcc, v6, v3
v_and_b32 v6, 2, v1
v_mov_b32 v{SL}, 0
v_cndmask_b32 v0, 0, v0, vcc
v_cmp_eq_u32 vcc, 0, v6
v_mov_b32 v{SL+1}, 0
v_mov_b32 v{SL+4}, 0
v_cndmask_b32 v{SL+2}, 0, v0, vcc
v_cndmask_b32 v{SL+3}, v0, 0, vcc
v_mov_b32 v{SL+5}, 0
s_sub_u32 s{T0}, 31, s{HB}
s_lshl_b32 s{SOW}, s{T0}, 7
s_mul_i32 s{HB}, s{HB}, {2*HSTR}''')
    if opt.get('nost'): e(f's_mov_b32 s{HB}, {BIG}')
    FO=[ROT,WSTEP,XL]
    for sb in range(3): e(f's_add_u32 s{T2}, s{FS}, {sb}\ns_lshl_b32 s{T2}, s{T2}, 10\ns_add_u32 s{T2}, s{T2}, s{HB}\ns_cmp_gt_u32 s{FCNT}, {sb}\ns_cselect_b32 s{FO[sb]}, s{T2}, {BIG}')
    e(f's_and_b32 s{T0}, s{CT}, 7\ns_cmp_lt_u32 s{T0}, 6\ns_cselect_b32 s{WL}, s{HA}, {BIG}\ns_add_u32 s{HA}, s{HA}, 128\ns_add_u32 s{SOX}, s{CT}, 86\ns_lshl_b32 s{SOX}, s{SOX}, 10\ns_add_u32 s{SOX}, s{SOX}, s{HB}')
    if opt.get('stamps'): e(mksrd(sX,36,37,2097152))
    zstamps()
    e(f'''s_waitcnt vmcnt(0)
v_lshlrev_b32 v244, 16, v244
v_lshlrev_b32 v245, 16, v245
v_lshlrev_b32 v246, 16, v246
v_mul_f32 v246, {F(LOG2E)}, v246
v_exp_f32 v246, v246
v_cvt_pk_bf16_f32 v246, v246, v246
v_lshlrev_b32 v246, 16, v246
v_mul_f32 v247, v246, v244
v_mul_f32 v248, v246, v245
v_mul_f32 v247, {F(LOG2E)}, v247
v_mul_f32 v248, 0.15915494, v248''')
    def cpow(dr,di,n):
        e([f'v_mul_f32 v249, {n}, v247',f'v_mul_f32 v250, {n}, v248','v_rndne_f32 v251, v250','v_exp_f32 v249, v249','v_sub_f32 v250, v250, v251','v_cos_f32 v251, v250','v_sin_f32 v250, v250',f'v_mul_f32 {v(dr)}, v249, v251',f'v_mul_f32 {v(di)}, v249, v250'])
    cpow(PR,PI,'1.0')
    for j in range(1,16):
        a=(j-1)//2; b=j-1-a
        e([f'v_mul_f32 {v(PR+j)}, {v(PR+a)}, {v(PR+b)}',f'v_mul_f32 {v(PI+j)}, {v(PR+a)}, {v(PI+b)}',f'v_fma_f32 {v(PR+j)}, -{v(PI+a)}, {v(PI+b)}, {v(PR+j)}',f'v_fmac_f32 {v(PI+j)}, {v(PI+a)}, {v(PR+b)}'])
    cpow(L32,L32+1,F(32.0)); cpow(L64,L64+1,F(64.0))
    e(['v_and_b32 v252, 16, v1','v_cvt_f32_u32 v252, v252']); cpow(WSEL,WSEL+1,'v252')
    e(['v_and_b32 v252, 48, v1','v_cvt_f32_u32 v252, v252']); cpow(WG,WG+1,'v252')
    e(f'v_mul_f32 v252, {F(32.0)}, v252'); cpow(254,255,'v252')
    e(['v_mul_f32 v249, v244, v244','v_fmac_f32 v249, v245, v245','v_rcp_f32 v249, v249',f'v_add_f32 v250, -1.0, v{PR}',f'v_mul_f32 v{KAP}, v250, v244',f'v_fmac_f32 v{KAP}, v{PI}, v245',
        f'v_mul_f32 v{KAP+1}, v{PI}, v244',f'v_fma_f32 v{KAP+1}, -v250, v245, v{KAP+1}','v_add_f32 v249, v249, v249',f'v_mul_f32 v{KAP}, v249, v{KAP}',f'v_mul_f32 v{KAP+1}, v249, v{KAP+1}'])
    e(cmul(WH,KAP,254)); e(f'v_sub_f32 v{NI}, 0, v{PI}')
    g.stamp('lam')
    if opt.get('ic'):
        e(f's_sub_u32 s{SPIN}, s{TQ}, 4\ns_mov_b64 exec, 0\nL_ret:\ns_add_u32 s{SPIN}, s{SPIN}, 4')
        for k in range(8): e(f's_cmp_eq_u32 s{SPIN}, {k}\ns_cbranch_scc1 L_pad{k}')
        e('s_mov_b64 exec, -1')
        g.stamp('icd')
    e(f's_setprio {opt.get("cprio",0)}\ns_barrier'); g.stamp('B0')
    X=lambda b,t4: XB+16*b+4*t4
    Wq=lambda q: WR+4*(q%4)
    def wr(q):
        n,k=divmod(q,8); i,u=divmod(n,2); st=i%3
        if k<2: return [f'ds_read_b128 {v(Wq(q),4)}, v{SA+u} offset:{st*WSS+k*2048}']
        sb,up=divmod(k-2,2)
        return [f'ds_read_b64_tr_b16 {v(Wq(q)+2*j,2)}, v{TA} offset:{st*WSS+(32*u+8*j)*96+32*sb+up*(UOFF-GOFF)}' for j in range(2)]
    def xr(n,t4):
        i,u=divmod(n,2)
        return f'ds_read_b128 {v(X(n&1,t4),4)}, v{XA+u} offset:{(i%3)*8192+t4*2048}'
    ops=[]
    def issue(x,tag): e(x); ops.append(tag)
    issue(wr(0)[0],('w',0))
    for t4 in range(4): issue(xr(0,t4),('x',0))
    for q in (1,2):
        for x in wr(q): issue(x,('w',q))
    for q in range(128):
        n,k=divmod(q,8); nxt=q+3
        need=[('w',q)]+([('x',n)] if k==0 else [])
        last=max(i for i,o in enumerate(ops) if o in need)
        if nxt%16==0:
            g.stamp(f'p{nxt//16}')
            e('s_waitcnt lgkmcnt(0)\ns_barrier'); g.stamp(f'B{nxt//16}')
        elif q<125: e(f's_waitcnt lgkmcnt({len(ops)-1-last})')
        R=[(x,('w',nxt)) for x in wr(nxt)] if nxt<128 else []
        if n<15 and k in (5,6): R+=[(xr(n+1,t4),('x',n+1)) for t4 in (2*(k-5),2*(k-5)+1)]
        if q in (121,122): R+=[(f'ds_read_b128 {v(RS+4*j,4)}, v{RA} offset:{16*j}',('r',0)) for j in (2*(q-121),2*(q-121)+1)]
        if q==125: R+=[(f'ds_read_b32 v{4+j}, v{SSA} offset:{256*j}',('r',0)) for j in range(4)]
        if q==126: R+=[(f'ds_read_b128 {v(MR+4*j,4)}, v{RA} offset:{256+16*j}',('r',0)) for j in (0,1)]
        if q==127: R+=[('',None),(f'ds_read_b128 {v(MR+8,4)}, v{RA} offset:{256+32}',('r',0))]
        for t4 in range(4):
            a=(ACC0+16*k if k<2 else FA+16*(k-2))+4*t4; c='0' if n==0 else v(a,4)
            xo,wo=v(X(n&1,t4),4),v(Wq(q),4)
            e(f'v_mfma_f32_16x16x32_bf16 {v(a,4)}, {xo if k<2 else wo}, {wo if k<2 else xo}, {c}')
            if R:
                x,tg=R.pop(0)
                if tg: issue(x,tg)
        assert not R
    g.stamp('loopend')
    Xr=ACC0; Yr=ACC0+16; Z,T,P,Q=4,6,8,10
    e(f's_waitcnt lgkmcnt(3)\nv_add_f32 v{SS}, v4, v6\nv_add_f32 v{SS+1}, v5, v7')
    e(f'ds_read_b128 {v(MR+12,4)}, v{RA} offset:{256+48}')
    for i in range(8): e(f'v_pk_mul_f32 {v(Xr+2*i,2)}, {v(Xr+2*i,2)}, {v(RS+2*i,2)}\nv_pk_mul_f32 {v(Yr+2*i,2)}, {v(Yr+2*i,2)}, {v(RS+2*i,2)}')
    e('s_waitcnt lgkmcnt(0)')
    for i in range(8):
        xx=v(Xr+2*i,2); yy=v(Yr+2*i,2)
        e(f'v_pk_fma_f32 {xx}, {v(MR+2*i,2)}, {v(SS,2)}, {xx} op_sel_hi:[1,0,1]\nv_pk_fma_f32 {yy}, {v(MR+2*i,2)}, {v(SS,2)}, {yy} op_sel:[0,1,0] op_sel_hi:[1,1,1]')
    SG=[RS,MR,RS]; SGT=RS+8; TMP=MR+8
    def sread(sb): return [f'ds_read_b128 {v((SG[sb],SGT)[q_>>1]+4*(q_&1),4)}, v{SPA} offset:{256*q_+64*(1+sb)}' for q_ in range(4)]
    def sadd(sb): return ['s_waitcnt lgkmcnt(0)']+[f'v_pk_add_f32 {v(SG[sb]+2*k,2)}, {v(SG[sb]+2*k,2)}, {v(SGT+2*k,2)}' for k in range(4)]
    SC=[]
    for j in range(1,16): SC+=[f'v_fmac_f32 v{Xr+j}, v{PR}, v{Xr+j-1}',f'v_fmac_f32 v{Yr+j}, v{PR}, v{Yr+j-1}',f'v_fmac_f32 v{Xr+j}, v{NI}, v{Yr+j-1}',f'v_fmac_f32 v{Yr+j}, v{PI}, v{Xr+j-1}']
    e(SC)
    g.stamp('a_scan')
    rd=[f'ds_read_b128 {v(GC+4*k,4)}, v{GA} offset:{256*k}' for k in range(4)]+sread(0)
    e(f'v_mov_b32 v{T}, v{Xr+15}\nv_mov_b32 v{T+1}, v{Yr+15}\nv_mov_b32 v{Z}, 0\nv_mov_b32 v{Z+1}, 0'); e(rd[:2])
    e(f'v_permlane16_swap_b32 v{Z}, v{T}\nv_permlane16_swap_b32 v{Z+1}, v{T+1}')
    e(cfma(P,(PR+15,PI+15),Z,(Xr+15,Yr+15)))
    e(f'v_mov_b32 v{Q}, v{P}\nv_mov_b32 v{Q+1}, v{P+1}\nv_mov_b32 v{T}, 0\nv_mov_b32 v{T+1}, 0\nv_permlane16_swap_b32 v{Q}, v{P}\nv_permlane16_swap_b32 v{Q+1}, v{P+1}'); e(rd[2:3])
    e(f'v_permlane32_swap_b32 v{T}, v{P}\nv_permlane32_swap_b32 v{T+1}, v{P+1}')
    e(cfma(P,L32,T,P))
    e(f'''v_min_u32 v{P}, -2, v{P}
v_min_u32 v{P+1}, -2, v{P+1}
s_mov_b32 exec_lo, 0
s_mov_b32 exec_hi, 0xffff0000
buffer_store_dwordx2 {v(P,2)}, v{EA}, {srd(sE)}, s{SOW} offen sc1
s_mov_b64 exec, -1''')
    g.stamp('b_pub')
    e(rd[3:])
    e(cfma(Z,WSEL,T,Z)+cmul(CP,KAP,Z))
    e(f'v_and_b32 v2, 48, v1\nv_lshl_add_u32 v{EA}, v2, 6, v{EA}\ns_add_u32 s{SOW}, s{SOW}, 128\nv_mov_b32 v2, 1\nv_mov_b32 v3, 0')
    def gelu(sb, tb):
        acc=FA+32*sb; sg=SG[sb]; L=[]; t=TMP
        G_=lambda i: v(acc+8*tb+2*i,2); U_=lambda i: v(acc+16+8*tb+2*i,2); T_=lambda i: v(t+2*i,2)
        cp=lambda i: v(GC+4*(2*tb+(i>>1)),2); rp=lambda i: v(GC+4*(2*tb+(i>>1))+2,2); o=acc+16+8*tb
        for i in range(4): L.append(f'v_pk_fma_f32 {G_(i)}, {v(sg+2*(i&1),2)}, {rp(i)}, {G_(i)} op_sel:[0,1,0] op_sel_hi:[1,1,1]')
        for i in range(4): L.append(f'v_pk_mul_f32 {T_(i)}, {G_(i)}, {G_(i)}')
        for i in range(4): L.append(f'v_pk_fma_f32 {T_(i)}, {T_(i)}, {cp(i)}, {cp(i)} op_sel:[0,1,0] op_sel_hi:[1,1,0]')
        for i in range(4): L.append(f'v_pk_mul_f32 {T_(i)}, {T_(i)}, {G_(i)}')
        for i in range(8): L.append(f'v_exp_f32 {v(t+i)}, {v(t+i)}')
        for i in range(4): L.append(f'v_pk_fma_f32 {U_(i)}, {v(sg+4+2*(i&1),2)}, {rp(i)}, {U_(i)} op_sel:[0,1,0] op_sel_hi:[1,1,1]')
        for i in range(4): L.append(f'v_pk_fma_f32 {T_(i)}, {T_(i)}, {rp(i)}, {rp(i)} op_sel_hi:[1,0,0]')
        for i in range(8): L.append(f'v_rcp_f32 {v(t+i)}, {v(t+i)}')
        for i in range(4): L.append(f'v_pk_mul_f32 {G_(i)}, {G_(i)}, {U_(i)}')
        for i in range(4): L.append(f'v_pk_mul_f32 {G_(i)}, {G_(i)}, {T_(i)}')
        for i in (0,2,1,3): L.append(f'v_cvt_pk_bf16_f32 {v(o+i)}, {v(acc+8*tb+2*i)}, {v(acc+8*tb+2*i+1)}')
        L.append(f's_add_u32 s{T1}, s{FO[sb]}, {tb*HSTR}\nv_permlane16_swap_b32 v{o}, v{o+2}\nv_permlane16_swap_b32 v{o+1}, v{o+3}\nbuffer_store_dwordx4 {v(o,4)}, v15, {srd(sWS)}, s{T1} offen sc1')
        return L
    signal=lambda sr: f's_mov_b64 exec, 1\nbuffer_atomic_add v2, v3, {srd(sWS)}, s{sr} offen sc1\ns_mov_b64 exec, -1'
    ER=[FA+32+2*k for k in range(8)]
    eld='\n'.join(f'buffer_load_dwordx2 {v(ER[u_],2)}, v{EA}, {srd(sE)}, s{SOW} offen offset:{128*u_} sc1' for u_ in range(8))
    e(sadd(0)); g.stamp('t0'); e(gelu(0,0)[:-1]); g.stamp('t1'); e(gelu(0,0)[-1]); g.stamp('t2'); e(mix(gelu(0,1),sread(1),8)); g.stamp('t3'); e(sadd(1)); e(gelu(1,0)[:-1]); g.stamp('t4'); e(gelu(1,0)[-1]); g.stamp('t5'); e(mix(gelu(1,1),sread(2),8)); g.stamp('t6'); e(sadd(2)); e(gelu(2,0)); g.stamp('t7')
    EP=opt.get('ep',1)
    if EP==0: e(eld)
    e(gelu(2,1))
    g.stamp('gdone')
    if EP==1: e(eld)
    kp=v(KAP,2)
    for i in range(8):
        xx=v(Xr+2*i,2); yy=v(Yr+2*i,2); tt=v(4+2*(i&1),2)
        e([f'v_pk_mul_f32 {tt}, {xx}, {kp} op_sel:[0,1] op_sel_hi:[1,1] neg_lo:[0,1] neg_hi:[0,1]',f'v_pk_mul_f32 {xx}, {xx}, {kp} op_sel_hi:[1,0]',
           f'v_pk_fma_f32 {xx}, {yy}, {kp}, {xx} op_sel:[0,1,0] op_sel_hi:[1,1,1] neg_lo:[0,1,0] neg_hi:[0,1,0]',f'v_pk_fma_f32 {yy}, {yy}, {kp}, {tt} op_sel_hi:[1,0,1] neg_lo:[0,1,0] neg_hi:[0,1,0]'])
    chk='\n'.join([f'v_max3_u32 v0, v{ER[0]}, v{ER[0]+1}, v{ER[1]}',f'v_max3_u32 v4, v{ER[1]+1}, v{ER[2]}, v{ER[2]+1}']+[f'v_max3_u32 v{(0,4)[u_&1]}, v{ER[u_]}, v{ER[u_]+1}, v{(0,4)[u_&1]}' for u_ in range(3,8)]+['v_max_u32 v0, v0, v4','v_cmp_eq_u32 vcc, -1, v0','s_cmp_eq_u64 vcc, 0'])
    if EP==1:
        e('s_waitcnt vmcnt(8)'); e(signal(WL)); g.stamp('flag0')
    e(f's_waitcnt vmcnt(1)\n{chk}\ns_cbranch_scc0 L_epoll\nL_eok:')
    pre='' if EP==1 else f's_waitcnt vmcnt(0)\n{signal(WL)}\ns_mov_b32 s{WL}, {BIG}'
    g.cold.append(f'''L_epoll:
{pre}
s_mov_b32 s{SPIN}, 0
L_epoll1:
s_sleep 4
{eld}
s_add_u32 s{SPIN}, s{SPIN}, 1
s_cmp_gt_u32 s{SPIN}, 100000
s_cbranch_scc1 L_eok
s_waitcnt vmcnt(0)
{chk}
s_cbranch_scc0 L_epoll1
s_branch L_eok''')
    g.stamp('Eok')
    e('s_setprio 2')
    for u_ in range(6,-1,-1): e(cfma(ER[u_],L64,ER[u_+1],ER[u_]))
    e(cmul(4,WH,ER[0]))
    for sw in ('16','32'):
        e(f'v_mov_b32 v6, v4\nv_mov_b32 v7, v5\nv_permlane{sw}_swap_b32 v6, v4\nv_permlane{sw}_swap_b32 v7, v5\nv_add_f32 v4, v6, v4\nv_add_f32 v5, v7, v5')
    e(cfma(CP,WG,4,CP))
    cp=v(CP,2)
    for comp,R_ in ((0,Xr),(1,Yr)):
        for i in range(8):
            rr_=v(R_+2*i,2); pr=v(PR+2*i,2); pi=v(PI+2*i,2)
            if comp==0: e(f'v_pk_fma_f32 {rr_}, {pr}, {cp}, {rr_} op_sel_hi:[1,0,1]\nv_pk_fma_f32 {rr_}, {pi}, {cp}, {rr_} op_sel:[0,1,0] op_sel_hi:[1,1,1] neg_lo:[0,1,0] neg_hi:[0,1,0]')
            else: e(f'v_pk_fma_f32 {rr_}, {pr}, {cp}, {rr_} op_sel:[0,1,0] op_sel_hi:[1,1,1] neg_lo:[0,1,0] neg_hi:[0,1,0]\nv_pk_fma_f32 {rr_}, {pi}, {cp}, {rr_} op_sel_hi:[1,0,1] neg_lo:[0,1,0] neg_hi:[0,1,0]')
    for comp,R_,D_ in ((0,Xr,112),(1,Yr,128)):
        for i in range(8): e(f'v_cvt_pk_bf16_f32 v{R_+i}, v{R_+2*i}, v{R_+2*i+1}')
        for tb in range(2):
            for ab in range(2): e(f'v_mfma_f32_16x16x32_bf16 {v(D_+8*tb+4*ab,4)}, {v(R_+4*tb,4)}, {v(SL+2-2*ab,4)}, 0')
    for comp,R_,D_ in ((0,Xr,112),(1,Yr,128)):
        for i in range(8): e(f'v_cvt_pk_bf16_f32 v{R_+8+i}, v{D_+2*i}, v{D_+2*i+1}')
        if EP==0 and comp==0: e('s_waitcnt vmcnt(0)'); e(signal(WL)); g.stamp('flag0')
        for tb in range(2):
            o=R_+8+4*tb
            e(f'v_permlane16_swap_b32 v{o}, v{o+2}\nv_permlane16_swap_b32 v{o+1}, v{o+3}')
            e(f's_add_u32 s{T1}, s{SOX}, {comp*32768+tb*HSTR}\nbuffer_store_dwordx4 {v(o,4)}, v15, {srd(sWS)}, s{T1} offen sc1')
    g.stamp('c_st')
    e(vgroup(f's{V14}, 0',[DF],sDN,FB,20*16384,2))
    TV=144; JB=112; RB_=160
    e(['v_and_b32 v12, 31, v1','v_lshrrev_b32 v13, 5, v1','v_bfe_u32 v0, v1, 1, 3','v_xor_b32 v0, v13, v0','v_lshlrev_b32 v0, 4, v0','v_lshl_add_u32 v0, v12, 7, v0',f'v_add_u32 v4, s{XR}, v0',f'v_add_u32 v8, s{WQ}, v0'])
    for k in range(1,4): e(f'v_xor_b32 v{4+k}, {32*k}, v4\nv_xor_b32 v{8+k}, {32*k}, v8')
    e(traddr(0,12)+[f'v_add_u32 v{TV+4}, s{WQ}, v0',f'v_add_u32 v{TV+5}, s{WQ}, v12',f'v_add_u32 v{TV}, s{V14}, v0',f'v_add_u32 v{TV+1}, s{V14}, v12'])
    e(f's_lshl_b32 s{T1}, s{TQ}, 2\ns_add_u32 s{T1}, s{T1}, {ZF}\nv_mov_b32 v13, s{T1}')
    e(p2base(0))
    e('s_waitcnt vmcnt(2)'); e(signal(HA))
    g.stamp('flag')
    e(f's_cmp_ge_u32 s{TQ}, 2\ns_cbranch_scc1 L_no14'); e(vgroup(f's{V14}, 2048',[DF],sDN,FB,21*16384,2)); e('L_no14:')
    e(f'''s_setprio 0
s_cmp_ge_u32 s{TQ}, 2
s_cselect_b32 s{XL}, {BIG}, s{SOW}
s_cselect_b32 s{T1}, 0, 2048
v_add_u32 v{TV+2}, s{T1}, v{TV}
v_add_u32 v{TV+3}, s{T1}, v{TV+1}
s_mov_b32 s{SPIN}, 0
L_z0:
s_sleep 1
ds_read_b32 v0, v13
s_add_u32 s{SPIN}, s{SPIN}, 1
s_waitcnt lgkmcnt(0)
v_cmp_ne_u32 vcc, 1, v0
s_cmp_gt_u32 s{SPIN}, 1000000
s_cselect_b64 vcc, 0, vcc
s_cmp_eq_u64 vcc, 0
s_cbranch_scc0 L_z0''')
    g.stamp('Z0')
    e([f'ds_read_b128 {v(JB+8*k+4*dh,4)}, v{4+k} offset:{2*8192+dh*4096}' for k in range(4) for dh in range(2)])
    e([f'ds_read_b128 {v(RB_+32*bl+8*k+4*dh,4)}, v{4+k} offset:{bl*8192+dh*4096}' for bl in range(2) for k in range(4) for dh in range(2)])
    e([f'ds_read_b128 {v(RB_+64+8*k+4*dh,4)}, v{8+k} offset:{dh*WSS}' for k in range(4) for dh in range(2)])
    e('s_waitcnt lgkmcnt(0)')
    e([f's_lshl_b32 s{T1}, s{TQ}, 11\ns_add_u32 s{T1}, s{T1}, {q_*XW+16384}\nv_add_u32 v{4+q_}, s{T1}, v15' for q_ in range(4)])
    e(f's_lshl_b32 s{T1}, s{TQ}, 10\ns_add_u32 s{T1}, s{T1}, {WB}\nv_add_u32 v8, s{T1}, v15')
    e('s_barrier'); g.stamp('Z1')
    e(spoll('L_fp0',8,opt.get('slp0',4)))
    g.stamp('go')
    blkoff=lambda b_,k: (86+32*(b_&1)+4*(b_>>1)+k)*1024
    st_=[(SOX,blkoff(0,k),JB+8*k) for k in range(4)]+[(SOW,(18+k)*1024,JB+8*k) for k in range(3)]+[(XL,21*1024,JB+24)]
    st2=[(SOX,blkoff(1+bl,k),RB_+32*bl+8*k) for bl in range(3) for k in range(4)]
    loads=[];groups=[]
    for s_,(sr,im,Bq) in enumerate(st_):
        groups.append([(TILE(mh,dh),len(loads)+mh,Bq+4*dh,s_==0) for mh in range(2) for dh in range(2)])
        for mh in range(2): loads.append((sr,im+mh*HSTR))
    for mh in range(2):
        for p_ in range(6):
            grp=[]
            for s_ in (2*p_,2*p_+1):
                sr,im,Bq=st2[s_]
                grp+=[(TILE(mh,dh),len(loads),Bq+4*dh,False) for dh in range(2)]
                loads.append((sr,im+mh*HSTR))
            groups.append(grp)
    jit=[trstep(JB,TV+4,2*WSS),trstep(JB+8,TV+4,2*WSS+2048),trstep(JB+16,TV,0),trstep(JB+24,TV+2,0)]
    wr0=[]
    for dh in range(2):
        for q_ in range(4): wr0+=[f'ds_write_b128 v{4+q_}, {v(TILE(0,dh)+4*q_,4)} offset:{dh*1024}','']
    hooks={1:([],jit[0]),2:([],jit[1]),3:([],jit[2]),4:(['s_waitcnt lgkmcnt(8)'],jit[3]),5:(['s_waitcnt lgkmcnt(8)'],[]),6:(['s_waitcnt lgkmcnt(4)'],[]),7:(['s_waitcnt lgkmcnt(0)'],[]),
           10:(['s_barrier',g.st('Z2')],[]),14:([],['']*6+wr0),17:(['s_waitcnt lgkmcnt(0)','s_barrier',g.st('Z23')],[])}
    run_groups(groups,loads,[16+4*k for k in range(8)]+[152,156],15,hooks)
    wr1=lambda dh: [f'ds_write_b128 v8, {v(TILE(1,dh)+4*q_,4)} offset:{dh*WSS+q_*4096}' for q_ in range(4)]
    idx=[k for k,l_ in enumerate(g.L) if 'v_mfma_f32_32x32x16' in l_][-12:]
    seg=g.L[idx[0]:]; del g.L[idx[0]:]
    assert not any('buffer_load' in l_ for l_ in seg)
    late=[l_ for l_ in seg if 'v_mfma' in l_ and l_.split()[1].rstrip(',')==v(TILE(1,1),16)]
    e([l_ for l_ in seg if l_ not in late])
    e([late[0],'s_nop 4',late[1],'s_nop 3']); e(mix(late[2:],wr1(0),1)); e('s_waitcnt lgkmcnt(0)\ns_barrier'); e(wr1(1))
    e('s_waitcnt lgkmcnt(0)\ns_barrier')
    g.stamp('p2end')
    if opt.get('stamps'):
        e('L_fin:\ns_waitcnt vmcnt(0)'); g.stamp('done')
        e(f'''s_waitcnt lgkmcnt(0)
s_cmp_eq_u32 s{TQ}, {opt.get('stq',0)}
s_cbranch_scc0 L_end
s_add_u32 s{sX}, s66, {STAMP}
s_addc_u32 s{sX+1}, s67, 0
s_lshl_b32 s{T0}, s2, 1
s_add_u32 s{T0}, s{T0}, s{NH}
s_lshl_b32 s{T0}, s{T0}, 7
v_mov_b32 v2, 0''')
        prs=[100]+G.POOL[:len(g.names())]
        for i,p in enumerate(prs): e(f'v_mov_b32 v4, s{p}\nv_mov_b32 v5, s{p+1}\nbuffer_store_dwordx2 v[4:5], v2, {srd(sX)}, s{T0} offen offset:{8*i}')
    e('L_end:\ns_endpgm'); e(g.cold); e('L_last:\ns_endpgm')
    if opt.get('stamps'): g.L.insert(0,'; STAMPS start,'+','.join(g.names()))
    body=hz.fix('\n'.join(g.L), verbose=opt.get('v',0))
    if opt.get('al'):
        import align
        body,nw,nn=align.run(body,lambda b: header([(NAME,256,512,163840)])+kstart(NAME)+b+'\n',opt['al'])
    if opt.get('ic'):
        import align
        body,npad=align.pads('L_anchor:\n'+body,lambda b: header([(NAME,256,512,163840)])+b+'\n')
        body=body.replace('L_anchor:\n','')
        if opt.get('v'): print('pads',npad)
    ref=open('parallel_sum__ssm_conv_s5__geglu_ffn__prompt.s.ref').read() if opt.get('final') else ''
    cm_=''.join(l+'\n' for l in ref.split('\n') if l.startswith(';') and '@launch' not in l and 'Override' not in l and 'grid=ceil' not in l)
    return cm_+header([(NAME,256,512,163840)])+('.p2align 12\n' if opt.get('pa',1) else '')+kstart(NAME)+body+'\n'+RODATA+kd(NAME,256,256)

if __name__=='__main__':
    out=sys.argv[1]; opt={}
    for a in sys.argv[2:]:
        k,_,val=a.partition('='); opt[k]=int(val) if val.lstrip('-').isdigit() else (val or 1)
    open(out,'w').write(build(opt))
```

```python
import sys, math
from asmlib import *
import hz
from gen_v3 import F, LOG2E, BIG, G, cmul, cfma, mix, mksrd, fsplit, v, srd
XW=24576; WB=98304; WSS=16640; GOFF=4096; UOFF=4096+6144+128
SCR=WB+3*WSS; SP=SCR+12288; RM=SP+1024; ZF=RM+2048
HSTR=150*1024; ST_M=0xA00000; ST_R=0xA08000; ARR=0xA10000; FLG=0xA20000; EOFF=0xA60000; WSSZ=0xA80000
STAMP=0x8000000
sX,sW,sWS,sDBG,sCR,sCI,sDN,sE,sOUT=4,8,12,16,20,24,28,32,68
sW2=sE
TH=0; W0=1; FS=3; WL2=54; WI=72; CB=73; FCNT=74; FB=75
W_,TQ,NH,RB,CT,ROT,WSTEP,XL,WL=76,77,78,79,80,81,82,83,84
RB2,TQ2,DQ,SOX,SOW,T0,T1,T2,F0,HB,XR,WQ=85,86,87,88,89,90,91,92,93,94,95,96
SPIN=97; HA=98; V14=99; XH=W_
G.POOL=[36,42,44,56,58,38,40,46,48,50,64,60]
G.DEF='B0,B1,B4,B8,gdone,flag,go,q1,ph1,p2end,done'
DC=12; DF=14
ACC0=48; B1,B2,B3=112,160,208
TILE=lambda mh,dh: ACC0+32*mh+16*dh

def build(opt):
    g=G(opt); e=g.e
    PF=opt.get('pf',2); NL=opt.get('nl',16)
    e(f'''s_cmp_ge_u32 s2, 256
s_cbranch_scc1 L_end
s_load_dwordx16 s[36:51], s[0:1], 0
s_load_dwordx16 s[52:67], s[0:1], 64
s_getpc_b64 s[72:73]
L_pc0:
v_lshrrev_b32 v3, 6, v0
s_and_b32 s3, s2, 0xf8
v_add_lshl_u32 v2, v3, s3, 7
v_min_u32 v2, L_last-L_pc0, v2
v_and_b32 v1, 63, v0
v_readfirstlane_b32 s{W_}, v3
global_load_dword v9, v2, s[72:73]
s_bfe_u32 s{TQ2}, s2, 0x20003
s_lshr_b32 s{DQ}, s2, 5''')
    if opt.get('stamps'): e(('s_memtime' if opt['stamps']==2 else 's_memrealtime')+' s[100:101]')
    oa,ob=opt.get('ord','x01245673.45670123')[1:].split('.')
    e(f'''s_and_b32 s{T0}, s2, 1
s_lshl_b32 s{RB}, s{T0}, 2
s_bfe_u32 s{T1}, s2, 0x20001
s_xor_b32 s{RB2}, s{RB}, 4
s_add_u32 s{RB2}, s{RB2}, s{T1}
s_add_u32 s{RB}, s{RB}, s{TQ2}
s_lshl_b32 s{CT}, s{T1}, 3
s_add_u32 s{CT}, s{CT}, s{DQ}
s_xor_b32 s{CT}, s{CT}, 4
s_and_b32 s{TQ}, s{W_}, 3
s_lshr_b32 s{NH}, s{W_}, 2
s_lshl_b32 s{HB}, s{RB}, 2
s_add_u32 s{HB}, s{HB}, s{TQ}
s_mul_i32 s{XR}, s{TQ}, {XW}
v_lshrrev_b32 v4, 3, v1          ; q
v_and_b32 v5, 7, v1              ; pos
s_cmp_eq_u32 s{NH}, 0
s_cbranch_scc1 L_comp''')
    def zstamps():
        if opt.get('stamps'):
            for r,nm in zip(G.POOL,g.names()):
                if nm not in ('e0','e1'): e(f's_mov_b64 s[{r}:{r+1}], 0')
    def common(nh):
        e(mksrd(sWS,66,67,WSSZ)); e(mksrd(sDN,60,61,1409024*(0 if opt.get('nodma') else 1)))
        e(f'''v_lshlrev_b32 v6, 1, v4
v_and_b32 v6, 4, v6
v_xor_b32 v6, v5, v6
v_lshlrev_b32 v6, 4, v6
v_lshl_add_u32 v6, v4, 10, v6
s_lshl_b32 s{T0}, s{DQ}, 7
v_add_u32 v{DF}, s{T0}, v6
s_mul_i32 s{F0}, s{TQ}, 22
s_cmp_eq_u32 s{TQ}, 3
s_cselect_b32 s{T0}, 1, 0
s_sub_u32 s{F0}, s{F0}, s{T0}
s_lshl_b32 s{FB}, s{F0}, 14
s_lshl_b32 s{WQ}, s{TQ}, 12
s_lshl_b32 s{T0}, s{T0}, 11
s_sub_u32 s{V14}, s{WQ}, s{T0}
s_add_u32 s{V14}, s{V14}, {SCR}
s_add_u32 s{WQ}, s{WQ}, {WB}
s_lshl_b32 s{HA}, s{HB}, 2
s_lshr_b32 s{T0}, s{CT}, 3
s_add_u32 s{HA}, s{HA}, s{T0}
s_lshl_b32 s{HA}, s{HA}, 8
s_add_u32 s{HA}, s{HA}, {FLG}
v_lshlrev_b32 v15, 4, v1
v_and_b32 v2, 15, v1
v_lshrrev_b32 v3, 4, v1
v_bfe_u32 v6, v1, 1, 3
v_xor_b32 v6, v3, v6
v_lshlrev_b32 v6, 4, v6
v_lshl_add_u32 v6, v2, 7, v6
v_bfe_u32 v10, v1, 2, 3
v_lshrrev_b32 v11, 5, v1
v_lshl_add_u32 v10, v11, 4, v10
v_mul_u32_u24 v10, 96, v10
v_and_b32 v11, 3, v1
v_lshl_add_u32 v10, v11, 3, v10''')
    def vgroup(m0, vregs, sr, sb, imm, n):
        L=[]
        for j in range(n):
            t=f's_add_u32 m0, {m0}\n' if j==0 else ''
            t+=f's_add_u32 s{T0}, s{sb}, {imm+j*(8192-1024)}\nbuffer_load_dwordx4 v{vregs[j%len(vregs)]}, {srd(sr)}, s{T0} offen'+(f' offset:{1024*j}' if j else '')+' lds'
            L.append(t)
        return L
    def vx(vs,half):
        st=vs%3; m0=f's{XR}, {st*8192+half*4096}'
        if vs>=11:
            b=vs-11; return vgroup(m0,[DC,DC+1],sCI if b&1 else sCR,CB,(b>>1)*128+half*32768,4)
        return vgroup(m0,[DF],sDN,FB,6*(vs-8)*16384+half*32768,4)
    def vw(vs):
        st=vs%3
        if vs>=12: return vgroup(f's{WQ}, {st*WSS}',[DC,DC+1],sCI,CB,128+(vs-12)*32768,4)
        return vgroup(f's{WQ}, {st*WSS}',[DF],sDN,FB,(6*(vs-8)+4 if vs<11 else 18)*16384,4)
    def vfull(vs): return vx(vs,0)+vx(vs,1)+vw(vs)
    def traddr(t0,t1):
        return [f'v_bfe_u32 v{t0}, v1, 2, 2',f'v_lshrrev_b32 v{t1}, 5, v1',f'v_lshl_add_u32 v{t0}, v{t1}, 3, v{t0}',f'v_lshlrev_b32 v{t0}, 7, v{t0}',f'v_and_b32 v{t1}, 3, v1',f'v_lshl_add_u32 v{t0}, v{t1}, 3, v{t0}',
            f'v_bfe_u32 v{t1}, v1, 4, 1',f'v_lshl_add_u32 v{t0}, v{t1}, 5, v{t0}',f'v_bfe_u32 v{t1}, v1, 3, 1',f'v_lshl_add_u32 v{t0}, v{t1}, 6, v{t0}',f'v_xor_b32 v{t1}, 64, v{t0}']
    def trstep(base,areg,off):
        return [f'ds_read_b64_tr_b16 {v(base+dh*4+2*j,2)}, v{areg+dh} offset:{off+j*512}' for dh in range(2) for j in range(2)]
    def p2base(nh):
        return f'''s_lshl_b32 s{T0}, s{RB2}, 2
s_add_u32 s{T0}, s{T0}, s{TQ2}
s_mul_i32 s{SOX}, s{T0}, {2*HSTR}
s_lshl_b32 s{HB}, s{T0}, 2
s_add_u32 s{HB}, s{HB}, s{TQ}
s_lshl_b32 s{HB}, s{HB}, 8
s_add_u32 s{HB}, s{HB}, {FLG+128*(1-nh)}
s_lshl_b32 s{T0}, s{F0}, 10
s_add_u32 s{SOW}, s{SOX}, s{T0}
s_lshl_b32 s{T0}, s{TQ}, 13
s_add_u32 s{SOX}, s{SOX}, s{T0}'''
    sld=f's_load_dword s55, s[66:67], s{HB} glc'
    def spoll(lbl, tgt, sl):
        g.cold.append(f'''{lbl}:
s_mov_b32 s{SPIN}, 0
{lbl}_1:
s_sleep {sl}
{sld}
s_add_u32 s{SPIN}, s{SPIN}, 1
s_waitcnt lgkmcnt(0)
s_cmp_gt_u32 s{SPIN}, 100000
s_cselect_b32 s55, {tgt}, s55
s_cmp_lt_u32 s55, {tgt}
s_cbranch_scc1 {lbl}_1
s_branch {lbl}_ok''')
        return f'{sld}\ns_waitcnt lgkmcnt(0)\ns_cmp_lt_u32 s55, {tgt}\ns_cbranch_scc1 {lbl}\n{lbl}_ok:'
    def run_groups(groups, loads, ring, areg, hooks, mid=[], freed={}, depth=0):
        free=list(ring); dest=[]; depth=max(depth,len(ring))
        def ld():
            sr,imm=loads[len(dest)]; dest.append(free.pop(0))
            return [f's_add_u32 s{T0}, s{sr}, {imm}',f'buffer_load_dwordx4 {v(dest[-1],4)}, v{areg}, {srd(sWS)}, s{T0} offen sc1']
        while free: e(ld())
        e(mid)
        il=[]
        for gi,grp in enumerate(groups):
            g.stamp(f'q{gi}')
            h=hooks.get(gi)
            if h:
                e(h[0]); il=il+list(h[1])
            for k,(a,li,Bq,first) in enumerate(grp):
                if k%2==0: e(f's_waitcnt vmcnt({len(dest)-1-li})')
                e(f'v_mfma_f32_32x32x16_bf16 {v(a,16)}, {v(dest[li],4)}, {v(Bq,4)}, {"0" if first else v(a,16)}')
                if k%2==1: free.append(dest[li])
                can=free and len(dest)<len(loads)
                if can and (k%2==1 or (k==0 and len(dest)-li<depth)): e(ld())
                for _ in range(2):
                    if il: e(il.pop(0))
            free+=freed.get(gi,[])
        e(il)
    ZE=opt.get('ze',8)
    def weave(mark, D, first=1, lastfree=2):
        W=g.L[mark:]; del g.L[mark:]
        ch=[]; cur=[]; hold=False
        for k,l_ in enumerate(W):
            cur.append(l_); t=l_.strip()
            if 'exec' in t: hold=not t.endswith('-1')
            nx=W[k+1].strip() if k+1<len(W) else ''
            if not hold and not (t.startswith('s_') and not t.startswith('s_waitcnt')) and not nx.startswith('s_cselect') and f's{T0}' not in nx: ch.append(cur); cur=[]
        if cur: ch.append(cur)
        slots=len(D)-lastfree-first+1
        for k,d in enumerate(D):
            if first<=k<first+slots:
                a=len(ch)*(k-first)//slots; b=len(ch)*(k-first+1)//slots
                for c in ch[a:b]: e(c)
            e(d)

    DX=16; DW=20; PTX=24; PTW=27; S1=29; S2=30; SELS=208; SFS=[224,228,232,236]; SACC=240
    e(f'''s_setprio 1
s_mov_b32 s{ROT}, 0x{oa[::-1]}
s_cmp_eq_u32 s{T0}, 1
s_cselect_b32 s{ROT}, 0x{ob[::-1]}, s{ROT}
v_lshrrev_b32 v6, 2, v4
v_lshlrev_b32 v6, 4, v6
v_and_or_b32 v6, v4, 3, v6
s_lshl_b32 s{T0}, s{HB}, 6
v_add_u32 v6, s{T0}, v6
v_lshlrev_b32 v6, 10, v6
v_lshrrev_b32 v7, 1, v4
v_xor_b32 v7, v5, v7             ; chunk (even j)
v_xor_b32 v8, 4, v7              ; chunk (odd j)
v_lshl_add_u32 v{DX}, v7, 4, v6
v_lshl_add_u32 v{DX+1}, v8, 4, v6
v_add_u32 v{DX+1}, {32768-1024}, v{DX+1}
v_add_u32 v{DX+2}, 2048, v{DX}
v_add_u32 v{DX+3}, 2048, v{DX+1}
s_and_b32 s{XH}, s{CT}, {opt.get('sx',1)}
s_lshl_b32 s{XL}, s{XH}, 12
s_add_u32 s{XL}, s{XL}, s{XR}
s_lshl_b32 s{XH}, s{XH}, 13
s_mov_b32 s{sX+2}, 2097152
s_mov_b32 s{sX+3}, 0x20000''')
    def xs(i,h):
        st=i%3
        if h==0: t=f's_bfe_u32 s{T0}, s{ROT}, {0x30000+4*i}\ns_lshl_b32 s{SOX}, s{T0}, 7\ns_add_u32 m0, s{XL}, {st*8192}\ns_add_u32 s{SOX}, s{SOX}, s{XH}\n'
        else: t=f's_xor_b32 s{T0}, s{XL}, 4096\ns_add_u32 m0, s{T0}, {st*8192}\ns_xor_b32 s{SOX}, s{SOX}, 8192\n'
        return [(t if j==0 else '')+f'buffer_load_dwordx4 v{DX+j}, {srd(sX)}, s{SOX} offen'+(f' offset:{1024*j}' if j else '')+' lds' for j in range(4)]
    def ws(i,h):
        st=i%3; sr=(sW,sW2)[h]
        t=f's_bfe_u32 s{T0}, s{ROT}, {0x30000+4*i}\ns_add_u32 m0, s{(WL,WL2)[h]}, {st*WSS}\ns_mul_i32 s{SOW}, s{T0}, '+(f's{WSTEP}' if h==0 else 's55')+'\n'
        return [t+f'buffer_load_dwordx4 v{DW+2*h}, {srd(sr)}, s{SOW} offen lds',f'buffer_load_dwordx4 v{DW+2*h+1}, {srd(sr)}, s{SOW} offen offset:1024 lds']
    slab=lambda i: xs(i,0)+ws(i,0)+xs(i,1)+ws(i,1)
    e(f's_waitcnt lgkmcnt(0)\ns_mov_b32 s{sX}, s36\ns_mov_b32 s{sX+1}, s37'); g.stamp('e0')
    e(xs(0,0)+xs(0,1))
    e(fsplit(CT,FS,FCNT,T0))
    e(f'''s_lshl_b32 s{WL}, s{TQ}, 11
s_add_u32 s{WL}, s{WL}, {WB}
s_cmp_eq_u32 s{TQ}, 0
s_cselect_b32 s{T1}, 0, 128
s_cselect_b32 s{SPIN}, 3, s{TQ}
s_cselect_b32 s{sW2}, s56, s58
s_cselect_b32 s{sW2+1}, s57, s59
s_cselect_b32 s{sW}, s42, s44
s_cselect_b32 s{sW+1}, s43, s45
s_add_u32 s{WL2}, s{WL}, s{T1}
s_add_u32 s{WL2}, s{WL2}, 8192
s_sub_u32 s{SPIN}, s{SPIN}, 1
s_lshl_b32 s{SPIN}, s{SPIN}, 7
s_lshl_b32 s{T2}, s{FS}, 5
s_lshl_b32 s{F0}, s{FCNT}, 1
s_mov_b32 s{sW2+2}, 1409024
s_mov_b32 s55, 176128
s_mov_b32 s{sW2+3}, 0x20000
v_mov_b32 v0, 0x80000000''')
    def ffo(d,gb,j):
        return f'''v_add_u32 v6, s{gb}, v1
{"v_add_u32 v6, 64, v6" if j else ""}
v_mul_u32_u24 v10, 10923, v6
v_lshrrev_b32 v10, 16, v10
v_mul_u32_u24 v11, 6, v10
v_sub_u32 v11, v6, v11
v_lshrrev_b32 v6, 1, v10
v_xor_b32 v6, v6, v10
v_and_b32 v6, 4, v6
v_mul_u32_u24 v6, 3, v6
v_xor_b32 v10, v10, v6
v_mul_u32_u24 v10, 2752, v10
v_lshl_add_u32 v10, v11, 4, v10
v_cmp_gt_u32 vcc, s{F0}, v11
v_add_u32 v10, s{T2}, v10
{"v_subrev_u32 v10, 1024, v10" if j else ""}
v_cndmask_b32 v{d}, v0, v10, vcc'''
    e(ffo(DW+2,SPIN,0)); e(ffo(DW+3,SPIN,1)); e(ws(0,1))
    e(f's_sub_u32 s{SPIN}, s{TQ}, 2\ns_lshl_b32 s{SPIN}, s{SPIN}, 7')
    e(ffo(DW,SPIN,0)); e(ffo(DW+1,SPIN,1))
    e(f'''s_lshl_b32 s{T1}, s{CT}, 4
v_add_u32 v6, s{T1}, v4
v_lshlrev_b32 v6, 10, v6
v_lshl_add_u32 v10, v7, 4, v6
v_lshl_add_u32 v11, v8, 4, v6
v_add_u32 v11, 7168, v11
s_mov_b32 s{WSTEP}, 176128
s_cmp_lt_u32 s{TQ}, 2
s_cselect_b64 vcc, -1, 0
s_cselect_b32 s{WSTEP}, 128, s{WSTEP}
s_cselect_b32 s{sW}, s{sW}, s56
s_cselect_b32 s{sW+1}, s{sW+1}, s57
s_cselect_b32 s{sW+2}, 524288, s{sW2+2}
s_mov_b32 s{sW+3}, 0x20000
v_cndmask_b32 v{DW}, v{DW}, v10, vcc
v_cndmask_b32 v{DW+1}, v{DW+1}, v11, vcc''')
    e(ws(0,0)); g.stamp('e1')
    if opt.get('sw',1):
        e(f's_bitcmp1_b32 s{RB}, 0\ns_cselect_b64 vcc, -1, 0')
        for a,b in ((sW,sW2),(sW+1,sW2+1),(sW+2,sW2+2),(WL,WL2),(WSTEP,55)):
            e(f's_cselect_b32 s{T0}, s{b}, s{a}\ns_cselect_b32 s{b}, s{a}, s{b}\ns_mov_b32 s{a}, s{T0}')
        for k in range(2): e(f'v_cndmask_b32 v10, v{DW+k}, v{DW+2+k}, vcc\nv_cndmask_b32 v{DW+2+k}, v{DW+2+k}, v{DW+k}, vcc\nv_mov_b32 v{DW+k}, v10')
    R0=160
    e(f'''s_lshl_b32 s{T0}, s{RB}, 5
s_add_u32 s{T0}, s{T0}, s{CT}
s_lshl_b32 s{T0}, s{T0}, 2
s_add_u32 s{WI}, s{T0}, s{TQ}
s_lshl_b32 s{T2}, s{WI}, 11
v_and_b32 v2, 31, v1
v_lshlrev_b32 v2, 4, v2
v_and_b32 v3, 32, v1
v_lshl_add_u32 v2, v3, 5, v2
s_lshl_b32 s{T1}, s2, 2
s_add_u32 s{T1}, s{T1}, s{TQ}
s_cmp_eq_u32 s{T1}, {97*4+3}
s_cbranch_scc1 L_init
L_initd:''')
    t=f'L_init:\nv_lshlrev_b32 v10, 4, v1\nv_add_u32 v10, {ARR}, v10\nv_mov_b32 v44, 0\nv_mov_b32 v45, 0\nv_mov_b32 v46, 0\nv_mov_b32 v47, 0'
    for k in range(NL//8): t+=f'\nglobal_store_dwordx4 v10, v[44:47], s[66:67] offset:{1024*k} sc1'
    g.cold.append(t+'\ns_branch L_initd')
    e(f'buffer_load_dwordx4 {v(R0,4)}, v2, {srd(sX)}, s{T2} offen\nbuffer_load_dwordx4 {v(R0+4,4)}, v2, {srd(sX)}, s{T2} offen offset:512')
    e(f's_lshl_b32 s{T1}, s{DQ}, 7\nv_and_b32 v3, 31, v1\nv_lshl_add_u32 v3, v3, 1, s{T1}\nglobal_load_ushort v40, v3, s[52:53]\nglobal_load_ushort v41, v3, s[52:53] offset:64')
    D=slab(1); n1=opt.get('n1',6)
    e(D[:n1])
    common(1)
    nd=0 if opt.get('nodma') else 1
    e(mksrd(sCR,46,47,524288*nd)); e(mksrd(sCI,48,49,524288*nd)); e(mksrd(sDBG,64,65,256)); e(mksrd(sOUT,62,63,4194304))
    e(f'''s_lshl_b32 s{CB}, s{TQ}, 8
s_cmp_eq_u32 s{TQ}, 0
s_cselect_b32 s{TH}, 1, 0
s_cselect_b32 s{W0}, 0, {BIG}
s_lshr_b32 s{T0}, s{TQ}, 1
s_and_b32 s{T1}, s{TQ}, 1
s_mul_i32 s{T2}, s{T0}, 3072
s_mul_i32 s{SPIN}, s{T1}, {UOFF-GOFF}
s_add_u32 s{T2}, s{T2}, s{SPIN}
s_add_u32 s{T2}, s{T2}, {WB+GOFF}
v_add_u32 v{S2}, s{T2}, v10
s_lshl_b32 s{T0}, s{T0}, 6
s_lshl_b32 s{T1}, s{T1}, 11
s_add_u32 s{T1}, s{T1}, {WB}
v_xor_b32 v{S1}, s{T0}, v6
v_add_u32 v{S1}, s{T1}, v{S1}
v_mov_b32 v3, 0x3f803f80''')
    for f_ in range(4):
        e(f'v_cmp_eq_u32 vcc, {f_}, v2')
        for k in range(4): e(f'v_cndmask_b32 v{SELS+4*f_+k}, 0, v3, vcc')
    zstamps()
    mark=len(g.L)
    if str(opt.get('ch','x1110'))[4]=='0': e([f'v_mov_b64 {v(ACC0+16*tl+k,2)}, 0' for tl in range(4) for k in range(4,16,2)])
    weave(mark,D[n1:],1,1)
    e(f's_setprio {opt.get("lprio",1)}\ns_waitcnt vmcnt(16)'); g.stamp('l0'); e('s_barrier'); g.stamp('B0')
    def ssum(i):
        st=i%3
        L=[f'ds_read_b128 {v(SFS[0],4)}, v{S1} offset:{st*WSS}']+[f'ds_read_b64_tr_b16 {v(SFS[1+q_]+2*j,2)}, v{S2} offset:{st*WSS+8*j*96+32*q_}' for q_ in range(3) for j in range(2)]
        return L+['s_waitcnt lgkmcnt(0)']+[f'v_mfma_f32_16x16x32_bf16 {v(SACC,4)}, {v(SFS[k],4)}, {v(SELS+4*k,4)}, {"0" if (i==0 and k==0) else v(SACC,4)}' for k in range(4)]
    r=lambda k: R0+k
    def allred(a,t):
        for k in (8,4,2,1): e(f'v_add_f32_dpp {v(a)}, {v(a)}, {v(a)} row_ror:{k} row_mask:0xf bank_mask:0xf')
        e(f'v_mov_b32 {v(t)}, {v(a)}\nv_permlane16_swap_b32 {v(t)}, {v(a)}\nv_add_f32 {v(a)}, {v(a)}, {v(t)}')
    e(f's_waitcnt vmcnt(12)\ns_lshl_b32 s{T1}, s2, 2\ns_add_u32 s{T1}, s{T1}, s{TQ}\ns_cmp_eq_u32 s{T1}, {97*4+3}\ns_cbranch_scc1 L_init2\nL_init2d:')
    g.cold.append(f'L_init2:\nv_mov_b32 v44, 0\nv_mov_b32 v45, 1\ns_mov_b64 exec, 1\nbuffer_store_dword v45, v44, {srd(sDBG)}, 0 offen sc1\ns_mov_b64 exec, -1\ns_branch L_init2d')
    D=slab(2); mark=len(g.L)
    for i in range(8): e(f'v_lshlrev_b32 v{r(8+2*i)}, 16, v{r(i)}\nv_and_b32 v{r(9+2*i)}, 0xffff0000, v{r(i)}')
    e(f'v_add_f32 v{r(24)}, v{r(8)}, v{r(9)}\nv_add_f32 v{r(25)}, v{r(10)}, v{r(11)}')
    for i in range(4,16): e(f'v_add_f32 v{r(24+(i&1))}, v{r(24+(i&1))}, v{r(8+i)}')
    e(f'v_add_f32 v{r(24)}, v{r(24)}, v{r(25)}')
    allred(r(24),r(25))
    e(f'v_mul_f32 v{r(24)}, {F(1/512)}, v{r(24)}')
    for i in range(16): e(f'v_sub_f32 v{r(8+i)}, v{r(8+i)}, v{r(24)}')
    e(f'v_mul_f32 v{r(26)}, v{r(8)}, v{r(8)}\nv_mul_f32 v{r(27)}, v{r(9)}, v{r(9)}')
    for i in range(2,16): e(f'v_fmac_f32 v{r(26+(i&1))}, v{r(8+i)}, v{r(8+i)}')
    e(f'v_add_f32 v{r(26)}, v{r(26)}, v{r(27)}')
    allred(r(26),r(27))
    m_,sd,A_,B_,R_,NM,MR_,ad,dt,tp=r(24),r(26),r(8),r(9),r(10),r(11),r(13),r(28),r(29),r(30)
    e(f'''v_mul_f32 v{sd}, {F(1/512)}, v{sd}
v_cvt_pk_bf16_f32 v{m_}, v{m_}, v{sd}
v_and_b32 v{sd}, 0xffff0000, v{m_}
v_lshlrev_b32 v{m_}, 16, v{m_}
v_add_f32 v{sd}, {F(1e-5)}, v{sd}
v_cvt_pk_bf16_f32 v{sd}, v{sd}, v{sd}
v_lshlrev_b32 v{sd}, 16, v{sd}
v_sqrt_f32 v{sd}, v{sd}
v_cvt_pk_bf16_f32 v{sd}, v{sd}, v{sd}
v_lshlrev_b32 v{sd}, 16, v{sd}          ; sd
v_mul_f32 v{R_}, v{sd}, v{sd}
v_rcp_f32 v{sd}, v{sd}                  ; r
v_sub_f32 v{NM}, 0, v{m_}
v_and_b32 v2, 31, v1
v_mul_f32 v{A_}, {F(-2*math.sqrt(2/math.pi)*LOG2E)}, v{sd}
v_mul_f32 v{B_}, v{sd}, v{sd}
v_mul_f32 v{MR_}, v{NM}, v{sd}
v_mul_f32 v{B_}, {F(0.044715)}, v{B_}
v_lshrrev_b32 v3, 5, v1
v_mul_f32 v{B_}, v{B_}, v{A_}
s_lshl_b32 s{T1}, s{CT}, 5
s_sub_u32 s{T1}, s{T1}, s{HB}
s_add_u32 s{T1}, s{T1}, 31
s_lshl_b32 s{T1}, s{T1}, 7
s_add_u32 s{T1}, s{T1}, {EOFF-64}
v_lshl_add_u32 v{ad}, v3, 4, v2
v_lshl_add_u32 v{ad}, v{ad}, 2, s{T1}
v_mov_b32 v{dt}, -1
s_and_b32 s{T1}, s{CT}, 7
s_cselect_b32 s{T1}, {BIG}, s{HA}
v_lshl_add_u32 v{tp}, v3, 7, s{T1}
v_cmp_gt_u32 vcc, 7, v2
v_cndmask_b32 v{ad}, v{ad}, v{tp}, vcc
v_cndmask_b32 v{dt}, v{dt}, 0, vcc
s_lshr_b32 s{T1}, s{WI}, 5
s_lshl_b32 s{T1}, s{T1}, 9
s_and_b32 s{T2}, s{WI}, 31
s_lshl_b32 s{T2}, s{T2}, 3
s_add_u32 s{T1}, s{T1}, s{T2}
s_add_u32 s{T1}, s{T1}, {ST_R-1024}
v_lshl_add_u32 v{tp}, v2, 6, v3
v_lshl_add_u32 v{tp}, v{tp}, 2, s{T1}
v_cmp_gt_u32 vcc, 6, v2
v_cndmask_b32 v{ad}, v{ad}, v{tp}, vcc
v_cndmask_b32 v{dt}, v{dt}, v{MR_}, vcc
s_lshl_b32 s{T1}, s{WI}, 5
s_add_u32 s{T1}, s{T1}, {ST_M}
v_lshl_add_u32 v{tp}, v3, 2, v2
v_lshl_add_u32 v{tp}, v{tp}, 2, s{T1}
v_cmp_gt_u32 vcc, 5, v2
v_cndmask_b32 v{dt}, v{dt}, v{sd}, vcc
v_cmp_gt_u32 vcc, 4, v2
v_cndmask_b32 v{ad}, v{ad}, v{tp}, vcc
v_cndmask_b32 v{dt}, v{dt}, v{NM}, vcc
v_cmp_gt_u32 vcc, 3, v2
v_cndmask_b32 v{dt}, v{dt}, v{R_}, vcc
v_cmp_gt_u32 vcc, 2, v2
v_cndmask_b32 v{dt}, v{dt}, v{B_}, vcc
v_cmp_gt_u32 vcc, 1, v2
v_cndmask_b32 v{dt}, v{dt}, v{A_}, vcc
s_mov_b32 exec_lo, 0xffff007f
s_mov_b32 exec_hi, 0xffff007f
buffer_store_dword v{dt}, v{ad}, {srd(sWS)}, 0 offen sc1
s_mov_b64 exec, -1''')
    e(ssum(0)); weave(mark,D,opt.get('n2',0),opt.get('n2l',2))
    e('s_waitcnt vmcnt(13)\ns_barrier'); g.stamp('B1')
    def vchk(lbl,ld,n):
        e(f's_waitcnt vmcnt({n})\nv_cmp_gt_u32 vcc, s{TH}, v2\ns_cmp_eq_u64 vcc, 0\ns_cbranch_scc0 {lbl}\n{lbl}ok:')
        g.cold.append(f'''{lbl}:
s_mov_b32 s{SPIN}, 0
{lbl}1:
s_sleep 8
{ld}
s_add_u32 s{SPIN}, s{SPIN}, 1
s_cmp_gt_u32 s{SPIN}, 100000
s_cbranch_scc1 {lbl}ok
s_waitcnt vmcnt(0)
v_cmp_gt_u32 vcc, s{TH}, v2
s_cmp_eq_u64 vcc, 0
s_cbranch_scc0 {lbl}1
s_branch {lbl}ok''')
    gold=f'buffer_load_dword v2, v3, {srd(sDBG)}, s{W0} offen sc1'
    arld=f'buffer_load_dword v2, v3, {srd(sWS)}, s{W0} offen sc1'
    W2PF=f'''s_cmp_eq_u32 s{TQ}, 0
s_cselect_b32 s{sOUT}, s{sCR}, s{sCI}
s_cselect_b32 s{sOUT+1}, s{sCR+1}, s{sCI+1}
s_and_b32 s{T2}, s2, -2
s_lshl_b32 s{T1}, s{T2}, 11
s_mul_i32 s{T2}, s{T2}, {43*128}
s_cmp_ge_u32 s{TQ}, 2
s_cselect_b32 s{sOUT}, s{sDN}, s{sOUT}
s_cselect_b32 s{sOUT+1}, s{sDN+1}, s{sOUT+1}
s_cselect_b32 s{T1}, s{T2}, s{T1}
s_cselect_b32 s{T2}, 42, 31
v_min_u32 v10, s{T2}, v1
s_cmp_eq_u32 s{TQ}, 3
s_cselect_b32 s{T2}, {43*128}, 0
s_add_u32 s{T1}, s{T1}, s{T2}
v_lshlrev_b32 v10, 7, v10
s_bitcmp1_b32 s2, 0
s_cselect_b32 s{T1}, {BIG}, s{T1}
buffer_load_dword v11, v10, {srd(sOUT)}, s{T1} offen
s_mov_b32 s{sOUT}, s62
s_mov_b32 s{sOUT+1}, s63'''
    XP=32; RB_=192 if opt.get('bb',0)==0 else ACC0+4; DS=40; OUTO=26
    def vread(vs, base):
        st=vs%3; L=[]
        for k in range(4): L+=trstep(base+8*k,PTX,st*8192+k*2048)
        for k in range(2): L+=trstep(base+32+8*k,PTW,st*WSS+k*2048)
        return L
    carry=0
    for bi in range(1,7):
        pre=0; post=0
        if bi==1: e('v_mov_b32 v3, 0\n'+gold)
        if bi==2:
            e(f's_bfe_u32 s{T1}, s2, {(NL.bit_length()-1)*65536+3}\ns_lshl_b32 s{T1}, s{T1}, 7\ns_add_u32 s{W0}, s{W0}, {ARR}\ns_add_u32 s{T1}, s{T1}, s{W0}\ns_mul_i32 s{TH}, s{TH}, {256//NL}\nv_mov_b32 v2, 1\ns_mov_b64 exec, 1\nbuffer_atomic_add v2, v3, {srd(sWS)}, s{T1} offen sc1\ns_mov_b64 exec, -1'); pre+=1
        if bi==opt.get('xp',3):
            e(f's_mov_b32 m0, s{V14}\ns_lshl_b32 s{T1}, s{DQ}, 7\nbuffer_load_dwordx4 v6, {srd(sX)}, s{T1} offen lds\ns_add_u32 s{T1}, s{T1}, {8192-1024}\nbuffer_load_dwordx4 v6, {srd(sX)}, s{T1} offen offset:1024 lds'); pre+=2
        PP=opt.get('pp',0)
        arp=f'v_min_u32 v3, {NL-1}, v1\nv_lshlrev_b32 v3, 7, v3\n'+arld
        if bi==5 and PP==0: e(arp)
        if bi==5 and PP==9: e('v_mov_b32 v2, 64')
        if bi==6:
            e(f'''s_lshl_b32 s{T1}, s{HB}, 10
s_add_u32 s{T1}, s{T1}, {ST_M}
s_mov_b32 m0, s{V14}
s_lshl_b32 s{T2}, s{HB}, 9
buffer_load_dwordx4 v42, {srd(sWS)}, s{T1} offen sc1 lds
s_lshr_b32 s{T1}, s{WI}, 6
s_lshl_b32 s{T1}, s{T1}, 9
s_add_u32 s{T1}, s{T1}, {ST_R-1024}
s_mov_b32 exec_hi, 0
buffer_load_dwordx4 v15, {srd(sWS)}, s{T1} offen offset:1024 sc1 lds
s_lshl_b32 s{T1}, s{TQ}, 9
s_add_u32 m0, s{T1}, {RM}
s_add_u32 s{T2}, s{T2}, {ST_R}
buffer_load_dwordx4 v15, {srd(sWS)}, s{T2} offen sc1 lds
s_mov_b64 exec, -1''')
        if PF==bi and opt.get('pfp',0)==0: e(W2PF); pre+=1
        if opt.get('tw')==bi:
            e(f'v_min_u32 v10, 4, v1\nv_lshlrev_b32 v10, 21, v10\nbuffer_load_dword v45, v10, {srd(sWS)}, 0 offen\ns_mov_b64 exec, 1\nbuffer_load_dword v46, v{OUTO}, {srd(sOUT)}, 0 offen\ns_mov_b64 exec, -1'); pre+=2
        mark=len(g.L)
        CH=[int(x) for x in str(opt.get('ch','x1110'))[1:]]
        if bi==CH[0]:
            e(f's_lshl_b32 s{T0}, s{DQ}, 6\nv_add_u32 v6, s{T0}, v4\nv_lshlrev_b32 v6, 10, v6\nv_lshl_add_u32 v{DC}, v7, 4, v6\nv_lshl_add_u32 v{DC+1}, v8, 4, v6')
            e(traddr(0,6)+[f'v_add_u32 v{PTX}, s{XR}, v0',f'v_add_u32 v{PTX+1}, s{XR}, v6',f'v_add_u32 v{PTW}, s{WQ}, v0',f'v_add_u32 v{PTW+1}, s{WQ}, v6'])
        if bi==CH[1]:
            e(f'''s_lshl_b32 s{T0}, s{RB2}, 2
s_add_u32 s{T2}, s{T0}, s{TQ2}
s_and_b32 s{T1}, s{TQ}, 1
s_lshl_b32 s{T1}, s{T1}, 5
s_and_b32 s{T0}, s{TQ}, 2
s_lshl_b32 s{T0}, s{T0}, 1
s_add_u32 s{T1}, s{T0}, s{T1}
s_lshl_b32 s{T0}, s{T2}, 6
s_add_u32 s{WI}, s{T0}, s{T1}
v_lshrrev_b32 v0, 5, v1
v_lshl_add_u32 v{OUTO}, v0, 4, s{WI}
v_and_b32 v6, 3, v4
v_add_u32 v6, v6, v{OUTO}
v_lshlrev_b32 v9, 4, v5
v_lshl_add_u32 v6, v6, 10, v9
s_lshl_b32 s{T1}, s{T1}, 2
s_add_u32 s{T1}, s{T1}, s{V14}
v_lshl_add_u32 v43, v0, 6, s{T1}
v_bfe_u32 v31, v1, 2, 2
v_lshl_add_u32 v31, v0, 2, v31
v_lshlrev_b32 v31, 7, v31
v_and_b32 v0, 3, v1
v_lshl_add_u32 v31, v0, 3, v31
v_and_b32 v0, 16, v1
v_lshl_add_u32 v31, v0, 1, v31
v_add_u32 v31, s{V14}, v31
s_lshl_b32 s{T1}, s{DQ}, 7
v_and_b32 v9, 31, v1
v_lshl_add_u32 v9, v9, 1, s{T1}
v_lshlrev_b32 v0, 1, v9
v_lshl_add_u32 v{OUTO}, v{OUTO}, 11, v0''')
        if bi==CH[2]:
            e(f'v_and_b32 v42, 12, v1\nv_lshlrev_b32 v42, 2, v42\nv_and_or_b32 v42, v1, 3, v42\nv_lshrrev_b32 v0, 4, v1\nv_lshl_add_u32 v42, v0, 2, v42\nv_lshlrev_b32 v42, 4, v42')
            e(f'v_and_b32 v0, 3, v1\nv_and_b32 v44, 48, v1\nv_lshl_add_u32 v44, v0, 6, v44\ns_lshl_b32 s{T1}, s{TQ}, 8\ns_add_u32 s{T1}, s{T1}, {SP}\nv_add_u32 v44, s{T1}, v44')
        if bi==CH[3]: e([f'v_mov_b32 v{ACC0+16*tl+k}, 0' for tl in range(4) for k in range(4,16)])
        if bi==opt.get('xq',5): e([f'ds_read_b64_tr_b16 {v(XP+2*tl,2)}, v31 offset:{(tl>>1)*1024+(tl&1)*64}' for tl in range(4)])
        e(ssum(bi))
        weave(mark,slab(bi+2) if bi<6 else vfull(8),opt.get('wf',2),opt.get('wl',3))
        if PF==bi and opt.get('pfp',0)==1: e(W2PF); post+=1
        if bi==4 and PP==1: e(arp); post+=1
        g.stamp(f'p{bi+1}')
        if bi==1: vchk('L_go',gold,12+pre+post)
        elif bi==5: vchk('L_poll',arld,12+post)
        n=12+post+(0 if bi in (5,6) else pre+carry)
        e(f's_waitcnt vmcnt({n}) lgkmcnt(0)\ns_barrier'); g.stamp(f'B{bi+1}')
        carry=post
    RQ=(lambda mh: RB_+8*mh) if opt.get('bb',0)==0 else (lambda mh: [4,16][mh])
    e([f'ds_read_b128 {v(RQ(mh)+4*k,4)}, v43 offset:{1024+32*mh+256*k}' for mh in range(2) for k in range(2)])
    e(ssum(7)); e('s_waitcnt vmcnt(0)')
    e(f's_mov_b32 exec_lo, 0x000f000f\ns_mov_b32 exec_hi, 0x000f000f\nds_write_b128 v44, {v(SACC,4)}\ns_mov_b64 exec, -1')
    if opt.get('ww',1): e('s_waitcnt lgkmcnt(0)')
    V9=vfull(9); R8=vread(8,B1); n9=opt.get('n9',8); r8=opt.get('r8',0)
    e(mix(R8[:r8],V9[:n9],2))
    g.stamp('p8')
    e('s_waitcnt lgkmcnt(15)' if r8>15 else f's_waitcnt lgkmcnt({r8})')
    e('s_setprio 0\ns_barrier'); g.stamp('B8')
    BB=[f'v_lshlrev_b32 v{DS}, 16, v{DS}',f'v_lshlrev_b32 v{DS+1}, 16, v{DS+1}']
    for mh in range(2):
        for dh in range(2):
            for i in range(4):
                a=TILE(mh,dh)+i; xr=XP+2*(2*mh+dh)+(i>>1)
                BB+=[f'v_lshlrev_b32 v{a}, 16, v{xr}' if i%2==0 else f'v_and_b32 v{a}, 0xffff0000, v{xr}',f'v_fma_f32 v0, v{a}, v{RQ(mh)+i}, v{RQ(mh)+4+i}',f'v_fmac_f32 v{a}, v0, v{DS+dh}']
    wstart=len(g.L)
    e(mix(R8[r8:],V9[n9:],3))
    e(mix(BB,vfull(10),4) if opt.get('bb',0)==0 else vfull(10))
    e('s_waitcnt vmcnt(12) lgkmcnt(0)')
    e(mix(vread(9,B2),vfull(11),2))
    e('s_waitcnt vmcnt(12) lgkmcnt(0)')
    e(mix(vread(10,B3),vfull(12),2))
    e('s_waitcnt lgkmcnt(0)'); e(vfull(13))
    if opt.setdefault('th',9):
        W=g.L[wstart:]; del g.L[wstart:]; c=0
        for l_ in W:
            if ' lds' in l_:
                c+=1
                if opt.get('th0',8)<c<=opt.get('th1',99): e(f's_waitcnt vmcnt({opt["th"]})')
            e(l_)
    g.stamp('chores')
    if opt.get('bb',0): e(BB)
    e(p2base(1))
    e(f's_lshl_b32 s{T1}, s{TQ}, 7\nv_xor_b32 v11, s{T1}, v15\nv_mov_b32 v10, v{OUTO}\ns_lshl_b32 s{T1}, s{TQ}, 2\ns_add_u32 s{T1}, s{T1}, {ZF}\nv_mov_b32 v2, s{T1}\nv_mov_b32 v3, 1')
    e(spoll('L_fp1',6,opt.get('slp1',4)))
    g.stamp('go')
    e('s_setprio 1')
    loads=[(SOW,s_*1024+mh*HSTR) for s_ in range(18) for mh in range(2)]
    groups=[[(TILE(mh,dh),2*s_+mh,B1+8*s_+4*dh,False) for mh in range(2) for dh in range(2)] for s_ in range(18)]
    run_groups(groups,loads,[16+4*k for k in range(8)]+[4],11,{ZE:(['s_barrier',g.st('Z1')],[])},['s_waitcnt vmcnt(9)','ds_write_b32 v2, v3'],{s_:[B1+8*s_,B1+8*s_+4] for s_ in range(18)},opt.get('dp1',14))
    g.stamp('ph1')
    e('s_setprio 0')
    XS=112
    for j in range(1,4):
        e(f's_xor_b32 s{T1}, s{TQ}, {j}\ns_mul_i32 s{T1}, s{T1}, {XW}\ns_add_u32 s{T1}, s{T1}, {(j-1)*4096}\nv_add_u32 v{3+j}, s{T1}, v15')
    e(f'v_add_u32 v7, s{XR}, v15\nv_add_u32 v8, s{WQ}, v15')
    for j in range(1,4):
        for tl in range(4): e(f'ds_write_b128 v{3+j}, {v(ACC0+16*tl+4*j,4)} offset:{tl*1024}')
    e('s_waitcnt lgkmcnt(0)\ns_barrier'); g.stamp('Z2')
    def addq(a,srcs,pk):
        for q_ in srcs:
            if pk:
                for j in range(2): e(f'v_pk_add_f32 {v(a+2*j,2)}, {v(a+2*j,2)}, {v(q_+2*j,2)}')
            else:
                for j in range(4): e(f'v_add_f32 v{a+j}, v{a+j}, v{q_+j}')
    def outst(mh,dh):
        for i in range(4):
            if i%2==0: e(f's_mov_b32 s{T0}, {mh*16384+i*2048}')
            e(f'buffer_store_dword v{TILE(mh,dh)+i}, v10, {srd(sOUT)}, s{T0} offen offset:{dh*128+(i&1)*2048} sc1')
    for tl in range(4):
        for j in range(3): e(f'ds_read_b128 {v(XS+12*tl+4*j,4)}, v7 offset:{j*4096+tl*1024}')
    for tl in range(4):
        e(f's_waitcnt lgkmcnt({9-3*tl})')
        addq(ACC0+16*tl,[XS+12*tl+4*k for k in range(3)],False)
    e('s_barrier'); g.stamp('Z23')
    e('s_setprio 1')
    for dh in range(2):
        for k in range(4): e(f'ds_read_b128 {v(XS+16*dh+4*k,4)}, v7 offset:{16384+k*2048+dh*1024}')
    for dh in range(2):
        e(f's_waitcnt lgkmcnt({4-4*dh})')
        addq(TILE(0,dh),[XS+16*dh+4*k for k in range(4)],False); outst(0,dh)
    for dh in range(2):
        e('s_barrier')
        if dh: g.stamp('p2end')
        for k in range(4): e(f'ds_read_b128 {v(XS+16*dh+4*k,4)}, v8 offset:{dh*WSS+k*1024}')
        for k in range(0,4,2):
            e(f's_waitcnt lgkmcnt({2-k})'); addq(TILE(1,dh),[XS+16*dh+4*k,XS+16*dh+4*k+4],True)
        outst(1,dh)
    e('s_branch L_fin' if opt.get('stamps') else 's_endpgm')
    e(g.cold); g.cold=[]

    SL=16; XA=22; SA=24; TA=26; GA=27; SPA=28; RA=29; SSA=30; SS=12
    L64,WG,WH,L32,WSEL,KAP,CP,EA,NI=32,34,36,38,40,42,44,46,47
    PR=80; PI=96; FA=112; XB=208; WR=240
    RS=XB; GC=XB+16; MR=WR
    e(f'''L_comp:
v_and_b32 v3, 15, v1
s_lshl_b32 s{T1}, s{CT}, 5
v_lshl_add_u32 v3, v3, 1, s{T1}
s_lshl_b32 s{T0}, s{TQ}, 2
s_add_u32 s{T0}, s{T0}, {ZF}
v_mov_b32 v10, s{T0}
v_mov_b32 v11, 0
ds_write_b32 v10, v11
s_waitcnt lgkmcnt(0)
global_load_ushort v244, v3, s[38:39]
global_load_ushort v245, v3, s[40:41]
global_load_ushort v246, v3, s[50:51]''')
    e(fsplit(CT,FS,FCNT,T0))
    common(0)
    e(f'''s_lshl_b32 s{T0}, s{CT}, 12
s_add_u32 s{T0}, s{T0}, {EOFF}
s_add_u32 s{sE}, s66, s{T0}
s_addc_u32 s{sE+1}, s67, 0
s_mov_b32 s{sE+2}, 4096
s_mov_b32 s{sE+3}, 0x20000
v_add_u32 v{XA}, s{XR}, v6
v_xor_b32 v{XA+1}, 64, v{XA}
v_add_u32 v{SA}, {WB}, v6
v_xor_b32 v{SA+1}, 64, v{SA}
v_add_u32 v{TA}, {WB+GOFF}, v10
v_lshl_add_u32 v{GA}, v2, 4, s{V14}
v_and_b32 v{SPA}, 48, v1
s_lshl_b32 s{T0}, s{TQ}, 9
s_add_u32 s{T0}, s{T0}, {RM}
v_lshl_add_u32 v{RA}, v{SPA}, 2, s{T0}
v_add_u32 v{SPA}, {SP}, v{SPA}
v_lshlrev_b32 v{SSA}, 2, v2
v_add_u32 v{SSA}, {SP}, v{SSA}
v_lshlrev_b32 v{EA}, 3, v2
v_and_b32 v0, 1, v1
v_lshlrev_b32 v0, 4, v0
v_mov_b32 v6, 0x3f80
v_lshlrev_b32 v0, v0, v6
v_bfe_u32 v6, v1, 2, 2
v_cmp_eq_u32 vcc, v6, v3
v_and_b32 v6, 2, v1
v_mov_b32 v{SL}, 0
v_cndmask_b32 v0, 0, v0, vcc
v_cmp_eq_u32 vcc, 0, v6
v_mov_b32 v{SL+1}, 0
v_mov_b32 v{SL+4}, 0
v_cndmask_b32 v{SL+2}, 0, v0, vcc
v_cndmask_b32 v{SL+3}, v0, 0, vcc
v_mov_b32 v{SL+5}, 0
s_sub_u32 s{T0}, 31, s{HB}
s_lshl_b32 s{SOW}, s{T0}, 7
s_mul_i32 s{HB}, s{HB}, {2*HSTR}''')
    if opt.get('nost'): e(f's_mov_b32 s{HB}, {BIG}')
    FO=[ROT,WSTEP,XL]
    for sb in range(3): e(f's_add_u32 s{T2}, s{FS}, {sb}\ns_lshl_b32 s{T2}, s{T2}, 10\ns_add_u32 s{T2}, s{T2}, s{HB}\ns_cmp_gt_u32 s{FCNT}, {sb}\ns_cselect_b32 s{FO[sb]}, s{T2}, {BIG}')
    e(f's_and_b32 s{T0}, s{CT}, 7\ns_cmp_lt_u32 s{T0}, 6\ns_cselect_b32 s{WL}, s{HA}, {BIG}\ns_add_u32 s{HA}, s{HA}, 128\ns_add_u32 s{SOX}, s{CT}, 86\ns_lshl_b32 s{SOX}, s{SOX}, 10\ns_add_u32 s{SOX}, s{SOX}, s{HB}')
    if opt.get('stamps'): e(mksrd(sX,36,37,2097152))
    zstamps()
    e(f'''s_waitcnt vmcnt(0)
v_lshlrev_b32 v244, 16, v244
v_lshlrev_b32 v245, 16, v245
v_lshlrev_b32 v246, 16, v246
v_mul_f32 v246, {F(LOG2E)}, v246
v_exp_f32 v246, v246
v_cvt_pk_bf16_f32 v246, v246, v246
v_lshlrev_b32 v246, 16, v246
v_mul_f32 v247, v246, v244
v_mul_f32 v248, v246, v245
v_mul_f32 v247, {F(LOG2E)}, v247
v_mul_f32 v248, 0.15915494, v248''')
    def cpow(dr,di,n):
        e([f'v_mul_f32 v249, {n}, v247',f'v_mul_f32 v250, {n}, v248','v_rndne_f32 v251, v250','v_exp_f32 v249, v249','v_sub_f32 v250, v250, v251','v_cos_f32 v251, v250','v_sin_f32 v250, v250',f'v_mul_f32 {v(dr)}, v249, v251',f'v_mul_f32 {v(di)}, v249, v250'])
    cpow(PR,PI,'1.0')
    for j in range(1,16):
        a=(j-1)//2; b=j-1-a
        e([f'v_mul_f32 {v(PR+j)}, {v(PR+a)}, {v(PR+b)}',f'v_mul_f32 {v(PI+j)}, {v(PR+a)}, {v(PI+b)}',f'v_fma_f32 {v(PR+j)}, -{v(PI+a)}, {v(PI+b)}, {v(PR+j)}',f'v_fmac_f32 {v(PI+j)}, {v(PI+a)}, {v(PR+b)}'])
    cpow(L32,L32+1,F(32.0)); cpow(L64,L64+1,F(64.0))
    e(['v_and_b32 v252, 16, v1','v_cvt_f32_u32 v252, v252']); cpow(WSEL,WSEL+1,'v252')
    e(['v_and_b32 v252, 48, v1','v_cvt_f32_u32 v252, v252']); cpow(WG,WG+1,'v252')
    e(f'v_mul_f32 v252, {F(32.0)}, v252'); cpow(254,255,'v252')
    e(['v_mul_f32 v249, v244, v244','v_fmac_f32 v249, v245, v245','v_rcp_f32 v249, v249',f'v_add_f32 v250, -1.0, v{PR}',f'v_mul_f32 v{KAP}, v250, v244',f'v_fmac_f32 v{KAP}, v{PI}, v245',
        f'v_mul_f32 v{KAP+1}, v{PI}, v244',f'v_fma_f32 v{KAP+1}, -v250, v245, v{KAP+1}','v_add_f32 v249, v249, v249',f'v_mul_f32 v{KAP}, v249, v{KAP}',f'v_mul_f32 v{KAP+1}, v249, v{KAP+1}'])
    e(cmul(WH,KAP,254)); e(f'v_sub_f32 v{NI}, 0, v{PI}')
    g.stamp('lam')
    if opt.get('ic'):
        e(f's_sub_u32 s{SPIN}, s{TQ}, 4\ns_mov_b64 exec, 0\nL_ret:\ns_add_u32 s{SPIN}, s{SPIN}, 4')
        for k in range(8): e(f's_cmp_eq_u32 s{SPIN}, {k}\ns_cbranch_scc1 L_pad{k}')
        e('s_mov_b64 exec, -1')
        g.stamp('icd')
    e(f's_setprio {opt.get("cprio",0)}\ns_barrier'); g.stamp('B0')
    X=lambda b,t4: XB+16*b+4*t4
    Wq=lambda q: WR+4*(q%4)
    def wr(q):
        n,k=divmod(q,8); i,u=divmod(n,2); st=i%3
        if k<2: return [f'ds_read_b128 {v(Wq(q),4)}, v{SA+u} offset:{st*WSS+k*2048}']
        sb,up=divmod(k-2,2)
        return [f'ds_read_b64_tr_b16 {v(Wq(q)+2*j,2)}, v{TA} offset:{st*WSS+(32*u+8*j)*96+32*sb+up*(UOFF-GOFF)}' for j in range(2)]
    def xr(n,t4):
        i,u=divmod(n,2)
        return f'ds_read_b128 {v(X(n&1,t4),4)}, v{XA+u} offset:{(i%3)*8192+t4*2048}'
    ops=[]
    def issue(x,tag): e(x); ops.append(tag)
    issue(wr(0)[0],('w',0))
    for t4 in range(4): issue(xr(0,t4),('x',0))
    for q in (1,2):
        for x in wr(q): issue(x,('w',q))
    for q in range(128):
        n,k=divmod(q,8); nxt=q+3
        need=[('w',q)]+([('x',n)] if k==0 else [])
        last=max(i for i,o in enumerate(ops) if o in need)
        if nxt%16==0:
            g.stamp(f'p{nxt//16}')
            e('s_waitcnt lgkmcnt(0)\ns_barrier'); g.stamp(f'B{nxt//16}')
        elif q<125: e(f's_waitcnt lgkmcnt({len(ops)-1-last})')
        R=[(x,('w',nxt)) for x in wr(nxt)] if nxt<128 else []
        if n<15 and k in (5,6): R+=[(xr(n+1,t4),('x',n+1)) for t4 in (2*(k-5),2*(k-5)+1)]
        if q in (121,122): R+=[(f'ds_read_b128 {v(RS+4*j,4)}, v{RA} offset:{16*j}',('r',0)) for j in (2*(q-121),2*(q-121)+1)]
        if q==125: R+=[(f'ds_read_b32 v{4+j}, v{SSA} offset:{256*j}',('r',0)) for j in range(4)]
        if q==126: R+=[(f'ds_read_b128 {v(MR+4*j,4)}, v{RA} offset:{256+16*j}',('r',0)) for j in (0,1)]
        if q==127: R+=[('',None),(f'ds_read_b128 {v(MR+8,4)}, v{RA} offset:{256+32}',('r',0))]
        for t4 in range(4):
            a=(ACC0+16*k if k<2 else FA+16*(k-2))+4*t4; c='0' if n==0 else v(a,4)
            xo,wo=v(X(n&1,t4),4),v(Wq(q),4)
            e(f'v_mfma_f32_16x16x32_bf16 {v(a,4)}, {xo if k<2 else wo}, {wo if k<2 else xo}, {c}')
            if R:
                x,tg=R.pop(0)
                if tg: issue(x,tg)
        assert not R
    g.stamp('loopend')
    Xr=ACC0; Yr=ACC0+16; Z,T,P,Q=4,6,8,10
    e(f's_waitcnt lgkmcnt(3)\nv_add_f32 v{SS}, v4, v6\nv_add_f32 v{SS+1}, v5, v7')
    e(f'ds_read_b128 {v(MR+12,4)}, v{RA} offset:{256+48}')
    for i in range(8): e(f'v_pk_mul_f32 {v(Xr+2*i,2)}, {v(Xr+2*i,2)}, {v(RS+2*i,2)}\nv_pk_mul_f32 {v(Yr+2*i,2)}, {v(Yr+2*i,2)}, {v(RS+2*i,2)}')
    e('s_waitcnt lgkmcnt(0)')
    for i in range(8):
        xx=v(Xr+2*i,2); yy=v(Yr+2*i,2)
        e(f'v_pk_fma_f32 {xx}, {v(MR+2*i,2)}, {v(SS,2)}, {xx} op_sel_hi:[1,0,1]\nv_pk_fma_f32 {yy}, {v(MR+2*i,2)}, {v(SS,2)}, {yy} op_sel:[0,1,0] op_sel_hi:[1,1,1]')
    SG=[RS,MR,RS]; SGT=RS+8; TMP=MR+8
    def sread(sb): return [f'ds_read_b128 {v((SG[sb],SGT)[q_>>1]+4*(q_&1),4)}, v{SPA} offset:{256*q_+64*(1+sb)}' for q_ in range(4)]
    def sadd(sb): return ['s_waitcnt lgkmcnt(0)']+[f'v_pk_add_f32 {v(SG[sb]+2*k,2)}, {v(SG[sb]+2*k,2)}, {v(SGT+2*k,2)}' for k in range(4)]
    SC=[]
    for j in range(1,16): SC+=[f'v_fmac_f32 v{Xr+j}, v{PR}, v{Xr+j-1}',f'v_fmac_f32 v{Yr+j}, v{PR}, v{Yr+j-1}',f'v_fmac_f32 v{Xr+j}, v{NI}, v{Yr+j-1}',f'v_fmac_f32 v{Yr+j}, v{PI}, v{Xr+j-1}']
    e(SC)
    g.stamp('a_scan')
    rd=[f'ds_read_b128 {v(GC+4*k,4)}, v{GA} offset:{256*k}' for k in range(4)]+sread(0)
    e(f'v_mov_b32 v{T}, v{Xr+15}\nv_mov_b32 v{T+1}, v{Yr+15}\nv_mov_b32 v{Z}, 0\nv_mov_b32 v{Z+1}, 0'); e(rd[:2])
    e(f'v_permlane16_swap_b32 v{Z}, v{T}\nv_permlane16_swap_b32 v{Z+1}, v{T+1}')
    e(cfma(P,(PR+15,PI+15),Z,(Xr+15,Yr+15)))
    e(f'v_mov_b32 v{Q}, v{P}\nv_mov_b32 v{Q+1}, v{P+1}\nv_mov_b32 v{T}, 0\nv_mov_b32 v{T+1}, 0\nv_permlane16_swap_b32 v{Q}, v{P}\nv_permlane16_swap_b32 v{Q+1}, v{P+1}'); e(rd[2:3])
    e(f'v_permlane32_swap_b32 v{T}, v{P}\nv_permlane32_swap_b32 v{T+1}, v{P+1}')
    e(cfma(P,L32,T,P))
    e(f'''v_min_u32 v{P}, -2, v{P}
v_min_u32 v{P+1}, -2, v{P+1}
s_mov_b32 exec_lo, 0
s_mov_b32 exec_hi, 0xffff0000
buffer_store_dwordx2 {v(P,2)}, v{EA}, {srd(sE)}, s{SOW} offen sc1
s_mov_b64 exec, -1''')
    g.stamp('b_pub')
    e(rd[3:])
    e(cfma(Z,WSEL,T,Z)+cmul(CP,KAP,Z))
    e(f'v_and_b32 v2, 48, v1\nv_lshl_add_u32 v{EA}, v2, 6, v{EA}\ns_add_u32 s{SOW}, s{SOW}, 128\nv_mov_b32 v2, 1\nv_mov_b32 v3, 0')
    def gelu(sb, tb):
        acc=FA+32*sb; sg=SG[sb]; L=[]; t=TMP
        G_=lambda i: v(acc+8*tb+2*i,2); U_=lambda i: v(acc+16+8*tb+2*i,2); T_=lambda i: v(t+2*i,2)
        cp=lambda i: v(GC+4*(2*tb+(i>>1)),2); rp=lambda i: v(GC+4*(2*tb+(i>>1))+2,2); o=acc+16+8*tb
        for i in range(4): L.append(f'v_pk_fma_f32 {G_(i)}, {v(sg+2*(i&1),2)}, {rp(i)}, {G_(i)} op_sel:[0,1,0] op_sel_hi:[1,1,1]')
        for i in range(4): L.append(f'v_pk_mul_f32 {T_(i)}, {G_(i)}, {G_(i)}')
        for i in range(4): L.append(f'v_pk_fma_f32 {T_(i)}, {T_(i)}, {cp(i)}, {cp(i)} op_sel:[0,1,0] op_sel_hi:[1,1,0]')
        for i in range(4): L.append(f'v_pk_mul_f32 {T_(i)}, {T_(i)}, {G_(i)}')
        for i in range(8): L.append(f'v_exp_f32 {v(t+i)}, {v(t+i)}')
        for i in range(4): L.append(f'v_pk_fma_f32 {U_(i)}, {v(sg+4+2*(i&1),2)}, {rp(i)}, {U_(i)} op_sel:[0,1,0] op_sel_hi:[1,1,1]')
        for i in range(4): L.append(f'v_pk_fma_f32 {T_(i)}, {T_(i)}, {rp(i)}, {rp(i)} op_sel_hi:[1,0,0]')
        for i in range(8): L.append(f'v_rcp_f32 {v(t+i)}, {v(t+i)}')
        for i in range(4): L.append(f'v_pk_mul_f32 {G_(i)}, {G_(i)}, {U_(i)}')
        for i in range(4): L.append(f'v_pk_mul_f32 {G_(i)}, {G_(i)}, {T_(i)}')
        for i in (0,2,1,3): L.append(f'v_cvt_pk_bf16_f32 {v(o+i)}, {v(acc+8*tb+2*i)}, {v(acc+8*tb+2*i+1)}')
        L.append(f's_add_u32 s{T1}, s{FO[sb]}, {tb*HSTR}\nv_permlane16_swap_b32 v{o}, v{o+2}\nv_permlane16_swap_b32 v{o+1}, v{o+3}\nbuffer_store_dwordx4 {v(o,4)}, v15, {srd(sWS)}, s{T1} offen sc1')
        return L
    signal=lambda sr: f's_mov_b64 exec, 1\nbuffer_atomic_add v2, v3, {srd(sWS)}, s{sr} offen sc1\ns_mov_b64 exec, -1'
    ER=[FA+32+2*k for k in range(8)]
    eld='\n'.join(f'buffer_load_dwordx2 {v(ER[u_],2)}, v{EA}, {srd(sE)}, s{SOW} offen offset:{128*u_} sc1' for u_ in range(8))
    e(sadd(0)); g.stamp('t0'); e(gelu(0,0)[:-1]); g.stamp('t1'); e(gelu(0,0)[-1]); g.stamp('t2'); e(mix(gelu(0,1),sread(1),8)); g.stamp('t3'); e(sadd(1)); e(gelu(1,0)[:-1]); g.stamp('t4'); e(gelu(1,0)[-1]); g.stamp('t5'); e(mix(gelu(1,1),sread(2),8)); g.stamp('t6'); e(sadd(2)); e(gelu(2,0)); g.stamp('t7')
    EP=opt.get('ep',1)
    if EP==0: e(eld)
    e(gelu(2,1))
    g.stamp('gdone')
    if EP==1: e(eld)
    kp=v(KAP,2)
    for i in range(8):
        xx=v(Xr+2*i,2); yy=v(Yr+2*i,2); tt=v(4+2*(i&1),2)
        e([f'v_pk_mul_f32 {tt}, {xx}, {kp} op_sel:[0,1] op_sel_hi:[1,1] neg_lo:[0,1] neg_hi:[0,1]',f'v_pk_mul_f32 {xx}, {xx}, {kp} op_sel_hi:[1,0]',
           f'v_pk_fma_f32 {xx}, {yy}, {kp}, {xx} op_sel:[0,1,0] op_sel_hi:[1,1,1] neg_lo:[0,1,0] neg_hi:[0,1,0]',f'v_pk_fma_f32 {yy}, {yy}, {kp}, {tt} op_sel_hi:[1,0,1] neg_lo:[0,1,0] neg_hi:[0,1,0]'])
    chk='\n'.join([f'v_max3_u32 v0, v{ER[0]}, v{ER[0]+1}, v{ER[1]}',f'v_max3_u32 v4, v{ER[1]+1}, v{ER[2]}, v{ER[2]+1}']+[f'v_max3_u32 v{(0,4)[u_&1]}, v{ER[u_]}, v{ER[u_]+1}, v{(0,4)[u_&1]}' for u_ in range(3,8)]+['v_max_u32 v0, v0, v4','v_cmp_eq_u32 vcc, -1, v0','s_cmp_eq_u64 vcc, 0'])
    if EP==1:
        e('s_waitcnt vmcnt(8)'); e(signal(WL)); g.stamp('flag0')
    e(f's_waitcnt vmcnt(1)\n{chk}\ns_cbranch_scc0 L_epoll\nL_eok:')
    pre='' if EP==1 else f's_waitcnt vmcnt(0)\n{signal(WL)}\ns_mov_b32 s{WL}, {BIG}'
    g.cold.append(f'''L_epoll:
{pre}
s_mov_b32 s{SPIN}, 0
L_epoll1:
s_sleep 4
{eld}
s_add_u32 s{SPIN}, s{SPIN}, 1
s_cmp_gt_u32 s{SPIN}, 100000
s_cbranch_scc1 L_eok
s_waitcnt vmcnt(0)
{chk}
s_cbranch_scc0 L_epoll1
s_branch L_eok''')
    g.stamp('Eok')
    e('s_setprio 2')
    for u_ in range(6,-1,-1): e(cfma(ER[u_],L64,ER[u_+1],ER[u_]))
    e(cmul(4,WH,ER[0]))
    for sw in ('16','32'):
        e(f'v_mov_b32 v6, v4\nv_mov_b32 v7, v5\nv_permlane{sw}_swap_b32 v6, v4\nv_permlane{sw}_swap_b32 v7, v5\nv_add_f32 v4, v6, v4\nv_add_f32 v5, v7, v5')
    e(cfma(CP,WG,4,CP))
    cp=v(CP,2)
    for comp,R_ in ((0,Xr),(1,Yr)):
        for i in range(8):
            rr_=v(R_+2*i,2); pr=v(PR+2*i,2); pi=v(PI+2*i,2)
            if comp==0: e(f'v_pk_fma_f32 {rr_}, {pr}, {cp}, {rr_} op_sel_hi:[1,0,1]\nv_pk_fma_f32 {rr_}, {pi}, {cp}, {rr_} op_sel:[0,1,0] op_sel_hi:[1,1,1] neg_lo:[0,1,0] neg_hi:[0,1,0]')
            else: e(f'v_pk_fma_f32 {rr_}, {pr}, {cp}, {rr_} op_sel:[0,1,0] op_sel_hi:[1,1,1] neg_lo:[0,1,0] neg_hi:[0,1,0]\nv_pk_fma_f32 {rr_}, {pi}, {cp}, {rr_} op_sel_hi:[1,0,1] neg_lo:[0,1,0] neg_hi:[0,1,0]')
    for comp,R_,D_ in ((0,Xr,112),(1,Yr,128)):
        for i in range(8): e(f'v_cvt_pk_bf16_f32 v{R_+i}, v{R_+2*i}, v{R_+2*i+1}')
        for tb in range(2):
            for ab in range(2): e(f'v_mfma_f32_16x16x32_bf16 {v(D_+8*tb+4*ab,4)}, {v(R_+4*tb,4)}, {v(SL+2-2*ab,4)}, 0')
    for comp,R_,D_ in ((0,Xr,112),(1,Yr,128)):
        for i in range(8): e(f'v_cvt_pk_bf16_f32 v{R_+8+i}, v{D_+2*i}, v{D_+2*i+1}')
        if EP==0 and comp==0: e('s_waitcnt vmcnt(0)'); e(signal(WL)); g.stamp('flag0')
        for tb in range(2):
            o=R_+8+4*tb
            e(f'v_permlane16_swap_b32 v{o}, v{o+2}\nv_permlane16_swap_b32 v{o+1}, v{o+3}')
            e(f's_add_u32 s{T1}, s{SOX}, {comp*32768+tb*HSTR}\nbuffer_store_dwordx4 {v(o,4)}, v15, {srd(sWS)}, s{T1} offen sc1')
    g.stamp('c_st')
    e(vgroup(f's{V14}, 0',[DF],sDN,FB,20*16384,2))
    TV=144; JB=112; RB_=160
    e(['v_and_b32 v12, 31, v1','v_lshrrev_b32 v13, 5, v1','v_bfe_u32 v0, v1, 1, 3','v_xor_b32 v0, v13, v0','v_lshlrev_b32 v0, 4, v0','v_lshl_add_u32 v0, v12, 7, v0',f'v_add_u32 v4, s{XR}, v0',f'v_add_u32 v8, s{WQ}, v0'])
    for k in range(1,4): e(f'v_xor_b32 v{4+k}, {32*k}, v4\nv_xor_b32 v{8+k}, {32*k}, v8')
    e(traddr(0,12)+[f'v_add_u32 v{TV+4}, s{WQ}, v0',f'v_add_u32 v{TV+5}, s{WQ}, v12',f'v_add_u32 v{TV}, s{V14}, v0',f'v_add_u32 v{TV+1}, s{V14}, v12'])
    e(f's_lshl_b32 s{T1}, s{TQ}, 2\ns_add_u32 s{T1}, s{T1}, {ZF}\nv_mov_b32 v13, s{T1}')
    e(p2base(0))
    e('s_waitcnt vmcnt(2)'); e(signal(HA))
    g.stamp('flag')
    e(f's_cmp_ge_u32 s{TQ}, 2\ns_cbranch_scc1 L_no14'); e(vgroup(f's{V14}, 2048',[DF],sDN,FB,21*16384,2)); e('L_no14:')
    e(f'''s_setprio 0
s_cmp_ge_u32 s{TQ}, 2
s_cselect_b32 s{XL}, {BIG}, s{SOW}
s_cselect_b32 s{T1}, 0, 2048
v_add_u32 v{TV+2}, s{T1}, v{TV}
v_add_u32 v{TV+3}, s{T1}, v{TV+1}
s_mov_b32 s{SPIN}, 0
L_z0:
s_sleep 1
ds_read_b32 v0, v13
s_add_u32 s{SPIN}, s{SPIN}, 1
s_waitcnt lgkmcnt(0)
v_cmp_ne_u32 vcc, 1, v0
s_cmp_gt_u32 s{SPIN}, 1000000
s_cselect_b64 vcc, 0, vcc
s_cmp_eq_u64 vcc, 0
s_cbranch_scc0 L_z0''')
    g.stamp('Z0')
    e([f'ds_read_b128 {v(JB+8*k+4*dh,4)}, v{4+k} offset:{2*8192+dh*4096}' for k in range(4) for dh in range(2)])
    e([f'ds_read_b128 {v(RB_+32*bl+8*k+4*dh,4)}, v{4+k} offset:{bl*8192+dh*4096}' for bl in range(2) for k in range(4) for dh in range(2)])
    e([f'ds_read_b128 {v(RB_+64+8*k+4*dh,4)}, v{8+k} offset:{dh*WSS}' for k in range(4) for dh in range(2)])
    e('s_waitcnt lgkmcnt(0)')
    e([f's_lshl_b32 s{T1}, s{TQ}, 11\ns_add_u32 s{T1}, s{T1}, {q_*XW+16384}\nv_add_u32 v{4+q_}, s{T1}, v15' for q_ in range(4)])
    e(f's_lshl_b32 s{T1}, s{TQ}, 10\ns_add_u32 s{T1}, s{T1}, {WB}\nv_add_u32 v8, s{T1}, v15')
    e('s_barrier'); g.stamp('Z1')
    e(spoll('L_fp0',8,opt.get('slp0',4)))
    g.stamp('go')
    blkoff=lambda b_,k: (86+32*(b_&1)+4*(b_>>1)+k)*1024
    st_=[(SOX,blkoff(0,k),JB+8*k) for k in range(4)]+[(SOW,(18+k)*1024,JB+8*k) for k in range(3)]+[(XL,21*1024,JB+24)]
    st2=[(SOX,blkoff(1+bl,k),RB_+32*bl+8*k) for bl in range(3) for k in range(4)]
    loads=[];groups=[]
    for s_,(sr,im,Bq) in enumerate(st_):
        groups.append([(TILE(mh,dh),len(loads)+mh,Bq+4*dh,s_==0) for mh in range(2) for dh in range(2)])
        for mh in range(2): loads.append((sr,im+mh*HSTR))
    for mh in range(2):
        for p_ in range(6):
            grp=[]
            for s_ in (2*p_,2*p_+1):
                sr,im,Bq=st2[s_]
                grp+=[(TILE(mh,dh),len(loads),Bq+4*dh,False) for dh in range(2)]
                loads.append((sr,im+mh*HSTR))
            groups.append(grp)
    jit=[trstep(JB,TV+4,2*WSS),trstep(JB+8,TV+4,2*WSS+2048),trstep(JB+16,TV,0),trstep(JB+24,TV+2,0)]
    wr0=[]
    for dh in range(2):
        for q_ in range(4): wr0+=[f'ds_write_b128 v{4+q_}, {v(TILE(0,dh)+4*q_,4)} offset:{dh*1024}','']
    hooks={1:([],jit[0]),2:([],jit[1]),3:([],jit[2]),4:(['s_waitcnt lgkmcnt(8)'],jit[3]),5:(['s_waitcnt lgkmcnt(8)'],[]),6:(['s_waitcnt lgkmcnt(4)'],[]),7:(['s_waitcnt lgkmcnt(0)'],[]),
           10:(['s_barrier',g.st('Z2')],[]),14:([],['']*6+wr0),17:(['s_waitcnt lgkmcnt(0)','s_barrier',g.st('Z23')],[])}
    run_groups(groups,loads,[16+4*k for k in range(8)]+[152,156],15,hooks)
    wr1=lambda dh: [f'ds_write_b128 v8, {v(TILE(1,dh)+4*q_,4)} offset:{dh*WSS+q_*4096}' for q_ in range(4)]
    idx=[k for k,l_ in enumerate(g.L) if 'v_mfma_f32_32x32x16' in l_][-12:]
    seg=g.L[idx[0]:]; del g.L[idx[0]:]
    assert not any('buffer_load' in l_ for l_ in seg)
    late=[l_ for l_ in seg if 'v_mfma' in l_ and l_.split()[1].rstrip(',')==v(TILE(1,1),16)]
    e([l_ for l_ in seg if l_ not in late])
    e([late[0],'s_nop 4',late[1],'s_nop 3']); e(mix(late[2:],wr1(0),1)); e('s_waitcnt lgkmcnt(0)\ns_barrier'); e(wr1(1))
    e('s_waitcnt lgkmcnt(0)\ns_barrier')
    g.stamp('p2end')
    if opt.get('stamps'):
        e('L_fin:\ns_waitcnt vmcnt(0)'); g.stamp('done')
        e(f'''s_waitcnt lgkmcnt(0)
s_cmp_eq_u32 s{TQ}, {opt.get('stq',0)}
s_cbranch_scc0 L_end
s_add_u32 s{sX}, s66, {STAMP}
s_addc_u32 s{sX+1}, s67, 0
s_lshl_b32 s{T0}, s2, 1
s_add_u32 s{T0}, s{T0}, s{NH}
s_lshl_b32 s{T0}, s{T0}, 7
v_mov_b32 v2, 0''')
        prs=[100]+G.POOL[:len(g.names())]
        if 'diag' in opt:
            p=prs[(['start']+g.names()).index(opt['diag'])]
            if 'dwg' in opt: e(f's_cmp_eq_u32 s2, {opt["dwg"]}\ns_cbranch_scc0 L_end')
            e(f's_cmp_eq_u32 s{NH}, {opt.get("dr",0)}\ns_cbranch_scc0 L_end\nL_dg:\ns_memrealtime s[72:73]\ns_waitcnt lgkmcnt(0)\ns_sub_u32 s72, s72, s{p}\ns_cmp_lt_u32 s72, 6000\ns_cbranch_scc1 L_dg')
            prs=[]
        for i,p in enumerate(prs): e(f'v_mov_b32 v4, s{p}\nv_mov_b32 v5, s{p+1}\nbuffer_store_dwordx2 v[4:5], v2, {srd(sX)}, s{T0} offen offset:{8*i}')
    e('L_end:\ns_endpgm'); e(g.cold); e('L_last:\ns_endpgm')
    if opt.get('stamps'): g.L.insert(0,'; STAMPS start,'+','.join(g.names()))
    body=hz.fix('\n'.join(g.L), verbose=opt.get('v',0))
    if opt.get('al'):
        import align
        body,nw,nn=align.run(body,lambda b: header([(NAME,256,512,163840)])+kstart(NAME)+b+'\n',opt['al'])
    if opt.get('ic'):
        import align
        body,npad=align.pads('L_anchor:\n'+body,lambda b: header([(NAME,256,512,163840)])+b+'\n')
        body=body.replace('L_anchor:\n','')
        if opt.get('v'): print('pads',npad)
    ref=open('parallel_sum__ssm_conv_s5__geglu_ffn__prompt.s.ref').read() if opt.get('final') else ''
    cm_=''.join(l+'\n' for l in ref.split('\n') if l.startswith(';') and '@launch' not in l and 'Override' not in l and 'grid=ceil' not in l)
    return cm_+header([(NAME,256,512,163840)])+('.p2align 12\n' if opt.get('pa',1) else '')+kstart(NAME)+body+'\n'+RODATA+kd(NAME,256,256)

if __name__=='__main__':
    out=sys.argv[1]; opt={}
    for a in sys.argv[2:]:
        k,_,val=a.partition('='); opt[k]=int(val) if val.lstrip('-').isdigit() else (val or 1)
    open(out,'w').write(build(opt))
```

```python
import sys, math
from asmlib import *
import hz
from gen_v3 import F, LOG2E, BIG, G, cmul, cfma, mix, mksrd, fsplit, v, srd
XW=24576; WB=98304; WSS=16640; GOFF=4096; UOFF=4096+6144+128
SCR=WB+3*WSS; SP=SCR+12288; RM=SP+1024; ZF=RM+2048
HSTR=150*1024; ST_M=0xA00000; ST_R=0xA08000; ARR=0xA10000; FLG=0xA20000; EOFF=0xA60000; WSSZ=0xA80000
STAMP=0x8000000
sX,sW,sWS,sDBG,sCR,sCI,sDN,sE,sOUT=4,8,12,16,20,24,28,32,68
sW2=sE
TH=0; W0=1; FS=3; WL2=54; WI=72; CB=73; FCNT=74; FB=75
W_,TQ,NH,RB,CT,ROT,WSTEP,XL,WL=76,77,78,79,80,81,82,83,84
RB2,TQ2,DQ,SOX,SOW,T0,T1,T2,F0,HB,XR,WQ=85,86,87,88,89,90,91,92,93,94,95,96
SPIN=97; HA=98; V14=99; XH=W_
G.POOL=[36,42,44,56,58,38,40,46,48,50,64,60]
G.DEF='B0,B1,B4,B8,gdone,flag,go,q1,ph1,p2end,done'
DC=12; DF=14
ACC0=48; B1,B2,B3=112,160,208
TILE=lambda mh,dh: ACC0+32*mh+16*dh

def build(opt):
    g=G(opt); e=g.e
    PF=opt.get('pf',2); NL=opt.get('nl',16)
    e(f'''s_cmp_ge_u32 s2, 256
s_cbranch_scc1 L_end
s_load_dwordx16 s[36:51], s[0:1], 0
s_load_dwordx16 s[52:67], s[0:1], 64
s_getpc_b64 s[72:73]
L_pc0:
v_lshrrev_b32 v3, 6, v0
s_and_b32 s3, s2, 0xf8
v_add_lshl_u32 v2, v3, s3, 7
v_min_u32 v2, L_last-L_pc0, v2
v_and_b32 v1, 63, v0
v_readfirstlane_b32 s{W_}, v3
global_load_dword v9, v2, s[72:73]
s_bfe_u32 s{TQ2}, s2, 0x20003
s_lshr_b32 s{DQ}, s2, 5''')
    if opt.get('stamps'): e(('s_memtime' if opt['stamps']==2 else 's_memrealtime')+' s[100:101]')
    m42=f's_and_b32 s{RB2}, s{RB2}, 4\ns_and_b32 s{T2}, s{T1}, 1\ns_lshl_b32 s{T2}, s{T2}, 1\ns_add_u32 s{RB2}, s{RB2}, s{T2}\ns_lshr_b32 s{T2}, s{DQ}, 2\ns_add_u32 s{RB2}, s{RB2}, s{T2}\ns_and_b32 s{DQ}, s{DQ}, 3\ns_and_b32 s{T2}, s{T1}, 2\ns_lshl_b32 s{T2}, s{T2}, 1\ns_add_u32 s{DQ}, s{DQ}, s{T2}' if opt.get('m42') else ''
    oa,ob=opt.get('ord','x01245673.45670123')[1:].split('.')
    e(f'''s_and_b32 s{T0}, s2, 1
s_lshl_b32 s{RB}, s{T0}, 2
s_bfe_u32 s{T1}, s2, 0x20001
s_xor_b32 s{RB2}, s{RB}, 4
s_add_u32 s{RB2}, s{RB2}, s{T1}
s_add_u32 s{RB}, s{RB}, s{TQ2}
s_lshl_b32 s{CT}, s{T1}, 3
s_add_u32 s{CT}, s{CT}, s{DQ}
s_xor_b32 s{CT}, s{CT}, 4
{m42}
s_and_b32 s{TQ}, s{W_}, 3
s_lshr_b32 s{NH}, s{W_}, 2
s_lshl_b32 s{HB}, s{RB}, 2
s_add_u32 s{HB}, s{HB}, s{TQ}
s_mul_i32 s{XR}, s{TQ}, {XW}
v_lshrrev_b32 v4, 3, v1          ; q
v_and_b32 v5, 7, v1              ; pos
s_cmp_eq_u32 s{NH}, 0''')
    NEAR=(f'''v_and_b32 v3, 15, v1
s_lshl_b32 s{T1}, s{CT}, 5
v_lshl_add_u32 v3, v3, 1, s{T1}
s_lshl_b32 s{T0}, s{TQ}, 2
s_add_u32 s{T0}, s{T0}, {ZF}
v_mov_b32 v10, s{T0}
v_mov_b32 v11, 0
ds_write_b32 v10, v11
s_lshl_b32 s{T0}, s{RB}, 5
s_add_u32 s{T0}, s{T0}, s{CT}
s_lshl_b32 s{T0}, s{T0}, 2
s_add_u32 s{WI}, s{T0}, s{TQ}
s_lshl_b32 s{T2}, s{WI}, 11
v_and_b32 v2, 31, v1
v_lshl_add_u32 v2, v2, 4, s{T2}
v_and_b32 v6, 32, v1
v_lshl_add_u32 v2, v6, 5, v2
s_waitcnt lgkmcnt(0)
global_load_ushort v244, v3, s[38:39]
global_load_ushort v245, v3, s[40:41]
global_load_ushort v246, v3, s[50:51]
global_load_dwordx4 v[112:115], v2, s[36:37]
global_load_dwordx4 v[116:119], v2, s[36:37] offset:512''')
    if opt.get('nb',1): e('s_cbranch_scc0 L_load\ns_setprio 2'); e(NEAR); e('s_setprio 0\ns_branch L_comp\nL_load:')
    else: e('s_cbranch_scc1 L_comp')
    def zstamps():
        if opt.get('stamps'):
            for r,nm in zip(G.POOL,g.names()):
                if nm not in ('e0','e1'): e(f's_mov_b64 s[{r}:{r+1}], 0')
    def common(nh):
        e(mksrd(sWS,66,67,WSSZ)); e(mksrd(sDN,60,61,1409024*(0 if opt.get('nodma') else 1)))
        e(f'''v_lshlrev_b32 v6, 1, v4
v_and_b32 v6, 4, v6
v_xor_b32 v6, v5, v6
v_lshlrev_b32 v6, 4, v6
v_lshl_add_u32 v6, v4, 10, v6
s_lshl_b32 s{T0}, s{DQ}, 7
v_add_u32 v{DF}, s{T0}, v6
s_mul_i32 s{F0}, s{TQ}, 22
s_cmp_eq_u32 s{TQ}, 3
s_cselect_b32 s{T0}, 1, 0
s_sub_u32 s{F0}, s{F0}, s{T0}
s_lshl_b32 s{FB}, s{F0}, 14
s_lshl_b32 s{WQ}, s{TQ}, 12
s_lshl_b32 s{T0}, s{T0}, 11
s_sub_u32 s{V14}, s{WQ}, s{T0}
s_add_u32 s{V14}, s{V14}, {SCR}
s_add_u32 s{WQ}, s{WQ}, {WB}
s_lshl_b32 s{HA}, s{HB}, 2
s_lshr_b32 s{T0}, s{CT}, 3
s_add_u32 s{HA}, s{HA}, s{T0}
s_lshl_b32 s{HA}, s{HA}, 8
s_add_u32 s{HA}, s{HA}, {FLG}
v_lshlrev_b32 v15, 4, v1
v_and_b32 v2, 15, v1
v_lshrrev_b32 v3, 4, v1
v_bfe_u32 v6, v1, 1, 3
v_xor_b32 v6, v3, v6
v_lshlrev_b32 v6, 4, v6
v_lshl_add_u32 v6, v2, 7, v6
v_bfe_u32 v10, v1, 2, 3
v_lshrrev_b32 v11, 5, v1
v_lshl_add_u32 v10, v11, 4, v10
v_mul_u32_u24 v10, 96, v10
v_and_b32 v11, 3, v1
v_lshl_add_u32 v10, v11, 3, v10''')
    def vgroup(m0, vregs, sr, sb, imm, n):
        L=[]
        for j in range(n):
            t=f's_add_u32 m0, {m0}\n' if j==0 else ''
            t+=f's_add_u32 s{T0}, s{sb}, {imm+j*(8192-1024)}\nbuffer_load_dwordx4 v{vregs[j%len(vregs)]}, {srd(sr)}, s{T0} offen'+(f' offset:{1024*j}' if j else '')+' lds'
            L.append(t)
        return L
    def vx(vs,half):
        st=vs%3; m0=f's{XR}, {st*8192+half*4096}'
        if vs>=11:
            b=vs-11; return vgroup(m0,[DC,DC+1],sCI if b&1 else sCR,CB,(b>>1)*128+half*32768,4)
        return vgroup(m0,[DF],sDN,FB,6*(vs-8)*16384+half*32768,4)
    def vw(vs):
        st=vs%3
        if vs>=12: return vgroup(f's{WQ}, {st*WSS}',[DC,DC+1],sCI,CB,128+(vs-12)*32768,4)
        return vgroup(f's{WQ}, {st*WSS}',[DF],sDN,FB,(6*(vs-8)+4 if vs<11 else 18)*16384,4)
    def vfull(vs): return vx(vs,0)+vx(vs,1)+vw(vs)
    def traddr(t0,t1):
        return [f'v_bfe_u32 v{t0}, v1, 2, 2',f'v_lshrrev_b32 v{t1}, 5, v1',f'v_lshl_add_u32 v{t0}, v{t1}, 3, v{t0}',f'v_lshlrev_b32 v{t0}, 7, v{t0}',f'v_and_b32 v{t1}, 3, v1',f'v_lshl_add_u32 v{t0}, v{t1}, 3, v{t0}',
            f'v_bfe_u32 v{t1}, v1, 4, 1',f'v_lshl_add_u32 v{t0}, v{t1}, 5, v{t0}',f'v_bfe_u32 v{t1}, v1, 3, 1',f'v_lshl_add_u32 v{t0}, v{t1}, 6, v{t0}',f'v_xor_b32 v{t1}, 64, v{t0}']
    def trstep(base,areg,off):
        return [f'ds_read_b64_tr_b16 {v(base+dh*4+2*j,2)}, v{areg+dh} offset:{off+j*512}' for dh in range(2) for j in range(2)]
    def p2base(nh):
        return f'''s_lshl_b32 s{T0}, s{RB2}, 2
s_add_u32 s{T0}, s{T0}, s{TQ2}
s_mul_i32 s{SOX}, s{T0}, {2*HSTR}
s_lshl_b32 s{HB}, s{T0}, 2
s_add_u32 s{HB}, s{HB}, s{TQ}
s_lshl_b32 s{HB}, s{HB}, 8
s_add_u32 s{HB}, s{HB}, {FLG+128*(1-nh)}
s_lshl_b32 s{T0}, s{F0}, 10
s_add_u32 s{SOW}, s{SOX}, s{T0}
s_lshl_b32 s{T0}, s{TQ}, 13
s_add_u32 s{SOX}, s{SOX}, s{T0}'''
    sld=f's_load_dword s55, s[66:67], s{HB} glc'
    def spoll(lbl, tgt, sl, first=True):
        g.cold.append(f'''{lbl}:
s_mov_b32 s{SPIN}, 0
{lbl}_1:
{sld}
s_add_u32 s{SPIN}, s{SPIN}, 1
s_waitcnt lgkmcnt(0)
s_cmp_gt_u32 s{SPIN}, 100000
s_cselect_b32 s55, {tgt}, s55
s_cmp_lt_u32 s55, {tgt}
s_cbranch_scc0 {lbl}_ok
s_sleep {sl}
s_branch {lbl}_1''')
        return (sld if first else '')+f'\ns_waitcnt lgkmcnt(0)\ns_cmp_lt_u32 s55, {tgt}\ns_cbranch_scc1 {lbl}\n{lbl}_ok:'
    def run_groups(groups, loads, ring, areg, hooks, mid=[], freed={}, depth=0):
        free=list(ring); dest=[]; depth=max(depth,len(ring))
        def ld():
            sr,imm=loads[len(dest)]; dest.append(free.pop(0))
            return [f's_add_u32 s{T0}, s{sr}, {imm}',f'buffer_load_dwordx4 {v(dest[-1],4)}, v{areg}, {srd(sWS)}, s{T0} offen sc1']
        while free: e(ld())
        e(mid)
        il=[]
        for gi,grp in enumerate(groups):
            g.stamp(f'q{gi}')
            h=hooks.get(gi)
            if h:
                e(h[0]); il=il+list(h[1])
            for k,(a,li,Bq,first) in enumerate(grp):
                if k%2==0: e(f's_waitcnt vmcnt({len(dest)-1-li})')
                e(f'v_mfma_f32_32x32x16_bf16 {v(a,16)}, {v(dest[li],4)}, {v(Bq,4)}, {"0" if first else v(a,16)}')
                if k%2==1: free.append(dest[li])
                can=free and len(dest)<len(loads)
                if can and (k%2==1 or (k==0 and len(dest)-li<depth)): e(ld())
                for _ in range(2):
                    if il: e(il.pop(0))
            free+=freed.get(gi,[])
        e(il)
    ZE=opt.get('ze',8)
    def weave(mark, D, first=1, lastfree=2):
        W=g.L[mark:]; del g.L[mark:]
        ch=[]; cur=[]; hold=False
        for k,l_ in enumerate(W):
            cur.append(l_); t=l_.strip()
            if 'exec' in t: hold=not t.endswith('-1')
            nx=W[k+1].strip() if k+1<len(W) else ''
            if not hold and not (t.startswith('s_') and not t.startswith('s_waitcnt')) and not nx.startswith('s_cselect') and f's{T0}' not in nx: ch.append(cur); cur=[]
        if cur: ch.append(cur)
        slots=len(D)-lastfree-first+1
        for k,d in enumerate(D):
            if first<=k<first+slots:
                a=len(ch)*(k-first)//slots; b=len(ch)*(k-first+1)//slots
                for c in ch[a:b]: e(c)
            e(d)

    DX=16; DW=20; PTX=24; PTW=27; S1=29; S2=30; SELS=208; SFS=[224,228,232,236]; SACC=240
    e(f'''s_setprio 1
s_mov_b32 s{ROT}, 0x{oa[::-1]}
s_cmp_eq_u32 s{T0}, 1
s_cselect_b32 s{ROT}, 0x{ob[::-1]}, s{ROT}
v_lshrrev_b32 v6, 2, v4
v_lshlrev_b32 v6, 4, v6
v_and_or_b32 v6, v4, 3, v6
s_lshl_b32 s{T0}, s{HB}, 6
v_add_u32 v6, s{T0}, v6
v_lshlrev_b32 v6, 10, v6
v_lshrrev_b32 v7, 1, v4
v_xor_b32 v7, v5, v7             ; chunk (even j)
v_xor_b32 v8, 4, v7              ; chunk (odd j)
v_lshl_add_u32 v{DX}, v7, 4, v6
v_lshl_add_u32 v{DX+1}, v8, 4, v6
v_add_u32 v{DX+1}, {32768-1024}, v{DX+1}
v_add_u32 v{DX+2}, 2048, v{DX}
v_add_u32 v{DX+3}, 2048, v{DX+1}
s_and_b32 s{XH}, s{CT}, {opt.get('sx',1)}
s_lshl_b32 s{XL}, s{XH}, 12
s_add_u32 s{XL}, s{XL}, s{XR}
s_lshl_b32 s{XH}, s{XH}, 13
s_mov_b32 s{sX+2}, 2097152
s_mov_b32 s{sX+3}, 0x20000''')
    def xs(i,h):
        st=i%3
        if h==0: t=f's_bfe_u32 s{T0}, s{ROT}, {0x30000+4*i}\ns_lshl_b32 s{SOX}, s{T0}, 7\ns_add_u32 m0, s{XL}, {st*8192}\ns_add_u32 s{SOX}, s{SOX}, s{XH}\n'
        else: t=f's_xor_b32 s{T0}, s{XL}, 4096\ns_add_u32 m0, s{T0}, {st*8192}\ns_xor_b32 s{SOX}, s{SOX}, 8192\n'
        return [(t if j==0 else '')+f'buffer_load_dwordx4 v{DX+j}, {srd(sX)}, s{SOX} offen'+(f' offset:{1024*j}' if j else '')+' lds' for j in range(4)]
    def ws(i,h):
        st=i%3; sr=(sW,sW2)[h]
        t=f's_bfe_u32 s{T0}, s{ROT}, {0x30000+4*i}\ns_add_u32 m0, s{(WL,WL2)[h]}, {st*WSS}\ns_mul_i32 s{SOW}, s{T0}, '+(f's{WSTEP}' if h==0 else 's55')+'\n'
        return [t+f'buffer_load_dwordx4 v{DW+2*h}, {srd(sr)}, s{SOW} offen lds',f'buffer_load_dwordx4 v{DW+2*h+1}, {srd(sr)}, s{SOW} offen offset:1024 lds']
    slab=lambda i: xs(i,0)+ws(i,0)+xs(i,1)+ws(i,1)
    e(f's_waitcnt lgkmcnt(0)\ns_mov_b32 s{sX}, s36\ns_mov_b32 s{sX+1}, s37'); g.stamp('e0')
    e(xs(0,0)+xs(0,1))
    e(fsplit(CT,FS,FCNT,T0))
    e(f'''s_lshl_b32 s{WL}, s{TQ}, 11
s_add_u32 s{WL}, s{WL}, {WB}
s_cmp_eq_u32 s{TQ}, 0
s_cselect_b32 s{T1}, 0, 128
s_cselect_b32 s{SPIN}, 3, s{TQ}
s_cselect_b32 s{sW2}, s56, s58
s_cselect_b32 s{sW2+1}, s57, s59
s_cselect_b32 s{sW}, s42, s44
s_cselect_b32 s{sW+1}, s43, s45
s_add_u32 s{WL2}, s{WL}, s{T1}
s_add_u32 s{WL2}, s{WL2}, 8192
s_sub_u32 s{SPIN}, s{SPIN}, 1
s_lshl_b32 s{SPIN}, s{SPIN}, 7
s_lshl_b32 s{T2}, s{FS}, 5
s_lshl_b32 s{F0}, s{FCNT}, 1
s_mov_b32 s{sW2+2}, 1409024
s_mov_b32 s55, 176128
s_mov_b32 s{sW2+3}, 0x20000
v_mov_b32 v0, 0x80000000''')
    def ffo(d,gb,j):
        return f'''v_add_u32 v6, s{gb}, v1
{"v_add_u32 v6, 64, v6" if j else ""}
v_mul_u32_u24 v10, 10923, v6
v_lshrrev_b32 v10, 16, v10
v_mul_u32_u24 v11, 6, v10
v_sub_u32 v11, v6, v11
v_lshrrev_b32 v6, 1, v10
v_xor_b32 v6, v6, v10
v_and_b32 v6, 4, v6
v_mul_u32_u24 v6, 3, v6
v_xor_b32 v10, v10, v6
v_mul_u32_u24 v10, 2752, v10
v_lshl_add_u32 v10, v11, 4, v10
v_cmp_gt_u32 vcc, s{F0}, v11
v_add_u32 v10, s{T2}, v10
{"v_subrev_u32 v10, 1024, v10" if j else ""}
v_cndmask_b32 v{d}, v0, v10, vcc'''
    e(ffo(DW+2,SPIN,0)); e(ffo(DW+3,SPIN,1)); e(ws(0,1))
    e(f's_sub_u32 s{SPIN}, s{TQ}, 2\ns_lshl_b32 s{SPIN}, s{SPIN}, 7')
    e(ffo(DW,SPIN,0)); e(ffo(DW+1,SPIN,1))
    e(f'''s_lshl_b32 s{T1}, s{CT}, 4
v_add_u32 v6, s{T1}, v4
v_lshlrev_b32 v6, 10, v6
v_lshl_add_u32 v10, v7, 4, v6
v_lshl_add_u32 v11, v8, 4, v6
v_add_u32 v11, 7168, v11
s_mov_b32 s{WSTEP}, 176128
s_cmp_lt_u32 s{TQ}, 2
s_cselect_b64 vcc, -1, 0
s_cselect_b32 s{WSTEP}, 128, s{WSTEP}
s_cselect_b32 s{sW}, s{sW}, s56
s_cselect_b32 s{sW+1}, s{sW+1}, s57
s_cselect_b32 s{sW+2}, 524288, s{sW2+2}
s_mov_b32 s{sW+3}, 0x20000
v_cndmask_b32 v{DW}, v{DW}, v10, vcc
v_cndmask_b32 v{DW+1}, v{DW+1}, v11, vcc''')
    e(ws(0,0)); g.stamp('e1')
    if opt.get('sw',1):
        e(f's_bitcmp1_b32 s{RB}, 0\ns_cselect_b64 vcc, -1, 0')
        for a,b in ((sW,sW2),(sW+1,sW2+1),(sW+2,sW2+2),(WL,WL2),(WSTEP,55)):
            e(f's_cselect_b32 s{T0}, s{b}, s{a}\ns_cselect_b32 s{b}, s{a}, s{b}\ns_mov_b32 s{a}, s{T0}')
        for k in range(2): e(f'v_cndmask_b32 v10, v{DW+k}, v{DW+2+k}, vcc\nv_cndmask_b32 v{DW+2+k}, v{DW+2+k}, v{DW+k}, vcc\nv_mov_b32 v{DW+k}, v10')
    e(f'''s_lshl_b32 s{T1}, s2, 2
s_add_u32 s{T1}, s{T1}, s{TQ}
s_cmp_eq_u32 s{T1}, {97*4+3}
s_cbranch_scc1 L_init
L_initd:''')
    t=f'L_init:\nv_lshlrev_b32 v10, 4, v1\nv_add_u32 v10, {ARR}, v10\nv_mov_b32 v44, 0\nv_mov_b32 v45, 0\nv_mov_b32 v46, 0\nv_mov_b32 v47, 0'
    for k in range(NL//8): t+=f'\nglobal_store_dwordx4 v10, v[44:47], s[66:67] offset:{1024*k} sc1'
    g.cold.append(t+'\ns_branch L_initd')
    e(f's_lshl_b32 s{T1}, s{DQ}, 7\nv_and_b32 v3, 31, v1\nv_lshl_add_u32 v3, v3, 1, s{T1}\nglobal_load_ushort v40, v3, s[52:53]\nglobal_load_ushort v41, v3, s[52:53] offset:64')
    D=slab(1); n1=opt.get('n1',6)
    e(D[:n1])
    common(1)
    nd=0 if opt.get('nodma') else 1
    e(mksrd(sCR,46,47,524288*nd)); e(mksrd(sCI,48,49,524288*nd)); e(mksrd(sDBG,64,65,256)); e(mksrd(sOUT,62,63,4194304))
    e(f'''s_lshl_b32 s{CB}, s{TQ}, 8
s_cmp_eq_u32 s{TQ}, 0
s_cselect_b32 s{TH}, 1, 0
s_cselect_b32 s{W0}, 0, {BIG}
s_lshr_b32 s{T0}, s{TQ}, 1
s_and_b32 s{T1}, s{TQ}, 1
s_mul_i32 s{T2}, s{T0}, 3072
s_mul_i32 s{SPIN}, s{T1}, {UOFF-GOFF}
s_add_u32 s{T2}, s{T2}, s{SPIN}
s_add_u32 s{T2}, s{T2}, {WB+GOFF}
v_add_u32 v{S2}, s{T2}, v10
s_lshl_b32 s{T0}, s{T0}, 6
s_lshl_b32 s{T1}, s{T1}, 11
s_add_u32 s{T1}, s{T1}, {WB}
v_xor_b32 v{S1}, s{T0}, v6
v_add_u32 v{S1}, s{T1}, v{S1}
v_mov_b32 v3, 0x3f803f80''')
    for f_ in range(4):
        e(f'v_cmp_eq_u32 vcc, {f_}, v2')
        for k in range(4): e(f'v_cndmask_b32 v{SELS+4*f_+k}, 0, v3, vcc')
    zstamps()
    mark=len(g.L)
    if str(opt.get('ch','x2220'))[4]=='0': e([f'v_mov_b64 {v(ACC0+16*tl+k,2)}, 0' for tl in range(4) for k in range(4,16,2)])
    MM=[int(c,16) for c in str(opt.get('mm','x88888888'))[1:]]
    weave(mark,D[n1:MM[0]],1,1); left=D[MM[0]:]
    e(f's_setprio {opt.get("lprio",1)}\ns_waitcnt vmcnt({2+MM[0]})'); g.stamp('l0'); e('s_barrier'); g.stamp('B0')
    def ssum(i):
        st=i%3
        L=[f'ds_read_b128 {v(SFS[0],4)}, v{S1} offset:{st*WSS}']+[f'ds_read_b64_tr_b16 {v(SFS[1+q_]+2*j,2)}, v{S2} offset:{st*WSS+8*j*96+32*q_}' for q_ in range(3) for j in range(2)]
        return L+['s_waitcnt lgkmcnt(0)']+[f'v_mfma_f32_16x16x32_bf16 {v(SACC,4)}, {v(SFS[k],4)}, {v(SELS+4*k,4)}, {"0" if (i==0 and k==0) else v(SACC,4)}' for k in range(4)]
    e(f's_lshl_b32 s{T1}, s2, 2\ns_add_u32 s{T1}, s{T1}, s{TQ}\ns_cmp_eq_u32 s{T1}, {97*4+3}\ns_cbranch_scc1 L_init2\nL_init2d:')
    g.cold.append(f'L_init2:\nv_mov_b32 v44, 0\nv_mov_b32 v45, 1\ns_mov_b64 exec, 1\nbuffer_store_dword v45, v44, {srd(sDBG)}, 0 offen sc1\ns_mov_b64 exec, -1\ns_branch L_init2d')
    D=slab(2); D,left=left+D[:MM[1]],D[MM[1]:]; mark=len(g.L)
    e(ssum(0)); weave(mark,D,opt.get('n2',2),opt.get('n2l',3))
    e(f's_waitcnt vmcnt({MM[1]})\ns_barrier'); g.stamp('B1')
    def vchk(lbl,ld,n):
        e(f's_waitcnt vmcnt({n})\nv_cmp_gt_u32 vcc, s{TH}, v2\ns_cmp_eq_u64 vcc, 0\ns_cbranch_scc0 {lbl}\n{lbl}ok:')
        g.cold.append(f'''{lbl}:
s_mov_b32 s{SPIN}, 0
{lbl}1:
s_sleep 8
{ld}
s_add_u32 s{SPIN}, s{SPIN}, 1
s_cmp_gt_u32 s{SPIN}, 100000
s_cbranch_scc1 {lbl}ok
s_waitcnt vmcnt(0)
v_cmp_gt_u32 vcc, s{TH}, v2
s_cmp_eq_u64 vcc, 0
s_cbranch_scc0 {lbl}1
s_branch {lbl}ok''')
    gold=f'buffer_load_dword v2, v3, {srd(sDBG)}, s{W0} offen sc1'
    arld=f'buffer_load_dword v2, v3, {srd(sWS)}, s{W0} offen sc1'
    W2PF=f'''s_cmp_eq_u32 s{TQ}, 0
s_cselect_b32 s{sOUT}, s{sCR}, s{sCI}
s_cselect_b32 s{sOUT+1}, s{sCR+1}, s{sCI+1}
s_and_b32 s{T2}, s2, -2
s_lshl_b32 s{T1}, s{T2}, 11
s_mul_i32 s{T2}, s{T2}, {43*128}
s_cmp_ge_u32 s{TQ}, 2
s_cselect_b32 s{sOUT}, s{sDN}, s{sOUT}
s_cselect_b32 s{sOUT+1}, s{sDN+1}, s{sOUT+1}
s_cselect_b32 s{T1}, s{T2}, s{T1}
s_cselect_b32 s{T2}, 42, 31
v_min_u32 v10, s{T2}, v1
s_cmp_eq_u32 s{TQ}, 3
s_cselect_b32 s{T2}, {43*128}, 0
s_add_u32 s{T1}, s{T1}, s{T2}
v_lshlrev_b32 v10, 7, v10
s_bitcmp1_b32 s2, 0
s_cselect_b32 s{T1}, {BIG}, s{T1}
buffer_load_dword v11, v10, {srd(sOUT)}, s{T1} offen
s_mov_b32 s{sOUT}, s62
s_mov_b32 s{sOUT+1}, s63'''
    XP=32; RB_=192 if opt.get('bb',0)==0 else ACC0+4; DS=40; OUTO=26
    def vread(vs, base):
        st=vs%3; L=[]
        for k in range(4): L+=trstep(base+8*k,PTX,st*8192+k*2048)
        for k in range(2): L+=trstep(base+32+8*k,PTW,st*WSS+k*2048)
        return L
    carry=0
    for bi in range(1,7):
        pre=0; post=0; e(left); m_=MM[bi+1]
        if bi==1: e('v_mov_b32 v3, 0\n'+gold)
        if bi==2:
            e(f's_bfe_u32 s{T1}, s2, {(NL.bit_length()-1)*65536+3}\ns_lshl_b32 s{T1}, s{T1}, 7\ns_add_u32 s{W0}, s{W0}, {ARR}\ns_add_u32 s{T1}, s{T1}, s{W0}\ns_mul_i32 s{TH}, s{TH}, {256//NL}\nv_mov_b32 v2, 1\ns_mov_b64 exec, 1\nbuffer_atomic_add v2, v3, {srd(sWS)}, s{T1} offen sc1\ns_mov_b64 exec, -1'); pre+=1
        if bi==opt.get('xp',3):
            e(f's_mov_b32 m0, s{V14}\ns_lshl_b32 s{T1}, s{DQ}, 7\nbuffer_load_dwordx4 v6, {srd(sX)}, s{T1} offen lds\ns_add_u32 s{T1}, s{T1}, {8192-1024}\nbuffer_load_dwordx4 v6, {srd(sX)}, s{T1} offen offset:1024 lds'); pre+=2
        PP=opt.get('pp',0)
        arp=f'v_min_u32 v3, {NL-1}, v1\nv_lshlrev_b32 v3, 7, v3\n'+arld
        if bi==5 and PP==0: e(arp)
        if bi==5 and PP==9: e('v_mov_b32 v2, 64')
        if bi==6:
            e(f'''s_lshl_b32 s{T1}, s{HB}, 10
s_add_u32 s{T1}, s{T1}, {ST_M}
s_mov_b32 m0, s{V14}
s_lshl_b32 s{T2}, s{HB}, 9
buffer_load_dwordx4 v42, {srd(sWS)}, s{T1} offen sc1 lds
s_lshr_b32 s{T1}, s{WI}, 6
s_lshl_b32 s{T1}, s{T1}, 9
s_add_u32 s{T1}, s{T1}, {ST_R-1024}
s_mov_b32 exec_hi, 0
buffer_load_dwordx4 v15, {srd(sWS)}, s{T1} offen offset:1024 sc1 lds
s_lshl_b32 s{T1}, s{TQ}, 9
s_add_u32 m0, s{T1}, {RM}
s_add_u32 s{T2}, s{T2}, {ST_R}
buffer_load_dwordx4 v15, {srd(sWS)}, s{T2} offen sc1 lds
s_mov_b64 exec, -1''')
        if PF==bi and opt.get('pfp',0)==0: e(W2PF); pre+=1
        if opt.get('tw')==bi:
            e(f'v_min_u32 v10, 4, v1\nv_lshlrev_b32 v10, 21, v10\nbuffer_load_dword v45, v10, {srd(sWS)}, 0 offen\ns_mov_b64 exec, 1\nbuffer_load_dword v46, v{OUTO}, {srd(sOUT)}, 0 offen\ns_mov_b64 exec, -1'); pre+=2
        mark=len(g.L)
        CH=[int(x) for x in str(opt.get('ch','x2220'))[1:]]
        if bi==CH[0]:
            e(f's_lshl_b32 s{T0}, s{DQ}, 6\nv_add_u32 v6, s{T0}, v4\nv_lshlrev_b32 v6, 10, v6\nv_lshl_add_u32 v{DC}, v7, 4, v6\nv_lshl_add_u32 v{DC+1}, v8, 4, v6')
            e(traddr(0,6)+[f'v_add_u32 v{PTX}, s{XR}, v0',f'v_add_u32 v{PTX+1}, s{XR}, v6',f'v_add_u32 v{PTW}, s{WQ}, v0',f'v_add_u32 v{PTW+1}, s{WQ}, v6'])
        if bi==CH[1]:
            e(f'''s_lshl_b32 s{T0}, s{RB2}, 2
s_add_u32 s{T2}, s{T0}, s{TQ2}
s_and_b32 s{T1}, s{TQ}, 1
s_lshl_b32 s{T1}, s{T1}, 5
s_and_b32 s{T0}, s{TQ}, 2
s_lshl_b32 s{T0}, s{T0}, 1
s_add_u32 s{T1}, s{T0}, s{T1}
s_lshl_b32 s{T0}, s{T2}, 6
s_add_u32 s{WI}, s{T0}, s{T1}
v_lshrrev_b32 v0, 5, v1
v_lshl_add_u32 v{OUTO}, v0, 4, s{WI}
v_and_b32 v6, 3, v4
v_add_u32 v6, v6, v{OUTO}
v_lshlrev_b32 v9, 4, v5
v_lshl_add_u32 v6, v6, 10, v9
s_lshl_b32 s{T1}, s{T1}, 2
s_add_u32 s{T1}, s{T1}, s{V14}
v_lshl_add_u32 v43, v0, 6, s{T1}
v_bfe_u32 v31, v1, 2, 2
v_lshl_add_u32 v31, v0, 2, v31
v_lshlrev_b32 v31, 7, v31
v_and_b32 v0, 3, v1
v_lshl_add_u32 v31, v0, 3, v31
v_and_b32 v0, 16, v1
v_lshl_add_u32 v31, v0, 1, v31
v_add_u32 v31, s{V14}, v31
s_lshl_b32 s{T1}, s{DQ}, 7
v_and_b32 v9, 31, v1
v_lshl_add_u32 v9, v9, 1, s{T1}
v_lshlrev_b32 v0, 1, v9
v_lshl_add_u32 v{OUTO}, v{OUTO}, 11, v0''')
        if bi==CH[2]:
            e(f'v_and_b32 v42, 12, v1\nv_lshlrev_b32 v42, 2, v42\nv_and_or_b32 v42, v1, 3, v42\nv_lshrrev_b32 v0, 4, v1\nv_lshl_add_u32 v42, v0, 2, v42\nv_lshlrev_b32 v42, 4, v42')
            e(f'v_and_b32 v0, 3, v1\nv_and_b32 v44, 48, v1\nv_lshl_add_u32 v44, v0, 6, v44\ns_lshl_b32 s{T1}, s{TQ}, 8\ns_add_u32 s{T1}, s{T1}, {SP}\nv_add_u32 v44, s{T1}, v44')
        if bi==CH[3]: e([f'v_mov_b32 v{ACC0+16*tl+k}, 0' for tl in range(4) for k in range(4,16)])
        if bi==opt.get('xq',5): e([f'ds_read_b64_tr_b16 {v(XP+2*tl,2)}, v31 offset:{(tl>>1)*1024+(tl&1)*64}' for tl in range(4)])
        e(ssum(bi))
        D=slab(bi+2) if bi<6 else vfull(8); left=D[m_:]
        weave(mark,D[:m_],opt.get('wf',2),opt.get('wl',3))
        if PF==bi and opt.get('pfp',0)==1: e(W2PF); post+=1
        if bi==4 and PP==1: e(arp); post+=1
        g.stamp(f'p{bi+1}')
        if bi==1: vchk('L_go',gold,m_+pre+post)
        elif bi==5: vchk('L_poll',arld,m_+post)
        n=m_+post+(0 if bi in (5,6) else pre)
        e(f's_waitcnt vmcnt({n}) lgkmcnt(0)\ns_barrier'); g.stamp(f'B{bi+1}')
        carry=post
    RQ=(lambda mh: RB_+8*mh) if opt.get('bb',0)==0 else (lambda mh: [4,16][mh])
    V9=left+vfull(9); n9=opt.get('n9',8); WW=opt.get('ww',1)
    mark=len(g.L)
    e([f'ds_read_b128 {v(RQ(mh)+4*k,4)}, v43 offset:{1024+32*mh+256*k}' for mh in range(2) for k in range(2)])
    e(ssum(7))
    swr=f's_mov_b32 exec_lo, 0x000f000f\ns_mov_b32 exec_hi, 0x000f000f\nds_write_b128 v44, {v(SACC,4)}\ns_mov_b64 exec, -1'
    if WW==1: e('s_waitcnt vmcnt(0)'); e(swr); e('s_waitcnt lgkmcnt(0)'); e(V9[:n9])
    if WW==0: e(swr); e(V9[:n9])
    if WW==2: weave(mark,V9[:n9],1,1); e(swr)
    if WW==3: weave(mark,V9[:n9],1,1); e('s_waitcnt vmcnt(0)'); e(swr)
    g.stamp('p8')
    e('s_waitcnt lgkmcnt(0)\ns_setprio 0\ns_barrier'); g.stamp('B8')
    BB=[f'v_lshlrev_b32 v{DS}, 16, v{DS}',f'v_lshlrev_b32 v{DS+1}, 16, v{DS+1}']
    for mh in range(2):
        for dh in range(2):
            for i in range(4):
                a=TILE(mh,dh)+i; xr=XP+2*(2*mh+dh)+(i>>1)
                BB+=[f'v_lshlrev_b32 v{a}, 16, v{xr}' if i%2==0 else f'v_and_b32 v{a}, 0xffff0000, v{xr}',f'v_fma_f32 v0, v{a}, v{RQ(mh)+i}, v{RQ(mh)+4+i}',f'v_fmac_f32 v{a}, v0, v{DS+dh}']
    wstart=len(g.L)
    e(mix(BB,V9[n9:],6) if opt.get('bb',0)==0 else V9[n9:])
    e('s_waitcnt vmcnt(12)')
    e(mix(vread(8,B1),vfull(10),2))
    e('s_waitcnt vmcnt(12) lgkmcnt(0)')
    e(mix(vread(9,B2),vfull(11),2))
    e('s_waitcnt vmcnt(12) lgkmcnt(0)')
    e(mix(vread(10,B3),vfull(12),2))
    e(p2base(1))
    e(f's_lshl_b32 s{T1}, s{TQ}, 7\nv_xor_b32 v11, s{T1}, v15\nv_mov_b32 v10, v{OUTO}\ns_lshl_b32 s{T1}, s{TQ}, 2\ns_add_u32 s{T1}, s{T1}, {ZF}\nv_mov_b32 v2, s{T1}\nv_mov_b32 v3, 1')
    ap=opt.get('ap',4); V=vfull(13)
    e('s_waitcnt lgkmcnt(0)'); e(V[:12-ap]); e(sld if ap else ''); e(V[12-ap:])
    if opt.setdefault('th',9):
        W=g.L[wstart:]; del g.L[wstart:]; c=0
        for l_ in W:
            if ' lds' in l_:
                c+=1
                if opt.get('th0',8)<c<=opt.get('th1',99): e(f's_waitcnt vmcnt({opt["th"]})')
            e(l_)
    g.stamp('chores')
    assert not opt.get('bb',0)
    e(spoll('L_fp1',6,opt.get('slp1',4),not ap))
    g.stamp('go')
    e('s_setprio 1')
    loads=[(SOW,s_*1024+mh*HSTR) for s_ in range(18) for mh in range(2)]
    groups=[[(TILE(mh,dh),2*s_+mh,B1+8*s_+4*dh,False) for mh in range(2) for dh in range(2)] for s_ in range(18)]
    run_groups(groups,loads,[16+4*k for k in range(8)]+[4],11,{ZE:(['s_barrier',g.st('Z1')],[])},['s_waitcnt vmcnt(9)','ds_write_b32 v2, v3'],{s_:[B1+8*s_,B1+8*s_+4] for s_ in range(18)},opt.get('dp1',14))
    g.stamp('ph1')
    e('s_setprio 0')
    XS=112
    for j in range(1,4):
        e(f's_xor_b32 s{T1}, s{TQ}, {j}\ns_mul_i32 s{T1}, s{T1}, {XW}\ns_add_u32 s{T1}, s{T1}, {(j-1)*4096}\nv_add_u32 v{3+j}, s{T1}, v15')
    e(f'v_add_u32 v7, s{XR}, v15\nv_add_u32 v8, s{WQ}, v15')
    for j in range(1,4):
        for tl in range(4): e(f'ds_write_b128 v{3+j}, {v(ACC0+16*tl+4*j,4)} offset:{tl*1024}')
    e('s_waitcnt lgkmcnt(0)\ns_barrier'); g.stamp('Z2')
    def addq(a,srcs,pk):
        for q_ in srcs:
            if pk:
                for j in range(2): e(f'v_pk_add_f32 {v(a+2*j,2)}, {v(a+2*j,2)}, {v(q_+2*j,2)}')
            else:
                for j in range(4): e(f'v_add_f32 v{a+j}, v{a+j}, v{q_+j}')
    def outst(mh,dh):
        for i in range(4):
            if i%2==0: e(f's_mov_b32 s{T0}, {mh*16384+i*2048}')
            e(f'buffer_store_dword v{TILE(mh,dh)+i}, v10, {srd(sOUT)}, s{T0} offen offset:{dh*128+(i&1)*2048} sc1')
    for tl in range(4):
        for j in range(3): e(f'ds_read_b128 {v(XS+12*tl+4*j,4)}, v7 offset:{j*4096+tl*1024}')
    for tl in range(4):
        e(f's_waitcnt lgkmcnt({9-3*tl})')
        addq(ACC0+16*tl,[XS+12*tl+4*k for k in range(3)],False)
    e('s_barrier'); g.stamp('Z23')
    e('s_setprio 1')
    for dh in range(2):
        for k in range(4): e(f'ds_read_b128 {v(XS+16*dh+4*k,4)}, v7 offset:{16384+k*2048+dh*1024}')
    for dh in range(2):
        e(f's_waitcnt lgkmcnt({4-4*dh})')
        addq(TILE(0,dh),[XS+16*dh+4*k for k in range(4)],False); outst(0,dh)
    for dh in range(2):
        e('s_barrier')
        if dh: g.stamp('p2end')
        for k in range(4): e(f'ds_read_b128 {v(XS+16*dh+4*k,4)}, v8 offset:{dh*WSS+k*1024}')
        for k in range(0,4,2):
            e(f's_waitcnt lgkmcnt({2-k})'); addq(TILE(1,dh),[XS+16*dh+4*k,XS+16*dh+4*k+4],True)
        outst(1,dh)
    e('s_branch L_fin' if opt.get('stamps') else 's_endpgm')
    e(g.cold); g.cold=[]

    SL=16; XA=22; SA=24; TA=26; GA=27; SPA=28; RA=29; SSA=30; SS=12
    L64,WG,WH,L32,WSEL,KAP,CP,EA,NI=32,34,36,38,40,42,44,46,47
    PR=80; PI=96; FA=112; XB=208; WR=240
    RS=XB; GC=XB+16; MR=WR
    e('L_comp:')
    if not opt.get('nb',1): e(NEAR)
    R0=112
    r=lambda k: R0+k
    def allred(a,t):
        for k in (8,4,2,1): e(f'v_add_f32_dpp {v(a)}, {v(a)}, {v(a)} row_ror:{k} row_mask:0xf bank_mask:0xf')
        e(f'v_mov_b32 {v(t)}, {v(a)}\nv_permlane16_swap_b32 {v(t)}, {v(a)}\nv_add_f32 {v(a)}, {v(a)}, {v(t)}')
    m_,sd,A_,B_,R_,NM,MR_,ad,dt,tp=r(24),r(26),r(8),r(9),r(10),r(11),r(13),r(28),r(29),r(30)
    e(fsplit(CT,FS,FCNT,T0))
    common(0)
    e(f'''s_lshl_b32 s{T0}, s{CT}, 12
s_add_u32 s{T0}, s{T0}, {EOFF}
s_add_u32 s{sE}, s66, s{T0}
s_addc_u32 s{sE+1}, s67, 0
s_mov_b32 s{sE+2}, 4096
s_mov_b32 s{sE+3}, 0x20000
v_add_u32 v{XA}, s{XR}, v6
v_xor_b32 v{XA+1}, 64, v{XA}
v_add_u32 v{SA}, {WB}, v6
v_xor_b32 v{SA+1}, 64, v{SA}
v_add_u32 v{TA}, {WB+GOFF}, v10
v_lshl_add_u32 v{GA}, v2, 4, s{V14}
v_and_b32 v{SPA}, 48, v1
s_lshl_b32 s{T0}, s{TQ}, 9
s_add_u32 s{T0}, s{T0}, {RM}
v_lshl_add_u32 v{RA}, v{SPA}, 2, s{T0}
v_add_u32 v{SPA}, {SP}, v{SPA}
v_lshlrev_b32 v{SSA}, 2, v2
v_add_u32 v{SSA}, {SP}, v{SSA}
v_lshlrev_b32 v{EA}, 3, v2
v_and_b32 v0, 1, v1
v_lshlrev_b32 v0, 4, v0
v_mov_b32 v6, 0x3f80
v_lshlrev_b32 v0, v0, v6
v_bfe_u32 v6, v1, 2, 2
v_cmp_eq_u32 vcc, v6, v3
v_and_b32 v6, 2, v1
v_mov_b32 v{SL}, 0
v_cndmask_b32 v0, 0, v0, vcc
v_cmp_eq_u32 vcc, 0, v6
v_mov_b32 v{SL+1}, 0
v_mov_b32 v{SL+4}, 0
v_cndmask_b32 v{SL+2}, 0, v0, vcc
v_cndmask_b32 v{SL+3}, v0, 0, vcc
v_mov_b32 v{SL+5}, 0
''')
    e(f'''; lanes (l&31): 0..3 quad (A,B,R,-m), 4 r, 5 -m*r, 6 counter clear, 16..31 carry sentinel
v_and_b32 v6, 31, v1
v_lshrrev_b32 v7, 5, v1
s_lshl_b32 s{T1}, s{CT}, 5
s_sub_u32 s{T1}, s{T1}, s{HB}
s_add_u32 s{T1}, s{T1}, 31
s_lshl_b32 s{T1}, s{T1}, 7
s_add_u32 s{T1}, s{T1}, {EOFF-64}
v_lshl_add_u32 v{ad}, v7, 4, v6
v_lshl_add_u32 v{ad}, v{ad}, 2, s{T1}
v_mov_b32 v{dt}, -1
s_and_b32 s{T1}, s{CT}, 7
s_cselect_b32 s{T1}, {BIG}, s{HA}
v_cmp_gt_u32 vcc, 7, v6
v_lshl_add_u32 v{tp}, v7, 7, s{T1}
s_lshr_b32 s{T1}, s{WI}, 5
v_cndmask_b32 v{ad}, v{ad}, v{tp}, vcc
v_cndmask_b32 v{dt}, v{dt}, 0, vcc
s_lshl_b32 s{T1}, s{T1}, 9
s_and_b32 s{T2}, s{WI}, 31
s_lshl_b32 s{T2}, s{T2}, 3
s_add_u32 s{T1}, s{T1}, s{T2}
s_add_u32 s{T1}, s{T1}, {ST_R-1024}
v_cmp_gt_u32 vcc, 6, v6
v_lshl_add_u32 v{tp}, v6, 6, v7
v_lshl_add_u32 v{tp}, v{tp}, 2, s{T1}
v_cndmask_b32 v{ad}, v{ad}, v{tp}, vcc
s_lshl_b32 s{T1}, s{WI}, 5
s_add_u32 s{T1}, s{T1}, {ST_M}
v_cmp_gt_u32 vcc, 4, v6
v_lshl_add_u32 v{tp}, v7, 2, v6
v_lshl_add_u32 v{tp}, v{tp}, 2, s{T1}
v_cndmask_b32 v{ad}, v{ad}, v{tp}, vcc''')
    e(f'''s_sub_u32 s{T0}, 31, s{HB}
s_lshl_b32 s{SOW}, s{T0}, 7
s_mul_i32 s{HB}, s{HB}, {2*HSTR}''')
    if opt.get('nost'): e(f's_mov_b32 s{HB}, {BIG}')
    FO=[ROT,WSTEP,XL]
    for sb in range(3): e(f's_add_u32 s{T2}, s{FS}, {sb}\ns_lshl_b32 s{T2}, s{T2}, 10\ns_add_u32 s{T2}, s{T2}, s{HB}\ns_cmp_gt_u32 s{FCNT}, {sb}\ns_cselect_b32 s{FO[sb]}, s{T2}, {BIG}')
    e(f's_and_b32 s{T0}, s{CT}, 7\ns_cmp_lt_u32 s{T0}, 6\ns_cselect_b32 s{WL}, s{HA}, {BIG}\ns_add_u32 s{HA}, s{HA}, 128\ns_add_u32 s{SOX}, s{CT}, 86\ns_lshl_b32 s{SOX}, s{SOX}, 10\ns_add_u32 s{SOX}, s{SOX}, s{HB}')
    if opt.get('stamps'): e(mksrd(sX,36,37,2097152))
    zstamps()
    e(f'''s_waitcnt vmcnt(2)
v_lshlrev_b32 v244, 16, v244
v_lshlrev_b32 v245, 16, v245
v_lshlrev_b32 v246, 16, v246
v_mul_f32 v246, {F(LOG2E)}, v246
v_exp_f32 v246, v246
v_cvt_pk_bf16_f32 v246, v246, v246
v_lshlrev_b32 v246, 16, v246
v_mul_f32 v247, v246, v244
v_mul_f32 v248, v246, v245
v_mul_f32 v247, {F(LOG2E)}, v247
v_mul_f32 v248, 0.15915494, v248''')
    def cpow(dr,di,n):
        e([f'v_mul_f32 v249, {n}, v247',f'v_mul_f32 v250, {n}, v248','v_rndne_f32 v251, v250','v_exp_f32 v249, v249','v_sub_f32 v250, v250, v251','v_cos_f32 v251, v250','v_sin_f32 v250, v250',f'v_mul_f32 {v(dr)}, v249, v251',f'v_mul_f32 {v(di)}, v249, v250'])
    cpow(PR,PI,'1.0')
    for j in range(1,16):
        a=(j-1)//2; b=j-1-a
        e([f'v_mul_f32 {v(PR+j)}, {v(PR+a)}, {v(PR+b)}',f'v_mul_f32 {v(PI+j)}, {v(PR+a)}, {v(PI+b)}',f'v_fma_f32 {v(PR+j)}, -{v(PI+a)}, {v(PI+b)}, {v(PR+j)}',f'v_fmac_f32 {v(PI+j)}, {v(PI+a)}, {v(PR+b)}'])
    cpow(L32,L32+1,F(32.0)); cpow(L64,L64+1,F(64.0))
    e(['v_and_b32 v252, 16, v1','v_cvt_f32_u32 v252, v252']); cpow(WSEL,WSEL+1,'v252')
    e(['v_and_b32 v252, 48, v1','v_cvt_f32_u32 v252, v252']); cpow(WG,WG+1,'v252')
    e(f'v_mul_f32 v252, {F(32.0)}, v252'); cpow(254,255,'v252')
    e(['v_mul_f32 v249, v244, v244','v_fmac_f32 v249, v245, v245','v_rcp_f32 v249, v249',f'v_add_f32 v250, -1.0, v{PR}',f'v_mul_f32 v{KAP}, v250, v244',f'v_fmac_f32 v{KAP}, v{PI}, v245',
        f'v_mul_f32 v{KAP+1}, v{PI}, v244',f'v_fma_f32 v{KAP+1}, -v250, v245, v{KAP+1}','v_add_f32 v249, v249, v249',f'v_mul_f32 v{KAP}, v249, v{KAP}',f'v_mul_f32 v{KAP+1}, v249, v{KAP+1}'])
    e(cmul(WH,KAP,254)); e(f'v_sub_f32 v{NI}, 0, v{PI}')
    g.stamp('lam')
    e('s_waitcnt vmcnt(0)')
    for i in range(8): e(f'v_lshlrev_b32 v{r(8+2*i)}, 16, v{r(i)}\nv_and_b32 v{r(9+2*i)}, 0xffff0000, v{r(i)}')
    e(f'v_pk_add_f32 {v(r(24),2)}, {v(r(8),2)}, {v(r(10),2)}')
    for i in range(2,8): e(f'v_pk_add_f32 {v(r(24),2)}, {v(r(24),2)}, {v(r(8+2*i),2)}')
    e(f'v_add_f32 v{r(24)}, v{r(24)}, v{r(25)}')
    allred(r(24),r(25))
    e(f'v_mul_f32 v{r(24)}, {F(1/512)}, v{r(24)}')
    for i in range(8): e(f'v_pk_add_f32 {v(r(8+2*i),2)}, {v(r(8+2*i),2)}, {v(r(24),2)} op_sel_hi:[1,0] neg_lo:[0,1] neg_hi:[0,1]')
    e(f'v_pk_mul_f32 {v(r(26),2)}, {v(r(8),2)}, {v(r(8),2)}')
    for i in range(1,8): e(f'v_pk_fma_f32 {v(r(26),2)}, {v(r(8+2*i),2)}, {v(r(8+2*i),2)}, {v(r(26),2)}')
    e(f'v_add_f32 v{r(26)}, v{r(26)}, v{r(27)}')
    allred(r(26),r(27))
    e(f'''v_mul_f32 v{sd}, {F(1/512)}, v{sd}
v_cvt_pk_bf16_f32 v{m_}, v{m_}, v{sd}
v_and_b32 v{sd}, 0xffff0000, v{m_}
v_lshlrev_b32 v{m_}, 16, v{m_}
v_add_f32 v{sd}, {F(1e-5)}, v{sd}
v_cvt_pk_bf16_f32 v{sd}, v{sd}, v{sd}
v_lshlrev_b32 v{sd}, 16, v{sd}
v_sqrt_f32 v{sd}, v{sd}
v_sub_f32 v{NM}, 0, v{m_}
v_cvt_pk_bf16_f32 v{sd}, v{sd}, v{sd}
v_lshlrev_b32 v{sd}, 16, v{sd}          ; sd
v_mul_f32 v{R_}, v{sd}, v{sd}
v_rcp_f32 v{sd}, v{sd}                  ; r
s_mov_b32 s{T0}, 8
s_mov_b32 s{T0+1}, 8
v_mul_f32 v{A_}, {F(-2*math.sqrt(2/math.pi)*LOG2E)}, v{sd}
v_mul_f32 v{B_}, v{sd}, v{sd}
v_mul_f32 v{MR_}, v{NM}, v{sd}
v_mul_f32 v{B_}, {F(0.044715)}, v{B_}
v_cndmask_b32 v{dt}, v{dt}, v{NM}, s[{T0}:{T0+1}]
v_mul_f32 v{B_}, v{B_}, v{A_}''')
    for bit,src in ((32,MR_),(16,sd),(4,R_),(2,B_),(1,A_)): e(f's_mov_b32 vcc_lo, {bit}\ns_mov_b32 vcc_hi, {bit}\nv_cndmask_b32 v{dt}, v{dt}, v{src}, vcc')
    e(f's_mov_b32 exec_lo, 0xffff007f\ns_mov_b32 exec_hi, 0xffff007f\nbuffer_store_dword v{dt}, v{ad}, {srd(sWS)}, 0 offen sc1\ns_mov_b64 exec, -1')
    g.stamp('st')
    if opt.get('ic'):
        e(f's_sub_u32 s{SPIN}, s{TQ}, 4\ns_mov_b64 exec, 0\nL_ret:\ns_add_u32 s{SPIN}, s{SPIN}, 4')
        for k in range(8): e(f's_cmp_eq_u32 s{SPIN}, {k}\ns_cbranch_scc1 L_pad{k}')
        e('s_mov_b64 exec, -1')
        g.stamp('icd')
    e(f's_setprio {opt.get("cprio",0)}\ns_barrier'); g.stamp('B0')
    X=lambda b,t4: XB+16*b+4*t4
    Wq=lambda q: WR+4*(q%4)
    def wr(q):
        n,k=divmod(q,8); i,u=divmod(n,2); st=i%3
        if k<2: return [f'ds_read_b128 {v(Wq(q),4)}, v{SA+u} offset:{st*WSS+k*2048}']
        sb,up=divmod(k-2,2)
        return [f'ds_read_b64_tr_b16 {v(Wq(q)+2*j,2)}, v{TA} offset:{st*WSS+(32*u+8*j)*96+32*sb+up*(UOFF-GOFF)}' for j in range(2)]
    def xr(n,t4):
        i,u=divmod(n,2)
        return f'ds_read_b128 {v(X(n&1,t4),4)}, v{XA+u} offset:{(i%3)*8192+t4*2048}'
    ops=[]
    def issue(x,tag): e(x); ops.append(tag)
    issue(wr(0)[0],('w',0))
    for t4 in range(4): issue(xr(0,t4),('x',0))
    for q in (1,2):
        for x in wr(q): issue(x,('w',q))
    for q in range(128):
        n,k=divmod(q,8); nxt=q+3
        need=[('w',q)]+([('x',n)] if k==0 else [])
        last=max(i for i,o in enumerate(ops) if o in need)
        if nxt%16==0:
            g.stamp(f'p{nxt//16}')
            e(('s_waitcnt vmcnt(0) lgkmcnt(0)' if nxt==32 else 's_waitcnt lgkmcnt(0)')+'\ns_barrier'); g.stamp(f'B{nxt//16}')
        elif q<125: e(f's_waitcnt lgkmcnt({len(ops)-1-last})')
        R=[(x,('w',nxt)) for x in wr(nxt)] if nxt<128 else []
        if n<15 and k in (5,6): R+=[(xr(n+1,t4),('x',n+1)) for t4 in (2*(k-5),2*(k-5)+1)]
        if q in (121,122): R+=[(f'ds_read_b128 {v(RS+4*j,4)}, v{RA} offset:{16*j}',('r',0)) for j in (2*(q-121),2*(q-121)+1)]
        if q==125: R+=[(f'ds_read_b32 v{4+j}, v{SSA} offset:{256*j}',('r',0)) for j in range(4)]
        if q==126: R+=[(f'ds_read_b128 {v(MR+4*j,4)}, v{RA} offset:{256+16*j}',('r',0)) for j in (0,1)]
        if q==127: R+=[('',None),(f'ds_read_b128 {v(MR+8,4)}, v{RA} offset:{256+32}',('r',0))]
        for t4 in range(4):
            a=(ACC0+16*k if k<2 else FA+16*(k-2))+4*t4; c='0' if n==0 else v(a,4)
            xo,wo=v(X(n&1,t4),4),v(Wq(q),4)
            e(f'v_mfma_f32_16x16x32_bf16 {v(a,4)}, {xo if k<2 else wo}, {wo if k<2 else xo}, {c}')
            if R:
                x,tg=R.pop(0)
                if tg: issue(x,tg)
        assert not R
    g.stamp('loopend')
    Xr=ACC0; Yr=ACC0+16; Z,T,P,Q=4,6,8,10
    e(f's_waitcnt lgkmcnt(3)\nv_add_f32 v{SS}, v4, v6\nv_add_f32 v{SS+1}, v5, v7')
    e(f'ds_read_b128 {v(MR+12,4)}, v{RA} offset:{256+48}')
    for i in range(8): e(f'v_pk_mul_f32 {v(Xr+2*i,2)}, {v(Xr+2*i,2)}, {v(RS+2*i,2)}\nv_pk_mul_f32 {v(Yr+2*i,2)}, {v(Yr+2*i,2)}, {v(RS+2*i,2)}')
    e('s_waitcnt lgkmcnt(0)')
    for i in range(8):
        xx=v(Xr+2*i,2); yy=v(Yr+2*i,2)
        e(f'v_pk_fma_f32 {xx}, {v(MR+2*i,2)}, {v(SS,2)}, {xx} op_sel_hi:[1,0,1]\nv_pk_fma_f32 {yy}, {v(MR+2*i,2)}, {v(SS,2)}, {yy} op_sel:[0,1,0] op_sel_hi:[1,1,1]')
    SG=[RS,MR,RS]; SGT=RS+8; TMP=MR+8
    def sread(sb): return [f'ds_read_b128 {v((SG[sb],SGT)[q_>>1]+4*(q_&1),4)}, v{SPA} offset:{256*q_+64*(1+sb)}' for q_ in range(4)]
    def sadd(sb): return ['s_waitcnt lgkmcnt(0)']+[f'v_pk_add_f32 {v(SG[sb]+2*k,2)}, {v(SG[sb]+2*k,2)}, {v(SGT+2*k,2)}' for k in range(4)]
    SC=[]
    for j in range(1,16): SC+=[f'v_fmac_f32 v{Xr+j}, v{PR}, v{Xr+j-1}',f'v_fmac_f32 v{Yr+j}, v{PR}, v{Yr+j-1}',f'v_fmac_f32 v{Xr+j}, v{NI}, v{Yr+j-1}',f'v_fmac_f32 v{Yr+j}, v{PI}, v{Xr+j-1}']
    e(SC)
    g.stamp('a_scan')
    rd=[f'ds_read_b128 {v(GC+4*k,4)}, v{GA} offset:{256*k}' for k in range(4)]+sread(0)
    e(f'v_mov_b32 v{T}, v{Xr+15}\nv_mov_b32 v{T+1}, v{Yr+15}\nv_mov_b32 v{Z}, 0\nv_mov_b32 v{Z+1}, 0'); e(rd[:2])
    e(f'v_permlane16_swap_b32 v{Z}, v{T}\nv_permlane16_swap_b32 v{Z+1}, v{T+1}')
    e(cfma(P,(PR+15,PI+15),Z,(Xr+15,Yr+15)))
    e(f'v_mov_b32 v{Q}, v{P}\nv_mov_b32 v{Q+1}, v{P+1}\nv_mov_b32 v{T}, 0\nv_mov_b32 v{T+1}, 0\nv_permlane16_swap_b32 v{Q}, v{P}\nv_permlane16_swap_b32 v{Q+1}, v{P+1}'); e(rd[2:3])
    e(f'v_permlane32_swap_b32 v{T}, v{P}\nv_permlane32_swap_b32 v{T+1}, v{P+1}')
    e(cfma(P,L32,T,P))
    e(f'''v_min_u32 v{P}, -2, v{P}
v_min_u32 v{P+1}, -2, v{P+1}
s_mov_b32 exec_lo, 0
s_mov_b32 exec_hi, 0xffff0000
buffer_store_dwordx2 {v(P,2)}, v{EA}, {srd(sE)}, s{SOW} offen sc1
s_mov_b64 exec, -1''')
    g.stamp('b_pub')
    e(rd[3:])
    e(cfma(Z,WSEL,T,Z)+cmul(CP,KAP,Z))
    e(f'v_and_b32 v2, 48, v1\nv_lshl_add_u32 v{EA}, v2, 6, v{EA}\ns_add_u32 s{SOW}, s{SOW}, 128\nv_mov_b32 v2, 1\nv_mov_b32 v3, 0')
    def gelu(sb, tb):
        acc=FA+32*sb; sg=SG[sb]; L=[]; t=TMP
        G_=lambda i: v(acc+8*tb+2*i,2); U_=lambda i: v(acc+16+8*tb+2*i,2); T_=lambda i: v(t+2*i,2)
        cp=lambda i: v(GC+4*(2*tb+(i>>1)),2); rp=lambda i: v(GC+4*(2*tb+(i>>1))+2,2); o=acc+16+8*tb
        for i in range(4): L.append(f'v_pk_fma_f32 {G_(i)}, {v(sg+2*(i&1),2)}, {rp(i)}, {G_(i)} op_sel:[0,1,0] op_sel_hi:[1,1,1]')
        for i in range(4): L.append(f'v_pk_mul_f32 {T_(i)}, {G_(i)}, {G_(i)}')
        for i in range(4): L.append(f'v_pk_fma_f32 {T_(i)}, {T_(i)}, {cp(i)}, {cp(i)} op_sel:[0,1,0] op_sel_hi:[1,1,0]')
        for i in range(4): L.append(f'v_pk_mul_f32 {T_(i)}, {T_(i)}, {G_(i)}')
        for i in range(8): L.append(f'v_exp_f32 {v(t+i)}, {v(t+i)}')
        for i in range(4): L.append(f'v_pk_fma_f32 {U_(i)}, {v(sg+4+2*(i&1),2)}, {rp(i)}, {U_(i)} op_sel:[0,1,0] op_sel_hi:[1,1,1]')
        for i in range(4): L.append(f'v_pk_fma_f32 {T_(i)}, {T_(i)}, {rp(i)}, {rp(i)} op_sel_hi:[1,0,0]')
        for i in range(8): L.append(f'v_rcp_f32 {v(t+i)}, {v(t+i)}')
        for i in range(4): L.append(f'v_pk_mul_f32 {G_(i)}, {G_(i)}, {U_(i)}')
        for i in range(4): L.append(f'v_pk_mul_f32 {G_(i)}, {G_(i)}, {T_(i)}')
        for i in (0,2,1,3): L.append(f'v_cvt_pk_bf16_f32 {v(o+i)}, {v(acc+8*tb+2*i)}, {v(acc+8*tb+2*i+1)}')
        L.append(f's_add_u32 s{T1}, s{FO[sb]}, {tb*HSTR}\nv_permlane16_swap_b32 v{o}, v{o+2}\nv_permlane16_swap_b32 v{o+1}, v{o+3}\nbuffer_store_dwordx4 {v(o,4)}, v15, {srd(sWS)}, s{T1} offen sc1')
        return L
    signal=lambda sr: f's_mov_b64 exec, 1\nbuffer_atomic_add v2, v3, {srd(sWS)}, s{sr} offen sc1\ns_mov_b64 exec, -1'
    ER=[FA+32+2*k for k in range(8)]
    eld='\n'.join(f'buffer_load_dwordx2 {v(ER[u_],2)}, v{EA}, {srd(sE)}, s{SOW} offen offset:{128*u_} sc1' for u_ in range(8))
    e(sadd(0)); g.stamp('t0'); e(gelu(0,0)[:-1]); g.stamp('t1'); e(gelu(0,0)[-1]); g.stamp('t2'); e(mix(gelu(0,1),sread(1),8)); g.stamp('t3'); e(sadd(1)); e(gelu(1,0)[:-1]); g.stamp('t4'); e(gelu(1,0)[-1]); g.stamp('t5'); e(mix(gelu(1,1),sread(2),8)); g.stamp('t6'); e(sadd(2)); e(gelu(2,0)); g.stamp('t7')
    EP=opt.get('ep',1)
    if EP==0: e(eld)
    e(gelu(2,1))
    g.stamp('gdone')
    if EP==1: e(eld)
    kp=v(KAP,2)
    for i in range(8):
        xx=v(Xr+2*i,2); yy=v(Yr+2*i,2); tt=v(4+2*(i&1),2)
        e([f'v_pk_mul_f32 {tt}, {xx}, {kp} op_sel:[0,1] op_sel_hi:[1,1] neg_lo:[0,1] neg_hi:[0,1]',f'v_pk_mul_f32 {xx}, {xx}, {kp} op_sel_hi:[1,0]',
           f'v_pk_fma_f32 {xx}, {yy}, {kp}, {xx} op_sel:[0,1,0] op_sel_hi:[1,1,1] neg_lo:[0,1,0] neg_hi:[0,1,0]',f'v_pk_fma_f32 {yy}, {yy}, {kp}, {tt} op_sel_hi:[1,0,1] neg_lo:[0,1,0] neg_hi:[0,1,0]'])
    chk='\n'.join([f'v_max3_u32 v0, v{ER[0]}, v{ER[0]+1}, v{ER[1]}',f'v_max3_u32 v4, v{ER[1]+1}, v{ER[2]}, v{ER[2]+1}']+[f'v_max3_u32 v{(0,4)[u_&1]}, v{ER[u_]}, v{ER[u_]+1}, v{(0,4)[u_&1]}' for u_ in range(3,8)]+['v_max_u32 v0, v0, v4','v_cmp_eq_u32 vcc, -1, v0','s_cmp_eq_u64 vcc, 0'])
    if EP==1:
        e('s_waitcnt vmcnt(8)'); e(signal(WL)); g.stamp('flag0')
    e(f's_waitcnt vmcnt(1)\n{chk}\ns_cbranch_scc0 L_epoll\nL_eok:')
    pre='' if EP==1 else f's_waitcnt vmcnt(0)\n{signal(WL)}\ns_mov_b32 s{WL}, {BIG}'
    g.cold.append(f'''L_epoll:
{pre}
s_mov_b32 s{SPIN}, 0
L_epoll1:
s_sleep 4
{eld}
s_add_u32 s{SPIN}, s{SPIN}, 1
s_cmp_gt_u32 s{SPIN}, 100000
s_cbranch_scc1 L_eok
s_waitcnt vmcnt(0)
{chk}
s_cbranch_scc0 L_epoll1
s_branch L_eok''')
    g.stamp('Eok')
    e('s_setprio 2')
    for u_ in range(6,-1,-1): e(cfma(ER[u_],L64,ER[u_+1],ER[u_]))
    e(cmul(4,WH,ER[0]))
    for sw in ('16','32'):
        e(f'v_mov_b32 v6, v4\nv_mov_b32 v7, v5\nv_permlane{sw}_swap_b32 v6, v4\nv_permlane{sw}_swap_b32 v7, v5\nv_add_f32 v4, v6, v4\nv_add_f32 v5, v7, v5')
    e(cfma(CP,WG,4,CP))
    cp=v(CP,2)
    for comp,R_ in ((0,Xr),(1,Yr)):
        for i in range(8):
            rr_=v(R_+2*i,2); pr=v(PR+2*i,2); pi=v(PI+2*i,2)
            if comp==0: e(f'v_pk_fma_f32 {rr_}, {pr}, {cp}, {rr_} op_sel_hi:[1,0,1]\nv_pk_fma_f32 {rr_}, {pi}, {cp}, {rr_} op_sel:[0,1,0] op_sel_hi:[1,1,1] neg_lo:[0,1,0] neg_hi:[0,1,0]')
            else: e(f'v_pk_fma_f32 {rr_}, {pr}, {cp}, {rr_} op_sel:[0,1,0] op_sel_hi:[1,1,1] neg_lo:[0,1,0] neg_hi:[0,1,0]\nv_pk_fma_f32 {rr_}, {pi}, {cp}, {rr_} op_sel_hi:[1,0,1] neg_lo:[0,1,0] neg_hi:[0,1,0]')
    for comp,R_,D_ in ((0,Xr,112),(1,Yr,128)):
        for i in range(8): e(f'v_cvt_pk_bf16_f32 v{R_+i}, v{R_+2*i}, v{R_+2*i+1}')
        for tb in range(2):
            for ab in range(2): e(f'v_mfma_f32_16x16x32_bf16 {v(D_+8*tb+4*ab,4)}, {v(R_+4*tb,4)}, {v(SL+2-2*ab,4)}, 0')
    for comp,R_,D_ in ((0,Xr,112),(1,Yr,128)):
        for i in range(8): e(f'v_cvt_pk_bf16_f32 v{R_+8+i}, v{D_+2*i}, v{D_+2*i+1}')
        if EP==0 and comp==0: e('s_waitcnt vmcnt(0)'); e(signal(WL)); g.stamp('flag0')
        for tb in range(2):
            o=R_+8+4*tb
            e(f'v_permlane16_swap_b32 v{o}, v{o+2}\nv_permlane16_swap_b32 v{o+1}, v{o+3}')
            e(f's_add_u32 s{T1}, s{SOX}, {comp*32768+tb*HSTR}\nbuffer_store_dwordx4 {v(o,4)}, v15, {srd(sWS)}, s{T1} offen sc1')
    g.stamp('c_st')
    e(vgroup(f's{V14}, 0',[DF],sDN,FB,20*16384,2))
    TV=144; JB=112; RB_=160
    e(['v_and_b32 v12, 31, v1','v_lshrrev_b32 v13, 5, v1','v_bfe_u32 v0, v1, 1, 3','v_xor_b32 v0, v13, v0','v_lshlrev_b32 v0, 4, v0','v_lshl_add_u32 v0, v12, 7, v0',f'v_add_u32 v4, s{XR}, v0',f'v_add_u32 v8, s{WQ}, v0'])
    for k in range(1,4): e(f'v_xor_b32 v{4+k}, {32*k}, v4\nv_xor_b32 v{8+k}, {32*k}, v8')
    e(traddr(0,12)+[f'v_add_u32 v{TV+4}, s{WQ}, v0',f'v_add_u32 v{TV+5}, s{WQ}, v12',f'v_add_u32 v{TV}, s{V14}, v0',f'v_add_u32 v{TV+1}, s{V14}, v12'])
    e(f's_lshl_b32 s{T1}, s{TQ}, 2\ns_add_u32 s{T1}, s{T1}, {ZF}\nv_mov_b32 v13, s{T1}')
    e(p2base(0))
    e('s_waitcnt vmcnt(2)'); e(signal(HA))
    g.stamp('flag')
    e(f's_cmp_ge_u32 s{TQ}, 2\ns_cbranch_scc1 L_no14'); e(vgroup(f's{V14}, 2048',[DF],sDN,FB,21*16384,2)); e('L_no14:')
    e(f'''s_setprio 0
s_cmp_ge_u32 s{TQ}, 2
s_cselect_b32 s{XL}, {BIG}, s{SOW}
s_cselect_b32 s{T1}, 0, 2048
v_add_u32 v{TV+2}, s{T1}, v{TV}
v_add_u32 v{TV+3}, s{T1}, v{TV+1}
s_mov_b32 s{SPIN}, 0
L_z0:
s_sleep 1
ds_read_b32 v0, v13
s_add_u32 s{SPIN}, s{SPIN}, 1
s_waitcnt lgkmcnt(0)
v_cmp_ne_u32 vcc, 1, v0
s_cmp_gt_u32 s{SPIN}, 1000000
s_cselect_b64 vcc, 0, vcc
s_cmp_eq_u64 vcc, 0
s_cbranch_scc0 L_z0''')
    g.stamp('Z0')
    e([f'ds_read_b128 {v(JB+8*k+4*dh,4)}, v{4+k} offset:{2*8192+dh*4096}' for k in range(4) for dh in range(2)])
    e([f'ds_read_b128 {v(RB_+32*bl+8*k+4*dh,4)}, v{4+k} offset:{bl*8192+dh*4096}' for bl in range(2) for k in range(4) for dh in range(2)])
    e([f'ds_read_b128 {v(RB_+64+8*k+4*dh,4)}, v{8+k} offset:{dh*WSS}' for k in range(4) for dh in range(2)])
    e('s_waitcnt lgkmcnt(0)')
    e([f's_lshl_b32 s{T1}, s{TQ}, 11\ns_add_u32 s{T1}, s{T1}, {q_*XW+16384}\nv_add_u32 v{4+q_}, s{T1}, v15' for q_ in range(4)])
    e(f's_lshl_b32 s{T1}, s{TQ}, 10\ns_add_u32 s{T1}, s{T1}, {WB}\nv_add_u32 v8, s{T1}, v15')
    e('s_barrier'); g.stamp('Z1')
    e(spoll('L_fp0',8,opt.get('slp0',4)))
    g.stamp('go')
    blkoff=lambda b_,k: (86+32*(b_&1)+4*(b_>>1)+k)*1024
    st_=[(SOX,blkoff(0,k),JB+8*k) for k in range(4)]+[(SOW,(18+k)*1024,JB+8*k) for k in range(3)]+[(XL,21*1024,JB+24)]
    st2=[(SOX,blkoff(1+bl,k),RB_+32*bl+8*k) for bl in range(3) for k in range(4)]
    loads=[];groups=[]
    for s_,(sr,im,Bq) in enumerate(st_):
        groups.append([(TILE(mh,dh),len(loads)+mh,Bq+4*dh,s_==0) for mh in range(2) for dh in range(2)])
        for mh in range(2): loads.append((sr,im+mh*HSTR))
    for mh in range(2):
        for p_ in range(6):
            grp=[]
            for s_ in (2*p_,2*p_+1):
                sr,im,Bq=st2[s_]
                grp+=[(TILE(mh,dh),len(loads),Bq+4*dh,False) for dh in range(2)]
                loads.append((sr,im+mh*HSTR))
            groups.append(grp)
    jit=[trstep(JB,TV+4,2*WSS),trstep(JB+8,TV+4,2*WSS+2048),trstep(JB+16,TV,0),trstep(JB+24,TV+2,0)]
    wr0=[]
    for dh in range(2):
        for q_ in range(4): wr0+=[f'ds_write_b128 v{4+q_}, {v(TILE(0,dh)+4*q_,4)} offset:{dh*1024}','']
    hooks={1:([],jit[0]),2:([],jit[1]),3:([],jit[2]),4:(['s_waitcnt lgkmcnt(8)'],jit[3]),5:(['s_waitcnt lgkmcnt(8)'],[]),6:(['s_waitcnt lgkmcnt(4)'],[]),7:(['s_waitcnt lgkmcnt(0)'],[]),
           10:(['s_barrier',g.st('Z2')],[]),14:([],['']*6+wr0),17:(['s_waitcnt lgkmcnt(0)','s_barrier',g.st('Z23')],[])}
    run_groups(groups,loads,[16+4*k for k in range(8)]+[152,156],15,hooks)
    wr1=lambda dh: [f'ds_write_b128 v8, {v(TILE(1,dh)+4*q_,4)} offset:{dh*WSS+q_*4096}' for q_ in range(4)]
    idx=[k for k,l_ in enumerate(g.L) if 'v_mfma_f32_32x32x16' in l_][-12:]
    seg=g.L[idx[0]:]; del g.L[idx[0]:]
    assert not any('buffer_load' in l_ for l_ in seg)
    late=[l_ for l_ in seg if 'v_mfma' in l_ and l_.split()[1].rstrip(',')==v(TILE(1,1),16)]
    e([l_ for l_ in seg if l_ not in late])
    e([late[0],'s_nop 4',late[1],'s_nop 3']); e(mix(late[2:],wr1(0),1)); e('s_waitcnt lgkmcnt(0)\ns_barrier'); e(wr1(1))
    e('s_waitcnt lgkmcnt(0)\ns_barrier')
    g.stamp('p2end')
    if opt.get('stamps'):
        e('L_fin:\ns_waitcnt vmcnt(0)'); g.stamp('done')
        e(f'''s_waitcnt lgkmcnt(0)
s_cmp_eq_u32 s{TQ}, {opt.get('stq',0)}
s_cbranch_scc0 L_end
s_add_u32 s{sX}, s66, {STAMP}
s_addc_u32 s{sX+1}, s67, 0
s_lshl_b32 s{T0}, s2, 1
s_add_u32 s{T0}, s{T0}, s{NH}
s_lshl_b32 s{T0}, s{T0}, 7
v_mov_b32 v2, 0''')
        prs=[100]+G.POOL[:len(g.names())]
        if 'diag' in opt:
            p=prs[(['start']+g.names()).index(opt['diag'])]
            if 'dwg' in opt: e(f's_cmp_eq_u32 s2, {opt["dwg"]}\ns_cbranch_scc0 L_end')
            e(f's_cmp_eq_u32 s{NH}, {opt.get("dr",0)}\ns_cbranch_scc0 L_end\nL_dg:\ns_memrealtime s[72:73]\ns_waitcnt lgkmcnt(0)\ns_sub_u32 s72, s72, s{p}\ns_cmp_lt_u32 s72, 6000\ns_cbranch_scc1 L_dg')
            prs=[]
        for i,p in enumerate(prs): e(f'v_mov_b32 v4, s{p}\nv_mov_b32 v5, s{p+1}\nbuffer_store_dwordx2 v[4:5], v2, {srd(sX)}, s{T0} offen offset:{8*i}')
    e('L_end:\ns_endpgm'); e(g.cold); e('L_last:\ns_endpgm')
    if opt.get('stamps'): g.L.insert(0,'; STAMPS start,'+','.join(g.names()))
    body=hz.fix('\n'.join(g.L), verbose=opt.get('v',0))
    if opt.get('al'):
        import align
        body,nw,nn=align.run(body,lambda b: header([(NAME,256,512,163840)])+kstart(NAME)+b+'\n',opt['al'])
    if opt.get('ic'):
        import align
        body,npad=align.pads('L_anchor:\n'+body,lambda b: header([(NAME,256,512,163840)])+b+'\n')
        body=body.replace('L_anchor:\n','')
        if opt.get('v'): print('pads',npad)
    ref=open('parallel_sum__ssm_conv_s5__geglu_ffn__prompt.s.ref').read() if opt.get('final') else ''
    cm_=''.join(l+'\n' for l in ref.split('\n') if l.startswith(';') and '@launch' not in l and 'Override' not in l and 'grid=ceil' not in l)
    return cm_+header([(NAME,256,512,163840)])+('.p2align 12\n' if opt.get('pa',1) else '')+kstart(NAME)+body+'\n'+RODATA+kd(NAME,256,256)

if __name__=='__main__':
    out=sys.argv[1]; opt={}
    for a in sys.argv[2:]:
        k,_,val=a.partition('='); opt[k]=int(val) if val.lstrip('-').isdigit() else (val or 1)
    open(out,'w').write(build(opt))
```

```python
import sys, math
from asmlib import *
import hz
from gen_v3 import F, LOG2E, BIG, G, cmul, cfma, mix, mksrd, fsplit, v, srd
XW=24576; WB=98304; WSS=16640; GOFF=4096; UOFF=4096+6144+128
SCR=WB+3*WSS; SP=SCR+12288; RM=SP+1024; ZF=RM+2048
HSTR=150*1024; ST_M=0xA00000; ST_R=0xA08000; ARR=0xA10000; FLG=0xA20000; EOFF=0xA60000; WSSZ=0xA80000
STAMP=0x8000000
sX,sW,sWS,sDBG,sCR,sCI,sDN,sE,sOUT=4,8,12,16,20,24,28,32,68
sW2=sE
TH=0; W0=1; FS=3; WL2=54; WI=72; CB=73; FCNT=74; FB=75
W_,TQ,NH,RB,CT,ROT,WSTEP,XL,WL=76,77,78,79,80,81,82,83,84
RB2,TQ2,DQ,SOX,SOW,T0,T1,T2,F0,HB,XR,WQ=85,86,87,88,89,90,91,92,93,94,95,96
SPIN=97; HA=98; V14=99; XH=W_
FBR=[60,61,64]; CB2=65
G.POOL=[36,42,44,56,58,38,40,46,48,50]
G.DEF='B4,B8,gdone,flag,chores,go,q1,ph1,p2end,done'
DC=12; DF=14
ACC0=48; B1,B2,B3=112,160,208
TILE=lambda mh,dh: ACC0+32*mh+16*dh

def build(opt):
    g=G(opt); e=g.e
    opt.setdefault('ch','x1120'); opt.setdefault('xp',2); opt.setdefault('dp1',12); opt.setdefault('ze',9)
    c_=opt['ch']; assert int(c_[1])<=int(c_[2])<opt['xp']<=opt.get('xq',5)-2 and int(c_[3])<=5
    SC_=opt.get('sc',1)
    PF=opt.get('pf',2); NL=opt.get('nl',16)
    e(f'''s_cmp_ge_u32 s2, 256
s_cbranch_scc1 L_end
s_load_dwordx16 s[36:51], s[0:1], 0
s_load_dwordx16 s[52:67], s[0:1], 64
s_getpc_b64 s[72:73]
L_pc0:
v_lshrrev_b32 v3, 6, v0
s_and_b32 s3, s2, 0xf8
v_add_lshl_u32 v2, v3, s3, 7
v_min_u32 v2, L_last-L_pc0, v2
v_and_b32 v1, 63, v0
v_readfirstlane_b32 s{W_}, v3
global_load_dword v9, v2, s[72:73]
s_bfe_u32 s{TQ2}, s2, 0x20003
s_lshr_b32 s{DQ}, s2, 5''')
    if opt.get('stamps'): e(('s_memtime' if opt['stamps']==2 else 's_memrealtime')+' s[100:101]')
    m42=f's_and_b32 s{RB2}, s{RB2}, 4\ns_and_b32 s{T2}, s{T1}, 1\ns_lshl_b32 s{T2}, s{T2}, 1\ns_add_u32 s{RB2}, s{RB2}, s{T2}\ns_lshr_b32 s{T2}, s{DQ}, 2\ns_add_u32 s{RB2}, s{RB2}, s{T2}\ns_and_b32 s{DQ}, s{DQ}, 3\ns_and_b32 s{T2}, s{T1}, 2\ns_lshl_b32 s{T2}, s{T2}, 1\ns_add_u32 s{DQ}, s{DQ}, s{T2}' if opt.setdefault('m42',1) else ''
    oa,ob=opt.get('ord','x01245673.45670123')[1:].split('.')
    e(f'''s_and_b32 s{T0}, s2, 1
s_lshl_b32 s{RB}, s{T0}, 2
s_bfe_u32 s{T1}, s2, 0x20001
s_xor_b32 s{RB2}, s{RB}, 4
s_add_u32 s{RB2}, s{RB2}, s{T1}
s_add_u32 s{RB}, s{RB}, s{TQ2}
s_lshl_b32 s{CT}, s{T1}, 3
s_add_u32 s{CT}, s{CT}, s{DQ}
s_xor_b32 s{CT}, s{CT}, 4
{m42}
s_and_b32 s{TQ}, s{W_}, 3
s_lshr_b32 s{NH}, s{W_}, 2
s_lshl_b32 s{HB}, s{RB}, 2
s_add_u32 s{HB}, s{HB}, s{TQ}
s_mul_i32 s{XR}, s{TQ}, {XW}
v_lshrrev_b32 v4, 3, v1          ; q
v_and_b32 v5, 7, v1              ; pos
s_cmp_eq_u32 s{NH}, 0''')
    NEAR=(f'''v_and_b32 v3, 15, v1
s_lshl_b32 s{T1}, s{CT}, 5
v_lshl_add_u32 v3, v3, 1, s{T1}
s_lshl_b32 s{T0}, s{TQ}, 2
s_add_u32 s{T0}, s{T0}, {ZF}
v_mov_b32 v10, s{T0}
v_mov_b32 v11, 0
ds_write_b32 v10, v11
s_lshl_b32 s{T0}, s{RB}, 5
s_add_u32 s{T0}, s{T0}, s{CT}
s_lshl_b32 s{T0}, s{T0}, 2
s_add_u32 s{WI}, s{T0}, s{TQ}
s_lshl_b32 s{T2}, s{WI}, 11
v_and_b32 v2, 31, v1
v_lshl_add_u32 v2, v2, 4, s{T2}
v_and_b32 v6, 32, v1
v_lshl_add_u32 v2, v6, 5, v2
s_waitcnt lgkmcnt(0)
global_load_ushort v244, v3, s[38:39]
global_load_ushort v245, v3, s[40:41]
global_load_ushort v246, v3, s[50:51]
global_load_dwordx4 v[112:115], v2, s[36:37]
global_load_dwordx4 v[116:119], v2, s[36:37] offset:512''')
    if opt.get('nb',1): e('s_cbranch_scc0 L_load\ns_setprio 2'); e(NEAR); e('s_setprio 0\ns_branch L_comp\nL_load:')
    else: e('s_cbranch_scc1 L_comp')
    def zstamps():
        if opt.get('stamps'):
            for r,nm in zip(G.POOL,g.names()):
                if nm not in ('e0','e1'): e(f's_mov_b64 s[{r}:{r+1}], 0')
    def common(nh):
        e(mksrd(sWS,66,67,WSSZ)); e(mksrd(sDN,60,61,1409024*(0 if opt.get('nodma') else 1)))
        e(f'''v_lshlrev_b32 v6, 1, v4
v_and_b32 v6, 4, v6
v_xor_b32 v6, v5, v6
v_lshlrev_b32 v6, 4, v6
v_lshl_add_u32 v6, v4, 10, v6
s_lshl_b32 s{T0}, s{DQ}, 7
v_add_u32 v{DF}, s{T0}, v6
s_mul_i32 s{F0}, s{TQ}, 22
s_cmp_eq_u32 s{TQ}, 3
s_cselect_b32 s{T0}, 1, 0
s_sub_u32 s{F0}, s{F0}, s{T0}
s_lshl_b32 s{FB}, s{F0}, 14
s_lshl_b32 s{WQ}, s{TQ}, 12
s_lshl_b32 s{T0}, s{T0}, 11
s_sub_u32 s{V14}, s{WQ}, s{T0}
s_add_u32 s{V14}, s{V14}, {SCR}
s_add_u32 s{WQ}, s{WQ}, {WB}
s_lshl_b32 s{HA}, s{HB}, 2
s_lshr_b32 s{T0}, s{CT}, 3
s_add_u32 s{HA}, s{HA}, s{T0}
s_lshl_b32 s{HA}, s{HA}, 8
s_add_u32 s{HA}, s{HA}, {FLG}
v_lshlrev_b32 v15, 4, v1
v_and_b32 v2, 15, v1
v_lshrrev_b32 v3, 4, v1
v_bfe_u32 v6, v1, 1, 3
v_xor_b32 v6, v3, v6
v_lshlrev_b32 v6, 4, v6
v_lshl_add_u32 v6, v2, 7, v6            ; b128 fragment pattern
v_bfe_u32 v10, v1, 2, 3
v_lshrrev_b32 v11, 5, v1
v_lshl_add_u32 v10, v11, 4, v10
v_mul_u32_u24 v10, 96, v10
v_and_b32 v11, 3, v1
v_lshl_add_u32 v10, v11, 3, v10''')
    def vgroup(m0, vregs, sr, sb, imm, n):
        L=[]
        for j in range(n):
            t=f's_add_u32 m0, {m0}\n' if j==0 else ''
            t+=f's_add_u32 s{T0}, s{sb}, {imm+j*(8192-1024)}\nbuffer_load_dwordx4 v{vregs[j%len(vregs)]}, {srd(sr)}, s{T0} offen'+(f' offset:{1024*j}' if j else '')+' lds'
            L.append(t)
        return L
    def vx(vs,half):
        st=vs%3; m0=f's{XR}, {st*8192+half*4096}'
        if vs>=11:
            b=vs-11; return vgroup(m0,[DC,DC+1],sCI if b&1 else sCR,CB2 if b>>1 else CB,half*32768,4)
        return vgroup(m0,[DF],sDN,FBR[vs-8],half*32768,4)
    def vw(vs):
        st=vs%3
        if vs>=12: return vgroup(f's{WQ}, {st*WSS}',[DC,DC+1],sCI,CB2,(vs-12)*32768,4)
        return vgroup(f's{WQ}, {st*WSS}',[DF],sDN,FBR[vs-8] if vs<11 else FB,(4 if vs<11 else 18)*16384,4)
    def vfull(vs): return vx(vs,0)+vx(vs,1)+vw(vs)
    def traddr(t0,t1):
        return [f'v_bfe_u32 v{t0}, v1, 2, 2',f'v_lshrrev_b32 v{t1}, 5, v1',f'v_lshl_add_u32 v{t0}, v{t1}, 3, v{t0}',f'v_lshlrev_b32 v{t0}, 7, v{t0}',f'v_and_b32 v{t1}, 3, v1',f'v_lshl_add_u32 v{t0}, v{t1}, 3, v{t0}',
            f'v_bfe_u32 v{t1}, v1, 4, 1',f'v_lshl_add_u32 v{t0}, v{t1}, 5, v{t0}',f'v_bfe_u32 v{t1}, v1, 3, 1',f'v_lshl_add_u32 v{t0}, v{t1}, 6, v{t0}',f'v_xor_b32 v{t1}, 64, v{t0}']
    def trstep(base,areg,off):
        return [f'ds_read_b64_tr_b16 {v(base+dh*4+2*j,2)}, v{areg+dh} offset:{off+j*512}' for dh in range(2) for j in range(2)]
    def hb(nh):
        if nh==1: return '\n'.join(f's_lshr_b32 s{FBR[k]}, s{FBR[k]}, 4\ns_add_u32 s{FBR[k]}, s{FBR[k]}, s{SOX}' for k in range(3))
        t=f's_lshl_b32 s{T0}, s{TQ}, 13\ns_add_u32 s{SOX}, s{SOX}, s{T0}\n{r4(T2)}'
        for b_,r_ in enumerate(FBR+[CB2]):
            t+=f'\ns_xor_b32 s{T0}, s{T2}, {b_}\ns_and_b32 s{T1}, s{T0}, 1\ns_lshl_b32 s{T1}, s{T1}, 15\ns_and_b32 s{T0}, s{T0}, 2\ns_lshl_b32 s{T0}, s{T0}, 11\ns_add_u32 s{T0}, s{T0}, s{T1}\ns_add_u32 s{r_}, s{SOX}, s{T0}'
        return t
    def p2base(nh):
        return f'''s_lshl_b32 s{T0}, s{RB2}, 2
s_add_u32 s{T0}, s{T0}, s{TQ2}
s_mul_i32 s{SOX}, s{T0}, {2*HSTR}
s_lshl_b32 s{HB}, s{T0}, 2
s_add_u32 s{HB}, s{HB}, s{TQ}
s_lshl_b32 s{HB}, s{HB}, 8
s_add_u32 s{HB}, s{HB}, {FLG+128*(1-nh)}
s_lshl_b32 s{T0}, s{F0}, 10
s_add_u32 s{SOW}, s{SOX}, s{T0}
{hb(nh)}'''
    sld=f's_load_dword s55, s[66:67], s{HB} glc'
    def spoll(lbl, tgt, sl, first=True):
        g.cold.append(f'''{lbl}:
s_mov_b32 s{SPIN}, 0
{lbl}_1:
{sld}
s_add_u32 s{SPIN}, s{SPIN}, 1
s_waitcnt lgkmcnt(0)
s_cmp_gt_u32 s{SPIN}, 100000
s_cselect_b32 s55, {tgt}, s55
s_cmp_lt_u32 s55, {tgt}
s_cbranch_scc0 {lbl}_ok
s_sleep {sl}
s_branch {lbl}_1''')
        return (sld if first else '')+f'\ns_waitcnt lgkmcnt(0)\ns_cmp_lt_u32 s55, {tgt}\ns_cbranch_scc1 {lbl}\n{lbl}_ok:'
    def run_groups(groups, loads, ring, areg, hooks, mid=[], freed={}, depth=0):
        free=list(ring); dest=[]; depth=max(depth,len(ring))
        def ld():
            sr,imm=loads[len(dest)]; dest.append(free.pop(0))
            return [f's_add_u32 s{T0}, s{sr}, {imm}',f'buffer_load_dwordx4 {v(dest[-1],4)}, v{areg}, {srd(sWS)}, s{T0} offen sc1']
        while free: e(ld())
        e(mid)
        il=[]
        for gi,grp in enumerate(groups):
            g.stamp(f'q{gi}')
            h=hooks.get(gi)
            if h:
                e(h[0]); il=il+list(h[1])
            for k,(a,li,Bq,first) in enumerate(grp):
                if k%2==0: e(f's_waitcnt vmcnt({len(dest)-1-li})')
                e(f'v_mfma_f32_32x32x16_bf16 {v(a,16)}, {v(dest[li],4)}, {v(Bq,4)}, {"0" if first else v(a,16)}')
                if k%2==1: free.append(dest[li])
                can=free and len(dest)<len(loads)
                if can and (k%2==1 or (k==0 and len(dest)-li<depth)): e(ld())
                for _ in range(2):
                    if il: e(il.pop(0))
            free+=freed.get(gi,[])
        e(il)
    ZE=opt.get('ze',8)
    r3t,m4=opt.get('r3','x01201201')[1:],opt.get('r4',3)
    def r4(d): return f's_and_b32 s{d}, s{TQ2}, {m4}'
    def weave(mark, D, first=1, lastfree=2):
        W=g.L[mark:]; del g.L[mark:]
        ch=[]; cur=[]; hold=False
        for k,l_ in enumerate(W):
            cur.append(l_); t=l_.strip()
            if 'exec' in t: hold=not t.endswith('-1')
            nx=W[k+1].strip() if k+1<len(W) else ''
            if not hold and not (t.startswith('s_') and '|' not in t and not t.startswith('s_waitcnt')) and not nx.startswith('s_cselect') and f's{T0}' not in nx: ch.append(cur); cur=[]
        if cur: ch.append(cur)
        slots=len(D)-lastfree-first+1
        assert slots>=1
        for k,d in enumerate(D):
            if first<=k<first+slots:
                a=len(ch)*(k-first)//slots; b=len(ch)*(k-first+1)//slots
                for c in ch[a:b]: e(c)
            e(d)

    DX=16; DW=20; PTX=24; PTW=27; S1=29; S2=30; SELS=208; SFS=[224,228,232,236]; SACC=240
    e(f'''s_setprio 1
s_mov_b32 s{ROT}, 0x{oa[::-1]}
s_cmp_eq_u32 s{T0}, 1
s_cselect_b32 s{ROT}, 0x{ob[::-1]}, s{ROT}
v_lshrrev_b32 v6, 2, v4
v_lshlrev_b32 v6, 4, v6
v_and_or_b32 v6, v4, 3, v6
s_lshl_b32 s{T0}, s{HB}, 6
v_add_u32 v6, s{T0}, v6
v_lshlrev_b32 v6, 10, v6
v_lshrrev_b32 v7, 1, v4
v_xor_b32 v7, v5, v7             ; chunk (even j)
v_xor_b32 v8, 4, v7              ; chunk (odd j)
v_lshl_add_u32 v{DX}, v7, 4, v6
v_lshl_add_u32 v{DX+1}, v8, 4, v6
v_add_u32 v{DX+1}, {32768-1024}, v{DX+1}
v_add_u32 v{DX+2}, 2048, v{DX}
v_add_u32 v{DX+3}, 2048, v{DX+1}
s_and_b32 s{XH}, s{CT}, {opt.get('sx',1)}
s_lshl_b32 s{XL}, s{XH}, 12
s_add_u32 s{XL}, s{XL}, s{XR}
s_lshl_b32 s{XH}, s{XH}, 13
s_mov_b32 s{sX+2}, 2097152
s_mov_b32 s{sX+3}, 0x20000''')
    def xs(i,h):
        st=i%3
        if h==0: t=f's_bfe_u32 s{T0}, s{ROT}, {0x30000+4*i}\ns_lshl_b32 s{SOX}, s{T0}, 7\ns_add_u32 m0, s{XL}, {st*8192}\ns_add_u32 s{SOX}, s{SOX}, s{XH}\n'
        else: t=f's_xor_b32 s{T0}, s{XL}, 4096\ns_add_u32 m0, s{T0}, {st*8192}\ns_xor_b32 s{SOX}, s{SOX}, 8192\n'
        return [(t if j==0 else '')+f'buffer_load_dwordx4 v{DX+j}, {srd(sX)}, s{SOX} offen'+(f' offset:{1024*j}' if j else '')+' lds' for j in range(4)]
    def ws(i,h):
        st=i%3; sr=(sW,sW2)[h]
        t=f's_bfe_u32 s{T0}, s{ROT}, {0x30000+4*i}\ns_add_u32 m0, s{(WL,WL2)[h]}, {st*WSS}\ns_mul_i32 s{SOW}, s{T0}, '+(f's{WSTEP}' if h==0 else 's55')+'\n'
        return [t+f'buffer_load_dwordx4 v{DW+2*h}, {srd(sr)}, s{SOW} offen lds',f'buffer_load_dwordx4 v{DW+2*h+1}, {srd(sr)}, s{SOW} offen offset:1024 lds']
    slab=lambda i: xs(i,0)+ws(i,0)+xs(i,1)+ws(i,1)
    e(f's_waitcnt lgkmcnt(0)\ns_mov_b32 s{sX}, s36\ns_mov_b32 s{sX+1}, s37'); g.stamp('e0')
    H0=opt.get('h0',1)
    e(xs(0,0)+([] if H0 else xs(0,1)))
    e(fsplit(CT,FS,FCNT,T0))
    e(f'''s_lshl_b32 s{T2}, s{FS}, 5
s_lshl_b32 s{F0}, s{FCNT}, 1
s_and_b32 s{HA}, s{RB}, 1
s_lshl_b32 s{HA}, s{HA}, 2
s_add_u32 s{HA}, s{HA}, s{TQ}
s_lshl_b32 s{T1}, s{CT}, 4
v_add_u32 v6, s{T1}, v4
v_lshlrev_b32 v6, 10, v6
v_lshl_add_u32 v2, v7, 4, v6
v_lshl_add_u32 v3, v8, 4, v6
v_add_u32 v3, 7168, v3
v_mov_b32 v0, 0x80000000''')
    def ffo(d,gb,j):
        return f'''v_add_u32 v6, s{gb}, v1
{"v_add_u32 v6, 64, v6" if j else ""}
v_mul_u32_u24 v10, 10923, v6
v_lshrrev_b32 v10, 16, v10
v_mul_u32_u24 v11, 6, v10
v_sub_u32 v11, v6, v11
v_lshrrev_b32 v6, 1, v10
v_xor_b32 v6, v6, v10
v_and_b32 v6, 4, v6
v_mul_u32_u24 v6, 3, v6
v_xor_b32 v10, v10, v6
v_mul_u32_u24 v10, 2752, v10
v_lshl_add_u32 v10, v11, 4, v10
v_cmp_gt_u32 vcc, s{F0}, v11
v_add_u32 v10, s{T2}, v10
{"v_subrev_u32 v10, 1024, v10" if j else ""}
v_cndmask_b32 v{d}, v0, v10, vcc'''
    def unit(h):
        sr,wl,stp,d=(sW,sW2)[h],(WL,WL2)[h],(WSTEP,55)[h],DW+2*h
        e(f'''s_cmp_ge_u32 s{HA}, 5
s_cselect_b32 s{SPIN}, 5, 2
s_cselect_b32 s{T1}, 128, 0
s_cselect_b32 s{sr}, s58, s56
s_cselect_b32 s{sr+1}, s59, s57
s_sub_u32 s{SPIN}, s{HA}, s{SPIN}
s_lshl_b32 s{SPIN}, s{SPIN}, 7''')
        e(ffo(d,SPIN,0)); e(ffo(d+1,SPIN,1))
        e(f'''s_lshl_b32 s{wl}, s{HA}, 11
s_add_u32 s{wl}, s{wl}, s{T1}
s_add_u32 s{wl}, s{wl}, {WB}
s_cmp_eq_u32 s{HA}, 0
s_cselect_b32 s{sr}, s42, s{sr}
s_cselect_b32 s{sr+1}, s43, s{sr+1}
s_cmp_eq_u32 s{HA}, 1
s_cselect_b32 s{sr}, s44, s{sr}
s_cselect_b32 s{sr+1}, s45, s{sr+1}
s_mov_b32 s{stp}, 176128
s_mov_b32 s{sr+2}, 1409024
s_cmp_lt_u32 s{HA}, 2
s_cselect_b64 vcc, -1, 0
s_cselect_b32 s{stp}, 128, s{stp}
s_cselect_b32 s{sr+2}, 524288, s{sr+2}
s_mov_b32 s{sr+3}, 0x20000
v_cndmask_b32 v{d}, v{d}, v2, vcc
v_cndmask_b32 v{d+1}, v{d+1}, v3, vcc''')
    unit(0); e(ws(0,0))
    if H0: e(xs(0,1))
    e(f's_xor_b32 s{HA}, s{HA}, 4')
    unit(1); e(ws(0,1)); g.stamp('e1')
    e(f'''s_lshl_b32 s{T1}, s2, 2
s_add_u32 s{T1}, s{T1}, s{TQ}
s_cmp_eq_u32 s{T1}, {97*4+3}
s_cbranch_scc1 L_init
L_initd:''')
    t=f'L_init:\nv_lshlrev_b32 v10, 4, v1\nv_add_u32 v10, {ARR}, v10\nv_mov_b32 v44, 0\nv_mov_b32 v45, 0\nv_mov_b32 v46, 0\nv_mov_b32 v47, 0'
    for k in range(NL//8): t+=f'\nglobal_store_dwordx4 v10, v[44:47], s[66:67] offset:{1024*k} sc1'
    g.cold.append(t+'\ns_branch L_initd')
    e(f's_lshl_b32 s{T1}, s{DQ}, 7\nv_and_b32 v3, 31, v1\nv_lshl_add_u32 v3, v3, 1, s{T1}\nglobal_load_ushort v40, v3, s[52:53]\nglobal_load_ushort v41, v3, s[52:53] offset:64')
    D=slab(1); n1=opt.get('n1',4)
    e(D[:n1])
    common(1)
    nd=0 if opt.get('nodma') else 1
    e(mksrd(sCR,46,47,524288*nd)); e(mksrd(sCI,48,49,524288*nd)); e(mksrd(sDBG,64,65,256)); e(mksrd(sOUT,62,63,4194304))
    sadr=f'''s_lshr_b32 s{T0}, s{TQ}, 1
s_and_b32 s{T1}, s{TQ}, 1
s_mul_i32 s{T2}, s{T0}, 3072
s_mul_i32 s{SPIN}, s{T1}, {UOFF-GOFF}
s_add_u32 s{T2}, s{T2}, s{SPIN}
s_add_u32 s{T2}, s{T2}, {WB+GOFF}
v_add_u32 v{S2}, s{T2}, v10
s_lshl_b32 s{T0}, s{T0}, 6
s_lshl_b32 s{T1}, s{T1}, 11
s_add_u32 s{T1}, s{T1}, {WB}
v_xor_b32 v{S1}, s{T0}, v6
v_add_u32 v{S1}, s{T1}, v{S1}''' if not SC_ else f'''s_lshl_b32 s{T2}, s{TQ}, 5
s_add_u32 s{T2}, s{T2}, {WB+GOFF-32}
v_add_u32 v{S2}, s{T2}, v10
v_add_u32 v{S1}, {WB}, v6
v_xor_b32 v244, 64, v{S1}'''
    e(f'''s_lshl_b32 s{CB}, s{TQ}, 8
s_cmp_eq_u32 s{TQ}, 0
s_cselect_b32 s{TH}, 1, 0
s_cselect_b32 s{W0}, 0, {BIG}
{sadr}
v_mov_b32 v3, 0x3f803f80''')
    for f_ in range(2 if SC_ else 4):
        e(f'v_cmp_eq_u32 vcc, {f_}, v2')
        for k in range(4): e(f'v_cndmask_b32 v{SELS+4*f_+k}, 0, v3, vcc')
    zstamps()
    mark=len(g.L)
    if str(opt.get('ch','x2220'))[4]=='0': e([f'v_mov_b64 {v(ACC0+16*tl+k,2)}, 0' for tl in range(4) for k in range(4,16,2)])
    MM=[int(c,16) for c in str(opt.get('mm','x88888888'))[1:]]
    weave(mark,D[n1:MM[0]],1,1); left=D[MM[0]:]
    e(f's_setprio {opt.get("lprio",1)}\ns_waitcnt vmcnt({2+MM[0]})'); g.stamp('l0'); e('s_barrier'); g.stamp('B0')
    def ssum(i):
        st=i%3
        if SC_:
            rd_='|'.join([f's_cmp_eq_u32 s{TQ}, 0',f's_cbranch_scc0 L_sb{i}']+[f'ds_read_b128 {v(SFS[k],4)}, v{(S1,244)[k>>1]} offset:{st*WSS+(k&1)*2048}' for k in range(4)]+[f's_branch L_sd{i}',f'L_sb{i}:']+[f'ds_read_b64_tr_b16 {v(SFS[k]+2*j,2)}, v{S2} offset:{st*WSS+(32*(k>>1)+8*j)*96+(k&1)*(UOFF-GOFF)}' for k in range(4) for j in range(2)]+[f'L_sd{i}:'])
            return [rd_+'|v_nop','s_waitcnt lgkmcnt(0)']+[f'v_mfma_f32_16x16x32_bf16 {v(SACC,4)}, {v(SFS[k],4)}, {v(SELS+4*(k&1),4)}, {"0" if (i==0 and k==0) else v(SACC,4)}' for k in range(4)]
        L=[f'ds_read_b128 {v(SFS[0],4)}, v{S1} offset:{st*WSS}']+[f'ds_read_b64_tr_b16 {v(SFS[1+q_]+2*j,2)}, v{S2} offset:{st*WSS+8*j*96+32*q_}' for q_ in range(3) for j in range(2)]
        return L+['s_waitcnt lgkmcnt(0)']+[f'v_mfma_f32_16x16x32_bf16 {v(SACC,4)}, {v(SFS[k],4)}, {v(SELS+4*k,4)}, {"0" if (i==0 and k==0) else v(SACC,4)}' for k in range(4)]
    e(f's_lshl_b32 s{T1}, s2, 2\ns_add_u32 s{T1}, s{T1}, s{TQ}\ns_cmp_eq_u32 s{T1}, {97*4+3}\ns_cbranch_scc1 L_init2\nL_init2d:')
    g.cold.append(f'L_init2:\nv_mov_b32 v44, 0\nv_mov_b32 v45, 1\ns_mov_b64 exec, 1\nbuffer_store_dword v45, v44, {srd(sDBG)}, 0 offen sc1\ns_mov_b64 exec, -1\ns_branch L_init2d')
    CH=[int(x) for x in opt['ch'][1:]]; OUTO=26
    def chores(bi):
        if bi==CH[0]:
            e(f's_lshl_b32 s{T0}, s{DQ}, 6\nv_add_u32 v6, s{T0}, v4\nv_lshlrev_b32 v6, 10, v6\nv_lshl_add_u32 v{DC}, v7, 4, v6\nv_lshl_add_u32 v{DC+1}, v8, 4, v6')
            e(traddr(0,6)+[f'v_add_u32 v{PTX}, s{XR}, v0',f'v_add_u32 v{PTX+1}, s{XR}, v6',f'v_add_u32 v{PTW}, s{WQ}, v0',f'v_add_u32 v{PTW+1}, s{WQ}, v6'])
        if bi==CH[1]:
            e(f'''s_lshl_b32 s{T0}, s{RB2}, 2
s_add_u32 s{T2}, s{T0}, s{TQ2}
s_and_b32 s{T1}, s{TQ}, 1
s_lshl_b32 s{T1}, s{T1}, 5
s_and_b32 s{T0}, s{TQ}, 2
s_lshl_b32 s{T0}, s{T0}, 1
s_add_u32 s{T1}, s{T0}, s{T1}
s_lshl_b32 s{T0}, s{T2}, 6
s_add_u32 s{WI}, s{T0}, s{T1}
v_lshrrev_b32 v0, 5, v1
v_lshl_add_u32 v{OUTO}, v0, 4, s{WI}
v_and_b32 v6, 3, v4
v_add_u32 v6, v6, v{OUTO}
v_lshlrev_b32 v9, 4, v5
v_lshl_add_u32 v6, v6, 10, v9
s_lshl_b32 s{T1}, s{T1}, 2
s_add_u32 s{T1}, s{T1}, s{V14}
v_lshl_add_u32 v43, v0, 6, s{T1}
v_bfe_u32 v31, v1, 2, 2
v_lshl_add_u32 v31, v0, 2, v31
v_lshlrev_b32 v31, 7, v31
v_and_b32 v0, 3, v1
v_lshl_add_u32 v31, v0, 3, v31
v_and_b32 v0, 16, v1
v_lshl_add_u32 v31, v0, 1, v31
v_add_u32 v31, s{V14}, v31
s_lshl_b32 s{T1}, s{DQ}, 7
v_and_b32 v9, 31, v1
v_lshl_add_u32 v9, v9, 1, s{T1}
v_lshlrev_b32 v0, 1, v9
v_lshl_add_u32 v{OUTO}, v{OUTO}, 11, v0''')
        if bi==CH[2]:
            e(f'v_and_b32 v42, 12, v1\nv_lshlrev_b32 v42, 2, v42\nv_and_or_b32 v42, v1, 3, v42\nv_lshrrev_b32 v0, 4, v1\nv_lshl_add_u32 v42, v0, 2, v42\nv_lshlrev_b32 v42, 4, v42')
            e(f'v_and_b32 v0, 3, v1\nv_and_b32 v44, 48, v1\nv_lshl_add_u32 v44, v0, 6, v44\ns_lshl_b32 s{T1}, s{TQ}, 8\ns_add_u32 s{T1}, s{T1}, {SP}\nv_add_u32 v44, s{T1}, v44')
    D=slab(2); D,left=left+D[:MM[1]],D[MM[1]:]; mark=len(g.L)
    chores(0)
    e(ssum(0)); weave(mark,D,opt.get('n2',2),opt.get('n2l',3))
    e(f's_waitcnt vmcnt({MM[1]})\ns_barrier'); g.stamp('B1')
    def vchk(lbl,ld,n):
        e(f's_waitcnt vmcnt({n})\nv_cmp_gt_u32 vcc, s{TH}, v2\ns_cmp_eq_u64 vcc, 0\ns_cbranch_scc0 {lbl}\n{lbl}ok:')
        g.cold.append(f'''{lbl}:
s_mov_b32 s{SPIN}, 0
{lbl}1:
s_sleep 8
{ld}
s_add_u32 s{SPIN}, s{SPIN}, 1
s_cmp_gt_u32 s{SPIN}, 100000
s_cbranch_scc1 {lbl}ok
s_waitcnt vmcnt(0)
v_cmp_gt_u32 vcc, s{TH}, v2
s_cmp_eq_u64 vcc, 0
s_cbranch_scc0 {lbl}1
s_branch {lbl}ok''')
    gold=f'buffer_load_dword v2, v3, {srd(sDBG)}, s{W0} offen sc1'
    arld=f'buffer_load_dword v2, v3, {srd(sWS)}, s{W0} offen sc1'
    W2PF=f'''s_cmp_eq_u32 s{TQ}, 0
s_cselect_b32 s{sOUT}, s{sCR}, s{sCI}
s_cselect_b32 s{sOUT+1}, s{sCR+1}, s{sCI+1}
s_and_b32 s{T2}, s2, -2
s_lshl_b32 s{T1}, s{T2}, 11
s_mul_i32 s{T2}, s{T2}, {43*128}
s_cmp_ge_u32 s{TQ}, 2
s_cselect_b32 s{sOUT}, s{sDN}, s{sOUT}
s_cselect_b32 s{sOUT+1}, s{sDN+1}, s{sOUT+1}
s_cselect_b32 s{T1}, s{T2}, s{T1}
s_cselect_b32 s{T2}, 42, 31
v_min_u32 v10, s{T2}, v1
s_cmp_eq_u32 s{TQ}, 3
s_cselect_b32 s{T2}, {43*128}, 0
s_add_u32 s{T1}, s{T1}, s{T2}
v_lshlrev_b32 v10, 7, v10
s_bitcmp1_b32 s2, 0
s_cselect_b32 s{T1}, {BIG}, s{T1}
buffer_load_dword v11, v10, {srd(sOUT)}, s{T1} offen
s_mov_b32 s{sOUT}, s62
s_mov_b32 s{sOUT+1}, s63'''
    XP=32; RB_=192 if opt.get('bb',0)==0 else ACC0+4; DS=40; OUTO=26
    def vread(vs, base):
        st=vs%3; L=[]
        for k in range(4): L+=trstep(base+8*k,PTX,st*8192+k*2048)
        for k in range(2): L+=trstep(base+32+8*k,PTW,st*WSS+k*2048)
        return L
    carry=0
    for bi in range(1,7):
        pre=0; post=0; e(left); m_=MM[bi+1]
        if bi==1: e('v_mov_b32 v3, 0\n'+gold)
        if bi==2:
            e(f's_bfe_u32 s{T1}, s2, {(NL.bit_length()-1)*65536+3}\ns_lshl_b32 s{T1}, s{T1}, 7\ns_add_u32 s{W0}, s{W0}, {ARR}\ns_add_u32 s{T1}, s{T1}, s{W0}\ns_mul_i32 s{TH}, s{TH}, {256//NL}\nv_mov_b32 v2, 1\ns_mov_b64 exec, 1\nbuffer_atomic_add v2, v3, {srd(sWS)}, s{T1} offen sc1\ns_mov_b64 exec, -1'); pre+=1
        if bi==opt.get('xp',3):
            e(f's_mov_b32 m0, s{V14}\ns_lshl_b32 s{T1}, s{DQ}, 7\n{"s_mov_b32 s%d, %s"%(T1,BIG) if opt.get("noxt") else ""}\nbuffer_load_dwordx4 v6, {srd(sX)}, s{T1} offen lds\ns_add_u32 s{T1}, s{T1}, {8192-1024}\nbuffer_load_dwordx4 v6, {srd(sX)}, s{T1} offen offset:1024 lds'); pre+=2
        PP=opt.get('pp',0)
        arp=f'v_min_u32 v3, {NL-1}, v1\nv_lshlrev_b32 v3, 7, v3\n'+arld
        if bi==5 and PP==0: e(arp)
        if bi==5 and PP==9: e('v_mov_b32 v2, 64')
        if bi==6:
            e(f'''s_lshl_b32 s{T1}, s{HB}, 10
s_add_u32 s{T1}, s{T1}, {ST_M}
s_mov_b32 m0, s{V14}
s_lshl_b32 s{T2}, s{HB}, 9
buffer_load_dwordx4 v42, {srd(sWS)}, s{T1} offen sc1 lds
s_lshr_b32 s{T1}, s{WI}, 6
s_lshl_b32 s{T1}, s{T1}, 9
s_add_u32 s{T1}, s{T1}, {ST_R-1024}
s_mov_b32 exec_hi, 0
buffer_load_dwordx4 v15, {srd(sWS)}, s{T1} offen offset:1024 sc1 lds
s_lshl_b32 s{T1}, s{TQ}, 9
s_add_u32 m0, s{T1}, {RM}
s_add_u32 s{T2}, s{T2}, {ST_R}
buffer_load_dwordx4 v15, {srd(sWS)}, s{T2} offen sc1 lds
s_mov_b64 exec, -1''')
        if PF==bi and opt.get('pfp',0)==0: e(W2PF); pre+=1
        if opt.get('tw')==bi:
            e(f'v_min_u32 v10, 4, v1\nv_lshlrev_b32 v10, 21, v10\nbuffer_load_dword v45, v10, {srd(sWS)}, 0 offen\ns_mov_b64 exec, 1\nbuffer_load_dword v46, v{OUTO}, {srd(sOUT)}, 0 offen\ns_mov_b64 exec, -1'); pre+=2
        mark=len(g.L)
        if bi==max(PF,CH[0])+1:
            e(f'''s_lshr_b32 s{T1}, s2, 7
s_lshl_b32 s{T1}, s{T1}, 2
s_add_u32 s{T1}, s{T1}, s{TQ2}
s_lshl_b32 s{T1}, s{T1}, 2
s_lshr_b32 s{T1}, 0x{r3t[::-1]}, s{T1}
s_and_b32 s{T1}, s{T1}, 3
s_mul_i32 s{T2}, s{T1}, {6*16384}
s_add_u32 s{FBR[0]}, s{FB}, s{T2}
s_add_u32 s{FBR[1]}, s{FBR[0]}, {6*16384}
s_cmp_eq_u32 s{T1}, 2
s_cselect_b32 s{FBR[1]}, s{FB}, s{FBR[1]}
s_add_u32 s{FBR[2]}, s{FBR[1]}, {6*16384}
s_cmp_eq_u32 s{T1}, 1
s_cselect_b32 s{FBR[2]}, s{FB}, s{FBR[2]}
{r4(T1)}
s_and_b32 s{T2}, s{T1}, 2
s_lshl_b32 s{T2}, s{T2}, 6
s_add_u32 s{CB}, s{CB}, s{T2}
s_xor_b32 s{CB2}, s{CB}, 128
s_bitcmp1_b32 s{T1}, 0
s_cselect_b32 s{T1}, s{sCI}, s{sCR}
s_cselect_b32 s{T2}, s{sCI+1}, s{sCR+1}
s_cselect_b32 s{sCI}, s{sCR}, s{sCI}
s_cselect_b32 s{sCI+1}, s{sCR+1}, s{sCI+1}
s_mov_b32 s{sCR}, s{T1}
s_mov_b32 s{sCR+1}, s{T2}''')
        chores(bi)
        if bi==CH[3]: e([f'v_mov_b32 v{ACC0+16*tl+k}, 0' for tl in range(4) for k in range(4,16)])
        if bi==opt.get('xq',5): e([f'ds_read_b64_tr_b16 {v(XP+2*tl,2)}, v31 offset:{(tl>>1)*1024+(tl&1)*64}' for tl in range(4)])
        e(ssum(bi))
        D=slab(bi+2) if bi<6 else vfull(8); left=D[m_:]
        weave(mark,D[:m_],opt.get('wf',2),opt.get('wl',3))
        if PF==bi and opt.get('pfp',0)==1: e(W2PF); post+=1
        if bi==4 and PP==1: e(arp); post+=1
        g.stamp(f'p{bi+1}')
        if bi==1: vchk('L_go',gold,m_+pre+post)
        elif bi==5: vchk('L_poll',arld,m_+post)
        n=m_+post+(0 if bi in (5,6) else pre)
        e(f's_waitcnt vmcnt({n}) lgkmcnt(0)\ns_barrier'); g.stamp(f'B{bi+1}')
        carry=post
    RQ=(lambda mh: RB_+8*mh) if opt.get('bb',0)==0 else (lambda mh: [4,16][mh])
    BB=[f'v_lshlrev_b32 v{DS}, 16, v{DS}',f'v_lshlrev_b32 v{DS+1}, 16, v{DS+1}']
    for mh in range(2):
        for dh in range(2):
            for i in range(4):
                a=TILE(mh,dh)+i; xr=XP+2*(2*mh+dh)+(i>>1)
                BB+=[f'v_lshlrev_b32 v{a}, 16, v{xr}' if i%2==0 else f'v_and_b32 v{a}, 0xffff0000, v{xr}',f'v_fma_f32 v0, v{a}, v{RQ(mh)+i}, v{RQ(mh)+4+i}',f'v_fmac_f32 v{a}, v0, v{DS+dh}']
    BP=opt.get('bp',1)
    V9=left+vfull(9); n9=opt.get('n9',9); WW=opt.get('ww',1)
    mark=len(g.L)
    e([f'ds_read_b128 {v(RQ(mh)+4*k,4)}, v43 offset:{1024+32*mh+256*k}' for mh in range(2) for k in range(2)])
    e(ssum(7))
    swr=f's_mov_b32 exec_lo, 0x000f000f\ns_mov_b32 exec_hi, 0x000f000f\nds_write_b128 v44, {v(SACC,4)}\ns_mov_b64 exec, -1'
    if WW==1: e(BB if BP==1 else ''); e('s_waitcnt vmcnt(0)'); e(swr); e('s_waitcnt lgkmcnt(0)'); e(mix(BB,V9[:n9],5) if BP==2 else V9[:n9])
    if WW==0: e(swr); e(V9[:n9])
    if WW==2: weave(mark,V9[:n9],1,1); e(swr)
    if WW==3: weave(mark,V9[:n9],1,1); e('s_waitcnt vmcnt(0)'); e(swr)
    g.stamp('p8')
    e('s_waitcnt lgkmcnt(0)\ns_setprio 0\ns_barrier'); g.stamp('B8')
    wstart=len(g.L)
    if BP==3: e('s_setprio 1')
    e(mix(BB,V9[n9:],6) if BP in (0,3) else V9[n9:])
    if BP==3: e('s_setprio 0')
    g.stamp('c9')
    e('s_waitcnt vmcnt(12)')
    e(mix(vread(8,B1),vfull(10),2))
    g.stamp('c10')
    e('s_waitcnt vmcnt(12) lgkmcnt(0)')
    e(mix(vread(9,B2),vfull(11),2))
    g.stamp('c11')
    e('s_waitcnt vmcnt(12) lgkmcnt(0)')
    e(mix(vread(10,B3),vfull(12),2))
    g.stamp('c12')
    e(p2base(1))
    e(f's_lshl_b32 s{T1}, s{TQ}, 7\nv_xor_b32 v11, s{T1}, v15\nv_mov_b32 v10, v{OUTO}\ns_lshl_b32 s{T1}, s{TQ}, 2\ns_add_u32 s{T1}, s{T1}, {ZF}\nv_mov_b32 v2, s{T1}\nv_mov_b32 v3, 1')
    ap=opt.get('ap',4); V=vfull(13)
    e('s_waitcnt lgkmcnt(0)'); e(V[:12-ap]); e(sld if ap else ''); e(V[12-ap:])
    if opt.setdefault('th',8):
        W=g.L[wstart:]; del g.L[wstart:]; c=0
        for l_ in W:
            if ' lds' in l_:
                c+=1
                if opt.get('th0',8)<c<=opt.get('th1',99): e(f's_waitcnt vmcnt({opt["th"]})')
            e(l_)
    g.stamp('chores')
    assert not opt.get('bb',0)
    e(spoll('L_fp1',6,opt.get('slp1',2),not ap))
    g.stamp('go')
    e('s_setprio 1')
    loads=[(FBR[s_//6],(s_%6)*1024+mh*HSTR) for s_ in range(18) for mh in range(2)]
    groups=[[(TILE(mh,dh),2*s_+mh,B1+8*s_+4*dh,False) for mh in range(2) for dh in range(2)] for s_ in range(18)]
    run_groups(groups,loads,[16+4*k for k in range(8)]+[4],11,{ZE:(['s_barrier',g.st('Z1')],[])},['s_waitcnt vmcnt(9)','ds_write_b32 v2, v3'],{s_:[B1+8*s_,B1+8*s_+4] for s_ in range(18)},opt.get('dp1',14))
    g.stamp('ph1')
    e('s_setprio 0')
    XS=112
    for j in range(1,4):
        e(f's_xor_b32 s{T1}, s{TQ}, {j}\ns_mul_i32 s{T1}, s{T1}, {XW}\ns_add_u32 s{T1}, s{T1}, {(j-1)*4096}\nv_add_u32 v{3+j}, s{T1}, v15')
    e(f'v_add_u32 v7, s{XR}, v15\nv_add_u32 v8, s{WQ}, v15')
    for j in range(1,4):
        for tl in range(4): e(f'ds_write_b128 v{3+j}, {v(ACC0+16*tl+4*j,4)} offset:{tl*1024}')
    e('s_waitcnt lgkmcnt(0)\ns_barrier'); g.stamp('Z2')
    def addq(a,srcs,pk):
        for q_ in srcs:
            if pk:
                for j in range(2): e(f'v_pk_add_f32 {v(a+2*j,2)}, {v(a+2*j,2)}, {v(q_+2*j,2)}')
            else:
                for j in range(4): e(f'v_add_f32 v{a+j}, v{a+j}, v{q_+j}')
    def outst(mh,dh):
        for i in range(4):
            if i%2==0: e(f's_mov_b32 s{T0}, {mh*16384+i*2048}')
            e(f'buffer_store_dword v{TILE(mh,dh)+i}, v10, {srd(sOUT)}, s{T0} offen offset:{dh*128+(i&1)*2048} sc1')
    for tl in range(4):
        for j in range(3): e(f'ds_read_b128 {v(XS+12*tl+4*j,4)}, v7 offset:{j*4096+tl*1024}')
    for tl in range(4):
        e(f's_waitcnt lgkmcnt({9-3*tl})')
        addq(ACC0+16*tl,[XS+12*tl+4*k for k in range(3)],False)
    e('s_barrier'); g.stamp('Z23')
    e('s_setprio 1')
    for dh in range(2):
        for k in range(4): e(f'ds_read_b128 {v(XS+16*dh+4*k,4)}, v7 offset:{16384+k*2048+dh*1024}')
    for dh in range(2):
        e(f's_waitcnt lgkmcnt({4-4*dh})')
        addq(TILE(0,dh),[XS+16*dh+4*k for k in range(4)],False); outst(0,dh)
    for dh in range(2):
        e('s_barrier')
        if dh: g.stamp('p2end')
        for k in range(4): e(f'ds_read_b128 {v(XS+16*dh+4*k,4)}, v8 offset:{dh*WSS+k*1024}')
        for k in range(0,4,2):
            e(f's_waitcnt lgkmcnt({2-k})'); addq(TILE(1,dh),[XS+16*dh+4*k,XS+16*dh+4*k+4],True)
        outst(1,dh)
    e('s_branch L_fin' if opt.get('stamps') else 's_endpgm')
    e(g.cold); g.cold=[]

    SL=16; XA=22; SA=24; TA=26; GA=27; SPA=28; RA=29; SSA=30; SS=12
    L64,WG,WH,L32,WSEL,KAP,CP,EA,NI=32,34,36,38,40,42,44,46,47
    PR=80; PI=96; FA=112; XB=208; WR=240
    RS=XB; GC=XB+16; MR=WR
    if 'pc' in opt: e(f'.p2align 12\n.fill {opt["pc"]//4}, 4, 0xbf800000')
    e('L_comp:')
    if not opt.get('nb',1): e(NEAR)
    R0=112
    r=lambda k: R0+k
    def allred(a,t):
        for k in (8,4,2,1): e(f'v_add_f32_dpp {v(a)}, {v(a)}, {v(a)} row_ror:{k} row_mask:0xf bank_mask:0xf')
        e(f'v_mov_b32 {v(t)}, {v(a)}\nv_permlane16_swap_b32 {v(t)}, {v(a)}\nv_add_f32 {v(a)}, {v(a)}, {v(t)}')
    m_,sd,A_,B_,R_,NM,MR_,ad,dt,tp=r(24),r(26),r(8),r(9),r(10),r(11),r(13),r(28),r(29),r(30)
    e(fsplit(CT,FS,FCNT,T0))
    common(0)
    e(f'''s_lshl_b32 s{T0}, s{CT}, 12
s_add_u32 s{T0}, s{T0}, {EOFF}
s_add_u32 s{sE}, s66, s{T0}
s_addc_u32 s{sE+1}, s67, 0
s_mov_b32 s{sE+2}, 4096
s_mov_b32 s{sE+3}, 0x20000
v_add_u32 v{XA}, s{XR}, v6
v_xor_b32 v{XA+1}, 64, v{XA}
v_add_u32 v{SA}, {WB}, v6
v_xor_b32 v{SA+1}, 64, v{SA}
v_add_u32 v{TA}, {WB+GOFF}, v10
v_lshl_add_u32 v{GA}, v2, 4, s{V14}
v_and_b32 v{SPA}, 48, v1
s_lshl_b32 s{T0}, s{TQ}, 9
s_add_u32 s{T0}, s{T0}, {RM}
v_lshl_add_u32 v{RA}, v{SPA}, 2, s{T0}
v_add_u32 v{SPA}, {SP}, v{SPA}
v_lshlrev_b32 v{SSA}, 2, v2
v_add_u32 v{SSA}, {SP}, v{SSA}
v_lshlrev_b32 v{EA}, 4, v2
v_and_b32 v0, 1, v1
v_lshlrev_b32 v0, 4, v0
v_mov_b32 v6, 0x3f80
v_lshlrev_b32 v0, v0, v6
v_bfe_u32 v6, v1, 2, 2
v_cmp_eq_u32 vcc, v6, v3
v_and_b32 v6, 2, v1
v_mov_b32 v{SL}, 0
v_cndmask_b32 v0, 0, v0, vcc
v_cmp_eq_u32 vcc, 0, v6
v_mov_b32 v{SL+1}, 0
v_mov_b32 v{SL+4}, 0
v_cndmask_b32 v{SL+2}, 0, v0, vcc
v_cndmask_b32 v{SL+3}, v0, 0, vcc
v_mov_b32 v{SL+5}, 0
''')
    e(f'''; lanes (l&31): 0..3 quad (A,B,R,-m), 4 r, 5 -m*r, 6 counter clear, 16..31 carry sentinel
v_and_b32 v6, 31, v1
v_lshrrev_b32 v7, 5, v1
s_sub_u32 s{T1}, 31, s{HB}
s_and_b32 s{T2}, s{T1}, 1
s_lshr_b32 s{T1}, s{T1}, 1
s_lshl_b32 s{T1}, s{T1}, 5
s_add_u32 s{T1}, s{T1}, s{T2}
s_lshl_b32 s{SOW}, s{T1}, 3
s_lshl_b32 s{T1}, s{CT}, 12
s_add_u32 s{T1}, s{T1}, s{SOW}
s_add_u32 s{T1}, s{T1}, {EOFF-256}
v_lshl_add_u32 v{ad}, v6, 2, v7
v_lshl_add_u32 v{ad}, v{ad}, 2, s{T1}
v_mov_b32 v{dt}, -1
s_and_b32 s{T1}, s{CT}, 7
s_cselect_b32 s{T1}, {BIG}, s{HA}
v_cmp_gt_u32 vcc, 7, v6
v_lshl_add_u32 v{tp}, v7, 7, s{T1}
s_lshr_b32 s{T1}, s{WI}, 5
v_cndmask_b32 v{ad}, v{ad}, v{tp}, vcc
v_cndmask_b32 v{dt}, v{dt}, 0, vcc
s_lshl_b32 s{T1}, s{T1}, 9
s_and_b32 s{T2}, s{WI}, 31
s_lshl_b32 s{T2}, s{T2}, 3
s_add_u32 s{T1}, s{T1}, s{T2}
s_add_u32 s{T1}, s{T1}, {ST_R-1024}
v_cmp_gt_u32 vcc, 6, v6
v_lshl_add_u32 v{tp}, v6, 6, v7
v_lshl_add_u32 v{tp}, v{tp}, 2, s{T1}
v_cndmask_b32 v{ad}, v{ad}, v{tp}, vcc
s_lshl_b32 s{T1}, s{WI}, 5
s_add_u32 s{T1}, s{T1}, {ST_M}
v_cmp_gt_u32 vcc, 4, v6
v_lshl_add_u32 v{tp}, v7, 2, v6
v_lshl_add_u32 v{tp}, v{tp}, 2, s{T1}
v_cndmask_b32 v{ad}, v{ad}, v{tp}, vcc''')
    e(f'''s_mul_i32 s{HB}, s{HB}, {2*HSTR}''')
    if opt.get('nost'): e(f's_mov_b32 s{HB}, {BIG}')
    FO=[ROT,WSTEP,XL]
    for sb in range(3): e(f's_add_u32 s{T2}, s{FS}, {sb}\ns_lshl_b32 s{T2}, s{T2}, 10\ns_add_u32 s{T2}, s{T2}, s{HB}\ns_cmp_gt_u32 s{FCNT}, {sb}\ns_cselect_b32 s{FO[sb]}, s{T2}, {BIG}')
    e(f's_and_b32 s{T0}, s{CT}, 7\ns_cmp_lt_u32 s{T0}, 6\ns_cselect_b32 s{WL}, s{HA}, {BIG}\ns_add_u32 s{HA}, s{HA}, 128\ns_add_u32 s{SOX}, s{CT}, 86\ns_lshl_b32 s{SOX}, s{SOX}, 10\ns_add_u32 s{SOX}, s{SOX}, s{HB}')
    if opt.get('stamps'): e(mksrd(sX,36,37,2097152))
    zstamps()
    e(f'''s_waitcnt vmcnt(2)
v_lshlrev_b32 v244, 16, v244
v_lshlrev_b32 v245, 16, v245
v_lshlrev_b32 v246, 16, v246
v_mul_f32 v246, {F(LOG2E)}, v246
v_exp_f32 v246, v246
v_cvt_pk_bf16_f32 v246, v246, v246
v_lshlrev_b32 v246, 16, v246
v_mul_f32 v247, v246, v244
v_mul_f32 v248, v246, v245
v_mul_f32 v247, {F(LOG2E)}, v247
v_mul_f32 v248, 0.15915494, v248''')
    def cpow(dr,di,n):
        e([f'v_mul_f32 v249, {n}, v247',f'v_mul_f32 v250, {n}, v248','v_rndne_f32 v251, v250','v_exp_f32 v249, v249','v_sub_f32 v250, v250, v251','v_cos_f32 v251, v250','v_sin_f32 v250, v250',f'v_mul_f32 {v(dr)}, v249, v251',f'v_mul_f32 {v(di)}, v249, v250'])
    cpow(PR,PI,'1.0')
    for j in range(1,16):
        a=(j-1)//2; b=j-1-a
        e([f'v_mul_f32 {v(PR+j)}, {v(PR+a)}, {v(PR+b)}',f'v_mul_f32 {v(PI+j)}, {v(PR+a)}, {v(PI+b)}',f'v_fma_f32 {v(PR+j)}, -{v(PI+a)}, {v(PI+b)}, {v(PR+j)}',f'v_fmac_f32 {v(PI+j)}, {v(PI+a)}, {v(PR+b)}'])
    cpow(L32,L32+1,F(32.0)); cpow(L64,L64+1,F(64.0))
    e(['v_and_b32 v252, 16, v1','v_cvt_f32_u32 v252, v252']); cpow(WSEL,WSEL+1,'v252')
    e(['v_and_b32 v252, 48, v1','v_cvt_f32_u32 v252, v252']); cpow(WG,WG+1,'v252')
    e(f's_bitcmp1_b32 s{TQ}, 0\ns_cselect_b32 s{T0}, {F(-64.0)}, 0\nv_mul_f32 v252, {F(32.0)}, v252\nv_add_f32 v252, s{T0}, v252\nv_max_f32 v252, 0, v252'); cpow(254,255,'v252')
    e(['v_mul_f32 v249, v244, v244','v_fmac_f32 v249, v245, v245','v_rcp_f32 v249, v249',f'v_add_f32 v250, -1.0, v{PR}',f'v_mul_f32 v{KAP}, v250, v244',f'v_fmac_f32 v{KAP}, v{PI}, v245',
        f'v_mul_f32 v{KAP+1}, v{PI}, v244',f'v_fma_f32 v{KAP+1}, -v250, v245, v{KAP+1}','v_add_f32 v249, v249, v249',f'v_mul_f32 v{KAP}, v249, v{KAP}',f'v_mul_f32 v{KAP+1}, v249, v{KAP+1}'])
    e(cmul(WH,KAP,254)); e(f'v_sub_f32 v{NI}, 0, v{PI}')
    g.stamp('lam')
    e('s_waitcnt vmcnt(0)')
    for i in range(8): e(f'v_lshlrev_b32 v{r(8+2*i)}, 16, v{r(i)}\nv_and_b32 v{r(9+2*i)}, 0xffff0000, v{r(i)}')
    e(f'v_pk_add_f32 {v(r(24),2)}, {v(r(8),2)}, {v(r(10),2)}')
    for i in range(2,8): e(f'v_pk_add_f32 {v(r(24),2)}, {v(r(24),2)}, {v(r(8+2*i),2)}')
    e(f'v_add_f32 v{r(24)}, v{r(24)}, v{r(25)}')
    allred(r(24),r(25))
    e(f'v_mul_f32 v{r(24)}, {F(1/512)}, v{r(24)}')
    for i in range(8): e(f'v_pk_add_f32 {v(r(8+2*i),2)}, {v(r(8+2*i),2)}, {v(r(24),2)} op_sel_hi:[1,0] neg_lo:[0,1] neg_hi:[0,1]')
    e(f'v_pk_mul_f32 {v(r(26),2)}, {v(r(8),2)}, {v(r(8),2)}')
    for i in range(1,8): e(f'v_pk_fma_f32 {v(r(26),2)}, {v(r(8+2*i),2)}, {v(r(8+2*i),2)}, {v(r(26),2)}')
    e(f'v_add_f32 v{r(26)}, v{r(26)}, v{r(27)}')
    allred(r(26),r(27))
    e(f'''v_mul_f32 v{sd}, {F(1/512)}, v{sd}
v_cvt_pk_bf16_f32 v{m_}, v{m_}, v{sd}
v_and_b32 v{sd}, 0xffff0000, v{m_}
v_lshlrev_b32 v{m_}, 16, v{m_}
v_add_f32 v{sd}, {F(1e-5)}, v{sd}
v_cvt_pk_bf16_f32 v{sd}, v{sd}, v{sd}
v_lshlrev_b32 v{sd}, 16, v{sd}
v_sqrt_f32 v{sd}, v{sd}
v_sub_f32 v{NM}, 0, v{m_}
v_cvt_pk_bf16_f32 v{sd}, v{sd}, v{sd}
v_lshlrev_b32 v{sd}, 16, v{sd}          ; sd
v_mul_f32 v{R_}, v{sd}, v{sd}
v_rcp_f32 v{sd}, v{sd}                  ; r
s_mov_b32 s{T0}, 8
s_mov_b32 s{T0+1}, 8
v_mul_f32 v{A_}, {F(-2*math.sqrt(2/math.pi)*LOG2E)}, v{sd}
v_mul_f32 v{B_}, v{sd}, v{sd}
v_mul_f32 v{MR_}, v{NM}, v{sd}
v_mul_f32 v{B_}, {F(0.044715)}, v{B_}
v_cndmask_b32 v{dt}, v{dt}, v{NM}, s[{T0}:{T0+1}]
v_mul_f32 v{B_}, v{B_}, v{A_}''')
    for bit,src in ((32,MR_),(16,sd),(4,R_),(2,B_),(1,A_)): e(f's_mov_b32 vcc_lo, {bit}\ns_mov_b32 vcc_hi, {bit}\nv_cndmask_b32 v{dt}, v{dt}, v{src}, vcc')
    e(f's_mov_b32 exec_lo, 0xffff007f\ns_mov_b32 exec_hi, 0xffff007f\nbuffer_store_dword v{dt}, v{ad}, {srd(sWS)}, 0 offen sc1\ns_mov_b64 exec, -1')
    g.stamp('st')
    if opt.get('ic'):
        e(f's_sub_u32 s{SPIN}, s{TQ}, 4\ns_mov_b64 exec, 0\nL_ret:\ns_add_u32 s{SPIN}, s{SPIN}, 4')
        for k in range(8): e(f's_cmp_eq_u32 s{SPIN}, {k}\ns_cbranch_scc1 L_pad{k}')
        e('s_mov_b64 exec, -1')
        g.stamp('icd')
    e(f's_setprio {opt.get("cprio",0)}\ns_barrier'); g.stamp('B0')
    X=lambda b,t4: XB+16*b+4*t4
    Wq=lambda q: WR+4*(q%4)
    def wr(q):
        n,k=divmod(q,8); i,u=divmod(n,2); st=i%3
        if k<2: return [f'ds_read_b128 {v(Wq(q),4)}, v{SA+u} offset:{st*WSS+k*2048}']
        sb,up=divmod(k-2,2)
        return [f'ds_read_b64_tr_b16 {v(Wq(q)+2*j,2)}, v{TA} offset:{st*WSS+(32*u+8*j)*96+32*sb+up*(UOFF-GOFF)}' for j in range(2)]
    def xr(n,t4):
        i,u=divmod(n,2)
        return f'ds_read_b128 {v(X(n&1,t4),4)}, v{XA+u} offset:{(i%3)*8192+t4*2048}'
    ops=[]
    def issue(x,tag): e(x); ops.append(tag)
    issue(wr(0)[0],('w',0))
    for t4 in range(4): issue(xr(0,t4),('x',0))
    for q in (1,2):
        for x in wr(q): issue(x,('w',q))
    for q in range(128):
        n,k=divmod(q,8); nxt=q+3
        need=[('w',q)]+([('x',n)] if k==0 else [])
        last=max(i for i,o in enumerate(ops) if o in need)
        if nxt%16==0:
            g.stamp(f'p{nxt//16}')
            e(('s_waitcnt vmcnt(0) lgkmcnt(0)' if nxt==32 else 's_waitcnt lgkmcnt(0)')+'\ns_barrier'); g.stamp(f'B{nxt//16}')
        elif q<125: e(f's_waitcnt lgkmcnt({len(ops)-1-last})')
        R=[(x,('w',nxt)) for x in wr(nxt)] if nxt<128 else []
        if n<15 and k in (5,6): R+=[(xr(n+1,t4),('x',n+1)) for t4 in (2*(k-5),2*(k-5)+1)]
        if q in (121,122): R+=[(f'ds_read_b128 {v(RS+4*j,4)}, v{RA} offset:{16*j}',('r',0)) for j in (2*(q-121),2*(q-121)+1)]
        if q==125: R+=[(f'ds_read_b32 v{SS+j}, v{SSA} offset:{64*j}',('r',0)) for j in range(2)] if SC_ else [(f'ds_read_b32 v{4+j}, v{SSA} offset:{256*j}',('r',0)) for j in range(4)]
        if q==126: R+=[(f'ds_read_b128 {v(MR+4*j,4)}, v{RA} offset:{256+16*j}',('r',0)) for j in (0,1)]
        if q==127: R+=[('',None),(f'ds_read_b128 {v(MR+8,4)}, v{RA} offset:{256+32}',('r',0))]
        for t4 in range(4):
            a=(ACC0+16*k if k<2 else FA+16*(k-2))+4*t4; c='0' if n==0 else v(a,4)
            xo,wo=v(X(n&1,t4),4),v(Wq(q),4)
            e(f'v_mfma_f32_16x16x32_bf16 {v(a,4)}, {xo if k<2 else wo}, {wo if k<2 else xo}, {c}')
            if R:
                x,tg=R.pop(0)
                if tg: issue(x,tg)
        assert not R
    g.stamp('loopend')
    Xr=ACC0; Yr=ACC0+16; Z,T,P,Q=4,6,8,10
    if not SC_: e(f's_waitcnt lgkmcnt(3)\nv_add_f32 v{SS}, v4, v6\nv_add_f32 v{SS+1}, v5, v7')
    else: e('s_nop 1')
    e(f'ds_read_b128 {v(MR+12,4)}, v{RA} offset:{256+48}')
    for i in range(8): e(f'v_pk_mul_f32 {v(Xr+2*i,2)}, {v(Xr+2*i,2)}, {v(RS+2*i,2)}\nv_pk_mul_f32 {v(Yr+2*i,2)}, {v(Yr+2*i,2)}, {v(RS+2*i,2)}')
    e('s_waitcnt lgkmcnt(0)')
    for i in range(8):
        xx=v(Xr+2*i,2); yy=v(Yr+2*i,2)
        e(f'v_pk_fma_f32 {xx}, {v(MR+2*i,2)}, {v(SS,2)}, {xx} op_sel_hi:[1,0,1]\nv_pk_fma_f32 {yy}, {v(MR+2*i,2)}, {v(SS,2)}, {yy} op_sel:[0,1,0] op_sel_hi:[1,1,1]')
    SG=[RS,MR,RS]; SGT=RS+8; TMP=MR+8
    if SC_: SG=[RS,RS+8,MR]
    def sread(sb):
        if SC_: return [f'ds_read_b128 {v(SG[s_]+4*p_,4)}, v{SPA} offset:{256*(1+s_)+64*p_}' for s_ in range(3) for p_ in range(2)] if sb==0 else []
        return [f'ds_read_b128 {v((SG[sb],SGT)[q_>>1]+4*(q_&1),4)}, v{SPA} offset:{256*q_+64*(1+sb)}' for q_ in range(4)]
    def sadd(sb):
        if SC_: return ['s_waitcnt lgkmcnt(0)'] if sb==0 else []
        return ['s_waitcnt lgkmcnt(0)']+[f'v_pk_add_f32 {v(SG[sb]+2*k,2)}, {v(SG[sb]+2*k,2)}, {v(SGT+2*k,2)}' for k in range(4)]
    SC=[]
    for j in range(1,16): SC+=[f'v_fmac_f32 v{Xr+j}, v{PR}, v{Xr+j-1}',f'v_fmac_f32 v{Yr+j}, v{PR}, v{Yr+j-1}',f'v_fmac_f32 v{Xr+j}, v{NI}, v{Yr+j-1}',f'v_fmac_f32 v{Yr+j}, v{PI}, v{Xr+j-1}']
    GF=opt.get('gf',0)
    rd=[f'ds_read_b128 {v(GC+4*k,4)}, v{GA} offset:{256*k}' for k in range(4)]+sread(0)
    if GF:
        e(mix(SC[:GF],rd,2)); SC=SC[GF:]; rd=['']*8
    mark=len(g.L)
    e(SC)
    g.stamp('a_scan')
    e(f'v_mov_b32 v{T}, v{Xr+15}\nv_mov_b32 v{T+1}, v{Yr+15}\nv_mov_b32 v{Z}, 0\nv_mov_b32 v{Z+1}, 0'); e(rd[:2])
    e(f'v_permlane16_swap_b32 v{Z}, v{T}\nv_permlane16_swap_b32 v{Z+1}, v{T+1}')
    e(cfma(P,(PR+15,PI+15),Z,(Xr+15,Yr+15)))
    e(f'v_mov_b32 v{Q}, v{P}\nv_mov_b32 v{Q+1}, v{P+1}\nv_mov_b32 v{T}, 0\nv_mov_b32 v{T+1}, 0\nv_permlane16_swap_b32 v{Q}, v{P}\nv_permlane16_swap_b32 v{Q+1}, v{P+1}'); e(rd[2:3])
    e(f'v_permlane32_swap_b32 v{T}, v{P}\nv_permlane32_swap_b32 v{T+1}, v{P+1}')
    e(cfma(P,L32,T,P))
    e(f'''v_min_u32 v{P}, -2, v{P}
v_min_u32 v{P+1}, -2, v{P+1}
s_mov_b32 exec_lo, 0
s_mov_b32 exec_hi, 0xffff0000
buffer_store_dwordx2 {v(P,2)}, v{EA}, {srd(sE)}, s{SOW} offen sc1
s_mov_b64 exec, -1''')
    g.stamp('b_pub')
    e(rd[3:])
    e(cfma(Z,WSEL,T,Z)+cmul(CP,KAP,Z))
    e(f'v_and_b32 v2, 48, v1\nv_lshl_add_u32 v{EA}, v2, 6, v{EA}\ns_add_u32 s{SOW}, s{SOW}, 248\ns_and_b32 s{SOW}, s{SOW}, 0xffffff00\nv_mov_b32 v2, 1\nv_mov_b32 v3, 0')
    if GF:
        SCAN=g.L[mark:]; del g.L[mark:]
    def gelu(sb, tb):
        acc=FA+32*sb; sg=SG[sb]; L=[]; t=TMP
        G_=lambda i: v(acc+8*tb+2*i,2); U_=lambda i: v(acc+16+8*tb+2*i,2); T_=lambda i: v(t+2*i,2)
        cp=lambda i: v(GC+4*(2*tb+(i>>1)),2); rp=lambda i: v(GC+4*(2*tb+(i>>1))+2,2); o=acc+16+8*tb
        for i in range(4): L.append(f'v_pk_fma_f32 {G_(i)}, {v(sg+2*(i&1),2)}, {rp(i)}, {G_(i)} op_sel:[0,1,0] op_sel_hi:[1,1,1]')
        for i in range(4): L.append(f'v_pk_mul_f32 {T_(i)}, {G_(i)}, {G_(i)}')
        for i in range(4): L.append(f'v_pk_fma_f32 {T_(i)}, {T_(i)}, {cp(i)}, {cp(i)} op_sel:[0,1,0] op_sel_hi:[1,1,0]')
        for i in range(4): L.append(f'v_pk_mul_f32 {T_(i)}, {T_(i)}, {G_(i)}')
        for i in range(8): L.append(f'v_exp_f32 {v(t+i)}, {v(t+i)}')
        for i in range(4): L.append(f'v_pk_fma_f32 {U_(i)}, {v(sg+4+2*(i&1),2)}, {rp(i)}, {U_(i)} op_sel:[0,1,0] op_sel_hi:[1,1,1]')
        for i in range(4): L.append(f'v_pk_fma_f32 {T_(i)}, {T_(i)}, {rp(i)}, {rp(i)} op_sel_hi:[1,0,0]')
        for i in range(8): L.append(f'v_rcp_f32 {v(t+i)}, {v(t+i)}')
        for i in range(4): L.append(f'v_pk_mul_f32 {G_(i)}, {G_(i)}, {U_(i)}')
        for i in range(4): L.append(f'v_pk_mul_f32 {G_(i)}, {G_(i)}, {T_(i)}')
        for i in (0,2,1,3): L.append(f'v_cvt_pk_bf16_f32 {v(o+i)}, {v(acc+8*tb+2*i)}, {v(acc+8*tb+2*i+1)}')
        L.append(f's_add_u32 s{T1}, s{FO[sb]}, {tb*HSTR}\nv_permlane16_swap_b32 v{o}, v{o+2}\nv_permlane16_swap_b32 v{o+1}, v{o+3}\nbuffer_store_dwordx4 {v(o,4)}, v15, {srd(sWS)}, s{T1} offen sc1')
        return L
    signal=lambda sr: f's_mov_b64 exec, 1\nbuffer_atomic_add v2, v3, {srd(sWS)}, s{sr} offen sc1\ns_mov_b64 exec, -1'
    ER=[FA+32+2*k for k in range(8)]
    eld='\n'.join(f'buffer_load_dwordx4 {v(ER[2*u_],4)}, v{EA}, {srd(sE)}, s{SOW} offen offset:{256*u_} sc1' for u_ in range(4))
    e(sadd(0)); g.stamp('t0'); e(gelu(0,0)[:-1]); g.stamp('t1'); e(gelu(0,0)[-1]); g.stamp('t2'); e(mix(gelu(0,1),sread(1),8)); g.stamp('t3'); e(sadd(1)); e(gelu(1,0)[:-1]); g.stamp('t4'); e(gelu(1,0)[-1]); g.stamp('t5'); e(mix(gelu(1,1),sread(2),8)); g.stamp('t6'); e(sadd(2)); e(eld if opt.get('eq',0)<0 else ''); e(gelu(2,0)); g.stamp('t7')
    EP=opt.get('ep',0); SP_=opt.get('sgp',2); EQ=opt.get('eq',0)
    L=gelu(2,1)
    if EP==0 and EQ>=0: L=mix(L,eld.split('\n'),EQ) if EQ else [eld]+L
    e(L)
    g.stamp('gdone')
    if GF:
        assert EP==1
        e(SCAN)
    elif EP==1: e(eld)
    kp=v(KAP,2)
    for i in range(8):
        xx=v(Xr+2*i,2); yy=v(Yr+2*i,2); tt=v(4+2*(i&1),2)
        e([f'v_pk_mul_f32 {tt}, {xx}, {kp} op_sel:[0,1] op_sel_hi:[1,1] neg_lo:[0,1] neg_hi:[0,1]',f'v_pk_mul_f32 {xx}, {xx}, {kp} op_sel_hi:[1,0]',
           f'v_pk_fma_f32 {xx}, {yy}, {kp}, {xx} op_sel:[0,1,0] op_sel_hi:[1,1,1] neg_lo:[0,1,0] neg_hi:[0,1,0]',f'v_pk_fma_f32 {yy}, {yy}, {kp}, {tt} op_sel_hi:[1,0,1] neg_lo:[0,1,0] neg_hi:[0,1,0]'])
    chk='\n'.join([f'v_max3_u32 v0, v{ER[0]}, v{ER[0]+1}, v{ER[1]}',f'v_max3_u32 v4, v{ER[1]+1}, v{ER[2]}, v{ER[2]+1}']+[f'v_max3_u32 v{(0,4)[u_&1]}, v{ER[u_]}, v{ER[u_]+1}, v{(0,4)[u_&1]}' for u_ in range(3,8)]+['v_max_u32 v0, v0, v4','v_cmp_eq_u32 vcc, -1, v0','s_cmp_eq_u64 vcc, 0'])
    if GF:
        e('s_waitcnt vmcnt(1)'); e(signal(WL)); g.stamp('flag0')
        e(f's_waitcnt vmcnt({opt.get("gw",1)})'); e(eld); e('s_waitcnt vmcnt(0)')
    elif EP==1:
        e('s_waitcnt vmcnt(4)'); e(signal(WL)); g.stamp('flag0')
    e(f's_waitcnt vmcnt({2 if EQ<0 else 1})\n{chk}\ns_cbranch_scc0 L_epoll\nL_eok:')
    pre='' if EP==1 else f's_waitcnt vmcnt(0)\n{signal(WL)}\ns_mov_b32 s{WL}, {BIG}'
    g.cold.append(f'''L_epoll:
{pre}
s_mov_b32 s{SPIN}, 0
L_epoll1:
s_sleep 4
{eld}
s_add_u32 s{SPIN}, s{SPIN}, 1
s_cmp_gt_u32 s{SPIN}, 100000
s_cbranch_scc1 L_eok
s_waitcnt vmcnt(0)
{chk}
s_cbranch_scc0 L_epoll1
s_branch L_eok''')
    g.stamp('Eok')
    e('s_setprio 2')
    for u_ in range(6,-1,-1): e(cfma(ER[u_],L64,ER[u_+1],ER[u_]))
    e(f's_bitcmp1_b32 s{TQ}, 0\ns_cselect_b32 vcc_lo, 0xffff, 0\ns_mov_b32 vcc_hi, 0\nv_cndmask_b32 v{ER[0]}, v{ER[0]}, v{ER[1]}, vcc\nv_cndmask_b32 v{ER[0]+1}, v{ER[0]+1}, v{ER[1]+1}, vcc')
    e(cmul(4,WH,ER[0]))
    for sw in ('16','32'):
        e(f'v_mov_b32 v6, v4\nv_mov_b32 v7, v5\nv_permlane{sw}_swap_b32 v6, v4\nv_permlane{sw}_swap_b32 v7, v5\nv_add_f32 v4, v6, v4\nv_add_f32 v5, v7, v5')
    e(cfma(CP,WG,4,CP))
    cp=v(CP,2)
    def sig(k,n=0):
        if EP==0 and SP_==k: e(f's_waitcnt vmcnt({n})'); e(signal(WL)); g.stamp('flag0')
    sig(0)
    for comp,R_ in ((0,Xr),(1,Yr)):
        for i in range(8):
            rr_=v(R_+2*i,2); pr=v(PR+2*i,2); pi=v(PI+2*i,2)
            if comp==0: e(f'v_pk_fma_f32 {rr_}, {pr}, {cp}, {rr_} op_sel_hi:[1,0,1]\nv_pk_fma_f32 {rr_}, {pi}, {cp}, {rr_} op_sel:[0,1,0] op_sel_hi:[1,1,1] neg_lo:[0,1,0] neg_hi:[0,1,0]')
            else: e(f'v_pk_fma_f32 {rr_}, {pr}, {cp}, {rr_} op_sel:[0,1,0] op_sel_hi:[1,1,1] neg_lo:[0,1,0] neg_hi:[0,1,0]\nv_pk_fma_f32 {rr_}, {pi}, {cp}, {rr_} op_sel_hi:[1,0,1] neg_lo:[0,1,0] neg_hi:[0,1,0]')
    sig(1)
    for comp,R_,D_ in ((0,Xr,112),(1,Yr,128)):
        for i in range(8): e(f'v_cvt_pk_bf16_f32 v{R_+i}, v{R_+2*i}, v{R_+2*i+1}')
        for tb in range(2):
            for ab in range(2): e(f'v_mfma_f32_16x16x32_bf16 {v(D_+8*tb+4*ab,4)}, {v(R_+4*tb,4)}, {v(SL+2-2*ab,4)}, 0')
    for comp,R_,D_ in ((0,Xr,112),(1,Yr,128)):
        for i in range(8): e(f'v_cvt_pk_bf16_f32 v{R_+8+i}, v{D_+2*i}, v{D_+2*i+1}')
        if comp==0: sig(2)
        if comp==1: sig(3,2)
        for tb in range(2):
            o=R_+8+4*tb
            e(f'v_permlane16_swap_b32 v{o}, v{o+2}\nv_permlane16_swap_b32 v{o+1}, v{o+3}')
            e(f's_add_u32 s{T1}, s{SOX}, {comp*32768+tb*HSTR}\nbuffer_store_dwordx4 {v(o,4)}, v15, {srd(sWS)}, s{T1} offen sc1')
    g.stamp('c_st')
    e(vgroup(f's{V14}, 0',[DF],sDN,FB,20*16384,2))
    TV=144; JB=112; RB_=160
    e(['v_and_b32 v12, 31, v1','v_lshrrev_b32 v13, 5, v1','v_bfe_u32 v0, v1, 1, 3','v_xor_b32 v0, v13, v0','v_lshlrev_b32 v0, 4, v0','v_lshl_add_u32 v0, v12, 7, v0',f'v_add_u32 v4, s{XR}, v0',f'v_add_u32 v8, s{WQ}, v0'])
    for k in range(1,4): e(f'v_xor_b32 v{4+k}, {32*k}, v4\nv_xor_b32 v{8+k}, {32*k}, v8')
    e(traddr(0,12)+[f'v_add_u32 v{TV+4}, s{WQ}, v0',f'v_add_u32 v{TV+5}, s{WQ}, v12',f'v_add_u32 v{TV}, s{V14}, v0',f'v_add_u32 v{TV+1}, s{V14}, v12'])
    e(f's_lshl_b32 s{T1}, s{TQ}, 2\ns_add_u32 s{T1}, s{T1}, {ZF}\nv_mov_b32 v13, s{T1}')
    e(p2base(0))
    e('s_waitcnt vmcnt(2)'); e(signal(HA))
    g.stamp('flag')
    e(f's_cmp_ge_u32 s{TQ}, 2\ns_cbranch_scc1 L_no14'); e(vgroup(f's{V14}, 2048',[DF],sDN,FB,21*16384,2)); e('L_no14:')
    e(f'''s_setprio 0
s_cmp_ge_u32 s{TQ}, 2
s_cselect_b32 s{XL}, {BIG}, s{SOW}
s_cselect_b32 s{T1}, 0, 2048
v_add_u32 v{TV+2}, s{T1}, v{TV}
v_add_u32 v{TV+3}, s{T1}, v{TV+1}
s_mov_b32 s{SPIN}, 0
L_z0:
s_sleep 1
ds_read_b32 v0, v13
s_add_u32 s{SPIN}, s{SPIN}, 1
s_waitcnt lgkmcnt(0)
v_cmp_ne_u32 vcc, 1, v0
s_cmp_gt_u32 s{SPIN}, 1000000
s_cselect_b64 vcc, 0, vcc
s_cmp_eq_u64 vcc, 0
s_cbranch_scc0 L_z0''')
    g.stamp('Z0')
    e([f'ds_read_b128 {v(JB+8*k+4*dh,4)}, v{4+k} offset:{2*8192+dh*4096}' for k in range(4) for dh in range(2)])
    e([f'ds_read_b128 {v(RB_+32*bl+8*k+4*dh,4)}, v{4+k} offset:{bl*8192+dh*4096}' for bl in range(2) for k in range(4) for dh in range(2)])
    e([f'ds_read_b128 {v(RB_+64+8*k+4*dh,4)}, v{8+k} offset:{dh*WSS}' for k in range(4) for dh in range(2)])
    e('s_waitcnt lgkmcnt(0)')
    e([f's_lshl_b32 s{T1}, s{TQ}, 11\ns_add_u32 s{T1}, s{T1}, {q_*XW+16384}\nv_add_u32 v{4+q_}, s{T1}, v15' for q_ in range(4)])
    e(f's_lshl_b32 s{T1}, s{TQ}, 10\ns_add_u32 s{T1}, s{T1}, {WB}\nv_add_u32 v8, s{T1}, v15')
    e('s_barrier'); g.stamp('Z1')
    e(spoll('L_fp0',8,opt.get('slp0',4)))
    g.stamp('go')
    HS=FBR+[CB2]
    st_=[(HS[0],(86+k)*1024,JB+8*k) for k in range(4)]+[(SOW,(18+k)*1024,JB+8*k) for k in range(3)]+[(XL,21*1024,JB+24)]
    st2=[(HS[1+bl],(86+k)*1024,RB_+32*bl+8*k) for bl in range(3) for k in range(4)]
    loads=[];groups=[]
    for s_,(sr,im,Bq) in enumerate(st_):
        groups.append([(TILE(mh,dh),len(loads)+mh,Bq+4*dh,s_==0) for mh in range(2) for dh in range(2)])
        for mh in range(2): loads.append((sr,im+mh*HSTR))
    for mh in range(2):
        for p_ in range(6):
            grp=[]
            for s_ in (2*p_,2*p_+1):
                sr,im,Bq=st2[s_]
                grp+=[(TILE(mh,dh),len(loads),Bq+4*dh,False) for dh in range(2)]
                loads.append((sr,im+mh*HSTR))
            groups.append(grp)
    jit=[trstep(JB,TV+4,2*WSS),trstep(JB+8,TV+4,2*WSS+2048),trstep(JB+16,TV,0),trstep(JB+24,TV+2,0)]
    wr0=[]
    for dh in range(2):
        for q_ in range(4): wr0+=[f'ds_write_b128 v{4+q_}, {v(TILE(0,dh)+4*q_,4)} offset:{dh*1024}','']
    hooks={1:([],jit[0]),2:([],jit[1]),3:([],jit[2]),4:(['s_waitcnt lgkmcnt(8)'],jit[3]),5:(['s_waitcnt lgkmcnt(8)'],[]),6:(['s_waitcnt lgkmcnt(4)'],[]),7:(['s_waitcnt lgkmcnt(0)'],[]),
           10:(['s_barrier',g.st('Z2')],[]),14:([],['']*6+wr0),17:(['s_waitcnt lgkmcnt(0)','s_barrier',g.st('Z23')],[])}
    run_groups(groups,loads,[16+4*k for k in range(8)]+[152,156],15,hooks)
    wr1=lambda dh: [f'ds_write_b128 v8, {v(TILE(1,dh)+4*q_,4)} offset:{dh*WSS+q_*4096}' for q_ in range(4)]
    idx=[k for k,l_ in enumerate(g.L) if 'v_mfma_f32_32x32x16' in l_][-12:]
    seg=g.L[idx[0]:]; del g.L[idx[0]:]
    assert not any('buffer_load' in l_ for l_ in seg)
    late=[l_ for l_ in seg if 'v_mfma' in l_ and l_.split()[1].rstrip(',')==v(TILE(1,1),16)]
    e([l_ for l_ in seg if l_ not in late])
    e([late[0],'s_nop 4',late[1],'s_nop 3']); e(mix(late[2:],wr1(0),1)); e('s_waitcnt lgkmcnt(0)\ns_barrier'); e(wr1(1))
    e('s_waitcnt lgkmcnt(0)\ns_barrier')
    g.stamp('p2end')
    if opt.get('stamps'):
        e('L_fin:\ns_waitcnt vmcnt(0)'); g.stamp('done')
        e(f'''s_waitcnt lgkmcnt(0)
s_cmp_eq_u32 s{TQ}, {opt.get('stq',0)}
s_cbranch_scc0 L_end
s_add_u32 s{sX}, s66, {STAMP}
s_addc_u32 s{sX+1}, s67, 0
s_lshl_b32 s{T0}, s2, 1
s_add_u32 s{T0}, s{T0}, s{NH}
s_lshl_b32 s{T0}, s{T0}, 7
v_mov_b32 v2, 0''')
        prs=[100]+G.POOL[:len(g.names())]
        if 'diag' in opt:
            p=prs[(['start']+g.names()).index(opt['diag'])]
            if 'dwg' in opt: e(f's_cmp_eq_u32 s2, {opt["dwg"]}\ns_cbranch_scc0 L_end')
            e(f's_cmp_eq_u32 s{NH}, {opt.get("dr",0)}\ns_cbranch_scc0 L_end\nL_dg:\ns_memrealtime s[72:73]\ns_waitcnt lgkmcnt(0)\ns_sub_u32 s72, s72, s{p}\ns_cmp_lt_u32 s72, 6000\ns_cbranch_scc1 L_dg')
            prs=[]
        for i,p in enumerate(prs): e(f'v_mov_b32 v4, s{p}\nv_mov_b32 v5, s{p+1}\nbuffer_store_dwordx2 v[4:5], v2, {srd(sX)}, s{T0} offen offset:{8*i}')
    e('L_end:\ns_endpgm'); e(g.cold); e('L_last:\ns_endpgm')
    if opt.get('stamps'): g.L.insert(0,'; STAMPS start,'+','.join(g.names()))
    g.L=[(x if x.endswith(':') or x.startswith('.') else '  '+x.strip()) for l_ in g.L for x in (l_.replace('|v_nop','').split('|') if '|' in l_ else [l_])]
    ab=opt.get('ab',0)
    if ab:
        import re
        L=[]
        for l_ in g.L:
            if ab&1 and (re.search(r', v(29|30) offset',l_) and 'v[2' in l_ and ('tr_b16' in l_ or 'v[224' in l_) or 'v_mfma_f32_16x16x32_bf16 v[240:243]' in l_): continue
            if ab&2 and 'buffer_load_dwordx2' in l_ and not re.search(r'offset:(0|128) ',l_): continue
            if ab&2 and 's_waitcnt vmcnt(8)' in l_ and 'pk' in L[-1]: l_='  s_waitcnt vmcnt(2)'
            if ab&2 and 'v_cmp_eq_u32 vcc, -1, v0' in l_: l_='  v_cmp_gt_u32 vcc, 0, v0'
            if ab&4 and re.search(r'ds_write_b128 v[4-8],',l_): continue
            if ab&8 and re.search(r'v_pk_add_f32 v\[2',l_): continue
            if ab&8 and re.search(r'v28 offset:(5|6|7|8|9)\d\d$',l_) and 'b128' in l_: continue
            if ab&16 and 'v_exp_f32 v2' in l_: continue
            if ab&32 and 'v_fmac_f32' in l_ and re.search(r'v(80|47|96), v',l_): continue
            L.append(l_)
        g.L=L
    body=hz.fix('\n'.join(g.L), verbose=opt.get('v',0))
    if opt.get('al'):
        import align
        body,nw,nn=align.run(body,lambda b: header([(NAME,256,512,163840)])+kstart(NAME)+b+'\n',opt['al'])
    if opt.get('ic'):
        import align
        body,npad=align.pads('L_anchor:\n'+body,lambda b: header([(NAME,256,512,163840)])+b+'\n')
        body=body.replace('L_anchor:\n','')
        if opt.get('v'): print('pads',npad)
    ref=open('parallel_sum__ssm_conv_s5__geglu_ffn__prompt.s.ref').read() if opt.get('final') else ''
    cm_=''.join(l+'\n' for l in ref.split('\n') if l.startswith(';') and '@launch' not in l and 'Override' not in l and 'grid=ceil' not in l)
    return cm_+header([(NAME,256,512,163840)])+('.p2align 12\n' if opt.get('pa',1) else '')+kstart(NAME)+body+'\n'+RODATA+kd(NAME,256,256)

if __name__=='__main__':
    out=sys.argv[1]; opt={}
    for a in sys.argv[2:]:
        k,_,val=a.partition('='); opt[k]=int(val) if val.lstrip('-').isdigit() else (val or 1)
    open(out,'w').write(build(opt))
```

```python
import sys, math
from asmlib import *
import hz
from gen_v3 import F, LOG2E, BIG, G, cmul, cfma, mix, mksrd, fsplit, v, srd
XW=24576; WB=98304; WSS=16640; GOFF=4096; UOFF=4096+6144+128
SCR=WB+3*WSS; SP=SCR+12288; RM=SP+1024; ZF=RM+2048
HSTR=150*1024; ST_M=0xA00000; ST_R=0xA08000; ARR=0xA10000; FLG=0xA20000; EOFF=0xA60000; WSSZ=0xA80000
STAMP=0x8000000
sX,sW,sWS,sDBG,sCR,sCI,sDN,sE,sOUT=4,8,12,16,20,24,28,32,68
sW2=sE
TH=0; W0=1; FS=3; WL2=54; WI=72; CB=73; FCNT=74; FB=75
W_,TQ,NH,RB,CT,ROT,WSTEP,XL,WL=76,77,78,79,80,81,82,83,84
RB2,TQ2,DQ,SOX,SOW,T0,T1,T2,F0,HB,XR,WQ=85,86,87,88,89,90,91,92,93,94,95,96
SPIN=97; HA=98; V14=99; XH=W_
FBR=[60,61,64]; CB2=65
G.POOL=[36,42,44,56,58,38,40,46,48,50]
G.DEF='B4,B8,gdone,flag,chores,go,q1,ph1,p2end,done'
DC=12; DF=14
ACC0=48; B1,B2,B3=112,160,208
TILE=lambda mh,dh: ACC0+32*mh+16*dh

DOC="""; ---------------------------------------------------------------------------------------------
; One launch, 256 workgroups x 8 waves (one workgroup per CU, all co-resident), generated by a script.
;          once per row and handed over through the workspace.
;          SSM: exact chunked scan, 64-step chunk end states are exchanged through the workspace.
; Phase 2: [act | 2h_re | -2h_im] (bf16, workspace) times [w_down | C_re | C_im], 64x64 outputs per
;          sentinels are initialised inside the launch (announced through d_debug).
; ---------------------------------------------------------------------------------------------
"""
def build(opt):
    g=G(opt); e=g.e
    opt.setdefault('ch','x1120'); opt.setdefault('xp',3); opt.setdefault('dp1',12); opt.setdefault('ze',9)
    c_=opt['ch']; assert int(c_[1])<=int(c_[2])<opt['xp']<=opt.get('xq',5)-2 and int(c_[3])<=5
    SC_=opt.get('sc',1)
    opt.setdefault('pfp',1); PF=opt.get('pf',4); NL=opt.get('nl',16)
    e(f'''s_cmp_ge_u32 s2, 256
s_cbranch_scc1 L_end
s_load_dwordx16 s[36:51], s[0:1], 0
s_load_dwordx16 s[52:67], s[0:1], 64
s_getpc_b64 s[72:73]
L_pc0:
v_lshrrev_b32 v3, 6, v0
s_and_b32 s3, s2, 0xf8
v_add_lshl_u32 v2, v3, s3, 7
v_min_u32 v2, L_last-L_pc0, v2
v_and_b32 v1, 63, v0
v_readfirstlane_b32 s{W_}, v3
global_load_dword v9, v2, s[72:73]
s_bfe_u32 s{TQ2}, s2, 0x20003
s_lshr_b32 s{DQ}, s2, 5''')
    if opt.get('stamps'): e(('s_memtime' if opt['stamps']==2 else 's_memrealtime')+' s[100:101]')
    m42=f's_and_b32 s{RB2}, s{RB2}, 4\ns_and_b32 s{T2}, s{T1}, 1\ns_lshl_b32 s{T2}, s{T2}, 1\ns_add_u32 s{RB2}, s{RB2}, s{T2}\ns_lshr_b32 s{T2}, s{DQ}, 2\ns_add_u32 s{RB2}, s{RB2}, s{T2}\ns_and_b32 s{DQ}, s{DQ}, 3\ns_and_b32 s{T2}, s{T1}, 2\ns_lshl_b32 s{T2}, s{T2}, 1\ns_add_u32 s{DQ}, s{DQ}, s{T2}' if opt.setdefault('m42',1) else ''
    oa,ob=opt.get('ord','x01245673.45670123')[1:].split('.')
    e(f'''s_and_b32 s{T0}, s2, 1
s_lshl_b32 s{RB}, s{T0}, 2
s_bfe_u32 s{T1}, s2, 0x20001
s_xor_b32 s{RB2}, s{RB}, 4
s_add_u32 s{RB2}, s{RB2}, s{T1}
s_add_u32 s{RB}, s{RB}, s{TQ2}
s_lshl_b32 s{CT}, s{T1}, 3
s_add_u32 s{CT}, s{CT}, s{DQ}
s_xor_b32 s{CT}, s{CT}, 4
{m42}
s_and_b32 s{TQ}, s{W_}, 3
s_lshr_b32 s{NH}, s{W_}, 2
s_lshl_b32 s{HB}, s{RB}, 2
s_add_u32 s{HB}, s{HB}, s{TQ}
s_mul_i32 s{XR}, s{TQ}, {XW}
v_lshrrev_b32 v4, 3, v1          ; q
v_and_b32 v5, 7, v1              ; pos
s_cmp_eq_u32 s{NH}, 0''')
    NEAR=(f'''v_and_b32 v3, 15, v1
s_lshl_b32 s{T1}, s{CT}, 5
v_lshl_add_u32 v3, v3, 1, s{T1}
s_lshl_b32 s{T0}, s{TQ}, 2
s_add_u32 s{T0}, s{T0}, {ZF}
v_mov_b32 v10, s{T0}
v_mov_b32 v11, 0
ds_write_b32 v10, v11
s_lshl_b32 s{T0}, s{RB}, 5
s_add_u32 s{T0}, s{T0}, s{CT}
s_lshl_b32 s{T0}, s{T0}, 2
s_add_u32 s{WI}, s{T0}, s{TQ}
s_lshl_b32 s{T2}, s{WI}, 11
v_and_b32 v2, 31, v1
v_lshl_add_u32 v2, v2, 4, s{T2}
v_and_b32 v6, 32, v1
v_lshl_add_u32 v2, v6, 5, v2
s_waitcnt lgkmcnt(0)
global_load_ushort v244, v3, s[38:39]
global_load_ushort v245, v3, s[40:41]
global_load_ushort v246, v3, s[50:51]
global_load_dwordx4 v[112:115], v2, s[36:37]
global_load_dwordx4 v[116:119], v2, s[36:37] offset:512''')
    if opt.get('nb',1): e('s_cbranch_scc0 L_load\ns_setprio 2'); e(NEAR); e('s_setprio 0\ns_branch L_comp\nL_load:')
    else: e('s_cbranch_scc1 L_comp')
    def zstamps():
        if opt.get('stamps'):
            for r,nm in zip(G.POOL,g.names()):
                if nm not in ('e0','e1'): e(f's_mov_b64 s[{r}:{r+1}], 0')
    def common(nh):
        e(mksrd(sWS,66,67,WSSZ)); e(mksrd(sDN,60,61,1409024*(0 if opt.get('nodma') else 1)))
        e(f'''v_lshlrev_b32 v6, 1, v4
v_and_b32 v6, 4, v6
v_xor_b32 v6, v5, v6
v_lshlrev_b32 v6, 4, v6
v_lshl_add_u32 v6, v4, 10, v6
s_lshl_b32 s{T0}, s{DQ}, 7
v_add_u32 v{DF}, s{T0}, v6
s_mul_i32 s{F0}, s{TQ}, 22
s_cmp_eq_u32 s{TQ}, 3
s_cselect_b32 s{T0}, 1, 0
s_sub_u32 s{F0}, s{F0}, s{T0}
s_lshl_b32 s{FB}, s{F0}, 14
s_lshl_b32 s{WQ}, s{TQ}, 12
s_lshl_b32 s{T0}, s{T0}, 11
s_sub_u32 s{V14}, s{WQ}, s{T0}
s_add_u32 s{V14}, s{V14}, {SCR}
s_add_u32 s{WQ}, s{WQ}, {WB}
s_lshl_b32 s{HA}, s{HB}, 2
s_lshr_b32 s{T0}, s{CT}, 3
s_add_u32 s{HA}, s{HA}, s{T0}
s_lshl_b32 s{HA}, s{HA}, 8
s_add_u32 s{HA}, s{HA}, {FLG}
v_lshlrev_b32 v15, 4, v1
v_and_b32 v2, 15, v1
v_lshrrev_b32 v3, 4, v1
v_bfe_u32 v6, v1, 1, 3
v_xor_b32 v6, v3, v6
v_lshlrev_b32 v6, 4, v6
v_lshl_add_u32 v6, v2, 7, v6
v_bfe_u32 v10, v1, 2, 3
v_lshrrev_b32 v11, 5, v1
v_lshl_add_u32 v10, v11, 4, v10
v_mul_u32_u24 v10, 96, v10
v_and_b32 v11, 3, v1
v_lshl_add_u32 v10, v11, 3, v10''')
    def vgroup(m0, vregs, sr, sb, imm, n):
        L=[]
        for j in range(n):
            t=f's_add_u32 m0, {m0}\n' if j==0 else ''
            t+=f's_add_u32 s{T0}, s{sb}, {imm+j*(8192-1024)}\nbuffer_load_dwordx4 v{vregs[j%len(vregs)]}, {srd(sr)}, s{T0} offen'+(f' offset:{1024*j}' if j else '')+' lds'
            L.append(t)
        return L
    def vx(vs,half):
        st=vs%3; m0=f's{XR}, {st*8192+half*4096}'
        if vs>=11:
            b=vs-11; return vgroup(m0,[DC,DC+1],sCI if b&1 else sCR,CB2 if b>>1 else CB,half*32768,4)
        return vgroup(m0,[DF],sDN,FBR[vs-8],half*32768,4)
    def vw(vs):
        st=vs%3
        if vs>=12: return vgroup(f's{WQ}, {st*WSS}',[DC,DC+1],sCI,CB2,(vs-12)*32768,4)
        return vgroup(f's{WQ}, {st*WSS}',[DF],sDN,FBR[vs-8] if vs<11 else FB,(4 if vs<11 else 18)*16384,4)
    def vfull(vs): return vx(vs,0)+vx(vs,1)+vw(vs)
    def traddr(t0,t1):
        return [f'v_bfe_u32 v{t0}, v1, 2, 2',f'v_lshrrev_b32 v{t1}, 5, v1',f'v_lshl_add_u32 v{t0}, v{t1}, 3, v{t0}',f'v_lshlrev_b32 v{t0}, 7, v{t0}',f'v_and_b32 v{t1}, 3, v1',f'v_lshl_add_u32 v{t0}, v{t1}, 3, v{t0}',
            f'v_bfe_u32 v{t1}, v1, 4, 1',f'v_lshl_add_u32 v{t0}, v{t1}, 5, v{t0}',f'v_bfe_u32 v{t1}, v1, 3, 1',f'v_lshl_add_u32 v{t0}, v{t1}, 6, v{t0}',f'v_xor_b32 v{t1}, 64, v{t0}']
    def trstep(base,areg,off):
        return [f'ds_read_b64_tr_b16 {v(base+dh*4+2*j,2)}, v{areg+dh} offset:{off+j*512}' for dh in range(2) for j in range(2)]
    def hb(nh):
        if nh==1: return '\n'.join(f's_lshr_b32 s{FBR[k]}, s{FBR[k]}, 4\ns_add_u32 s{FBR[k]}, s{FBR[k]}, s{SOX}' for k in range(3))
        t=f's_lshl_b32 s{T0}, s{TQ}, 13\ns_add_u32 s{SOX}, s{SOX}, s{T0}\n{r4(T2)}'
        for b_,r_ in enumerate(FBR+[CB2]):
            t+=f'\ns_xor_b32 s{T0}, s{T2}, {b_}\ns_and_b32 s{T1}, s{T0}, 1\ns_lshl_b32 s{T1}, s{T1}, 15\ns_and_b32 s{T0}, s{T0}, 2\ns_lshl_b32 s{T0}, s{T0}, 11\ns_add_u32 s{T0}, s{T0}, s{T1}\ns_add_u32 s{r_}, s{SOX}, s{T0}'
        return t
    def p2base(nh):
        return f'''s_lshl_b32 s{T0}, s{RB2}, 2
s_add_u32 s{T0}, s{T0}, s{TQ2}
s_mul_i32 s{SOX}, s{T0}, {2*HSTR}
s_lshl_b32 s{HB}, s{T0}, 2
s_add_u32 s{HB}, s{HB}, s{TQ}
s_lshl_b32 s{HB}, s{HB}, 8
s_add_u32 s{HB}, s{HB}, {FLG+128*(1-nh)}
s_lshl_b32 s{T0}, s{F0}, 10
s_add_u32 s{SOW}, s{SOX}, s{T0}
{hb(nh)}'''
    sld=f's_load_dword s55, s[66:67], s{HB} glc'
    def spoll(lbl, tgt, sl, first=True):
        g.cold.append(f'''{lbl}:
s_mov_b32 s{SPIN}, 0
{lbl}_1:
{sld}
s_add_u32 s{SPIN}, s{SPIN}, 1
s_waitcnt lgkmcnt(0)
s_cmp_gt_u32 s{SPIN}, 100000
s_cselect_b32 s55, {tgt}, s55
s_cmp_lt_u32 s55, {tgt}
s_cbranch_scc0 {lbl}_ok
s_sleep {sl}
s_branch {lbl}_1''')
        return (sld if first else '')+f'\ns_waitcnt lgkmcnt(0)\ns_cmp_lt_u32 s55, {tgt}\ns_cbranch_scc1 {lbl}\n{lbl}_ok:'
    def run_groups(groups, loads, ring, areg, hooks, mid=[], freed={}, depth=0):
        free=list(ring); dest=[]; depth=max(depth,len(ring))
        def ld():
            sr,imm=loads[len(dest)]; dest.append(free.pop(0))
            return [f's_add_u32 s{T0}, s{sr}, {imm}',f'buffer_load_dwordx4 {v(dest[-1],4)}, v{areg}, {srd(sWS)}, s{T0} offen sc1']
        while free: e(ld())
        e(mid)
        il=[]
        for gi,grp in enumerate(groups):
            g.stamp(f'q{gi}')
            h=hooks.get(gi)
            if h:
                e(h[0]); il=il+list(h[1])
            for k,(a,li,Bq,first) in enumerate(grp):
                if k%2==0: e(f's_waitcnt vmcnt({len(dest)-1-li})')
                e(f'v_mfma_f32_32x32x16_bf16 {v(a,16)}, {v(dest[li],4)}, {v(Bq,4)}, {"0" if first else v(a,16)}')
                if k%2==1: free.append(dest[li])
                can=free and len(dest)<len(loads)
                if can and (k%2==1 or (k==0 and len(dest)-li<depth)): e(ld())
                for _ in range(2):
                    if il: e(il.pop(0))
            free+=freed.get(gi,[])
        e(il)
    ZE=opt.get('ze',8)
    r3t,m4=opt.get('r3','x01201201')[1:],opt.get('r4',3)
    def r4(d): return f's_and_b32 s{d}, s{TQ2}, {m4}'
    def weave(mark, D, first=1, lastfree=2):
        W=g.L[mark:]; del g.L[mark:]
        ch=[]; cur=[]; hold=False
        for k,l_ in enumerate(W):
            cur.append(l_); t=l_.strip()
            if 'exec' in t: hold=not t.endswith('-1')
            nx=W[k+1].strip() if k+1<len(W) else ''
            if not hold and not (t.startswith('s_') and '|' not in t and not t.startswith('s_waitcnt')) and not nx.startswith('s_cselect') and f's{T0}' not in nx: ch.append(cur); cur=[]
        if cur: ch.append(cur)
        slots=len(D)-lastfree-first+1
        assert slots>=1
        for k,d in enumerate(D):
            if first<=k<first+slots:
                a=len(ch)*(k-first)//slots; b=len(ch)*(k-first+1)//slots
                for c in ch[a:b]: e(c)
            e(d)

    DX=16; DW=20; PTX=24; PTW=27; S1=29; S2=30; SELS=208; SFS=[224,228,232,236]; SACC=240
    e(f'''s_setprio 1
s_mov_b32 s{ROT}, 0x{oa[::-1]}
s_cmp_eq_u32 s{T0}, 1
s_cselect_b32 s{ROT}, 0x{ob[::-1]}, s{ROT}
v_lshrrev_b32 v6, 2, v4
v_lshlrev_b32 v6, 4, v6
v_and_or_b32 v6, v4, 3, v6
s_lshl_b32 s{T0}, s{HB}, 6
v_add_u32 v6, s{T0}, v6
v_lshlrev_b32 v6, 10, v6
v_lshrrev_b32 v7, 1, v4
v_xor_b32 v7, v5, v7             ; chunk (even j)
v_xor_b32 v8, 4, v7              ; chunk (odd j)
v_lshl_add_u32 v{DX}, v7, 4, v6
v_lshl_add_u32 v{DX+1}, v8, 4, v6
v_add_u32 v{DX+1}, {32768-1024}, v{DX+1}
v_add_u32 v{DX+2}, 2048, v{DX}
v_add_u32 v{DX+3}, 2048, v{DX+1}
s_and_b32 s{XH}, s{CT}, {opt.get('sx',1)}
s_lshl_b32 s{XL}, s{XH}, 12
s_add_u32 s{XL}, s{XL}, s{XR}
s_lshl_b32 s{XH}, s{XH}, 13
s_mov_b32 s{sX+2}, 2097152
s_mov_b32 s{sX+3}, 0x20000''')
    def xs(i,h):
        st=i%3
        if h==0: t=f's_bfe_u32 s{T0}, s{ROT}, {0x30000+4*i}\ns_lshl_b32 s{SOX}, s{T0}, 7\ns_add_u32 m0, s{XL}, {st*8192}\ns_add_u32 s{SOX}, s{SOX}, s{XH}\n'
        else: t=f's_xor_b32 s{T0}, s{XL}, 4096\ns_add_u32 m0, s{T0}, {st*8192}\ns_xor_b32 s{SOX}, s{SOX}, 8192\n'
        return [(t if j==0 else '')+f'buffer_load_dwordx4 v{DX+j}, {srd(sX)}, s{SOX} offen'+(f' offset:{1024*j}' if j else '')+' lds' for j in range(4)]
    def ws(i,h):
        st=i%3; sr=(sW,sW2)[h]
        t=f's_bfe_u32 s{T0}, s{ROT}, {0x30000+4*i}\ns_add_u32 m0, s{(WL,WL2)[h]}, {st*WSS}\ns_mul_i32 s{SOW}, s{T0}, '+(f's{WSTEP}' if h==0 else 's55')+'\n'
        return [t+f'buffer_load_dwordx4 v{DW+2*h}, {srd(sr)}, s{SOW} offen lds',f'buffer_load_dwordx4 v{DW+2*h+1}, {srd(sr)}, s{SOW} offen offset:1024 lds']
    slab=lambda i: xs(i,0)+ws(i,0)+xs(i,1)+ws(i,1)
    e(f's_waitcnt lgkmcnt(0)\ns_mov_b32 s{sX}, s36\ns_mov_b32 s{sX+1}, s37'); g.stamp('e0')
    H0=opt.get('h0',1)
    e(xs(0,0)+([] if H0 else xs(0,1)))
    e(fsplit(CT,FS,FCNT,T0))
    e(f'''s_lshl_b32 s{T2}, s{FS}, 5
s_lshl_b32 s{F0}, s{FCNT}, 1
s_and_b32 s{HA}, s{RB}, 1
s_lshl_b32 s{HA}, s{HA}, 2
s_add_u32 s{HA}, s{HA}, s{TQ}
s_lshl_b32 s{T1}, s{CT}, 4
v_add_u32 v6, s{T1}, v4
v_lshlrev_b32 v6, 10, v6
v_lshl_add_u32 v2, v7, 4, v6
v_lshl_add_u32 v3, v8, 4, v6
v_add_u32 v3, 7168, v3
v_mov_b32 v0, 0x80000000''')
    def ffo(d,gb,j):
        return f'''v_add_u32 v6, s{gb}, v1
{"v_add_u32 v6, 64, v6" if j else ""}
v_mul_u32_u24 v10, 10923, v6
v_lshrrev_b32 v10, 16, v10
v_mul_u32_u24 v11, 6, v10
v_sub_u32 v11, v6, v11
v_lshrrev_b32 v6, 1, v10
v_xor_b32 v6, v6, v10
v_and_b32 v6, 4, v6
v_mul_u32_u24 v6, 3, v6
v_xor_b32 v10, v10, v6
v_mul_u32_u24 v10, 2752, v10
v_lshl_add_u32 v10, v11, 4, v10
v_cmp_gt_u32 vcc, s{F0}, v11
v_add_u32 v10, s{T2}, v10
{"v_subrev_u32 v10, 1024, v10" if j else ""}
v_cndmask_b32 v{d}, v0, v10, vcc'''
    def unit(h):
        sr,wl,stp,d=(sW,sW2)[h],(WL,WL2)[h],(WSTEP,55)[h],DW+2*h
        e(f'''s_cmp_ge_u32 s{HA}, 5
s_cselect_b32 s{SPIN}, 5, 2
s_cselect_b32 s{T1}, 128, 0
s_cselect_b32 s{sr}, s58, s56
s_cselect_b32 s{sr+1}, s59, s57
s_sub_u32 s{SPIN}, s{HA}, s{SPIN}
s_lshl_b32 s{SPIN}, s{SPIN}, 7''')
        e(ffo(d,SPIN,0)); e(ffo(d+1,SPIN,1))
        e(f'''s_lshl_b32 s{wl}, s{HA}, 11
s_add_u32 s{wl}, s{wl}, s{T1}
s_add_u32 s{wl}, s{wl}, {WB}
s_cmp_eq_u32 s{HA}, 0
s_cselect_b32 s{sr}, s42, s{sr}
s_cselect_b32 s{sr+1}, s43, s{sr+1}
s_cmp_eq_u32 s{HA}, 1
s_cselect_b32 s{sr}, s44, s{sr}
s_cselect_b32 s{sr+1}, s45, s{sr+1}
s_mov_b32 s{stp}, 176128
s_mov_b32 s{sr+2}, 1409024
s_cmp_lt_u32 s{HA}, 2
s_cselect_b64 vcc, -1, 0
s_cselect_b32 s{stp}, 128, s{stp}
s_cselect_b32 s{sr+2}, 524288, s{sr+2}
s_mov_b32 s{sr+3}, 0x20000
v_cndmask_b32 v{d}, v{d}, v2, vcc
v_cndmask_b32 v{d+1}, v{d+1}, v3, vcc''')
    unit(0); e(ws(0,0))
    if H0: e(xs(0,1))
    e(f's_xor_b32 s{HA}, s{HA}, 4')
    unit(1); e(ws(0,1)); g.stamp('e1')
    e(f'''s_lshl_b32 s{T1}, s2, 2
s_add_u32 s{T1}, s{T1}, s{TQ}
s_cmp_eq_u32 s{T1}, {97*4+3}
s_cbranch_scc1 L_init
L_initd:''')
    t=f'L_init:\nv_lshlrev_b32 v10, 4, v1\nv_add_u32 v10, {ARR}, v10\nv_mov_b32 v44, 0\nv_mov_b32 v45, 0\nv_mov_b32 v46, 0\nv_mov_b32 v47, 0'
    for k in range(NL//8): t+=f'\nglobal_store_dwordx4 v10, v[44:47], s[66:67] offset:{1024*k} sc1'
    g.cold.append(t+'\ns_branch L_initd')
    e(f's_lshl_b32 s{T1}, s{DQ}, 7\nv_and_b32 v3, 31, v1\nv_lshl_add_u32 v3, v3, 1, s{T1}\nglobal_load_ushort v40, v3, s[52:53]\nglobal_load_ushort v41, v3, s[52:53] offset:64')
    D=slab(1); n1=opt.get('n1',4)
    e(D[:n1])
    common(1)
    nd=0 if opt.get('nodma') else 1
    e(mksrd(sCR,46,47,524288*nd)); e(mksrd(sCI,48,49,524288*nd)); e(mksrd(sDBG,64,65,256)); e(mksrd(sOUT,62,63,4194304))
    sadr=f'''s_lshr_b32 s{T0}, s{TQ}, 1
s_and_b32 s{T1}, s{TQ}, 1
s_mul_i32 s{T2}, s{T0}, 3072
s_mul_i32 s{SPIN}, s{T1}, {UOFF-GOFF}
s_add_u32 s{T2}, s{T2}, s{SPIN}
s_add_u32 s{T2}, s{T2}, {WB+GOFF}
v_add_u32 v{S2}, s{T2}, v10
s_lshl_b32 s{T0}, s{T0}, 6
s_lshl_b32 s{T1}, s{T1}, 11
s_add_u32 s{T1}, s{T1}, {WB}
v_xor_b32 v{S1}, s{T0}, v6
v_add_u32 v{S1}, s{T1}, v{S1}''' if not SC_ else f'''s_lshl_b32 s{T2}, s{TQ}, 5
s_add_u32 s{T2}, s{T2}, {WB+GOFF-32}
v_add_u32 v{S2}, s{T2}, v10
v_add_u32 v{S1}, {WB}, v6
v_xor_b32 v244, 64, v{S1}'''
    e(f'''s_lshl_b32 s{CB}, s{TQ}, 8
s_cmp_eq_u32 s{TQ}, 0
s_cselect_b32 s{TH}, 1, 0
s_cselect_b32 s{W0}, 0, {BIG}
{sadr}
v_mov_b32 v3, 0x3f803f80''')
    for f_ in range(2 if SC_ else 4):
        e(f'v_cmp_eq_u32 vcc, {f_}, v2')
        for k in range(4): e(f'v_cndmask_b32 v{SELS+4*f_+k}, 0, v3, vcc')
    zstamps()
    mark=len(g.L)
    if str(opt.get('ch','x2220'))[4]=='0': e([f'v_mov_b64 {v(ACC0+16*tl+k,2)}, 0' for tl in range(4) for k in range(4,16,2)])
    MM=[int(c,16) for c in str(opt.get('mm','x88888888'))[1:]]
    weave(mark,D[n1:MM[0]],1,1); left=D[MM[0]:]
    e(f's_setprio {opt.get("lprio",1)}\ns_waitcnt vmcnt({2+MM[0]})'); g.stamp('l0'); e('s_barrier'); g.stamp('B0')
    def ssum(i):
        st=i%3
        if SC_:
            rd_='|'.join([f's_cmp_eq_u32 s{TQ}, 0',f's_cbranch_scc0 L_sb{i}']+[f'ds_read_b128 {v(SFS[k],4)}, v{(S1,244)[k>>1]} offset:{st*WSS+(k&1)*2048}' for k in range(4)]+[f's_branch L_sd{i}',f'L_sb{i}:']+[f'ds_read_b64_tr_b16 {v(SFS[k]+2*j,2)}, v{S2} offset:{st*WSS+(32*(k>>1)+8*j)*96+(k&1)*(UOFF-GOFF)}' for k in range(4) for j in range(2)]+[f'L_sd{i}:'])
            return [rd_+'|v_nop','s_waitcnt lgkmcnt(0)']+[f'v_mfma_f32_16x16x32_bf16 {v(SACC,4)}, {v(SFS[k],4)}, {v(SELS+4*(k&1),4)}, {"0" if (i==0 and k==0) else v(SACC,4)}' for k in range(4)]
        L=[f'ds_read_b128 {v(SFS[0],4)}, v{S1} offset:{st*WSS}']+[f'ds_read_b64_tr_b16 {v(SFS[1+q_]+2*j,2)}, v{S2} offset:{st*WSS+8*j*96+32*q_}' for q_ in range(3) for j in range(2)]
        return L+['s_waitcnt lgkmcnt(0)']+[f'v_mfma_f32_16x16x32_bf16 {v(SACC,4)}, {v(SFS[k],4)}, {v(SELS+4*k,4)}, {"0" if (i==0 and k==0) else v(SACC,4)}' for k in range(4)]
    e(f's_lshl_b32 s{T1}, s2, 2\ns_add_u32 s{T1}, s{T1}, s{TQ}\ns_cmp_eq_u32 s{T1}, {97*4+3}\ns_cbranch_scc1 L_init2\nL_init2d:')
    g.cold.append(f'L_init2:\nv_mov_b32 v44, 0\nv_mov_b32 v45, 1\ns_mov_b64 exec, 1\nbuffer_store_dword v45, v44, {srd(sDBG)}, 0 offen sc1\ns_mov_b64 exec, -1\ns_branch L_init2d')
    CH=[int(x) for x in opt['ch'][1:]]; OUTO=26
    def chores(bi):
        if bi==CH[0]:
            e(f's_lshl_b32 s{T0}, s{DQ}, 6\nv_add_u32 v6, s{T0}, v4\nv_lshlrev_b32 v6, 10, v6\nv_lshl_add_u32 v{DC}, v7, 4, v6\nv_lshl_add_u32 v{DC+1}, v8, 4, v6')
            e(traddr(0,6)+[f'v_add_u32 v{PTX}, s{XR}, v0',f'v_add_u32 v{PTX+1}, s{XR}, v6',f'v_add_u32 v{PTW}, s{WQ}, v0',f'v_add_u32 v{PTW+1}, s{WQ}, v6'])
        if bi==CH[1]:
            e(f'''s_lshl_b32 s{T0}, s{RB2}, 2
s_add_u32 s{T2}, s{T0}, s{TQ2}
s_and_b32 s{T1}, s{TQ}, 1
s_lshl_b32 s{T1}, s{T1}, 5
s_and_b32 s{T0}, s{TQ}, 2
s_lshl_b32 s{T0}, s{T0}, 1
s_add_u32 s{T1}, s{T0}, s{T1}
s_lshl_b32 s{T0}, s{T2}, 6
s_add_u32 s{WI}, s{T0}, s{T1}
v_lshrrev_b32 v0, 5, v1
v_lshl_add_u32 v{OUTO}, v0, 4, s{WI}
v_and_b32 v6, 3, v4
v_add_u32 v6, v6, v{OUTO}
v_lshlrev_b32 v9, 4, v5
v_lshl_add_u32 v6, v6, 10, v9
s_lshl_b32 s{T1}, s{T1}, 2
s_add_u32 s{T1}, s{T1}, s{V14}
v_lshl_add_u32 v43, v0, 6, s{T1}
v_bfe_u32 v31, v1, 2, 2
v_lshl_add_u32 v31, v0, 2, v31
v_lshlrev_b32 v31, 7, v31
v_and_b32 v0, 3, v1
v_lshl_add_u32 v31, v0, 3, v31
v_and_b32 v0, 16, v1
v_lshl_add_u32 v31, v0, 1, v31
v_add_u32 v31, s{V14}, v31
s_lshl_b32 s{T1}, s{DQ}, 7
v_and_b32 v9, 31, v1
v_lshl_add_u32 v9, v9, 1, s{T1}
v_lshlrev_b32 v0, 1, v9
v_lshl_add_u32 v{OUTO}, v{OUTO}, 11, v0''')
        if bi==CH[2]:
            e(f'v_and_b32 v42, 12, v1\nv_lshlrev_b32 v42, 2, v42\nv_and_or_b32 v42, v1, 3, v42\nv_lshrrev_b32 v0, 4, v1\nv_lshl_add_u32 v42, v0, 2, v42\nv_lshlrev_b32 v42, 4, v42')
            e(f'v_and_b32 v0, 3, v1\nv_and_b32 v44, 48, v1\nv_lshl_add_u32 v44, v0, 6, v44\ns_lshl_b32 s{T1}, s{TQ}, 8\ns_add_u32 s{T1}, s{T1}, {SP}\nv_add_u32 v44, s{T1}, v44')
    D=slab(2); D,left=left+D[:MM[1]],D[MM[1]:]; mark=len(g.L)
    chores(0)
    e(ssum(0)); weave(mark,D,opt.get('n2',2),opt.get('n2l',3))
    e(f's_waitcnt vmcnt({MM[1]})\ns_barrier'); g.stamp('B1')
    def vchk(lbl,ld,n):
        e(f's_waitcnt vmcnt({n})\nv_cmp_gt_u32 vcc, s{TH}, v2\ns_cmp_eq_u64 vcc, 0\ns_cbranch_scc0 {lbl}\n{lbl}ok:')
        g.cold.append(f'''{lbl}:
s_mov_b32 s{SPIN}, 0
{lbl}1:
s_sleep 8
{ld}
s_add_u32 s{SPIN}, s{SPIN}, 1
s_cmp_gt_u32 s{SPIN}, 100000
s_cbranch_scc1 {lbl}ok
s_waitcnt vmcnt(0)
v_cmp_gt_u32 vcc, s{TH}, v2
s_cmp_eq_u64 vcc, 0
s_cbranch_scc0 {lbl}1
s_branch {lbl}ok''')
    gold=f'buffer_load_dword v2, v3, {srd(sDBG)}, s{W0} offen sc1'
    arld=f'buffer_load_dword v2, v3, {srd(sWS)}, s{W0} offen sc1'
    W2PF=f'''s_cmp_eq_u32 s{TQ}, 0
s_cselect_b32 s{sOUT}, s{sCR}, s{sCI}
s_cselect_b32 s{sOUT+1}, s{sCR+1}, s{sCI+1}
s_and_b32 s{T2}, s2, -2
s_lshl_b32 s{T1}, s{T2}, 11
s_mul_i32 s{T2}, s{T2}, {43*128}
s_cmp_ge_u32 s{TQ}, 2
s_cselect_b32 s{sOUT}, s{sDN}, s{sOUT}
s_cselect_b32 s{sOUT+1}, s{sDN+1}, s{sOUT+1}
s_cselect_b32 s{T1}, s{T2}, s{T1}
s_cselect_b32 s{T2}, 42, 31
v_min_u32 v10, s{T2}, v1
s_cmp_eq_u32 s{TQ}, 3
s_cselect_b32 s{T2}, {43*128}, 0
s_add_u32 s{T1}, s{T1}, s{T2}
v_lshlrev_b32 v10, 7, v10
s_bitcmp1_b32 s2, 0
s_cselect_b32 s{T1}, {BIG}, s{T1}
buffer_load_dword v11, v10, {srd(sOUT)}, s{T1} offen
s_mov_b32 s{sOUT}, s62
s_mov_b32 s{sOUT+1}, s63'''
    if opt.get('pe',1)==0:
        W2PF=W2PF.replace('s2, -2','s2, -1').replace(', 42, 31',', 21, 15').replace(f'{43*128}, 0',f'{21*128}, 0').replace(f's_bitcmp1_b32 s2, 0\ns_cselect_b32 s{T1}, {BIG}, s{T1}\n','')
    PM=opt.get('pm',0)
    if PM:
        k_=PM
        W2PF=f'''s_cmp_eq_u32 s{TQ}, 0
s_cselect_b32 s{sOUT}, s{sCR}, s{sCI}
s_cselect_b32 s{sOUT+1}, s{sCR+1}, s{sCI+1}
s_and_b32 s{T2}, s2, {-k_}
s_lshl_b32 s{T1}, s{T2}, 11
s_lshr_b32 s{SPIN}, s{T2}, 6
s_mul_i32 s{SPIN}, s{SPIN}, {22*16}
s_min_u32 s{SPIN}, s{SPIN}, {64*16}
s_and_b32 s{T2}, s{T2}, 63
s_add_u32 s{T2}, s{T2}, s{SPIN}
s_add_u32 s{T2}, s{T2}, {18*16}
s_lshl_b32 s{T2}, s{T2}, 10
s_cmp_ge_u32 s{TQ}, 2
s_cselect_b32 s{sOUT}, s{sDN}, s{sOUT}
s_cselect_b32 s{sOUT+1}, s{sDN+1}, s{sOUT+1}
s_cselect_b32 s{T1}, s{T2}, s{T1}
s_cselect_b32 s{T2}, {8*k_-1}, {16*k_-1}
v_min_u32 v10, s{T2}, v1
s_cmp_eq_u32 s{TQ}, 3
s_cselect_b32 s{T1}, {BIG}, s{T1}
v_lshlrev_b32 v10, 7, v10
{"s_bitcmp1_b32 s2, 0" if PM==2 else ""}
{"s_cselect_b32 s%d, %s, s%d"%(T1,BIG,T1) if PM==2 else ""}
buffer_load_dword v11, v10, {srd(sOUT)}, s{T1} offen
s_mov_b32 s{sOUT}, s62
s_mov_b32 s{sOUT+1}, s63'''
    XP=32; RB_=192 if opt.get('bb',0)==0 else ACC0+4; DS=40; OUTO=26
    def vread(vs, base):
        st=vs%3; L=[]
        for k in range(4): L+=trstep(base+8*k,PTX,st*8192+k*2048)
        for k in range(2): L+=trstep(base+32+8*k,PTW,st*WSS+k*2048)
        return L
    carry=0
    for bi in range(1,7):
        pre=0; post=0; e(left); m_=MM[bi+1]
        if bi==1: e('v_mov_b32 v3, 0\n'+gold)
        if bi==2:
            e(f's_bfe_u32 s{T1}, s2, {(NL.bit_length()-1)*65536+3}\ns_lshl_b32 s{T1}, s{T1}, 7\ns_add_u32 s{W0}, s{W0}, {ARR}\ns_add_u32 s{T1}, s{T1}, s{W0}\ns_mul_i32 s{TH}, s{TH}, {256//NL}\nv_mov_b32 v2, 1\ns_mov_b64 exec, 1\nbuffer_atomic_add v2, v3, {srd(sWS)}, s{T1} offen sc1\ns_mov_b64 exec, -1'); pre+=1
        if bi==opt.get('xp',3):
            e(f's_mov_b32 m0, s{V14}\ns_lshl_b32 s{T1}, s{DQ}, 7\n{"s_mov_b32 s%d, %s"%(T1,BIG) if opt.get("noxt") else ""}\nbuffer_load_dwordx4 v6, {srd(sX)}, s{T1} offen lds\ns_add_u32 s{T1}, s{T1}, {8192-1024}\nbuffer_load_dwordx4 v6, {srd(sX)}, s{T1} offen offset:1024 lds'); pre+=2
        PP=opt.get('pp',0)
        arp=f'v_min_u32 v3, {NL-1}, v1\nv_lshlrev_b32 v3, 7, v3\n'+arld
        if bi==5 and PP==0: e(arp)
        if bi==5 and PP==9: e('v_mov_b32 v2, 64')
        if bi==6:
            e(f'''s_lshl_b32 s{T1}, s{HB}, 10
s_add_u32 s{T1}, s{T1}, {ST_M}
s_mov_b32 m0, s{V14}
s_lshl_b32 s{T2}, s{HB}, 9
buffer_load_dwordx4 v42, {srd(sWS)}, s{T1} offen sc1 lds
s_lshr_b32 s{T1}, s{WI}, 6
s_lshl_b32 s{T1}, s{T1}, 9
s_add_u32 s{T1}, s{T1}, {ST_R-1024}
s_mov_b32 exec_hi, 0
buffer_load_dwordx4 v15, {srd(sWS)}, s{T1} offen offset:1024 sc1 lds
s_lshl_b32 s{T1}, s{TQ}, 9
s_add_u32 m0, s{T1}, {RM}
s_add_u32 s{T2}, s{T2}, {ST_R}
buffer_load_dwordx4 v15, {srd(sWS)}, s{T2} offen sc1 lds
s_mov_b64 exec, -1''')
        if PF==bi and opt.get('pfp',0)==0: e(W2PF); pre+=1
        if opt.get('tw')==bi:
            e(f'v_min_u32 v10, 4, v1\nv_lshlrev_b32 v10, 21, v10\nbuffer_load_dword v45, v10, {srd(sWS)}, 0 offen\ns_mov_b64 exec, 1\nbuffer_load_dword v46, v{OUTO}, {srd(sOUT)}, 0 offen\ns_mov_b64 exec, -1'); pre+=2
        mark=len(g.L)
        if bi==3:
            e(f'''s_lshr_b32 s{T1}, s2, 7
s_lshl_b32 s{T1}, s{T1}, 2
s_add_u32 s{T1}, s{T1}, s{TQ2}
s_lshl_b32 s{T1}, s{T1}, 2
s_lshr_b32 s{T1}, 0x{r3t[::-1]}, s{T1}
s_and_b32 s{T1}, s{T1}, 3
s_mul_i32 s{T2}, s{T1}, {6*16384}
s_add_u32 s{FBR[0]}, s{FB}, s{T2}
s_add_u32 s{FBR[1]}, s{FBR[0]}, {6*16384}
s_cmp_eq_u32 s{T1}, 2
s_cselect_b32 s{FBR[1]}, s{FB}, s{FBR[1]}
s_add_u32 s{FBR[2]}, s{FBR[1]}, {6*16384}
s_cmp_eq_u32 s{T1}, 1
s_cselect_b32 s{FBR[2]}, s{FB}, s{FBR[2]}
{r4(T1)}
s_and_b32 s{T2}, s{T1}, 2
s_lshl_b32 s{T2}, s{T2}, 6
s_add_u32 s{CB}, s{CB}, s{T2}
s_xor_b32 s{CB2}, s{CB}, 128
s_bitcmp1_b32 s{T1}, 0
s_cselect_b32 s{T1}, s{sCI}, s{sCR}
s_cselect_b32 s{T2}, s{sCI+1}, s{sCR+1}
s_cselect_b32 s{sCI}, s{sCR}, s{sCI}
s_cselect_b32 s{sCI+1}, s{sCR+1}, s{sCI+1}
s_mov_b32 s{sCR}, s{T1}
s_mov_b32 s{sCR+1}, s{T2}''')
        chores(bi)
        if bi==CH[3]: e([f'v_mov_b32 v{ACC0+16*tl+k}, 0' for tl in range(4) for k in range(4,16)])
        if bi==opt.get('xq',5): e([f'ds_read_b64_tr_b16 {v(XP+2*tl,2)}, v31 offset:{(tl>>1)*1024+(tl&1)*64}' for tl in range(4)])
        e(ssum(bi))
        D=slab(bi+2) if bi<6 else vfull(8); left=D[m_:]
        weave(mark,D[:m_],opt.get('wf',2),opt.get('wl',3))
        if PF==bi and opt.get('pfp',0)==1: e(W2PF); post+=1
        if bi==4 and PP==1: e(arp); post+=1
        g.stamp(f'p{bi+1}')
        if bi==1: vchk('L_go',gold,m_+pre+post)
        elif bi==5: vchk('L_poll',arld,m_+post+(1 if PF==5 and not post else 0))
        n=m_+post+((1 if PF==bi and not post else 0) if bi in (5,6) else pre)
        e(f's_waitcnt vmcnt({n}) lgkmcnt(0)\ns_barrier'); g.stamp(f'B{bi+1}')
        carry=post
    RQ=(lambda mh: RB_+8*mh) if opt.get('bb',0)==0 else (lambda mh: [4,16][mh])
    BB=[f'v_lshlrev_b32 v{DS}, 16, v{DS}',f'v_lshlrev_b32 v{DS+1}, 16, v{DS+1}']
    for mh in range(2):
        for dh in range(2):
            for i in range(4):
                a=TILE(mh,dh)+i; xr=XP+2*(2*mh+dh)+(i>>1)
                BB+=[f'v_lshlrev_b32 v{a}, 16, v{xr}' if i%2==0 else f'v_and_b32 v{a}, 0xffff0000, v{xr}',f'v_fma_f32 v0, v{a}, v{RQ(mh)+i}, v{RQ(mh)+4+i}',f'v_fmac_f32 v{a}, v0, v{DS+dh}']
    BP=opt.get('bp',1)
    V9=left+vfull(9); n9=opt.get('n9',12); WW=opt.get('ww',1)
    n0=opt.get('n0',2); e(V9[:n0]); V9=V9[n0:]; n9-=n0
    mark=len(g.L)
    e([f'ds_read_b128 {v(RQ(mh)+4*k,4)}, v43 offset:{1024+32*mh+256*k}' for mh in range(2) for k in range(2)])
    e(ssum(7))
    swr=f's_mov_b32 exec_lo, 0x000f000f\ns_mov_b32 exec_hi, 0x000f000f\nds_write_b128 v44, {v(SACC,4)}\ns_mov_b64 exec, -1'
    if WW==1: e(BB if BP==1 else ''); e(f's_waitcnt vmcnt({opt.get("wv",0)})'); e(swr); e('s_waitcnt lgkmcnt(0)' if opt.get('wl2',0) else ''); e(mix(BB,V9[:n9],5) if BP==2 else V9[:n9])
    if WW==0: e(swr); e(V9[:n9])
    if WW==2: weave(mark,V9[:n9],1,1); e(swr)
    if WW==3: weave(mark,V9[:n9],1,1); e('s_waitcnt vmcnt(0)'); e(swr)
    g.stamp('p8')
    e('s_waitcnt lgkmcnt(0)\ns_setprio 0\ns_barrier'); g.stamp('B8')
    wstart=len(g.L)
    if BP==3: e('s_setprio 1')
    e(mix(BB,V9[n9:],6) if BP in (0,3) else V9[n9:])
    if BP==3: e('s_setprio 0')
    g.stamp('c9')
    e('s_waitcnt vmcnt(12)')
    e(mix(vread(8,B1),vfull(10),2))
    g.stamp('c10')
    e('s_waitcnt vmcnt(12) lgkmcnt(0)')
    e(mix(vread(9,B2),vfull(11),2))
    g.stamp('c11')
    e('s_waitcnt vmcnt(12) lgkmcnt(0)')
    e(mix(vread(10,B3),vfull(12),2))
    g.stamp('c12')
    e(p2base(1))
    e(f's_lshl_b32 s{T1}, s{TQ}, 7\nv_xor_b32 v11, s{T1}, v15\nv_mov_b32 v10, v{OUTO}\ns_lshl_b32 s{T1}, s{TQ}, 2\ns_add_u32 s{T1}, s{T1}, {ZF}\nv_mov_b32 v2, s{T1}\nv_mov_b32 v3, 1')
    ap=opt.get('ap',4); V=vfull(13)
    e('s_waitcnt lgkmcnt(0)'); e(V[:12-ap]); e(sld if ap else ''); e(V[12-ap:])
    if opt.setdefault('th',8):
        W=g.L[wstart:]; del g.L[wstart:]; c=0
        for l_ in W:
            if ' lds' in l_:
                c+=1
                if opt.get('th0',16)<c<=opt.get('th1',99): e(f's_waitcnt vmcnt({opt["th"]})')
            e(l_)
    g.stamp('chores')
    assert not opt.get('bb',0)
    e(spoll('L_fp1',6,opt.get('slp1',2),not ap))
    g.stamp('go')
    e('s_setprio 1')
    loads=[(FBR[s_//6],(s_%6)*1024+mh*HSTR) for s_ in range(18) for mh in range(2)]
    groups=[[(TILE(mh,dh),2*s_+mh,B1+8*s_+4*dh,False) for mh in range(2) for dh in range(2)] for s_ in range(18)]
    run_groups(groups,loads,[16+4*k for k in range(8)]+[4],11,{ZE:(['s_barrier',g.st('Z1')],[])},['s_waitcnt vmcnt(9)','ds_write_b32 v2, v3'],{s_:[B1+8*s_,B1+8*s_+4] for s_ in range(18)},opt.get('dp1',14))
    g.stamp('ph1')
    e('s_setprio 0')
    XS=112
    for j in range(1,4):
        e(f's_xor_b32 s{T1}, s{TQ}, {j}\ns_mul_i32 s{T1}, s{T1}, {XW}\ns_add_u32 s{T1}, s{T1}, {(j-1)*4096}\nv_add_u32 v{3+j}, s{T1}, v15')
    e(f'v_add_u32 v7, s{XR}, v15\nv_add_u32 v8, s{WQ}, v15')
    for j in range(1,4):
        for tl in range(4): e(f'ds_write_b128 v{3+j}, {v(ACC0+16*tl+4*j,4)} offset:{tl*1024}')
    e('s_waitcnt lgkmcnt(0)\ns_barrier'); g.stamp('Z2')
    def addq(a,srcs,pk):
        for q_ in srcs:
            if pk:
                for j in range(2): e(f'v_pk_add_f32 {v(a+2*j,2)}, {v(a+2*j,2)}, {v(q_+2*j,2)}')
            else:
                for j in range(4): e(f'v_add_f32 v{a+j}, v{a+j}, v{q_+j}')
    def outst(mh,dh):
        for i in range(4):
            if i%2==0: e(f's_mov_b32 s{T0}, {mh*16384+i*2048}')
            e(f'buffer_store_dword v{TILE(mh,dh)+i}, v10, {srd(sOUT)}, s{T0} offen offset:{dh*128+(i&1)*2048} sc1')
    for tl in range(4):
        for j in range(3): e(f'ds_read_b128 {v(XS+12*tl+4*j,4)}, v7 offset:{j*4096+tl*1024}')
    for tl in range(4):
        e(f's_waitcnt lgkmcnt({9-3*tl})')
        addq(ACC0+16*tl,[XS+12*tl+4*k for k in range(3)],False)
    e('s_barrier'); g.stamp('Z23')
    e('s_setprio 1')
    for dh in range(2):
        for k in range(4): e(f'ds_read_b128 {v(XS+16*dh+4*k,4)}, v7 offset:{16384+k*2048+dh*1024}')
    for dh in range(2):
        e(f's_waitcnt lgkmcnt({4-4*dh})')
        addq(TILE(0,dh),[XS+16*dh+4*k for k in range(4)],False); outst(0,dh)
    for dh in range(2):
        e('s_barrier')
        if dh: g.stamp('p2end')
        for k in range(4): e(f'ds_read_b128 {v(XS+16*dh+4*k,4)}, v8 offset:{dh*WSS+k*1024}')
        for k in range(0,4,2):
            e(f's_waitcnt lgkmcnt({2-k})'); addq(TILE(1,dh),[XS+16*dh+4*k,XS+16*dh+4*k+4],True)
        outst(1,dh)
    e('s_branch L_fin' if opt.get('stamps') else 's_endpgm')
    e(g.cold); g.cold=[]

    SL=16; XA=22; SA=24; TA=26; GA=27; SPA=28; RA=29; SSA=30; SS=12
    L64,WG,WH,L32,WSEL,KAP,CP,EA,NI=32,34,36,38,40,42,44,46,47
    PR=80; PI=96; FA=112; XB=208; WR=240
    RS=XB; GC=XB+16; MR=WR
    if 'pc' in opt: e(f'.p2align 12\n.fill {opt["pc"]//4}, 4, 0xbf800000')
    e('L_comp:')
    if not opt.get('nb',1): e(NEAR)
    R0=112
    r=lambda k: R0+k
    def allred(a,t):
        for k in (8,4,2,1): e(f'v_add_f32_dpp {v(a)}, {v(a)}, {v(a)} row_ror:{k} row_mask:0xf bank_mask:0xf')
        e(f'v_mov_b32 {v(t)}, {v(a)}\nv_permlane16_swap_b32 {v(t)}, {v(a)}\nv_add_f32 {v(a)}, {v(a)}, {v(t)}')
    m_,sd,A_,B_,R_,NM,MR_,ad,dt,tp=r(24),r(26),r(8),r(9),r(10),r(11),r(13),r(28),r(29),r(30)
    e(fsplit(CT,FS,FCNT,T0))
    common(0)
    e(f'''s_lshl_b32 s{T0}, s{CT}, 12
s_add_u32 s{T0}, s{T0}, {EOFF}
s_add_u32 s{sE}, s66, s{T0}
s_addc_u32 s{sE+1}, s67, 0
s_mov_b32 s{sE+2}, 4096
s_mov_b32 s{sE+3}, 0x20000
v_add_u32 v{XA}, s{XR}, v6
v_xor_b32 v{XA+1}, 64, v{XA}
v_add_u32 v{SA}, {WB}, v6
v_xor_b32 v{SA+1}, 64, v{SA}
v_add_u32 v{TA}, {WB+GOFF}, v10
v_lshl_add_u32 v{GA}, v2, 4, s{V14}
v_and_b32 v{SPA}, 48, v1
s_lshl_b32 s{T0}, s{TQ}, 9
s_add_u32 s{T0}, s{T0}, {RM}
v_lshl_add_u32 v{RA}, v{SPA}, 2, s{T0}
v_add_u32 v{SPA}, {SP}, v{SPA}
v_lshlrev_b32 v{SSA}, 2, v2
v_add_u32 v{SSA}, {SP}, v{SSA}
v_lshlrev_b32 v{EA}, 4, v2
v_and_b32 v0, 1, v1
v_lshlrev_b32 v0, 4, v0
v_mov_b32 v6, 0x3f80
v_lshlrev_b32 v0, v0, v6
v_bfe_u32 v6, v1, 2, 2
v_cmp_eq_u32 vcc, v6, v3
v_and_b32 v6, 2, v1
v_mov_b32 v{SL}, 0
v_cndmask_b32 v0, 0, v0, vcc
v_cmp_eq_u32 vcc, 0, v6
v_mov_b32 v{SL+1}, 0
v_mov_b32 v{SL+4}, 0
v_cndmask_b32 v{SL+2}, 0, v0, vcc
v_cndmask_b32 v{SL+3}, v0, 0, vcc
v_mov_b32 v{SL+5}, 0
''')
    e(f'''; lanes (l&31): 0..3 quad (A,B,R,-m), 4 r, 5 -m*r, 6 counter clear, 16..31 carry sentinel
v_and_b32 v6, 31, v1
v_lshrrev_b32 v7, 5, v1
s_sub_u32 s{T1}, 31, s{HB}
s_and_b32 s{T2}, s{T1}, 1
s_lshr_b32 s{T1}, s{T1}, 1
s_lshl_b32 s{T1}, s{T1}, 5
s_add_u32 s{T1}, s{T1}, s{T2}
s_lshl_b32 s{SOW}, s{T1}, 3
s_lshl_b32 s{T1}, s{CT}, 12
s_add_u32 s{T1}, s{T1}, s{SOW}
s_add_u32 s{T1}, s{T1}, {EOFF-256}
v_lshl_add_u32 v{ad}, v6, 2, v7
v_lshl_add_u32 v{ad}, v{ad}, 2, s{T1}
v_mov_b32 v{dt}, -1
s_and_b32 s{T1}, s{CT}, 7
s_cselect_b32 s{T1}, {BIG}, s{HA}
v_cmp_gt_u32 vcc, 7, v6
v_lshl_add_u32 v{tp}, v7, 7, s{T1}
s_lshr_b32 s{T1}, s{WI}, 5
v_cndmask_b32 v{ad}, v{ad}, v{tp}, vcc
v_cndmask_b32 v{dt}, v{dt}, 0, vcc
s_lshl_b32 s{T1}, s{T1}, 9
s_and_b32 s{T2}, s{WI}, 31
s_lshl_b32 s{T2}, s{T2}, 3
s_add_u32 s{T1}, s{T1}, s{T2}
s_add_u32 s{T1}, s{T1}, {ST_R-1024}
v_cmp_gt_u32 vcc, 6, v6
v_lshl_add_u32 v{tp}, v6, 6, v7
v_lshl_add_u32 v{tp}, v{tp}, 2, s{T1}
v_cndmask_b32 v{ad}, v{ad}, v{tp}, vcc
s_lshl_b32 s{T1}, s{WI}, 5
s_add_u32 s{T1}, s{T1}, {ST_M}
v_cmp_gt_u32 vcc, 4, v6
v_lshl_add_u32 v{tp}, v7, 2, v6
v_lshl_add_u32 v{tp}, v{tp}, 2, s{T1}
v_cndmask_b32 v{ad}, v{ad}, v{tp}, vcc''')
    e(f'''s_mul_i32 s{HB}, s{HB}, {2*HSTR}''')
    if opt.get('nost'): e(f's_mov_b32 s{HB}, {BIG}')
    FO=[ROT,WSTEP,XL]
    for sb in range(3): e(f's_add_u32 s{T2}, s{FS}, {sb}\ns_lshl_b32 s{T2}, s{T2}, 10\ns_add_u32 s{T2}, s{T2}, s{HB}\ns_cmp_gt_u32 s{FCNT}, {sb}\ns_cselect_b32 s{FO[sb]}, s{T2}, {BIG}')
    e(f's_and_b32 s{T0}, s{CT}, 7\ns_cmp_lt_u32 s{T0}, 6\ns_cselect_b32 s{WL}, s{HA}, {BIG}\ns_add_u32 s{HA}, s{HA}, 128\ns_add_u32 s{SOX}, s{CT}, 86\ns_lshl_b32 s{SOX}, s{SOX}, 10\ns_add_u32 s{SOX}, s{SOX}, s{HB}')
    if opt.get('stamps'): e(mksrd(sX,36,37,2097152))
    zstamps()
    e(f'''s_waitcnt vmcnt(2)
v_lshlrev_b32 v244, 16, v244
v_lshlrev_b32 v245, 16, v245
v_lshlrev_b32 v246, 16, v246
v_mul_f32 v246, {F(LOG2E)}, v246
v_exp_f32 v246, v246
v_cvt_pk_bf16_f32 v246, v246, v246
v_lshlrev_b32 v246, 16, v246
v_mul_f32 v247, v246, v244
v_mul_f32 v248, v246, v245
v_mul_f32 v247, {F(LOG2E)}, v247
v_mul_f32 v248, 0.15915494, v248''')
    def cpow(dr,di,n):
        e([f'v_mul_f32 v249, {n}, v247',f'v_mul_f32 v250, {n}, v248','v_rndne_f32 v251, v250','v_exp_f32 v249, v249','v_sub_f32 v250, v250, v251','v_cos_f32 v251, v250','v_sin_f32 v250, v250',f'v_mul_f32 {v(dr)}, v249, v251',f'v_mul_f32 {v(di)}, v249, v250'])
    cpow(PR,PI,'1.0')
    for j in range(1,16):
        a=(j-1)//2; b=j-1-a
        e([f'v_mul_f32 {v(PR+j)}, {v(PR+a)}, {v(PR+b)}',f'v_mul_f32 {v(PI+j)}, {v(PR+a)}, {v(PI+b)}',f'v_fma_f32 {v(PR+j)}, -{v(PI+a)}, {v(PI+b)}, {v(PR+j)}',f'v_fmac_f32 {v(PI+j)}, {v(PI+a)}, {v(PR+b)}'])
    cpow(L32,L32+1,F(32.0)); cpow(L64,L64+1,F(64.0))
    e(['v_and_b32 v252, 16, v1','v_cvt_f32_u32 v252, v252']); cpow(WSEL,WSEL+1,'v252')
    e(['v_and_b32 v252, 48, v1','v_cvt_f32_u32 v252, v252']); cpow(WG,WG+1,'v252')
    e(f's_bitcmp1_b32 s{TQ}, 0\ns_cselect_b32 s{T0}, {F(-64.0)}, 0\nv_mul_f32 v252, {F(32.0)}, v252\nv_add_f32 v252, s{T0}, v252\nv_max_f32 v252, 0, v252'); cpow(254,255,'v252')
    e(['v_mul_f32 v249, v244, v244','v_fmac_f32 v249, v245, v245','v_rcp_f32 v249, v249',f'v_add_f32 v250, -1.0, v{PR}',f'v_mul_f32 v{KAP}, v250, v244',f'v_fmac_f32 v{KAP}, v{PI}, v245',
        f'v_mul_f32 v{KAP+1}, v{PI}, v244',f'v_fma_f32 v{KAP+1}, -v250, v245, v{KAP+1}','v_add_f32 v249, v249, v249',f'v_mul_f32 v{KAP}, v249, v{KAP}',f'v_mul_f32 v{KAP+1}, v249, v{KAP+1}'])
    e(cmul(WH,KAP,254)); e(f'v_sub_f32 v{NI}, 0, v{PI}')
    g.stamp('lam')
    e('s_waitcnt vmcnt(0)')
    for i in range(8): e(f'v_lshlrev_b32 v{r(8+2*i)}, 16, v{r(i)}\nv_and_b32 v{r(9+2*i)}, 0xffff0000, v{r(i)}')
    e(f'v_pk_add_f32 {v(r(24),2)}, {v(r(8),2)}, {v(r(10),2)}')
    for i in range(2,8): e(f'v_pk_add_f32 {v(r(24),2)}, {v(r(24),2)}, {v(r(8+2*i),2)}')
    e(f'v_add_f32 v{r(24)}, v{r(24)}, v{r(25)}')
    allred(r(24),r(25))
    e(f'v_mul_f32 v{r(24)}, {F(1/512)}, v{r(24)}')
    for i in range(8): e(f'v_pk_add_f32 {v(r(8+2*i),2)}, {v(r(8+2*i),2)}, {v(r(24),2)} op_sel_hi:[1,0] neg_lo:[0,1] neg_hi:[0,1]')
    e(f'v_pk_mul_f32 {v(r(26),2)}, {v(r(8),2)}, {v(r(8),2)}')
    for i in range(1,8): e(f'v_pk_fma_f32 {v(r(26),2)}, {v(r(8+2*i),2)}, {v(r(8+2*i),2)}, {v(r(26),2)}')
    e(f'v_add_f32 v{r(26)}, v{r(26)}, v{r(27)}')
    allred(r(26),r(27))
    e(f'''v_mul_f32 v{sd}, {F(1/512)}, v{sd}
v_cvt_pk_bf16_f32 v{m_}, v{m_}, v{sd}
v_and_b32 v{sd}, 0xffff0000, v{m_}
v_lshlrev_b32 v{m_}, 16, v{m_}
v_add_f32 v{sd}, {F(1e-5)}, v{sd}
v_cvt_pk_bf16_f32 v{sd}, v{sd}, v{sd}
v_lshlrev_b32 v{sd}, 16, v{sd}
v_sqrt_f32 v{sd}, v{sd}
v_sub_f32 v{NM}, 0, v{m_}
v_cvt_pk_bf16_f32 v{sd}, v{sd}, v{sd}
v_lshlrev_b32 v{sd}, 16, v{sd}          ; sd
v_mul_f32 v{R_}, v{sd}, v{sd}
v_rcp_f32 v{sd}, v{sd}                  ; r
s_mov_b32 s{T0}, 8
s_mov_b32 s{T0+1}, 8
v_mul_f32 v{A_}, {F(-2*math.sqrt(2/math.pi)*LOG2E)}, v{sd}
v_mul_f32 v{B_}, v{sd}, v{sd}
v_mul_f32 v{MR_}, v{NM}, v{sd}
v_mul_f32 v{B_}, {F(0.044715)}, v{B_}
v_cndmask_b32 v{dt}, v{dt}, v{NM}, s[{T0}:{T0+1}]
v_mul_f32 v{B_}, v{B_}, v{A_}''')
    for bit,src in ((32,MR_),(16,sd),(4,R_),(2,B_),(1,A_)): e(f's_mov_b32 vcc_lo, {bit}\ns_mov_b32 vcc_hi, {bit}\nv_cndmask_b32 v{dt}, v{dt}, v{src}, vcc')
    e(f's_mov_b32 exec_lo, 0xffff007f\ns_mov_b32 exec_hi, 0xffff007f\nbuffer_store_dword v{dt}, v{ad}, {srd(sWS)}, 0 offen sc1\ns_mov_b64 exec, -1')
    g.stamp('st')
    if opt.get('ic'):
        e(f's_sub_u32 s{SPIN}, s{TQ}, 4\ns_mov_b64 exec, 0\nL_ret:\ns_add_u32 s{SPIN}, s{SPIN}, 4')
        for k in range(8): e(f's_cmp_eq_u32 s{SPIN}, {k}\ns_cbranch_scc1 L_pad{k}')
        e('s_mov_b64 exec, -1')
        g.stamp('icd')
    e(f's_setprio {opt.get("cprio",0)}\ns_barrier'); g.stamp('B0')
    X=lambda b,t4: XB+16*b+4*t4
    Wq=lambda q: WR+4*(q%4)
    def wr(q):
        n,k=divmod(q,8); i,u=divmod(n,2); st=i%3
        if k<2: return [f'ds_read_b128 {v(Wq(q),4)}, v{SA+u} offset:{st*WSS+k*2048}']
        sb,up=divmod(k-2,2)
        return [f'ds_read_b64_tr_b16 {v(Wq(q)+2*j,2)}, v{TA} offset:{st*WSS+(32*u+8*j)*96+32*sb+up*(UOFF-GOFF)}' for j in range(2)]
    def xr(n,t4):
        i,u=divmod(n,2)
        return f'ds_read_b128 {v(X(n&1,t4),4)}, v{XA+u} offset:{(i%3)*8192+t4*2048}'
    ops=[]
    def issue(x,tag): e(x); ops.append(tag)
    issue(wr(0)[0],('w',0))
    for t4 in range(4): issue(xr(0,t4),('x',0))
    for q in (1,2):
        for x in wr(q): issue(x,('w',q))
    for q in range(128):
        n,k=divmod(q,8); nxt=q+3
        need=[('w',q)]+([('x',n)] if k==0 else [])
        last=max(i for i,o in enumerate(ops) if o in need)
        if nxt%16==0:
            g.stamp(f'p{nxt//16}')
            e(('s_waitcnt vmcnt(0) lgkmcnt(0)' if nxt==32 else 's_waitcnt lgkmcnt(0)')+'\ns_barrier'); g.stamp(f'B{nxt//16}')
        elif q<125: e(f's_waitcnt lgkmcnt({len(ops)-1-last})')
        R=[(x,('w',nxt)) for x in wr(nxt)] if nxt<128 else []
        if n<15 and k in (5,6): R+=[(xr(n+1,t4),('x',n+1)) for t4 in (2*(k-5),2*(k-5)+1)]
        if q in (121,122): R+=[(f'ds_read_b128 {v(RS+4*j,4)}, v{RA} offset:{16*j}',('r',0)) for j in (2*(q-121),2*(q-121)+1)]
        if q==125: R+=[(f'ds_read_b32 v{SS+j}, v{SSA} offset:{64*j}',('r',0)) for j in range(2)] if SC_ else [(f'ds_read_b32 v{4+j}, v{SSA} offset:{256*j}',('r',0)) for j in range(4)]
        if q==126: R+=[(f'ds_read_b128 {v(MR+4*j,4)}, v{RA} offset:{256+16*j}',('r',0)) for j in (0,1)]
        if q==127: R+=[('',None),(f'ds_read_b128 {v(MR+8,4)}, v{RA} offset:{256+32}',('r',0))]
        for t4 in range(4):
            a=(ACC0+16*k if k<2 else FA+16*(k-2))+4*t4; c='0' if n==0 else v(a,4)
            xo,wo=v(X(n&1,t4),4),v(Wq(q),4)
            e(f'v_mfma_f32_16x16x32_bf16 {v(a,4)}, {xo if k<2 else wo}, {wo if k<2 else xo}, {c}')
            if R:
                x,tg=R.pop(0)
                if tg: issue(x,tg)
        assert not R
    g.stamp('loopend')
    Xr=ACC0; Yr=ACC0+16; Z,T,P,Q=4,6,8,10
    if not SC_: e(f's_waitcnt lgkmcnt(3)\nv_add_f32 v{SS}, v4, v6\nv_add_f32 v{SS+1}, v5, v7')
    else: e('s_nop 1')
    e(f'ds_read_b128 {v(MR+12,4)}, v{RA} offset:{256+48}')
    for i in range(8): e(f'v_pk_mul_f32 {v(Xr+2*i,2)}, {v(Xr+2*i,2)}, {v(RS+2*i,2)}\nv_pk_mul_f32 {v(Yr+2*i,2)}, {v(Yr+2*i,2)}, {v(RS+2*i,2)}')
    e('s_waitcnt lgkmcnt(0)')
    for i in range(8):
        xx=v(Xr+2*i,2); yy=v(Yr+2*i,2)
        e(f'v_pk_fma_f32 {xx}, {v(MR+2*i,2)}, {v(SS,2)}, {xx} op_sel_hi:[1,0,1]\nv_pk_fma_f32 {yy}, {v(MR+2*i,2)}, {v(SS,2)}, {yy} op_sel:[0,1,0] op_sel_hi:[1,1,1]')
    SG=[RS,MR,RS]; SGT=RS+8; TMP=MR+8
    if SC_: SG=[RS,RS+8,MR]
    def sread(sb):
        if SC_: return [f'ds_read_b128 {v(SG[s_]+4*p_,4)}, v{SPA} offset:{256*(1+s_)+64*p_}' for s_ in range(3) for p_ in range(2)] if sb==0 else []
        return [f'ds_read_b128 {v((SG[sb],SGT)[q_>>1]+4*(q_&1),4)}, v{SPA} offset:{256*q_+64*(1+sb)}' for q_ in range(4)]
    def sadd(sb):
        if SC_: return ['s_waitcnt lgkmcnt(0)'] if sb==0 else []
        return ['s_waitcnt lgkmcnt(0)']+[f'v_pk_add_f32 {v(SG[sb]+2*k,2)}, {v(SG[sb]+2*k,2)}, {v(SGT+2*k,2)}' for k in range(4)]
    SC=[]
    for j in range(1,16): SC+=[f'v_fmac_f32 v{Xr+j}, v{PR}, v{Xr+j-1}',f'v_fmac_f32 v{Yr+j}, v{PR}, v{Yr+j-1}',f'v_fmac_f32 v{Xr+j}, v{NI}, v{Yr+j-1}',f'v_fmac_f32 v{Yr+j}, v{PI}, v{Xr+j-1}']
    GF=opt.get('gf',0)
    rd=[f'ds_read_b128 {v(GC+4*k,4)}, v{GA} offset:{256*k}' for k in range(4)]+sread(0)
    if GF:
        e(mix(SC[:GF],rd,2)); SC=SC[GF:]; rd=['']*8
    mark=len(g.L)
    e(SC)
    g.stamp('a_scan')
    e(f'v_mov_b32 v{T}, v{Xr+15}\nv_mov_b32 v{T+1}, v{Yr+15}\nv_mov_b32 v{Z}, 0\nv_mov_b32 v{Z+1}, 0'); e(rd[:2])
    e(f'v_permlane16_swap_b32 v{Z}, v{T}\nv_permlane16_swap_b32 v{Z+1}, v{T+1}')
    e(cfma(P,(PR+15,PI+15),Z,(Xr+15,Yr+15)))
    e(f'v_mov_b32 v{Q}, v{P}\nv_mov_b32 v{Q+1}, v{P+1}\nv_mov_b32 v{T}, 0\nv_mov_b32 v{T+1}, 0\nv_permlane16_swap_b32 v{Q}, v{P}\nv_permlane16_swap_b32 v{Q+1}, v{P+1}'); e(rd[2:3])
    e(f'v_permlane32_swap_b32 v{T}, v{P}\nv_permlane32_swap_b32 v{T+1}, v{P+1}')
    e(cfma(P,L32,T,P))
    e(f'''v_min_u32 v{P}, -2, v{P}
v_min_u32 v{P+1}, -2, v{P+1}
s_mov_b32 exec_lo, 0
s_mov_b32 exec_hi, 0xffff0000
buffer_store_dwordx2 {v(P,2)}, v{EA}, {srd(sE)}, s{SOW} offen sc1
s_mov_b64 exec, -1''')
    g.stamp('b_pub')
    e(rd[3:])
    e(cfma(Z,WSEL,T,Z)+cmul(CP,KAP,Z))
    e(f'v_and_b32 v2, 48, v1\nv_lshl_add_u32 v{EA}, v2, 6, v{EA}\ns_add_u32 s{SOW}, s{SOW}, 248\ns_and_b32 s{SOW}, s{SOW}, 0xffffff00\nv_mov_b32 v2, 1\nv_mov_b32 v3, 0')
    if GF:
        SCAN=g.L[mark:]; del g.L[mark:]
    def gelu(sb, tb):
        acc=FA+32*sb; sg=SG[sb]; L=[]; t=TMP
        G_=lambda i: v(acc+8*tb+2*i,2); U_=lambda i: v(acc+16+8*tb+2*i,2); T_=lambda i: v(t+2*i,2)
        cp=lambda i: v(GC+4*(2*tb+(i>>1)),2); rp=lambda i: v(GC+4*(2*tb+(i>>1))+2,2); o=acc+16+8*tb
        for i in range(4): L.append(f'v_pk_fma_f32 {G_(i)}, {v(sg+2*(i&1),2)}, {rp(i)}, {G_(i)} op_sel:[0,1,0] op_sel_hi:[1,1,1]')
        for i in range(4): L.append(f'v_pk_mul_f32 {T_(i)}, {G_(i)}, {G_(i)}')
        for i in range(4): L.append(f'v_pk_fma_f32 {T_(i)}, {T_(i)}, {cp(i)}, {cp(i)} op_sel:[0,1,0] op_sel_hi:[1,1,0]')
        for i in range(4): L.append(f'v_pk_mul_f32 {T_(i)}, {T_(i)}, {G_(i)}')
        for i in range(8): L.append(f'v_exp_f32 {v(t+i)}, {v(t+i)}')
        for i in range(4): L.append(f'v_pk_fma_f32 {U_(i)}, {v(sg+4+2*(i&1),2)}, {rp(i)}, {U_(i)} op_sel:[0,1,0] op_sel_hi:[1,1,1]')
        for i in range(4): L.append(f'v_pk_fma_f32 {T_(i)}, {T_(i)}, {rp(i)}, {rp(i)} op_sel_hi:[1,0,0]')
        for i in range(8): L.append(f'v_rcp_f32 {v(t+i)}, {v(t+i)}')
        for i in range(4): L.append(f'v_pk_mul_f32 {G_(i)}, {G_(i)}, {U_(i)}')
        for i in range(4): L.append(f'v_pk_mul_f32 {G_(i)}, {G_(i)}, {T_(i)}')
        for i in (0,2,1,3): L.append(f'v_cvt_pk_bf16_f32 {v(o+i)}, {v(acc+8*tb+2*i)}, {v(acc+8*tb+2*i+1)}')
        L.append(f's_add_u32 s{T1}, s{FO[sb]}, {tb*HSTR}\nv_permlane16_swap_b32 v{o}, v{o+2}\nv_permlane16_swap_b32 v{o+1}, v{o+3}\nbuffer_store_dwordx4 {v(o,4)}, v15, {srd(sWS)}, s{T1} offen sc1')
        return L
    signal=lambda sr: f's_mov_b64 exec, 1\nbuffer_atomic_add v2, v3, {srd(sWS)}, s{sr} offen sc1\ns_mov_b64 exec, -1'
    ER=[FA+32+2*k for k in range(8)]
    eld='\n'.join(f'buffer_load_dwordx4 {v(ER[2*u_],4)}, v{EA}, {srd(sE)}, s{SOW} offen offset:{256*u_} sc1' for u_ in range(4))
    e(sadd(0)); g.stamp('t0'); e(gelu(0,0)[:-1]); g.stamp('t1'); e(gelu(0,0)[-1]); g.stamp('t2'); e(mix(gelu(0,1),sread(1),8)); g.stamp('t3'); e(sadd(1)); e(gelu(1,0)[:-1]); g.stamp('t4'); e(gelu(1,0)[-1]); g.stamp('t5'); e(mix(gelu(1,1),sread(2),8)); g.stamp('t6'); e(sadd(2)); e(eld if opt.get('eq',0)<0 else ''); e(gelu(2,0)); g.stamp('t7')
    EP=opt.get('ep',0); SP_=opt.get('sgp',2); EQ=opt.get('eq',0)
    L=gelu(2,1)
    if EP==0 and EQ>=0: L=mix(L,eld.split('\n'),EQ) if EQ else [eld]+L
    e(L)
    g.stamp('gdone')
    if GF:
        assert EP==1
        e(SCAN)
    elif EP==1: e(eld)
    kp=v(KAP,2)
    for i in range(8):
        xx=v(Xr+2*i,2); yy=v(Yr+2*i,2); tt=v(4+2*(i&1),2)
        e([f'v_pk_mul_f32 {tt}, {xx}, {kp} op_sel:[0,1] op_sel_hi:[1,1] neg_lo:[0,1] neg_hi:[0,1]',f'v_pk_mul_f32 {xx}, {xx}, {kp} op_sel_hi:[1,0]',
           f'v_pk_fma_f32 {xx}, {yy}, {kp}, {xx} op_sel:[0,1,0] op_sel_hi:[1,1,1] neg_lo:[0,1,0] neg_hi:[0,1,0]',f'v_pk_fma_f32 {yy}, {yy}, {kp}, {tt} op_sel_hi:[1,0,1] neg_lo:[0,1,0] neg_hi:[0,1,0]'])
    chk='\n'.join([f'v_max3_u32 v0, v{ER[0]}, v{ER[0]+1}, v{ER[1]}',f'v_max3_u32 v4, v{ER[1]+1}, v{ER[2]}, v{ER[2]+1}']+[f'v_max3_u32 v{(0,4)[u_&1]}, v{ER[u_]}, v{ER[u_]+1}, v{(0,4)[u_&1]}' for u_ in range(3,8)]+['v_max_u32 v0, v0, v4','v_cmp_eq_u32 vcc, -1, v0','s_cmp_eq_u64 vcc, 0'])
    if GF:
        e('s_waitcnt vmcnt(1)'); e(signal(WL)); g.stamp('flag0')
        e(f's_waitcnt vmcnt({opt.get("gw",1)})'); e(eld); e('s_waitcnt vmcnt(0)')
    elif EP==1:
        e('s_waitcnt vmcnt(4)'); e(signal(WL)); g.stamp('flag0')
    e(f's_waitcnt vmcnt({2 if EQ<0 else 1})\n{chk}\ns_cbranch_scc0 L_epoll\nL_eok:')
    pre='' if EP==1 else f's_waitcnt vmcnt(0)\n{signal(WL)}\ns_mov_b32 s{WL}, {BIG}'
    g.cold.append(f'''L_epoll:
{pre}
s_mov_b32 s{SPIN}, 0
L_epoll1:
s_sleep 4
{eld}
s_add_u32 s{SPIN}, s{SPIN}, 1
s_cmp_gt_u32 s{SPIN}, 100000
s_cbranch_scc1 L_eok
s_waitcnt vmcnt(0)
{chk}
s_cbranch_scc0 L_epoll1
s_branch L_eok''')
    g.stamp('Eok')
    e('s_setprio 2')
    for u_ in range(6,-1,-1): e(cfma(ER[u_],L64,ER[u_+1],ER[u_]))
    e(f's_bitcmp1_b32 s{TQ}, 0\ns_cselect_b32 vcc_lo, 0xffff, 0\ns_mov_b32 vcc_hi, 0\nv_cndmask_b32 v{ER[0]}, v{ER[0]}, v{ER[1]}, vcc\nv_cndmask_b32 v{ER[0]+1}, v{ER[0]+1}, v{ER[1]+1}, vcc')
    e(cmul(4,WH,ER[0]))
    for sw in ('16','32'):
        e(f'v_mov_b32 v6, v4\nv_mov_b32 v7, v5\nv_permlane{sw}_swap_b32 v6, v4\nv_permlane{sw}_swap_b32 v7, v5\nv_add_f32 v4, v6, v4\nv_add_f32 v5, v7, v5')
    e(cfma(CP,WG,4,CP))
    cp=v(CP,2)
    def sig(k,n=0):
        if EP==0 and SP_==k: e(f's_waitcnt vmcnt({n})'); e(signal(WL)); g.stamp('flag0')
    sig(0)
    for comp,R_ in ((0,Xr),(1,Yr)):
        for i in range(8):
            rr_=v(R_+2*i,2); pr=v(PR+2*i,2); pi=v(PI+2*i,2)
            if comp==0: e(f'v_pk_fma_f32 {rr_}, {pr}, {cp}, {rr_} op_sel_hi:[1,0,1]\nv_pk_fma_f32 {rr_}, {pi}, {cp}, {rr_} op_sel:[0,1,0] op_sel_hi:[1,1,1] neg_lo:[0,1,0] neg_hi:[0,1,0]')
            else: e(f'v_pk_fma_f32 {rr_}, {pr}, {cp}, {rr_} op_sel:[0,1,0] op_sel_hi:[1,1,1] neg_lo:[0,1,0] neg_hi:[0,1,0]\nv_pk_fma_f32 {rr_}, {pi}, {cp}, {rr_} op_sel_hi:[1,0,1] neg_lo:[0,1,0] neg_hi:[0,1,0]')
    sig(1)
    for comp,R_,D_ in ((0,Xr,112),(1,Yr,128)):
        for i in range(8): e(f'v_cvt_pk_bf16_f32 v{R_+i}, v{R_+2*i}, v{R_+2*i+1}')
        for tb in range(2):
            for ab in range(2): e(f'v_mfma_f32_16x16x32_bf16 {v(D_+8*tb+4*ab,4)}, {v(R_+4*tb,4)}, {v(SL+2-2*ab,4)}, 0')
    for comp,R_,D_ in ((0,Xr,112),(1,Yr,128)):
        for i in range(8): e(f'v_cvt_pk_bf16_f32 v{R_+8+i}, v{D_+2*i}, v{D_+2*i+1}')
        if comp==0: sig(2)
        if comp==1: sig(3,2)
        for tb in range(2):
            o=R_+8+4*tb
            e(f'v_permlane16_swap_b32 v{o}, v{o+2}\nv_permlane16_swap_b32 v{o+1}, v{o+3}')
            e(f's_add_u32 s{T1}, s{SOX}, {comp*32768+tb*HSTR}\nbuffer_store_dwordx4 {v(o,4)}, v15, {srd(sWS)}, s{T1} offen sc1')
    g.stamp('c_st')
    e(vgroup(f's{V14}, 0',[DF],sDN,FB,20*16384,2))
    TV=144; JB=112; RB_=160
    e(['v_and_b32 v12, 31, v1','v_lshrrev_b32 v13, 5, v1','v_bfe_u32 v0, v1, 1, 3','v_xor_b32 v0, v13, v0','v_lshlrev_b32 v0, 4, v0','v_lshl_add_u32 v0, v12, 7, v0',f'v_add_u32 v4, s{XR}, v0',f'v_add_u32 v8, s{WQ}, v0'])
    for k in range(1,4): e(f'v_xor_b32 v{4+k}, {32*k}, v4\nv_xor_b32 v{8+k}, {32*k}, v8')
    e(traddr(0,12)+[f'v_add_u32 v{TV+4}, s{WQ}, v0',f'v_add_u32 v{TV+5}, s{WQ}, v12',f'v_add_u32 v{TV}, s{V14}, v0',f'v_add_u32 v{TV+1}, s{V14}, v12'])
    e(f's_lshl_b32 s{T1}, s{TQ}, 2\ns_add_u32 s{T1}, s{T1}, {ZF}\nv_mov_b32 v13, s{T1}')
    e(p2base(0))
    e('s_waitcnt vmcnt(2)'); e(signal(HA))
    g.stamp('flag')
    e(f's_cmp_ge_u32 s{TQ}, 2\ns_cbranch_scc1 L_no14'); e(vgroup(f's{V14}, 2048',[DF],sDN,FB,21*16384,2)); e('L_no14:')
    e(f'''s_setprio 0
s_cmp_ge_u32 s{TQ}, 2
s_cselect_b32 s{XL}, {BIG}, s{SOW}
s_cselect_b32 s{T1}, 0, 2048
v_add_u32 v{TV+2}, s{T1}, v{TV}
v_add_u32 v{TV+3}, s{T1}, v{TV+1}
s_mov_b32 s{SPIN}, 0
L_z0:
s_sleep 1
ds_read_b32 v0, v13
s_add_u32 s{SPIN}, s{SPIN}, 1
s_waitcnt lgkmcnt(0)
v_cmp_ne_u32 vcc, 1, v0
s_cmp_gt_u32 s{SPIN}, 1000000
s_cselect_b64 vcc, 0, vcc
s_cmp_eq_u64 vcc, 0
s_cbranch_scc0 L_z0''')
    g.stamp('Z0')
    e([f'ds_read_b128 {v(JB+8*k+4*dh,4)}, v{4+k} offset:{2*8192+dh*4096}' for k in range(4) for dh in range(2)])
    e([f'ds_read_b128 {v(RB_+32*bl+8*k+4*dh,4)}, v{4+k} offset:{bl*8192+dh*4096}' for bl in range(2) for k in range(4) for dh in range(2)])
    e([f'ds_read_b128 {v(RB_+64+8*k+4*dh,4)}, v{8+k} offset:{dh*WSS}' for k in range(4) for dh in range(2)])
    e('s_waitcnt lgkmcnt(0)')
    e([f's_lshl_b32 s{T1}, s{TQ}, 11\ns_add_u32 s{T1}, s{T1}, {q_*XW+16384}\nv_add_u32 v{4+q_}, s{T1}, v15' for q_ in range(4)])
    e(f's_lshl_b32 s{T1}, s{TQ}, 10\ns_add_u32 s{T1}, s{T1}, {WB}\nv_add_u32 v8, s{T1}, v15')
    e('s_barrier'); g.stamp('Z1')
    e(spoll('L_fp0',8,opt.get('slp0',4)))
    g.stamp('go')
    HS=FBR+[CB2]
    st_=[(HS[0],(86+k)*1024,JB+8*k) for k in range(4)]+[(SOW,(18+k)*1024,JB+8*k) for k in range(3)]+[(XL,21*1024,JB+24)]
    st2=[(HS[1+bl],(86+k)*1024,RB_+32*bl+8*k) for bl in range(3) for k in range(4)]
    loads=[];groups=[]
    for s_,(sr,im,Bq) in enumerate(st_):
        groups.append([(TILE(mh,dh),len(loads)+mh,Bq+4*dh,s_==0) for mh in range(2) for dh in range(2)])
        for mh in range(2): loads.append((sr,im+mh*HSTR))
    for mh in range(2):
        for p_ in range(6):
            grp=[]
            for s_ in (2*p_,2*p_+1):
                sr,im,Bq=st2[s_]
                grp+=[(TILE(mh,dh),len(loads),Bq+4*dh,False) for dh in range(2)]
                loads.append((sr,im+mh*HSTR))
            groups.append(grp)
    jit=[trstep(JB,TV+4,2*WSS),trstep(JB+8,TV+4,2*WSS+2048),trstep(JB+16,TV,0),trstep(JB+24,TV+2,0)]
    wr0=[]
    for dh in range(2):
        for q_ in range(4): wr0+=[f'ds_write_b128 v{4+q_}, {v(TILE(0,dh)+4*q_,4)} offset:{dh*1024}','']
    hooks={1:([],jit[0]),2:([],jit[1]),3:([],jit[2]),4:(['s_waitcnt lgkmcnt(8)'],jit[3]),5:(['s_waitcnt lgkmcnt(8)'],[]),6:(['s_waitcnt lgkmcnt(4)'],[]),7:(['s_waitcnt lgkmcnt(0)'],[]),
           opt.get('z2',10):(['s_barrier',g.st('Z2')],[]),14:([],['']*6+wr0),17:(['s_waitcnt lgkmcnt(0)','s_barrier',g.st('Z23')],[])}
    run_groups(groups,loads,([16+4*k for k in range(8)]+[152,156])[:opt.get('nr0',10)],15,hooks)
    wr1=lambda dh: [f'ds_write_b128 v8, {v(TILE(1,dh)+4*q_,4)} offset:{dh*WSS+q_*4096}' for q_ in range(4)]
    idx=[k for k,l_ in enumerate(g.L) if 'v_mfma_f32_32x32x16' in l_][-12:]
    seg=g.L[idx[0]:]; del g.L[idx[0]:]
    assert not any('buffer_load' in l_ for l_ in seg)
    late=[l_ for l_ in seg if 'v_mfma' in l_ and l_.split()[1].rstrip(',')==v(TILE(1,1),16)]
    e([l_ for l_ in seg if l_ not in late])
    e([late[0],'s_nop 4',late[1],'s_nop 3']); e(mix(late[2:],wr1(0),1)); e('s_waitcnt lgkmcnt(0)\ns_barrier'); e(wr1(1))
    e('s_waitcnt lgkmcnt(0)\ns_barrier')
    g.stamp('p2end')
    if opt.get('stamps'):
        e('L_fin:\ns_waitcnt vmcnt(0)'); g.stamp('done')
        e(f'''s_waitcnt lgkmcnt(0)
s_cmp_eq_u32 s{TQ}, {opt.get('stq',0)}
s_cbranch_scc0 L_end
s_add_u32 s{sX}, s66, {STAMP}
s_addc_u32 s{sX+1}, s67, 0
s_lshl_b32 s{T0}, s2, 1
s_add_u32 s{T0}, s{T0}, s{NH}
s_lshl_b32 s{T0}, s{T0}, 7
v_mov_b32 v2, 0''')
        prs=[100]+G.POOL[:len(g.names())]
        if 'diag' in opt:
            p=prs[(['start']+g.names()).index(opt['diag'])]
            if 'dwg' in opt: e(f's_cmp_eq_u32 s2, {opt["dwg"]}\ns_cbranch_scc0 L_end')
            e(f's_cmp_eq_u32 s{NH}, {opt.get("dr",0)}\ns_cbranch_scc0 L_end\nL_dg:\ns_memrealtime s[72:73]\ns_waitcnt lgkmcnt(0)\ns_sub_u32 s72, s72, s{p}\ns_cmp_lt_u32 s72, 6000\ns_cbranch_scc1 L_dg')
            prs=[]
        for i,p in enumerate(prs): e(f'v_mov_b32 v4, s{p}\nv_mov_b32 v5, s{p+1}\nbuffer_store_dwordx2 v[4:5], v2, {srd(sX)}, s{T0} offen offset:{8*i}')
    e('L_end:\ns_endpgm'); e(g.cold); e('L_last:\ns_endpgm')
    if opt.get('stamps'): g.L.insert(0,'; STAMPS start,'+','.join(g.names()))
    g.L=[(x if x.endswith(':') or x.startswith('.') else '  '+x.strip()) for l_ in g.L for x in (l_.replace('|v_nop','').split('|') if '|' in l_ else [l_])]
    ab=opt.get('ab',0)
    if ab:
        import re
        L=[]
        for l_ in g.L:
            if ab&1 and (re.search(r'v\[2[23]\d:2[23]\d\], v(29|30|244) offset:\d+$',l_) and not l_.strip().startswith('ds_read_b128 v[2') or re.search(r'b128 v\[2(24|28|32|36):\d+\], v(29|244) offset:(?!(0|16|32|48)$)',l_) or 'v_mfma_f32_16x16x32_bf16 v[240:243]' in l_): continue
            if ab&4 and re.search(r'ds_write_b128 v[4-8],',l_): continue
            if ab&16 and 'v_exp_f32 v2' in l_ and len(L)>2500: continue
            if ab&32 and 'v_fmac_f32' in l_ and re.search(r'v(80|47|96), v',l_) and len(L)>2500: continue
            if ab&64 and 'v_permlane16_swap_b32 v1' in l_ and len(L)>2500: continue
            if ab&128 and 'buffer_store_dword v' in l_ and 's[68:71]' in l_ and 'v4' not in l_ and 'v5' not in l_ and 'v6' not in l_: continue
            L.append(l_)
        g.L=L
    body=hz.fix('\n'.join(g.L), verbose=opt.get('v',0))
    if opt.get('al'):
        import align
        body,nw,nn=align.run(body,lambda b: header([(NAME,256,512,163840)])+kstart(NAME)+b+'\n',opt['al'])
    if opt.get('ic'):
        import align
        body,npad=align.pads('L_anchor:\n'+body,lambda b: header([(NAME,256,512,163840)])+b+'\n')
        body=body.replace('L_anchor:\n','')
        if opt.get('v'): print('pads',npad)
    ref=open('parallel_sum__ssm_conv_s5__geglu_ffn__prompt.s.ref').read() if opt.get('final') else ''
    cm_=''.join(l+'\n' for l in ref.split('\n') if l.startswith(';') and '@launch' not in l and 'Override' not in l and 'grid=ceil' not in l)
    if opt.get('final'): cm_+=DOC
    return cm_+header([(NAME,256,512,163840)])+('.p2align 12\n' if opt.get('pa',1) else '')+kstart(NAME)+body+'\n'+RODATA+kd(NAME,256,256)

if __name__=='__main__':
    out=sys.argv[1]; opt={}
    for a in sys.argv[2:]:
        k,_,val=a.partition('='); opt[k]=int(val) if val.lstrip('-').isdigit() else (val or 1)
    open(out,'w').write(build(opt))
```

```python
import sys, math
from asmlib import *
import hz
from gen_v3 import F, LOG2E, BIG, G, cmul, cfma, mix, mksrd, fsplit, v, srd
XW=24576; WB=98304; WSS=16640; GOFF=4096; UOFF=4096+6144+128
SCR=WB+3*WSS; SP=SCR+12288; RM=SP+1024; ZF=RM+2048
HSTR=150*1024; ST_M=0xA00000; ST_R=0xA08000; ARR=0xA10000; FLG=0xA20000; EOFF=0xA60000; WSSZ=0xA80000
STAMP=0x8000000
sX,sW,sWS,sDBG,sCR,sCI,sDN,sE,sOUT=4,8,12,16,20,24,28,32,68
sW2=sE
TH=0; W0=1; FS=3; WL2=54; WI=72; CB=73; FCNT=74; FB=75
W_,TQ,NH,RB,CT,ROT,WSTEP,XL,WL=76,77,78,79,80,81,82,83,84
RB2,TQ2,DQ,SOX,SOW,T0,T1,T2,F0,HB,XR,WQ=85,86,87,88,89,90,91,92,93,94,95,96
SPIN=97; HA=98; V14=99; XH=W_
FBR=[60,61,64]; CB2=65
G.POOL=[36,42,44,56,58,38,40,46,48,50]
G.DEF='B4,B8,gdone,flag,chores,go,q1,ph1,p2end,done'
DC=12; DF=14
ACC0=48; B1,B2,B3=112,160,208
TILE=lambda mh,dh: ACC0+32*mh+16*dh

DOC="""; ---------------------------------------------------------------------------------------------
; One launch, 256 workgroups x 8 waves (one workgroup per CU, all co-resident), generated by a script.
;          once per row and handed over through the workspace.
;          SSM: exact chunked scan, 64-step chunk end states are exchanged through the workspace.
; Phase 2: [act | 2h_re | -2h_im] (bf16, workspace) times [w_down | C_re | C_im], 64x64 outputs per
;          sentinels are initialised inside the launch (announced through d_debug).
; ---------------------------------------------------------------------------------------------
"""
def build(opt):
    g=G(opt); e=g.e
    if opt.get('jit'):
        import random
        rnd=random.Random(opt['jit']); cnt=[0]
        def st(k):
            if k in ('e0',): return ''
            cnt[0]+=1; c=cnt[0]
            return '|'.join([f's_lshl_b32 s100, s2, 2',f's_add_u32 s100, s100, s{TQ}' if rnd.random()<0.5 else 's_nop 0',f's_mul_i32 s100, s100, {rnd.randrange(1<<30)|1}',f's_bfe_u32 s100, s100, {0x40000+rnd.randrange(8,20)}',
                             's_cmp_lg_u32 s100, 0',f's_cbranch_scc1 L_j{c}',f's_sleep {rnd.choice([8,30,100])}',f'L_j{c}:'])+'|v_nop'
        g.st=st
    opt.setdefault('ch','x1120'); opt.setdefault('xp',3); opt.setdefault('dp1',12); opt.setdefault('ze',9)
    c_=opt['ch']; assert int(c_[1])<=int(c_[2])<opt['xp']<=opt.get('xq',5)-2 and int(c_[3])<=5
    SC_=opt.get('sc',1)
    opt.setdefault('pfp',1); PF=opt.get('pf',4); NL=opt.get('nl',16)
    e(f'''s_cmp_ge_u32 s2, 256
s_cbranch_scc1 L_end
s_load_dwordx16 s[36:51], s[0:1], 0
s_load_dwordx16 s[52:67], s[0:1], 64
s_getpc_b64 s[72:73]
L_pc0:
v_lshrrev_b32 v3, 6, v0
s_and_b32 s3, s2, 0xf8
v_add_lshl_u32 v2, v3, s3, 7
v_min_u32 v2, L_last-L_pc0, v2
v_and_b32 v1, 63, v0
v_readfirstlane_b32 s{W_}, v3
global_load_dword v9, v2, s[72:73]
s_bfe_u32 s{TQ2}, s2, 0x20003
s_lshr_b32 s{DQ}, s2, 5''')
    if opt.get('stamps'): e(('s_memtime' if opt['stamps']==2 else 's_memrealtime')+' s[100:101]')
    m42=f's_and_b32 s{RB2}, s{RB2}, 4\ns_and_b32 s{T2}, s{T1}, 1\ns_lshl_b32 s{T2}, s{T2}, 1\ns_add_u32 s{RB2}, s{RB2}, s{T2}\ns_lshr_b32 s{T2}, s{DQ}, 2\ns_add_u32 s{RB2}, s{RB2}, s{T2}\ns_and_b32 s{DQ}, s{DQ}, 3\ns_and_b32 s{T2}, s{T1}, 2\ns_lshl_b32 s{T2}, s{T2}, 1\ns_add_u32 s{DQ}, s{DQ}, s{T2}' if opt.setdefault('m42',1) else ''
    oa,ob=opt.get('ord','x01245673.45670123')[1:].split('.')
    e(f'''s_and_b32 s{T0}, s2, 1
s_lshl_b32 s{RB}, s{T0}, 2
s_bfe_u32 s{T1}, s2, 0x20001
s_xor_b32 s{RB2}, s{RB}, 4
s_add_u32 s{RB2}, s{RB2}, s{T1}
s_add_u32 s{RB}, s{RB}, s{TQ2}
s_lshl_b32 s{CT}, s{T1}, 3
s_add_u32 s{CT}, s{CT}, s{DQ}
s_xor_b32 s{CT}, s{CT}, 4
{m42}
s_and_b32 s{TQ}, s{W_}, 3
s_lshr_b32 s{NH}, s{W_}, 2
s_lshl_b32 s{HB}, s{RB}, 2
s_add_u32 s{HB}, s{HB}, s{TQ}
s_mul_i32 s{XR}, s{TQ}, {XW}
v_lshrrev_b32 v4, 3, v1          ; q
v_and_b32 v5, 7, v1              ; pos
s_cmp_eq_u32 s{NH}, 0''')
    NEAR=(f'''v_and_b32 v3, 15, v1
s_lshl_b32 s{T1}, s{CT}, 5
v_lshl_add_u32 v3, v3, 1, s{T1}
s_lshl_b32 s{T0}, s{TQ}, 2
s_add_u32 s{T0}, s{T0}, {ZF}
v_mov_b32 v10, s{T0}
v_mov_b32 v11, 0
ds_write_b32 v10, v11
s_lshl_b32 s{T0}, s{RB}, 5
s_add_u32 s{T0}, s{T0}, s{CT}
s_lshl_b32 s{T0}, s{T0}, 2
s_add_u32 s{WI}, s{T0}, s{TQ}
s_lshl_b32 s{T2}, s{WI}, 11
v_and_b32 v2, 31, v1
v_lshl_add_u32 v2, v2, 4, s{T2}
v_and_b32 v6, 32, v1
v_lshl_add_u32 v2, v6, 5, v2
s_waitcnt lgkmcnt(0)
global_load_ushort v244, v3, s[38:39]
global_load_ushort v245, v3, s[40:41]
global_load_ushort v246, v3, s[50:51]
global_load_dwordx4 v[112:115], v2, s[36:37]
global_load_dwordx4 v[116:119], v2, s[36:37] offset:512''')
    if opt.get('nb',1): e('s_cbranch_scc0 L_load\ns_setprio 2'); e(NEAR); e('s_setprio 0\ns_branch L_comp\nL_load:')
    else: e('s_cbranch_scc1 L_comp')
    def zstamps():
        if opt.get('stamps'):
            for r,nm in zip(G.POOL,g.names()):
                if nm not in ('e0','e1'): e(f's_mov_b64 s[{r}:{r+1}], 0')
    def common(nh):
        e(mksrd(sWS,66,67,WSSZ)); e(mksrd(sDN,60,61,1409024*(0 if opt.get('nodma') else 1)))
        e(f'''v_lshlrev_b32 v6, 1, v4
v_and_b32 v6, 4, v6
v_xor_b32 v6, v5, v6
v_lshlrev_b32 v6, 4, v6
v_lshl_add_u32 v6, v4, 10, v6
s_lshl_b32 s{T0}, s{DQ}, 7
v_add_u32 v{DF}, s{T0}, v6
s_mul_i32 s{F0}, s{TQ}, 22
s_cmp_eq_u32 s{TQ}, 3
s_cselect_b32 s{T0}, 1, 0
s_sub_u32 s{F0}, s{F0}, s{T0}
s_lshl_b32 s{FB}, s{F0}, 14
s_lshl_b32 s{WQ}, s{TQ}, 12
s_lshl_b32 s{T0}, s{T0}, 11
s_sub_u32 s{V14}, s{WQ}, s{T0}
s_add_u32 s{V14}, s{V14}, {SCR}
s_add_u32 s{WQ}, s{WQ}, {WB}
s_lshl_b32 s{HA}, s{HB}, 2
s_lshr_b32 s{T0}, s{CT}, 3
s_add_u32 s{HA}, s{HA}, s{T0}
s_lshl_b32 s{HA}, s{HA}, 8
s_add_u32 s{HA}, s{HA}, {FLG}
v_lshlrev_b32 v15, 4, v1
v_and_b32 v2, 15, v1
v_lshrrev_b32 v3, 4, v1
v_bfe_u32 v6, v1, 1, 3
v_xor_b32 v6, v3, v6
v_lshlrev_b32 v6, 4, v6
v_lshl_add_u32 v6, v2, 7, v6
v_bfe_u32 v10, v1, 2, 3
v_lshrrev_b32 v11, 5, v1
v_lshl_add_u32 v10, v11, 4, v10
v_mul_u32_u24 v10, 96, v10
v_and_b32 v11, 3, v1
v_lshl_add_u32 v10, v11, 3, v10''')
    def vgroup(m0, vregs, sr, sb, imm, n):
        L=[]
        for j in range(n):
            t=f's_add_u32 m0, {m0}\n' if j==0 else ''
            t+=f's_add_u32 s{T0}, s{sb}, {imm+j*(8192-1024)}\nbuffer_load_dwordx4 v{vregs[j%len(vregs)]}, {srd(sr)}, s{T0} offen'+(f' offset:{1024*j}' if j else '')+' lds'
            L.append(t)
        return L
    def vx(vs,half):
        st=vs%3; m0=f's{XR}, {st*8192+half*4096}'
        if vs>=11:
            b=vs-11; return vgroup(m0,[DC,DC+1],sCI if b&1 else sCR,CB2 if b>>1 else CB,half*32768,4)
        return vgroup(m0,[DF],sDN,FBR[vs-8],half*32768,4)
    def vw(vs):
        st=vs%3
        if vs>=12: return vgroup(f's{WQ}, {st*WSS}',[DC,DC+1],sCI,CB2,(vs-12)*32768,4)
        return vgroup(f's{WQ}, {st*WSS}',[DF],sDN,FBR[vs-8] if vs<11 else FB,(4 if vs<11 else 18)*16384,4)
    def vfull(vs): return vx(vs,0)+vx(vs,1)+vw(vs)
    def traddr(t0,t1):
        return [f'v_bfe_u32 v{t0}, v1, 2, 2',f'v_lshrrev_b32 v{t1}, 5, v1',f'v_lshl_add_u32 v{t0}, v{t1}, 3, v{t0}',f'v_lshlrev_b32 v{t0}, 7, v{t0}',f'v_and_b32 v{t1}, 3, v1',f'v_lshl_add_u32 v{t0}, v{t1}, 3, v{t0}',
            f'v_bfe_u32 v{t1}, v1, 4, 1',f'v_lshl_add_u32 v{t0}, v{t1}, 5, v{t0}',f'v_bfe_u32 v{t1}, v1, 3, 1',f'v_lshl_add_u32 v{t0}, v{t1}, 6, v{t0}',f'v_xor_b32 v{t1}, 64, v{t0}']
    def trstep(base,areg,off):
        return [f'ds_read_b64_tr_b16 {v(base+dh*4+2*j,2)}, v{areg+dh} offset:{off+j*512}' for dh in range(2) for j in range(2)]
    def hb(nh):
        if nh==1: return '\n'.join(f's_lshr_b32 s{FBR[k]}, s{FBR[k]}, 4\ns_add_u32 s{FBR[k]}, s{FBR[k]}, s{SOX}' for k in range(3))
        t=f's_lshl_b32 s{T0}, s{TQ}, 13\ns_add_u32 s{SOX}, s{SOX}, s{T0}\n{r4(T2)}'
        for b_,r_ in enumerate(FBR+[CB2]):
            t+=f'\ns_xor_b32 s{T0}, s{T2}, {b_}\ns_and_b32 s{T1}, s{T0}, 1\ns_lshl_b32 s{T1}, s{T1}, 15\ns_and_b32 s{T0}, s{T0}, 2\ns_lshl_b32 s{T0}, s{T0}, 11\ns_add_u32 s{T0}, s{T0}, s{T1}\ns_add_u32 s{r_}, s{SOX}, s{T0}'
        return t
    def p2base(nh):
        return f'''s_lshl_b32 s{T0}, s{RB2}, 2
s_add_u32 s{T0}, s{T0}, s{TQ2}
s_mul_i32 s{SOX}, s{T0}, {2*HSTR}
s_lshl_b32 s{HB}, s{T0}, 2
s_add_u32 s{HB}, s{HB}, s{TQ}
s_lshl_b32 s{HB}, s{HB}, 8
s_add_u32 s{HB}, s{HB}, {FLG+128*(1-nh)}
s_lshl_b32 s{T0}, s{F0}, 10
s_add_u32 s{SOW}, s{SOX}, s{T0}
{hb(nh)}'''
    sld=f's_load_dword s55, s[66:67], s{HB} glc'
    def spoll(lbl, tgt, sl, first=True):
        g.cold.append(f'''{lbl}:
s_mov_b32 s{SPIN}, 0
{lbl}_1:
{sld}
s_add_u32 s{SPIN}, s{SPIN}, 1
s_waitcnt lgkmcnt(0)
s_cmp_gt_u32 s{SPIN}, 100000
s_cselect_b32 s55, {tgt}, s55
s_cmp_lt_u32 s55, {tgt}
s_cbranch_scc0 {lbl}_ok
s_sleep {sl}
s_branch {lbl}_1''')
        return (sld if first else '')+f'\ns_waitcnt lgkmcnt(0)\ns_cmp_lt_u32 s55, {tgt}\ns_cbranch_scc1 {lbl}\n{lbl}_ok:'
    def run_groups(groups, loads, ring, areg, hooks, mid=[], freed={}, depth=0):
        free=list(ring); dest=[]; depth=max(depth,len(ring))
        def ld():
            sr,imm=loads[len(dest)]; dest.append(free.pop(0))
            return [f's_add_u32 s{T0}, s{sr}, {imm}',f'buffer_load_dwordx4 {v(dest[-1],4)}, v{areg}, {srd(sWS)}, s{T0} offen sc1']
        while free: e(ld())
        e(mid)
        il=[]
        for gi,grp in enumerate(groups):
            g.stamp(f'q{gi}')
            h=hooks.get(gi)
            if h:
                e(h[0]); il=il+list(h[1])
            for k,(a,li,Bq,first) in enumerate(grp):
                if k%2==0: e(f's_waitcnt vmcnt({len(dest)-1-li})')
                e(f'v_mfma_f32_32x32x16_bf16 {v(a,16)}, {v(dest[li],4)}, {v(Bq,4)}, {"0" if first else v(a,16)}')
                if k%2==1: free.append(dest[li])
                can=free and len(dest)<len(loads)
                if can and (k%2==1 or (k==0 and len(dest)-li<depth)): e(ld())
                for _ in range(2):
                    if il: e(il.pop(0))
            free+=freed.get(gi,[])
        e(il)
    ZE=opt.get('ze',8)
    r3t,m4=opt.get('r3','x01201201')[1:],opt.get('r4',3)
    def r4(d): return f's_and_b32 s{d}, s{TQ2}, {m4}'
    def weave(mark, D, first=1, lastfree=2):
        W=g.L[mark:]; del g.L[mark:]
        ch=[]; cur=[]; hold=False
        for k,l_ in enumerate(W):
            cur.append(l_); t=l_.strip()
            if 'exec' in t: hold=not t.endswith('-1')
            nx=W[k+1].strip() if k+1<len(W) else ''
            if not hold and not (t.startswith('s_') and '|' not in t and not t.startswith('s_waitcnt')) and not nx.startswith('s_cselect') and f's{T0}' not in nx: ch.append(cur); cur=[]
        if cur: ch.append(cur)
        slots=len(D)-lastfree-first+1
        assert slots>=1
        for k,d in enumerate(D):
            if first<=k<first+slots:
                a=len(ch)*(k-first)//slots; b=len(ch)*(k-first+1)//slots
                for c in ch[a:b]: e(c)
            e(d)

    DX=16; DW=20; PTX=24; PTW=27; S1=29; S2=30; SELS=208; SFS=[224,228,232,236]; SACC=240
    e(f'''s_setprio 1
s_mov_b32 s{ROT}, 0x{oa[::-1]}
s_cmp_eq_u32 s{T0}, 1
s_cselect_b32 s{ROT}, 0x{ob[::-1]}, s{ROT}
v_lshrrev_b32 v6, 2, v4
v_lshlrev_b32 v6, 4, v6
v_and_or_b32 v6, v4, 3, v6
s_lshl_b32 s{T0}, s{HB}, 6
v_add_u32 v6, s{T0}, v6
v_lshlrev_b32 v6, 10, v6
v_lshrrev_b32 v7, 1, v4
v_xor_b32 v7, v5, v7             ; chunk (even j)
v_xor_b32 v8, 4, v7              ; chunk (odd j)
v_lshl_add_u32 v{DX}, v7, 4, v6
v_lshl_add_u32 v{DX+1}, v8, 4, v6
v_add_u32 v{DX+1}, {32768-1024}, v{DX+1}
v_add_u32 v{DX+2}, 2048, v{DX}
v_add_u32 v{DX+3}, 2048, v{DX+1}
s_and_b32 s{XH}, s{CT}, {opt.get('sx',1)}
s_lshl_b32 s{XL}, s{XH}, 12
s_add_u32 s{XL}, s{XL}, s{XR}
s_lshl_b32 s{XH}, s{XH}, 13
s_mov_b32 s{sX+2}, 2097152
s_mov_b32 s{sX+3}, 0x20000''')
    def xs(i,h):
        st=i%3
        if h==0: t=f's_bfe_u32 s{T0}, s{ROT}, {0x30000+4*i}\ns_lshl_b32 s{SOX}, s{T0}, 7\ns_add_u32 m0, s{XL}, {st*8192}\ns_add_u32 s{SOX}, s{SOX}, s{XH}\n'
        else: t=f's_xor_b32 s{T0}, s{XL}, 4096\ns_add_u32 m0, s{T0}, {st*8192}\ns_xor_b32 s{SOX}, s{SOX}, 8192\n'
        return [(t if j==0 else '')+f'buffer_load_dwordx4 v{DX+j}, {srd(sX)}, s{SOX} offen'+(f' offset:{1024*j}' if j else '')+' lds' for j in range(4)]
    def ws(i,h):
        st=i%3; sr=(sW,sW2)[h]
        t=f's_bfe_u32 s{T0}, s{ROT}, {0x30000+4*i}\ns_add_u32 m0, s{(WL,WL2)[h]}, {st*WSS}\ns_mul_i32 s{SOW}, s{T0}, '+(f's{WSTEP}' if h==0 else 's55')+'\n'
        return [t+f'buffer_load_dwordx4 v{DW+2*h}, {srd(sr)}, s{SOW} offen lds',f'buffer_load_dwordx4 v{DW+2*h+1}, {srd(sr)}, s{SOW} offen offset:1024 lds']
    slab=lambda i: xs(i,0)+ws(i,0)+xs(i,1)+ws(i,1)
    e(f's_waitcnt lgkmcnt(0)\ns_mov_b32 s{sX}, s36\ns_mov_b32 s{sX+1}, s37'); g.stamp('e0')
    H0=opt.get('h0',1)
    e(xs(0,0)+([] if H0 else xs(0,1)))
    e(fsplit(CT,FS,FCNT,T0))
    e(f'''s_lshl_b32 s{T2}, s{FS}, 5
s_lshl_b32 s{F0}, s{FCNT}, 1
s_and_b32 s{HA}, s{RB}, 1
s_lshl_b32 s{HA}, s{HA}, 2
s_add_u32 s{HA}, s{HA}, s{TQ}
s_lshl_b32 s{T1}, s{CT}, 4
v_add_u32 v6, s{T1}, v4
v_lshlrev_b32 v6, 10, v6
v_lshl_add_u32 v2, v7, 4, v6
v_lshl_add_u32 v3, v8, 4, v6
v_add_u32 v3, 7168, v3
v_mov_b32 v0, 0x80000000''')
    def ffo(d,gb,j):
        return f'''v_add_u32 v6, s{gb}, v1
{"v_add_u32 v6, 64, v6" if j else ""}
v_mul_u32_u24 v10, 10923, v6
v_lshrrev_b32 v10, 16, v10
v_mul_u32_u24 v11, 6, v10
v_sub_u32 v11, v6, v11
v_lshrrev_b32 v6, 1, v10
v_xor_b32 v6, v6, v10
v_and_b32 v6, 4, v6
v_mul_u32_u24 v6, 3, v6
v_xor_b32 v10, v10, v6
v_mul_u32_u24 v10, 2752, v10
v_lshl_add_u32 v10, v11, 4, v10
v_cmp_gt_u32 vcc, s{F0}, v11
v_add_u32 v10, s{T2}, v10
{"v_subrev_u32 v10, 1024, v10" if j else ""}
v_cndmask_b32 v{d}, v0, v10, vcc'''
    def unit(h):
        sr,wl,stp,d=(sW,sW2)[h],(WL,WL2)[h],(WSTEP,55)[h],DW+2*h
        e(f'''s_cmp_ge_u32 s{HA}, 5
s_cselect_b32 s{SPIN}, 5, 2
s_cselect_b32 s{T1}, 128, 0
s_cselect_b32 s{sr}, s58, s56
s_cselect_b32 s{sr+1}, s59, s57
s_sub_u32 s{SPIN}, s{HA}, s{SPIN}
s_lshl_b32 s{SPIN}, s{SPIN}, 7''')
        e(ffo(d,SPIN,0)); e(ffo(d+1,SPIN,1))
        e(f'''s_lshl_b32 s{wl}, s{HA}, 11
s_add_u32 s{wl}, s{wl}, s{T1}
s_add_u32 s{wl}, s{wl}, {WB}
s_cmp_eq_u32 s{HA}, 0
s_cselect_b32 s{sr}, s42, s{sr}
s_cselect_b32 s{sr+1}, s43, s{sr+1}
s_cmp_eq_u32 s{HA}, 1
s_cselect_b32 s{sr}, s44, s{sr}
s_cselect_b32 s{sr+1}, s45, s{sr+1}
s_mov_b32 s{stp}, 176128
s_mov_b32 s{sr+2}, 1409024
s_cmp_lt_u32 s{HA}, 2
s_cselect_b64 vcc, -1, 0
s_cselect_b32 s{stp}, 128, s{stp}
s_cselect_b32 s{sr+2}, 524288, s{sr+2}
s_mov_b32 s{sr+3}, 0x20000
v_cndmask_b32 v{d}, v{d}, v2, vcc
v_cndmask_b32 v{d+1}, v{d+1}, v3, vcc''')
    unit(0); e(ws(0,0))
    if H0: e(xs(0,1))
    e(f's_xor_b32 s{HA}, s{HA}, 4')
    unit(1); e(ws(0,1)); g.stamp('e1')
    e(f'''s_lshl_b32 s{T1}, s2, 2
s_add_u32 s{T1}, s{T1}, s{TQ}
s_cmp_eq_u32 s{T1}, {97*4+3}
s_cbranch_scc1 L_init
L_initd:''')
    t=f'L_init:\nv_lshlrev_b32 v10, 4, v1\nv_add_u32 v10, {ARR}, v10\nv_mov_b32 v44, 0\nv_mov_b32 v45, 0\nv_mov_b32 v46, 0\nv_mov_b32 v47, 0'
    for k in range(NL//8): t+=f'\nglobal_store_dwordx4 v10, v[44:47], s[66:67] offset:{1024*k} sc1'
    g.cold.append(t+'\ns_branch L_initd')
    e(f's_lshl_b32 s{T1}, s{DQ}, 7\nv_and_b32 v3, 31, v1\nv_lshl_add_u32 v3, v3, 1, s{T1}\nglobal_load_ushort v40, v3, s[52:53]\nglobal_load_ushort v41, v3, s[52:53] offset:64')
    D=slab(1); n1=opt.get('n1',4)
    e(D[:n1])
    common(1)
    nd=0 if opt.get('nodma') else 1
    e(mksrd(sCR,46,47,524288*nd)); e(mksrd(sCI,48,49,524288*nd)); e(mksrd(sDBG,64,65,256)); e(mksrd(sOUT,62,63,4194304))
    sadr=f'''s_lshr_b32 s{T0}, s{TQ}, 1
s_and_b32 s{T1}, s{TQ}, 1
s_mul_i32 s{T2}, s{T0}, 3072
s_mul_i32 s{SPIN}, s{T1}, {UOFF-GOFF}
s_add_u32 s{T2}, s{T2}, s{SPIN}
s_add_u32 s{T2}, s{T2}, {WB+GOFF}
v_add_u32 v{S2}, s{T2}, v10
s_lshl_b32 s{T0}, s{T0}, 6
s_lshl_b32 s{T1}, s{T1}, 11
s_add_u32 s{T1}, s{T1}, {WB}
v_xor_b32 v{S1}, s{T0}, v6
v_add_u32 v{S1}, s{T1}, v{S1}''' if not SC_ else f'''s_lshl_b32 s{T2}, s{TQ}, 5
s_add_u32 s{T2}, s{T2}, {WB+GOFF-32}
v_add_u32 v{S2}, s{T2}, v10
v_add_u32 v{S1}, {WB}, v6
v_xor_b32 v244, 64, v{S1}'''
    e(f'''s_lshl_b32 s{CB}, s{TQ}, 8
s_cmp_eq_u32 s{TQ}, 0
s_cselect_b32 s{TH}, 1, 0
s_cselect_b32 s{W0}, 0, {BIG}
{sadr}
v_mov_b32 v3, 0x3f803f80''')
    for f_ in range(2 if SC_ else 4):
        e(f'v_cmp_eq_u32 vcc, {f_}, v2')
        for k in range(4): e(f'v_cndmask_b32 v{SELS+4*f_+k}, 0, v3, vcc')
    zstamps()
    mark=len(g.L)
    if str(opt.get('ch','x2220'))[4]=='0': e([f'v_mov_b64 {v(ACC0+16*tl+k,2)}, 0' for tl in range(4) for k in range(4,16,2)])
    MM=[int(c,16) for c in str(opt.get('mm','x88888888'))[1:]]
    weave(mark,D[n1:MM[0]],1,1); left=D[MM[0]:]
    e(f's_setprio {opt.get("lprio",1)}\ns_waitcnt vmcnt({2+MM[0]})'); g.stamp('l0'); e('s_barrier'); g.stamp('B0')
    def ssum(i):
        st=i%3
        if SC_:
            rd_='|'.join([f's_cmp_eq_u32 s{TQ}, 0',f's_cbranch_scc0 L_sb{i}']+[f'ds_read_b128 {v(SFS[k],4)}, v{(S1,244)[k>>1]} offset:{st*WSS+(k&1)*2048}' for k in range(4)]+[f's_branch L_sd{i}',f'L_sb{i}:']+[f'ds_read_b64_tr_b16 {v(SFS[k]+2*j,2)}, v{S2} offset:{st*WSS+(32*(k>>1)+8*j)*96+(k&1)*(UOFF-GOFF)}' for k in range(4) for j in range(2)]+[f'L_sd{i}:'])
            return [rd_+'|v_nop','s_waitcnt lgkmcnt(0)']+[f'v_mfma_f32_16x16x32_bf16 {v(SACC,4)}, {v(SFS[k],4)}, {v(SELS+4*(k&1),4)}, {"0" if (i==0 and k==0) else v(SACC,4)}' for k in range(4)]
        L=[f'ds_read_b128 {v(SFS[0],4)}, v{S1} offset:{st*WSS}']+[f'ds_read_b64_tr_b16 {v(SFS[1+q_]+2*j,2)}, v{S2} offset:{st*WSS+8*j*96+32*q_}' for q_ in range(3) for j in range(2)]
        return L+['s_waitcnt lgkmcnt(0)']+[f'v_mfma_f32_16x16x32_bf16 {v(SACC,4)}, {v(SFS[k],4)}, {v(SELS+4*k,4)}, {"0" if (i==0 and k==0) else v(SACC,4)}' for k in range(4)]
    e(f's_lshl_b32 s{T1}, s2, 2\ns_add_u32 s{T1}, s{T1}, s{TQ}\ns_cmp_eq_u32 s{T1}, {97*4+3}\ns_cbranch_scc1 L_init2\nL_init2d:')
    g.cold.append(f'L_init2:\nv_mov_b32 v44, 0\nv_mov_b32 v45, 1\ns_mov_b64 exec, 1\nbuffer_store_dword v45, v44, {srd(sDBG)}, 0 offen sc1\ns_mov_b64 exec, -1\ns_branch L_init2d')
    CH=[int(x) for x in opt['ch'][1:]]; OUTO=26
    def chores(bi):
        if bi==CH[0]:
            e(f's_lshl_b32 s{T0}, s{DQ}, 6\nv_add_u32 v6, s{T0}, v4\nv_lshlrev_b32 v6, 10, v6\nv_lshl_add_u32 v{DC}, v7, 4, v6\nv_lshl_add_u32 v{DC+1}, v8, 4, v6')
            e(traddr(0,6)+[f'v_add_u32 v{PTX}, s{XR}, v0',f'v_add_u32 v{PTX+1}, s{XR}, v6',f'v_add_u32 v{PTW}, s{WQ}, v0',f'v_add_u32 v{PTW+1}, s{WQ}, v6'])
        if bi==CH[1]:
            e(f'''s_lshl_b32 s{T0}, s{RB2}, 2
s_add_u32 s{T2}, s{T0}, s{TQ2}
s_and_b32 s{T1}, s{TQ}, 1
s_lshl_b32 s{T1}, s{T1}, 5
s_and_b32 s{T0}, s{TQ}, 2
s_lshl_b32 s{T0}, s{T0}, 1
s_add_u32 s{T1}, s{T0}, s{T1}
s_lshl_b32 s{T0}, s{T2}, 6
s_add_u32 s{WI}, s{T0}, s{T1}
v_lshrrev_b32 v0, 5, v1
v_lshl_add_u32 v{OUTO}, v0, 4, s{WI}
v_and_b32 v6, 3, v4
v_add_u32 v6, v6, v{OUTO}
v_lshlrev_b32 v9, 4, v5
v_lshl_add_u32 v6, v6, 10, v9
s_lshl_b32 s{T1}, s{T1}, 2
s_add_u32 s{T1}, s{T1}, s{V14}
v_lshl_add_u32 v43, v0, 6, s{T1}
v_bfe_u32 v31, v1, 2, 2
v_lshl_add_u32 v31, v0, 2, v31
v_lshlrev_b32 v31, 7, v31
v_and_b32 v0, 3, v1
v_lshl_add_u32 v31, v0, 3, v31
v_and_b32 v0, 16, v1
v_lshl_add_u32 v31, v0, 1, v31
v_add_u32 v31, s{V14}, v31
s_lshl_b32 s{T1}, s{DQ}, 7
v_and_b32 v9, 31, v1
v_lshl_add_u32 v9, v9, 1, s{T1}
v_lshlrev_b32 v0, 1, v9
v_lshl_add_u32 v{OUTO}, v{OUTO}, 11, v0''')
        if bi==CH[2]:
            e(f'v_and_b32 v42, 12, v1\nv_lshlrev_b32 v42, 2, v42\nv_and_or_b32 v42, v1, 3, v42\nv_lshrrev_b32 v0, 4, v1\nv_lshl_add_u32 v42, v0, 2, v42\nv_lshlrev_b32 v42, 4, v42')
            e(f'v_and_b32 v0, 3, v1\nv_and_b32 v44, 48, v1\nv_lshl_add_u32 v44, v0, 6, v44\ns_lshl_b32 s{T1}, s{TQ}, 8\ns_add_u32 s{T1}, s{T1}, {SP}\nv_add_u32 v44, s{T1}, v44')
    D=slab(2); D,left=left+D[:MM[1]],D[MM[1]:]; mark=len(g.L)
    chores(0)
    e(ssum(0)); weave(mark,D,opt.get('n2',2),opt.get('n2l',3))
    e(f's_waitcnt vmcnt({MM[1]})\ns_barrier'); g.stamp('B1')
    def vchk(lbl,ld,n):
        e(f's_waitcnt vmcnt({n})\nv_cmp_gt_u32 vcc, s{TH}, v2\ns_cmp_eq_u64 vcc, 0\ns_cbranch_scc0 {lbl}\n{lbl}ok:')
        g.cold.append(f'''{lbl}:
s_mov_b32 s{SPIN}, 0
{lbl}1:
s_sleep 8
{ld}
s_add_u32 s{SPIN}, s{SPIN}, 1
s_cmp_gt_u32 s{SPIN}, 100000
s_cbranch_scc1 {lbl}ok
s_waitcnt vmcnt(0)
v_cmp_gt_u32 vcc, s{TH}, v2
s_cmp_eq_u64 vcc, 0
s_cbranch_scc0 {lbl}1
s_branch {lbl}ok''')
    gold=f'buffer_load_dword v2, v3, {srd(sDBG)}, s{W0} offen sc1'
    arld=f'buffer_load_dword v2, v3, {srd(sWS)}, s{W0} offen sc1'
    W2PF=f'''s_cmp_eq_u32 s{TQ}, 0
s_cselect_b32 s{sOUT}, s{sCR}, s{sCI}
s_cselect_b32 s{sOUT+1}, s{sCR+1}, s{sCI+1}
s_and_b32 s{T2}, s2, -2
s_lshl_b32 s{T1}, s{T2}, 11
s_mul_i32 s{T2}, s{T2}, {43*128}
s_cmp_ge_u32 s{TQ}, 2
s_cselect_b32 s{sOUT}, s{sDN}, s{sOUT}
s_cselect_b32 s{sOUT+1}, s{sDN+1}, s{sOUT+1}
s_cselect_b32 s{T1}, s{T2}, s{T1}
s_cselect_b32 s{T2}, 42, 31
v_min_u32 v10, s{T2}, v1
s_cmp_eq_u32 s{TQ}, 3
s_cselect_b32 s{T2}, {43*128}, 0
s_add_u32 s{T1}, s{T1}, s{T2}
v_lshlrev_b32 v10, 7, v10
s_bitcmp1_b32 s2, 0
s_cselect_b32 s{T1}, {BIG}, s{T1}
buffer_load_dword v11, v10, {srd(sOUT)}, s{T1} offen
s_mov_b32 s{sOUT}, s62
s_mov_b32 s{sOUT+1}, s63'''
    if opt.get('pe',1)==0:
        W2PF=W2PF.replace('s2, -2','s2, -1').replace(', 42, 31',', 21, 15').replace(f'{43*128}, 0',f'{21*128}, 0').replace(f's_bitcmp1_b32 s2, 0\ns_cselect_b32 s{T1}, {BIG}, s{T1}\n','')
    PM=opt.get('pm',0)
    if PM:
        k_=PM
        W2PF=f'''s_cmp_eq_u32 s{TQ}, 0
s_cselect_b32 s{sOUT}, s{sCR}, s{sCI}
s_cselect_b32 s{sOUT+1}, s{sCR+1}, s{sCI+1}
s_and_b32 s{T2}, s2, {-k_}
s_lshl_b32 s{T1}, s{T2}, 11
s_lshr_b32 s{SPIN}, s{T2}, 6
s_mul_i32 s{SPIN}, s{SPIN}, {22*16}
s_min_u32 s{SPIN}, s{SPIN}, {64*16}
s_and_b32 s{T2}, s{T2}, 63
s_add_u32 s{T2}, s{T2}, s{SPIN}
s_add_u32 s{T2}, s{T2}, {18*16}
s_lshl_b32 s{T2}, s{T2}, 10
s_cmp_ge_u32 s{TQ}, 2
s_cselect_b32 s{sOUT}, s{sDN}, s{sOUT}
s_cselect_b32 s{sOUT+1}, s{sDN+1}, s{sOUT+1}
s_cselect_b32 s{T1}, s{T2}, s{T1}
s_cselect_b32 s{T2}, {8*k_-1}, {16*k_-1}
v_min_u32 v10, s{T2}, v1
s_cmp_eq_u32 s{TQ}, 3
s_cselect_b32 s{T1}, {BIG}, s{T1}
v_lshlrev_b32 v10, 7, v10
{"s_bitcmp1_b32 s2, 0" if PM==2 else ""}
{"s_cselect_b32 s%d, %s, s%d"%(T1,BIG,T1) if PM==2 else ""}
buffer_load_dword v11, v10, {srd(sOUT)}, s{T1} offen
s_mov_b32 s{sOUT}, s62
s_mov_b32 s{sOUT+1}, s63'''
    XP=32; RB_=192 if opt.get('bb',0)==0 else ACC0+4; DS=40; OUTO=26
    def vread(vs, base):
        st=vs%3; L=[]
        for k in range(4): L+=trstep(base+8*k,PTX,st*8192+k*2048)
        for k in range(2): L+=trstep(base+32+8*k,PTW,st*WSS+k*2048)
        return L
    carry=0
    for bi in range(1,7):
        pre=0; post=0; e(left); m_=MM[bi+1]
        if bi==1: e('v_mov_b32 v3, 0\n'+gold)
        if bi==2:
            e(f's_bfe_u32 s{T1}, s2, {(NL.bit_length()-1)*65536+3}\ns_lshl_b32 s{T1}, s{T1}, 7\ns_add_u32 s{W0}, s{W0}, {ARR}\ns_add_u32 s{T1}, s{T1}, s{W0}\ns_mul_i32 s{TH}, s{TH}, {256//NL}\nv_mov_b32 v2, 1\ns_mov_b64 exec, 1\nbuffer_atomic_add v2, v3, {srd(sWS)}, s{T1} offen sc1\ns_mov_b64 exec, -1'); pre+=1
        if bi==opt.get('xp',3):
            e(f's_mov_b32 m0, s{V14}\ns_lshl_b32 s{T1}, s{DQ}, 7\n{"s_mov_b32 s%d, %s"%(T1,BIG) if opt.get("noxt") else ""}\nbuffer_load_dwordx4 v6, {srd(sX)}, s{T1} offen lds\ns_add_u32 s{T1}, s{T1}, {8192-1024}\nbuffer_load_dwordx4 v6, {srd(sX)}, s{T1} offen offset:1024 lds'); pre+=2
        PP=opt.get('pp',0)
        arp=f'v_min_u32 v3, {NL-1}, v1\nv_lshlrev_b32 v3, 7, v3\n'+arld
        if bi==5 and PP==0: e(arp)
        if bi==5 and PP==9: e('v_mov_b32 v2, 64')
        if bi==6:
            e(f'''s_lshl_b32 s{T1}, s{HB}, 10
s_add_u32 s{T1}, s{T1}, {ST_M}
s_mov_b32 m0, s{V14}
s_lshl_b32 s{T2}, s{HB}, 9
buffer_load_dwordx4 v42, {srd(sWS)}, s{T1} offen sc1 lds
s_lshr_b32 s{T1}, s{WI}, 6
s_lshl_b32 s{T1}, s{T1}, 9
s_add_u32 s{T1}, s{T1}, {ST_R-1024}
s_mov_b32 exec_hi, 0
buffer_load_dwordx4 v15, {srd(sWS)}, s{T1} offen offset:1024 sc1 lds
s_lshl_b32 s{T1}, s{TQ}, 9
s_add_u32 m0, s{T1}, {RM}
s_add_u32 s{T2}, s{T2}, {ST_R}
buffer_load_dwordx4 v15, {srd(sWS)}, s{T2} offen sc1 lds
s_mov_b64 exec, -1''')
        if PF==bi and opt.get('pfp',0)==0: e(W2PF); pre+=1
        if opt.get('tw')==bi:
            e(f'v_min_u32 v10, 4, v1\nv_lshlrev_b32 v10, 21, v10\nbuffer_load_dword v45, v10, {srd(sWS)}, 0 offen\ns_mov_b64 exec, 1\nbuffer_load_dword v46, v{OUTO}, {srd(sOUT)}, 0 offen\ns_mov_b64 exec, -1'); pre+=2
        mark=len(g.L)
        if bi==3:
            e(f'''s_lshr_b32 s{T1}, s2, 7
s_lshl_b32 s{T1}, s{T1}, 2
s_add_u32 s{T1}, s{T1}, s{TQ2}
s_lshl_b32 s{T1}, s{T1}, 2
s_lshr_b32 s{T1}, 0x{r3t[::-1]}, s{T1}
s_and_b32 s{T1}, s{T1}, 3
s_mul_i32 s{T2}, s{T1}, {6*16384}
s_add_u32 s{FBR[0]}, s{FB}, s{T2}
s_add_u32 s{FBR[1]}, s{FBR[0]}, {6*16384}
s_cmp_eq_u32 s{T1}, 2
s_cselect_b32 s{FBR[1]}, s{FB}, s{FBR[1]}
s_add_u32 s{FBR[2]}, s{FBR[1]}, {6*16384}
s_cmp_eq_u32 s{T1}, 1
s_cselect_b32 s{FBR[2]}, s{FB}, s{FBR[2]}
{r4(T1)}
s_and_b32 s{T2}, s{T1}, 2
s_lshl_b32 s{T2}, s{T2}, 6
s_add_u32 s{CB}, s{CB}, s{T2}
s_xor_b32 s{CB2}, s{CB}, 128
s_bitcmp1_b32 s{T1}, 0
s_cselect_b32 s{T1}, s{sCI}, s{sCR}
s_cselect_b32 s{T2}, s{sCI+1}, s{sCR+1}
s_cselect_b32 s{sCI}, s{sCR}, s{sCI}
s_cselect_b32 s{sCI+1}, s{sCR+1}, s{sCI+1}
s_mov_b32 s{sCR}, s{T1}
s_mov_b32 s{sCR+1}, s{T2}''')
        chores(bi)
        if bi==CH[3]: e([f'v_mov_b32 v{ACC0+16*tl+k}, 0' for tl in range(4) for k in range(4,16)])
        if bi==opt.get('xq',5): e([f'ds_read_b64_tr_b16 {v(XP+2*tl,2)}, v31 offset:{(tl>>1)*1024+(tl&1)*64}' for tl in range(4)])
        e(ssum(bi))
        D=slab(bi+2) if bi<6 else vfull(8); left=D[m_:]
        weave(mark,D[:m_],opt.get('wf',2),opt.get('wl',3))
        if PF==bi and opt.get('pfp',0)==1: e(W2PF); post+=1
        if bi==4 and PP==1: e(arp); post+=1
        g.stamp(f'p{bi+1}')
        if bi==1: vchk('L_go',gold,m_+pre+post)
        elif bi==5: vchk('L_poll',arld,m_+post+(1 if PF==5 and not post else 0))
        n=m_+post+((1 if PF==bi and not post else 0) if bi in (5,6) else pre)
        e(f's_waitcnt vmcnt({n}) lgkmcnt(0)\ns_barrier'); g.stamp(f'B{bi+1}')
        carry=post
    RQ=(lambda mh: RB_+8*mh) if opt.get('bb',0)==0 else (lambda mh: [4,16][mh])
    BB=[f'v_lshlrev_b32 v{DS}, 16, v{DS}',f'v_lshlrev_b32 v{DS+1}, 16, v{DS+1}']
    for mh in range(2):
        for dh in range(2):
            for i in range(4):
                a=TILE(mh,dh)+i; xr=XP+2*(2*mh+dh)+(i>>1)
                BB+=[f'v_lshlrev_b32 v{a}, 16, v{xr}' if i%2==0 else f'v_and_b32 v{a}, 0xffff0000, v{xr}',f'v_fma_f32 v0, v{a}, v{RQ(mh)+i}, v{RQ(mh)+4+i}',f'v_fmac_f32 v{a}, v0, v{DS+dh}']
    BP=opt.get('bp',1)
    V9=left+vfull(9); n9=opt.get('n9',12); WW=opt.get('ww',1)
    n0=opt.get('n0',2); e(V9[:n0]); V9=V9[n0:]; n9-=n0
    mark=len(g.L)
    e([f'ds_read_b128 {v(RQ(mh)+4*k,4)}, v43 offset:{1024+32*mh+256*k}' for mh in range(2) for k in range(2)])
    e(ssum(7))
    swr=f's_mov_b32 exec_lo, 0x000f000f\ns_mov_b32 exec_hi, 0x000f000f\nds_write_b128 v44, {v(SACC,4)}\ns_mov_b64 exec, -1'
    if WW==1: e(BB if BP==1 else ''); e(f's_waitcnt vmcnt({opt.get("wv",0)})'); e(swr); e('s_waitcnt lgkmcnt(0)' if opt.get('wl2',0) else ''); e(mix(BB,V9[:n9],5) if BP==2 else V9[:n9])
    if WW==0: e(swr); e(V9[:n9])
    if WW==2: weave(mark,V9[:n9],1,1); e(swr)
    if WW==3: weave(mark,V9[:n9],1,1); e('s_waitcnt vmcnt(0)'); e(swr)
    g.stamp('p8')
    e('s_waitcnt lgkmcnt(0)\ns_setprio 0\ns_barrier'); g.stamp('B8')
    wstart=len(g.L)
    if BP==3: e('s_setprio 1')
    e(mix(BB,V9[n9:],6) if BP in (0,3) else V9[n9:])
    if BP==3: e('s_setprio 0')
    g.stamp('c9')
    e('s_waitcnt vmcnt(12)')
    e(mix(vread(8,B1),vfull(10),2))
    g.stamp('c10')
    e('s_waitcnt vmcnt(12) lgkmcnt(0)')
    e(mix(vread(9,B2),vfull(11),2))
    g.stamp('c11')
    e('s_waitcnt vmcnt(12) lgkmcnt(0)')
    e(mix(vread(10,B3),vfull(12),2))
    g.stamp('c12')
    e(p2base(1))
    e(f's_lshl_b32 s{T1}, s{TQ}, 7\nv_xor_b32 v11, s{T1}, v15\nv_mov_b32 v10, v{OUTO}\ns_lshl_b32 s{T1}, s{TQ}, 2\ns_add_u32 s{T1}, s{T1}, {ZF}\nv_mov_b32 v2, s{T1}\nv_mov_b32 v3, 1')
    ap=opt.get('ap',4); V=vfull(13)
    e('s_waitcnt lgkmcnt(0)'); e(V[:12-ap]); e(sld if ap else ''); e(V[12-ap:])
    if opt.setdefault('th',8):
        W=g.L[wstart:]; del g.L[wstart:]; c=0
        for l_ in W:
            if ' lds' in l_:
                c+=1
                if opt.get('th0',16)<c<=opt.get('th1',99): e(f's_waitcnt vmcnt({opt["th"]})')
            e(l_)
    g.stamp('chores')
    assert not opt.get('bb',0)
    e(spoll('L_fp1',6,opt.get('slp1',2),not ap))
    g.stamp('go')
    e('s_setprio 1')
    loads=[(FBR[s_//6],(s_%6)*1024+mh*HSTR) for s_ in range(18) for mh in range(2)]
    groups=[[(TILE(mh,dh),2*s_+mh,B1+8*s_+4*dh,False) for mh in range(2) for dh in range(2)] for s_ in range(18)]
    run_groups(groups,loads,[16+4*k for k in range(8)]+[4],11,{ZE:(['s_barrier',g.st('Z1')],[])},['s_waitcnt vmcnt(9)','ds_write_b32 v2, v3'],{s_:[B1+8*s_,B1+8*s_+4] for s_ in range(18)},opt.get('dp1',14))
    g.stamp('ph1')
    e('s_setprio 0')
    XS=112
    for j in range(1,4):
        e(f's_xor_b32 s{T1}, s{TQ}, {j}\ns_mul_i32 s{T1}, s{T1}, {XW}\ns_add_u32 s{T1}, s{T1}, {(j-1)*4096}\nv_add_u32 v{3+j}, s{T1}, v15')
    e(f'v_add_u32 v7, s{XR}, v15\nv_add_u32 v8, s{WQ}, v15')
    for j in range(1,4):
        for tl in range(4): e(f'ds_write_b128 v{3+j}, {v(ACC0+16*tl+4*j,4)} offset:{tl*1024}')
    e('s_waitcnt lgkmcnt(0)\ns_barrier'); g.stamp('Z2')
    def addq(a,srcs,pk):
        for q_ in srcs:
            if pk:
                for j in range(2): e(f'v_pk_add_f32 {v(a+2*j,2)}, {v(a+2*j,2)}, {v(q_+2*j,2)}')
            else:
                for j in range(4): e(f'v_add_f32 v{a+j}, v{a+j}, v{q_+j}')
    def outst(mh,dh):
        for i in range(4):
            if i%2==0: e(f's_mov_b32 s{T0}, {mh*16384+i*2048}')
            e(f'buffer_store_dword v{TILE(mh,dh)+i}, v10, {srd(sOUT)}, s{T0} offen offset:{dh*128+(i&1)*2048} sc1')
    for tl in range(4):
        for j in range(3): e(f'ds_read_b128 {v(XS+12*tl+4*j,4)}, v7 offset:{j*4096+tl*1024}')
    for tl in range(4):
        e(f's_waitcnt lgkmcnt({9-3*tl})')
        addq(ACC0+16*tl,[XS+12*tl+4*k for k in range(3)],False)
    e('s_barrier'); g.stamp('Z23')
    e('s_setprio 1')
    for dh in range(2):
        for k in range(4): e(f'ds_read_b128 {v(XS+16*dh+4*k,4)}, v7 offset:{16384+k*2048+dh*1024}')
    for dh in range(2):
        e(f's_waitcnt lgkmcnt({4-4*dh})')
        addq(TILE(0,dh),[XS+16*dh+4*k for k in range(4)],False); outst(0,dh)
    for dh in range(2):
        e('s_barrier')
        if dh: g.stamp('p2end')
        for k in range(4): e(f'ds_read_b128 {v(XS+16*dh+4*k,4)}, v8 offset:{dh*WSS+k*1024}')
        for k in range(0,4,2):
            e(f's_waitcnt lgkmcnt({2-k})'); addq(TILE(1,dh),[XS+16*dh+4*k,XS+16*dh+4*k+4],True)
        outst(1,dh)
    e('s_branch L_fin' if opt.get('stamps') else 's_endpgm')
    e(g.cold); g.cold=[]

    SL=16; XA=22; SA=24; TA=26; GA=27; SPA=28; RA=29; SSA=30; SS=12
    L64,WG,WH,L32,WSEL,KAP,CP,EA,NI=32,34,36,38,40,42,44,46,47
    PR=80; PI=96; FA=112; XB=208; WR=240
    RS=XB; GC=XB+16; MR=WR
    if 'pc' in opt: e(f'.p2align 12\n.fill {opt["pc"]//4}, 4, 0xbf800000')
    e('L_comp:')
    if not opt.get('nb',1): e(NEAR)
    R0=112
    r=lambda k: R0+k
    def allred(a,t):
        for k in (8,4,2,1): e(f'v_add_f32_dpp {v(a)}, {v(a)}, {v(a)} row_ror:{k} row_mask:0xf bank_mask:0xf')
        e(f'v_mov_b32 {v(t)}, {v(a)}\nv_permlane16_swap_b32 {v(t)}, {v(a)}\nv_add_f32 {v(a)}, {v(a)}, {v(t)}')
    m_,sd,A_,B_,R_,NM,MR_,ad,dt,tp=r(24),r(26),r(8),r(9),r(10),r(11),r(13),r(28),r(29),r(30)
    e(fsplit(CT,FS,FCNT,T0))
    common(0)
    e(f'''s_lshl_b32 s{T0}, s{CT}, 12
s_add_u32 s{T0}, s{T0}, {EOFF}
s_add_u32 s{sE}, s66, s{T0}
s_addc_u32 s{sE+1}, s67, 0
s_mov_b32 s{sE+2}, 4096
s_mov_b32 s{sE+3}, 0x20000
v_add_u32 v{XA}, s{XR}, v6
v_xor_b32 v{XA+1}, 64, v{XA}
v_add_u32 v{SA}, {WB}, v6
v_xor_b32 v{SA+1}, 64, v{SA}
v_add_u32 v{TA}, {WB+GOFF}, v10
v_lshl_add_u32 v{GA}, v2, 4, s{V14}
v_and_b32 v{SPA}, 48, v1
s_lshl_b32 s{T0}, s{TQ}, 9
s_add_u32 s{T0}, s{T0}, {RM}
v_lshl_add_u32 v{RA}, v{SPA}, 2, s{T0}
v_add_u32 v{SPA}, {SP}, v{SPA}
v_lshlrev_b32 v{SSA}, 2, v2
v_add_u32 v{SSA}, {SP}, v{SSA}
v_lshlrev_b32 v{EA}, 4, v2
v_and_b32 v0, 1, v1
v_lshlrev_b32 v0, 4, v0
v_mov_b32 v6, 0x3f80
v_lshlrev_b32 v0, v0, v6
v_bfe_u32 v6, v1, 2, 2
v_cmp_eq_u32 vcc, v6, v3
v_and_b32 v6, 2, v1
v_mov_b32 v{SL}, 0
v_cndmask_b32 v0, 0, v0, vcc
v_cmp_eq_u32 vcc, 0, v6
v_mov_b32 v{SL+1}, 0
v_mov_b32 v{SL+4}, 0
v_cndmask_b32 v{SL+2}, 0, v0, vcc
v_cndmask_b32 v{SL+3}, v0, 0, vcc
v_mov_b32 v{SL+5}, 0
''')
    e(f'''; lanes (l&31): 0..3 quad (A,B,R,-m), 4 r, 5 -m*r, 6 counter clear, 16..31 carry sentinel
v_and_b32 v6, 31, v1
v_lshrrev_b32 v7, 5, v1
s_sub_u32 s{T1}, 31, s{HB}
s_and_b32 s{T2}, s{T1}, 1
s_lshr_b32 s{T1}, s{T1}, 1
s_lshl_b32 s{T1}, s{T1}, 5
s_add_u32 s{T1}, s{T1}, s{T2}
s_lshl_b32 s{SOW}, s{T1}, 3
s_lshl_b32 s{T1}, s{CT}, 12
s_add_u32 s{T1}, s{T1}, s{SOW}
s_add_u32 s{T1}, s{T1}, {EOFF-256}
v_lshl_add_u32 v{ad}, v6, 2, v7
v_lshl_add_u32 v{ad}, v{ad}, 2, s{T1}
v_mov_b32 v{dt}, -1
s_and_b32 s{T1}, s{CT}, 7
s_cselect_b32 s{T1}, {BIG}, s{HA}
v_cmp_gt_u32 vcc, 7, v6
v_lshl_add_u32 v{tp}, v7, 7, s{T1}
s_lshr_b32 s{T1}, s{WI}, 5
v_cndmask_b32 v{ad}, v{ad}, v{tp}, vcc
v_cndmask_b32 v{dt}, v{dt}, 0, vcc
s_lshl_b32 s{T1}, s{T1}, 9
s_and_b32 s{T2}, s{WI}, 31
s_lshl_b32 s{T2}, s{T2}, 3
s_add_u32 s{T1}, s{T1}, s{T2}
s_add_u32 s{T1}, s{T1}, {ST_R-1024}
v_cmp_gt_u32 vcc, 6, v6
v_lshl_add_u32 v{tp}, v6, 6, v7
v_lshl_add_u32 v{tp}, v{tp}, 2, s{T1}
v_cndmask_b32 v{ad}, v{ad}, v{tp}, vcc
s_lshl_b32 s{T1}, s{WI}, 5
s_add_u32 s{T1}, s{T1}, {ST_M}
v_cmp_gt_u32 vcc, 4, v6
v_lshl_add_u32 v{tp}, v7, 2, v6
v_lshl_add_u32 v{tp}, v{tp}, 2, s{T1}
v_cndmask_b32 v{ad}, v{ad}, v{tp}, vcc''')
    e(f'''s_mul_i32 s{HB}, s{HB}, {2*HSTR}''')
    if opt.get('nost'): e(f's_mov_b32 s{HB}, {BIG}')
    FO=[ROT,WSTEP,XL]
    for sb in range(3): e(f's_add_u32 s{T2}, s{FS}, {sb}\ns_lshl_b32 s{T2}, s{T2}, 10\ns_add_u32 s{T2}, s{T2}, s{HB}\ns_cmp_gt_u32 s{FCNT}, {sb}\ns_cselect_b32 s{FO[sb]}, s{T2}, {BIG}')
    e(f's_and_b32 s{T0}, s{CT}, 7\ns_cmp_lt_u32 s{T0}, 6\ns_cselect_b32 s{WL}, s{HA}, {BIG}\ns_add_u32 s{HA}, s{HA}, 128\ns_add_u32 s{SOX}, s{CT}, 86\ns_lshl_b32 s{SOX}, s{SOX}, 10\ns_add_u32 s{SOX}, s{SOX}, s{HB}')
    if opt.get('stamps'): e(mksrd(sX,36,37,2097152))
    zstamps()
    e(f'''s_waitcnt vmcnt(2)
v_lshlrev_b32 v244, 16, v244
v_lshlrev_b32 v245, 16, v245
v_lshlrev_b32 v246, 16, v246
v_mul_f32 v246, {F(LOG2E)}, v246
v_exp_f32 v246, v246
v_cvt_pk_bf16_f32 v246, v246, v246
v_lshlrev_b32 v246, 16, v246
v_mul_f32 v247, v246, v244
v_mul_f32 v248, v246, v245
v_mul_f32 v247, {F(LOG2E)}, v247
v_mul_f32 v248, 0.15915494, v248''')
    def cpow(dr,di,n):
        e([f'v_mul_f32 v249, {n}, v247',f'v_mul_f32 v250, {n}, v248','v_rndne_f32 v251, v250','v_exp_f32 v249, v249','v_sub_f32 v250, v250, v251','v_cos_f32 v251, v250','v_sin_f32 v250, v250',f'v_mul_f32 {v(dr)}, v249, v251',f'v_mul_f32 {v(di)}, v249, v250'])
    cpow(PR,PI,'1.0')
    for j in range(1,16):
        a=(j-1)//2; b=j-1-a
        e([f'v_mul_f32 {v(PR+j)}, {v(PR+a)}, {v(PR+b)}',f'v_mul_f32 {v(PI+j)}, {v(PR+a)}, {v(PI+b)}',f'v_fma_f32 {v(PR+j)}, -{v(PI+a)}, {v(PI+b)}, {v(PR+j)}',f'v_fmac_f32 {v(PI+j)}, {v(PI+a)}, {v(PR+b)}'])
    cpow(L32,L32+1,F(32.0)); cpow(L64,L64+1,F(64.0))
    e(['v_and_b32 v252, 16, v1','v_cvt_f32_u32 v252, v252']); cpow(WSEL,WSEL+1,'v252')
    e(['v_and_b32 v252, 48, v1','v_cvt_f32_u32 v252, v252']); cpow(WG,WG+1,'v252')
    e(f's_bitcmp1_b32 s{TQ}, 0\ns_cselect_b32 s{T0}, {F(-64.0)}, 0\nv_mul_f32 v252, {F(32.0)}, v252\nv_add_f32 v252, s{T0}, v252\nv_max_f32 v252, 0, v252'); cpow(254,255,'v252')
    e(['v_mul_f32 v249, v244, v244','v_fmac_f32 v249, v245, v245','v_rcp_f32 v249, v249',f'v_add_f32 v250, -1.0, v{PR}',f'v_mul_f32 v{KAP}, v250, v244',f'v_fmac_f32 v{KAP}, v{PI}, v245',
        f'v_mul_f32 v{KAP+1}, v{PI}, v244',f'v_fma_f32 v{KAP+1}, -v250, v245, v{KAP+1}','v_add_f32 v249, v249, v249',f'v_mul_f32 v{KAP}, v249, v{KAP}',f'v_mul_f32 v{KAP+1}, v249, v{KAP+1}'])
    e(cmul(WH,KAP,254)); e(f'v_sub_f32 v{NI}, 0, v{PI}')
    g.stamp('lam')
    e('s_waitcnt vmcnt(0)')
    for i in range(8): e(f'v_lshlrev_b32 v{r(8+2*i)}, 16, v{r(i)}\nv_and_b32 v{r(9+2*i)}, 0xffff0000, v{r(i)}')
    e(f'v_pk_add_f32 {v(r(24),2)}, {v(r(8),2)}, {v(r(10),2)}')
    for i in range(2,8): e(f'v_pk_add_f32 {v(r(24),2)}, {v(r(24),2)}, {v(r(8+2*i),2)}')
    e(f'v_add_f32 v{r(24)}, v{r(24)}, v{r(25)}')
    allred(r(24),r(25))
    e(f'v_mul_f32 v{r(24)}, {F(1/512)}, v{r(24)}')
    for i in range(8): e(f'v_pk_add_f32 {v(r(8+2*i),2)}, {v(r(8+2*i),2)}, {v(r(24),2)} op_sel_hi:[1,0] neg_lo:[0,1] neg_hi:[0,1]')
    e(f'v_pk_mul_f32 {v(r(26),2)}, {v(r(8),2)}, {v(r(8),2)}')
    for i in range(1,8): e(f'v_pk_fma_f32 {v(r(26),2)}, {v(r(8+2*i),2)}, {v(r(8+2*i),2)}, {v(r(26),2)}')
    e(f'v_add_f32 v{r(26)}, v{r(26)}, v{r(27)}')
    allred(r(26),r(27))
    e(f'''v_mul_f32 v{sd}, {F(1/512)}, v{sd}
v_cvt_pk_bf16_f32 v{m_}, v{m_}, v{sd}
v_and_b32 v{sd}, 0xffff0000, v{m_}
v_lshlrev_b32 v{m_}, 16, v{m_}
v_add_f32 v{sd}, {F(1e-5)}, v{sd}
v_cvt_pk_bf16_f32 v{sd}, v{sd}, v{sd}
v_lshlrev_b32 v{sd}, 16, v{sd}
v_sqrt_f32 v{sd}, v{sd}
v_sub_f32 v{NM}, 0, v{m_}
v_cvt_pk_bf16_f32 v{sd}, v{sd}, v{sd}
v_lshlrev_b32 v{sd}, 16, v{sd}          ; sd
v_mul_f32 v{R_}, v{sd}, v{sd}
v_rcp_f32 v{sd}, v{sd}                  ; r
s_mov_b32 s{T0}, 8
s_mov_b32 s{T0+1}, 8
v_mul_f32 v{A_}, {F(-2*math.sqrt(2/math.pi)*LOG2E)}, v{sd}
v_mul_f32 v{B_}, v{sd}, v{sd}
v_mul_f32 v{MR_}, v{NM}, v{sd}
v_mul_f32 v{B_}, {F(0.044715)}, v{B_}
v_cndmask_b32 v{dt}, v{dt}, v{NM}, s[{T0}:{T0+1}]
v_mul_f32 v{B_}, v{B_}, v{A_}''')
    for bit,src in ((32,MR_),(16,sd),(4,R_),(2,B_),(1,A_)): e(f's_mov_b32 vcc_lo, {bit}\ns_mov_b32 vcc_hi, {bit}\nv_cndmask_b32 v{dt}, v{dt}, v{src}, vcc')
    e(f's_mov_b32 exec_lo, 0xffff007f\ns_mov_b32 exec_hi, 0xffff007f\nbuffer_store_dword v{dt}, v{ad}, {srd(sWS)}, 0 offen sc1\ns_mov_b64 exec, -1')
    g.stamp('st')
    if opt.get('ic'):
        e(f's_sub_u32 s{SPIN}, s{TQ}, 4\ns_mov_b64 exec, 0\nL_ret:\ns_add_u32 s{SPIN}, s{SPIN}, 4')
        for k in range(8): e(f's_cmp_eq_u32 s{SPIN}, {k}\ns_cbranch_scc1 L_pad{k}')
        e('s_mov_b64 exec, -1')
        g.stamp('icd')
    e(f's_setprio {opt.get("cprio",0)}\ns_barrier'); g.stamp('B0')
    X=lambda b,t4: XB+16*b+4*t4
    Wq=lambda q: WR+4*(q%4)
    def wr(q):
        n,k=divmod(q,8); i,u=divmod(n,2); st=i%3
        if k<2: return [f'ds_read_b128 {v(Wq(q),4)}, v{SA+u} offset:{st*WSS+k*2048}']
        sb,up=divmod(k-2,2)
        return [f'ds_read_b64_tr_b16 {v(Wq(q)+2*j,2)}, v{TA} offset:{st*WSS+(32*u+8*j)*96+32*sb+up*(UOFF-GOFF)}' for j in range(2)]
    def xr(n,t4):
        i,u=divmod(n,2)
        return f'ds_read_b128 {v(X(n&1,t4),4)}, v{XA+u} offset:{(i%3)*8192+t4*2048}'
    ops=[]
    def issue(x,tag): e(x); ops.append(tag)
    issue(wr(0)[0],('w',0))
    for t4 in range(4): issue(xr(0,t4),('x',0))
    for q in (1,2):
        for x in wr(q): issue(x,('w',q))
    for q in range(128):
        n,k=divmod(q,8); nxt=q+3
        need=[('w',q)]+([('x',n)] if k==0 else [])
        last=max(i for i,o in enumerate(ops) if o in need)
        if nxt%16==0:
            g.stamp(f'p{nxt//16}')
            e(('s_waitcnt vmcnt(0) lgkmcnt(0)' if nxt==32 else 's_waitcnt lgkmcnt(0)')+'\ns_barrier'); g.stamp(f'B{nxt//16}')
        elif q<125: e(f's_waitcnt lgkmcnt({len(ops)-1-last})')
        R=[(x,('w',nxt)) for x in wr(nxt)] if nxt<128 else []
        if n<15 and k in (5,6): R+=[(xr(n+1,t4),('x',n+1)) for t4 in (2*(k-5),2*(k-5)+1)]
        if q in (121,122): R+=[(f'ds_read_b128 {v(RS+4*j,4)}, v{RA} offset:{16*j}',('r',0)) for j in (2*(q-121),2*(q-121)+1)]
        if q==125: R+=[(f'ds_read_b32 v{SS+j}, v{SSA} offset:{64*j}',('r',0)) for j in range(2)] if SC_ else [(f'ds_read_b32 v{4+j}, v{SSA} offset:{256*j}',('r',0)) for j in range(4)]
        if q==126: R+=[(f'ds_read_b128 {v(MR+4*j,4)}, v{RA} offset:{256+16*j}',('r',0)) for j in (0,1)]
        if q==127: R+=[('',None),(f'ds_read_b128 {v(MR+8,4)}, v{RA} offset:{256+32}',('r',0))]
        for t4 in range(4):
            a=(ACC0+16*k if k<2 else FA+16*(k-2))+4*t4; c='0' if n==0 else v(a,4)
            xo,wo=v(X(n&1,t4),4),v(Wq(q),4)
            e(f'v_mfma_f32_16x16x32_bf16 {v(a,4)}, {xo if k<2 else wo}, {wo if k<2 else xo}, {c}')
            if R:
                x,tg=R.pop(0)
                if tg: issue(x,tg)
        assert not R
    g.stamp('loopend')
    Xr=ACC0; Yr=ACC0+16; Z,T,P,Q=4,6,8,10
    if not SC_: e(f's_waitcnt lgkmcnt(3)\nv_add_f32 v{SS}, v4, v6\nv_add_f32 v{SS+1}, v5, v7')
    else: e('s_nop 1')
    e(f'ds_read_b128 {v(MR+12,4)}, v{RA} offset:{256+48}')
    for i in range(8): e(f'v_pk_mul_f32 {v(Xr+2*i,2)}, {v(Xr+2*i,2)}, {v(RS+2*i,2)}\nv_pk_mul_f32 {v(Yr+2*i,2)}, {v(Yr+2*i,2)}, {v(RS+2*i,2)}')
    e('s_waitcnt lgkmcnt(0)')
    for i in range(8):
        xx=v(Xr+2*i,2); yy=v(Yr+2*i,2)
        e(f'v_pk_fma_f32 {xx}, {v(MR+2*i,2)}, {v(SS,2)}, {xx} op_sel_hi:[1,0,1]\nv_pk_fma_f32 {yy}, {v(MR+2*i,2)}, {v(SS,2)}, {yy} op_sel:[0,1,0] op_sel_hi:[1,1,1]')
    SG=[RS,MR,RS]; SGT=RS+8; TMP=MR+8
    if SC_: SG=[RS,RS+8,MR]
    def sread(sb):
        if SC_: return [f'ds_read_b128 {v(SG[s_]+4*p_,4)}, v{SPA} offset:{256*(1+s_)+64*p_}' for s_ in range(3) for p_ in range(2)] if sb==0 else []
        return [f'ds_read_b128 {v((SG[sb],SGT)[q_>>1]+4*(q_&1),4)}, v{SPA} offset:{256*q_+64*(1+sb)}' for q_ in range(4)]
    def sadd(sb):
        if SC_: return ['s_waitcnt lgkmcnt(0)'] if sb==0 else []
        return ['s_waitcnt lgkmcnt(0)']+[f'v_pk_add_f32 {v(SG[sb]+2*k,2)}, {v(SG[sb]+2*k,2)}, {v(SGT+2*k,2)}' for k in range(4)]
    SC=[]
    for j in range(1,16): SC+=[f'v_fmac_f32 v{Xr+j}, v{PR}, v{Xr+j-1}',f'v_fmac_f32 v{Yr+j}, v{PR}, v{Yr+j-1}',f'v_fmac_f32 v{Xr+j}, v{NI}, v{Yr+j-1}',f'v_fmac_f32 v{Yr+j}, v{PI}, v{Xr+j-1}']
    GF=opt.get('gf',0)
    rd=[f'ds_read_b128 {v(GC+4*k,4)}, v{GA} offset:{256*k}' for k in range(4)]+sread(0)
    if GF:
        e(mix(SC[:GF],rd,2)); SC=SC[GF:]; rd=['']*8
    mark=len(g.L)
    e(SC)
    g.stamp('a_scan')
    e(f'v_mov_b32 v{T}, v{Xr+15}\nv_mov_b32 v{T+1}, v{Yr+15}\nv_mov_b32 v{Z}, 0\nv_mov_b32 v{Z+1}, 0'); e(rd[:2])
    e(f'v_permlane16_swap_b32 v{Z}, v{T}\nv_permlane16_swap_b32 v{Z+1}, v{T+1}')
    e(cfma(P,(PR+15,PI+15),Z,(Xr+15,Yr+15)))
    e(f'v_mov_b32 v{Q}, v{P}\nv_mov_b32 v{Q+1}, v{P+1}\nv_mov_b32 v{T}, 0\nv_mov_b32 v{T+1}, 0\nv_permlane16_swap_b32 v{Q}, v{P}\nv_permlane16_swap_b32 v{Q+1}, v{P+1}'); e(rd[2:3])
    e(f'v_permlane32_swap_b32 v{T}, v{P}\nv_permlane32_swap_b32 v{T+1}, v{P+1}')
    e(cfma(P,L32,T,P))
    e(f'''v_min_u32 v{P}, -2, v{P}
v_min_u32 v{P+1}, -2, v{P+1}
s_mov_b32 exec_lo, 0
s_mov_b32 exec_hi, 0xffff0000
buffer_store_dwordx2 {v(P,2)}, v{EA}, {srd(sE)}, s{SOW} offen sc1
s_mov_b64 exec, -1''')
    g.stamp('b_pub')
    e(rd[3:])
    e(cfma(Z,WSEL,T,Z)+cmul(CP,KAP,Z))
    e(f'v_and_b32 v2, 48, v1\nv_lshl_add_u32 v{EA}, v2, 6, v{EA}\ns_add_u32 s{SOW}, s{SOW}, 248\ns_and_b32 s{SOW}, s{SOW}, 0xffffff00\nv_mov_b32 v2, 1\nv_mov_b32 v3, 0')
    if GF:
        SCAN=g.L[mark:]; del g.L[mark:]
    def gelu(sb, tb):
        acc=FA+32*sb; sg=SG[sb]; L=[]; t=TMP
        G_=lambda i: v(acc+8*tb+2*i,2); U_=lambda i: v(acc+16+8*tb+2*i,2); T_=lambda i: v(t+2*i,2)
        cp=lambda i: v(GC+4*(2*tb+(i>>1)),2); rp=lambda i: v(GC+4*(2*tb+(i>>1))+2,2); o=acc+16+8*tb
        for i in range(4): L.append(f'v_pk_fma_f32 {G_(i)}, {v(sg+2*(i&1),2)}, {rp(i)}, {G_(i)} op_sel:[0,1,0] op_sel_hi:[1,1,1]')
        for i in range(4): L.append(f'v_pk_mul_f32 {T_(i)}, {G_(i)}, {G_(i)}')
        for i in range(4): L.append(f'v_pk_fma_f32 {T_(i)}, {T_(i)}, {cp(i)}, {cp(i)} op_sel:[0,1,0] op_sel_hi:[1,1,0]')
        for i in range(4): L.append(f'v_pk_mul_f32 {T_(i)}, {T_(i)}, {G_(i)}')
        for i in range(8): L.append(f'v_exp_f32 {v(t+i)}, {v(t+i)}')
        for i in range(4): L.append(f'v_pk_fma_f32 {U_(i)}, {v(sg+4+2*(i&1),2)}, {rp(i)}, {U_(i)} op_sel:[0,1,0] op_sel_hi:[1,1,1]')
        for i in range(4): L.append(f'v_pk_fma_f32 {T_(i)}, {T_(i)}, {rp(i)}, {rp(i)} op_sel_hi:[1,0,0]')
        for i in range(8): L.append(f'v_rcp_f32 {v(t+i)}, {v(t+i)}')
        for i in range(4): L.append(f'v_pk_mul_f32 {G_(i)}, {G_(i)}, {U_(i)}')
        for i in range(4): L.append(f'v_pk_mul_f32 {G_(i)}, {G_(i)}, {T_(i)}')
        for i in (0,2,1,3): L.append(f'v_cvt_pk_bf16_f32 {v(o+i)}, {v(acc+8*tb+2*i)}, {v(acc+8*tb+2*i+1)}')
        L.append(f's_add_u32 s{T1}, s{FO[sb]}, {tb*HSTR}\nv_permlane16_swap_b32 v{o}, v{o+2}\nv_permlane16_swap_b32 v{o+1}, v{o+3}\nbuffer_store_dwordx4 {v(o,4)}, v15, {srd(sWS)}, s{T1} offen sc1')
        return L
    signal=lambda sr: f's_mov_b64 exec, 1\nbuffer_atomic_add v2, v3, {srd(sWS)}, s{sr} offen sc1\ns_mov_b64 exec, -1'
    ER=[FA+32+2*k for k in range(8)]
    eld='\n'.join(f'buffer_load_dwordx4 {v(ER[2*u_],4)}, v{EA}, {srd(sE)}, s{SOW} offen offset:{256*u_} sc1' for u_ in range(4))
    e(sadd(0)); g.stamp('t0'); e(gelu(0,0)[:-1]); g.stamp('t1'); e(gelu(0,0)[-1]); g.stamp('t2'); e(mix(gelu(0,1),sread(1),8)); g.stamp('t3'); e(sadd(1)); e(gelu(1,0)[:-1]); g.stamp('t4'); e(gelu(1,0)[-1]); g.stamp('t5'); e(mix(gelu(1,1),sread(2),8)); g.stamp('t6'); e(sadd(2)); e(eld if opt.get('eq',0)<0 else ''); e(gelu(2,0)); g.stamp('t7')
    EP=opt.get('ep',0); SP_=opt.get('sgp',2); EQ=opt.get('eq',0)
    L=gelu(2,1)
    if EP==0 and EQ>=0: L=mix(L,eld.split('\n'),EQ) if EQ else [eld]+L
    e(L)
    g.stamp('gdone')
    if GF:
        assert EP==1
        e(SCAN)
    elif EP==1: e(eld)
    kp=v(KAP,2)
    for i in range(8):
        xx=v(Xr+2*i,2); yy=v(Yr+2*i,2); tt=v(4+2*(i&1),2)
        e([f'v_pk_mul_f32 {tt}, {xx}, {kp} op_sel:[0,1] op_sel_hi:[1,1] neg_lo:[0,1] neg_hi:[0,1]',f'v_pk_mul_f32 {xx}, {xx}, {kp} op_sel_hi:[1,0]',
           f'v_pk_fma_f32 {xx}, {yy}, {kp}, {xx} op_sel:[0,1,0] op_sel_hi:[1,1,1] neg_lo:[0,1,0] neg_hi:[0,1,0]',f'v_pk_fma_f32 {yy}, {yy}, {kp}, {tt} op_sel_hi:[1,0,1] neg_lo:[0,1,0] neg_hi:[0,1,0]'])
    chk='\n'.join([f'v_max3_u32 v0, v{ER[0]}, v{ER[0]+1}, v{ER[1]}',f'v_max3_u32 v4, v{ER[1]+1}, v{ER[2]}, v{ER[2]+1}']+[f'v_max3_u32 v{(0,4)[u_&1]}, v{ER[u_]}, v{ER[u_]+1}, v{(0,4)[u_&1]}' for u_ in range(3,8)]+['v_max_u32 v0, v0, v4','v_cmp_eq_u32 vcc, -1, v0','s_cmp_eq_u64 vcc, 0'])
    if GF:
        e('s_waitcnt vmcnt(1)'); e(signal(WL)); g.stamp('flag0')
        e(f's_waitcnt vmcnt({opt.get("gw",1)})'); e(eld); e('s_waitcnt vmcnt(0)')
    elif EP==1:
        e('s_waitcnt vmcnt(4)'); e(signal(WL)); g.stamp('flag0')
    e(f's_waitcnt vmcnt({2 if EQ<0 else 1})\n{chk}\ns_cbranch_scc0 L_epoll\nL_eok:')
    pre='' if EP==1 else f's_waitcnt vmcnt(0)\n{signal(WL)}\ns_mov_b32 s{WL}, {BIG}'
    g.cold.append(f'''L_epoll:
{pre}
s_mov_b32 s{SPIN}, 0
L_epoll1:
s_sleep 4
{eld}
s_add_u32 s{SPIN}, s{SPIN}, 1
s_cmp_gt_u32 s{SPIN}, 100000
s_cbranch_scc1 L_eok
s_waitcnt vmcnt(0)
{chk}
s_cbranch_scc0 L_epoll1
s_branch L_eok''')
    g.stamp('Eok')
    e('s_setprio 2')
    for u_ in range(6,-1,-1): e(cfma(ER[u_],L64,ER[u_+1],ER[u_]))
    e(f's_bitcmp1_b32 s{TQ}, 0\ns_cselect_b32 vcc_lo, 0xffff, 0\ns_mov_b32 vcc_hi, 0\nv_cndmask_b32 v{ER[0]}, v{ER[0]}, v{ER[1]}, vcc\nv_cndmask_b32 v{ER[0]+1}, v{ER[0]+1}, v{ER[1]+1}, vcc')
    e(cmul(4,WH,ER[0]))
    for sw in ('16','32'):
        e(f'v_mov_b32 v6, v4\nv_mov_b32 v7, v5\nv_permlane{sw}_swap_b32 v6, v4\nv_permlane{sw}_swap_b32 v7, v5\nv_add_f32 v4, v6, v4\nv_add_f32 v5, v7, v5')
    e(cfma(CP,WG,4,CP))
    cp=v(CP,2)
    def sig(k,n=0):
        if EP==0 and SP_==k: e(f's_waitcnt vmcnt({n})'); e(signal(WL)); g.stamp('flag0')
    sig(0)
    for comp,R_ in ((0,Xr),(1,Yr)):
        for i in range(8):
            rr_=v(R_+2*i,2); pr=v(PR+2*i,2); pi=v(PI+2*i,2)
            if comp==0: e(f'v_pk_fma_f32 {rr_}, {pr}, {cp}, {rr_} op_sel_hi:[1,0,1]\nv_pk_fma_f32 {rr_}, {pi}, {cp}, {rr_} op_sel:[0,1,0] op_sel_hi:[1,1,1] neg_lo:[0,1,0] neg_hi:[0,1,0]')
            else: e(f'v_pk_fma_f32 {rr_}, {pr}, {cp}, {rr_} op_sel:[0,1,0] op_sel_hi:[1,1,1] neg_lo:[0,1,0] neg_hi:[0,1,0]\nv_pk_fma_f32 {rr_}, {pi}, {cp}, {rr_} op_sel_hi:[1,0,1] neg_lo:[0,1,0] neg_hi:[0,1,0]')
    sig(1)
    for comp,R_,D_ in ((0,Xr,112),(1,Yr,128)):
        for i in range(8): e(f'v_cvt_pk_bf16_f32 v{R_+i}, v{R_+2*i}, v{R_+2*i+1}')
        for tb in range(2):
            for ab in range(2): e(f'v_mfma_f32_16x16x32_bf16 {v(D_+8*tb+4*ab,4)}, {v(R_+4*tb,4)}, {v(SL+2-2*ab,4)}, 0')
    for comp,R_,D_ in ((0,Xr,112),(1,Yr,128)):
        for i in range(8): e(f'v_cvt_pk_bf16_f32 v{R_+8+i}, v{D_+2*i}, v{D_+2*i+1}')
        if comp==0: sig(2)
        if comp==1: sig(3,2)
        for tb in range(2):
            o=R_+8+4*tb
            e(f'v_permlane16_swap_b32 v{o}, v{o+2}\nv_permlane16_swap_b32 v{o+1}, v{o+3}')
            e(f's_add_u32 s{T1}, s{SOX}, {comp*32768+tb*HSTR}\nbuffer_store_dwordx4 {v(o,4)}, v15, {srd(sWS)}, s{T1} offen sc1')
    g.stamp('c_st')
    e(vgroup(f's{V14}, 0',[DF],sDN,FB,20*16384,2))
    TV=144; JB=112; RB_=160
    e(['v_and_b32 v12, 31, v1','v_lshrrev_b32 v13, 5, v1','v_bfe_u32 v0, v1, 1, 3','v_xor_b32 v0, v13, v0','v_lshlrev_b32 v0, 4, v0','v_lshl_add_u32 v0, v12, 7, v0',f'v_add_u32 v4, s{XR}, v0',f'v_add_u32 v8, s{WQ}, v0'])
    for k in range(1,4): e(f'v_xor_b32 v{4+k}, {32*k}, v4\nv_xor_b32 v{8+k}, {32*k}, v8')
    e(traddr(0,12)+[f'v_add_u32 v{TV+4}, s{WQ}, v0',f'v_add_u32 v{TV+5}, s{WQ}, v12',f'v_add_u32 v{TV}, s{V14}, v0',f'v_add_u32 v{TV+1}, s{V14}, v12'])
    e(f's_lshl_b32 s{T1}, s{TQ}, 2\ns_add_u32 s{T1}, s{T1}, {ZF}\nv_mov_b32 v13, s{T1}')
    e(p2base(0))
    e('s_waitcnt vmcnt(2)'); e(signal(HA))
    g.stamp('flag')
    e(f's_cmp_ge_u32 s{TQ}, 2\ns_cbranch_scc1 L_no14'); e(vgroup(f's{V14}, 2048',[DF],sDN,FB,21*16384,2)); e('L_no14:')
    e(f'''s_setprio 0
s_cmp_ge_u32 s{TQ}, 2
s_cselect_b32 s{XL}, {BIG}, s{SOW}
s_cselect_b32 s{T1}, 0, 2048
v_add_u32 v{TV+2}, s{T1}, v{TV}
v_add_u32 v{TV+3}, s{T1}, v{TV+1}
s_mov_b32 s{SPIN}, 0
L_z0:
s_sleep 1
ds_read_b32 v0, v13
s_add_u32 s{SPIN}, s{SPIN}, 1
s_waitcnt lgkmcnt(0)
v_cmp_ne_u32 vcc, 1, v0
s_cmp_gt_u32 s{SPIN}, 1000000
s_cselect_b64 vcc, 0, vcc
s_cmp_eq_u64 vcc, 0
s_cbranch_scc0 L_z0''')
    g.stamp('Z0')
    e([f'ds_read_b128 {v(JB+8*k+4*dh,4)}, v{4+k} offset:{2*8192+dh*4096}' for k in range(4) for dh in range(2)])
    e([f'ds_read_b128 {v(RB_+32*bl+8*k+4*dh,4)}, v{4+k} offset:{bl*8192+dh*4096}' for bl in range(2) for k in range(4) for dh in range(2)])
    e([f'ds_read_b128 {v(RB_+64+8*k+4*dh,4)}, v{8+k} offset:{dh*WSS}' for k in range(4) for dh in range(2)])
    e('s_waitcnt lgkmcnt(0)')
    e([f's_lshl_b32 s{T1}, s{TQ}, 11\ns_add_u32 s{T1}, s{T1}, {q_*XW+16384}\nv_add_u32 v{4+q_}, s{T1}, v15' for q_ in range(4)])
    e(f's_lshl_b32 s{T1}, s{TQ}, 10\ns_add_u32 s{T1}, s{T1}, {WB}\nv_add_u32 v8, s{T1}, v15')
    e('s_barrier'); g.stamp('Z1')
    e(spoll('L_fp0',8,opt.get('slp0',4)))
    g.stamp('go')
    HS=FBR+[CB2]
    st_=[(HS[0],(86+k)*1024,JB+8*k) for k in range(4)]+[(SOW,(18+k)*1024,JB+8*k) for k in range(3)]+[(XL,21*1024,JB+24)]
    st2=[(HS[1+bl],(86+k)*1024,RB_+32*bl+8*k) for bl in range(3) for k in range(4)]
    loads=[];groups=[]
    for s_,(sr,im,Bq) in enumerate(st_):
        groups.append([(TILE(mh,dh),len(loads)+mh,Bq+4*dh,s_==0) for mh in range(2) for dh in range(2)])
        for mh in range(2): loads.append((sr,im+mh*HSTR))
    for mh in range(2):
        for p_ in range(6):
            grp=[]
            for s_ in (2*p_,2*p_+1):
                sr,im,Bq=st2[s_]
                grp+=[(TILE(mh,dh),len(loads),Bq+4*dh,False) for dh in range(2)]
                loads.append((sr,im+mh*HSTR))
            groups.append(grp)
    jit=[trstep(JB,TV+4,2*WSS),trstep(JB+8,TV+4,2*WSS+2048),trstep(JB+16,TV,0),trstep(JB+24,TV+2,0)]
    wr0=[]
    for dh in range(2):
        for q_ in range(4): wr0+=[f'ds_write_b128 v{4+q_}, {v(TILE(0,dh)+4*q_,4)} offset:{dh*1024}','']
    hooks={1:([],jit[0]),2:([],jit[1]),3:([],jit[2]),4:(['s_waitcnt lgkmcnt(8)'],jit[3]),5:(['s_waitcnt lgkmcnt(8)'],[]),6:(['s_waitcnt lgkmcnt(4)'],[]),7:(['s_waitcnt lgkmcnt(0)'],[]),
           opt.get('z2',10):(['s_barrier',g.st('Z2')],[]),14:([],['']*6+wr0),17:(['s_waitcnt lgkmcnt(0)','s_barrier',g.st('Z23')],[])}
    run_groups(groups,loads,([16+4*k for k in range(8)]+[152,156])[:opt.get('nr0',10)],15,hooks)
    wr1=lambda dh: [f'ds_write_b128 v8, {v(TILE(1,dh)+4*q_,4)} offset:{dh*WSS+q_*4096}' for q_ in range(4)]
    idx=[k for k,l_ in enumerate(g.L) if 'v_mfma_f32_32x32x16' in l_][-12:]
    seg=g.L[idx[0]:]; del g.L[idx[0]:]
    assert not any('buffer_load' in l_ for l_ in seg)
    late=[l_ for l_ in seg if 'v_mfma' in l_ and l_.split()[1].rstrip(',')==v(TILE(1,1),16)]
    e([l_ for l_ in seg if l_ not in late])
    e([late[0],'s_nop 4',late[1],'s_nop 3']); e(mix(late[2:],wr1(0),1)); e('s_waitcnt lgkmcnt(0)\ns_barrier'); e(wr1(1))
    e('s_waitcnt lgkmcnt(0)\ns_barrier')
    g.stamp('p2end')
    if opt.get('stamps'):
        e('L_fin:\ns_waitcnt vmcnt(0)'); g.stamp('done')
        e(f'''s_waitcnt lgkmcnt(0)
s_cmp_eq_u32 s{TQ}, {opt.get('stq',0)}
s_cbranch_scc0 L_end
s_add_u32 s{sX}, s66, {STAMP}
s_addc_u32 s{sX+1}, s67, 0
s_lshl_b32 s{T0}, s2, 1
s_add_u32 s{T0}, s{T0}, s{NH}
s_lshl_b32 s{T0}, s{T0}, 7
v_mov_b32 v2, 0''')
        prs=[100]+G.POOL[:len(g.names())]
        if 'diag' in opt:
            p=prs[(['start']+g.names()).index(opt['diag'])]
            if 'dwg' in opt: e(f's_cmp_eq_u32 s2, {opt["dwg"]}\ns_cbranch_scc0 L_end')
            e(f's_cmp_eq_u32 s{NH}, {opt.get("dr",0)}\ns_cbranch_scc0 L_end\nL_dg:\ns_memrealtime s[72:73]\ns_waitcnt lgkmcnt(0)\ns_sub_u32 s72, s72, s{p}\ns_cmp_lt_u32 s72, 6000\ns_cbranch_scc1 L_dg')
            prs=[]
        for i,p in enumerate(prs): e(f'v_mov_b32 v4, s{p}\nv_mov_b32 v5, s{p+1}\nbuffer_store_dwordx2 v[4:5], v2, {srd(sX)}, s{T0} offen offset:{8*i}')
    e('L_end:\ns_endpgm'); e(g.cold); e('L_last:\ns_endpgm')
    if opt.get('stamps'): g.L.insert(0,'; STAMPS start,'+','.join(g.names()))
    g.L=[(x if x.endswith(':') or x.startswith('.') else '  '+x.strip()) for l_ in g.L for x in (l_.replace('|v_nop','').split('|') if '|' in l_ else [l_])]
    ab=opt.get('ab',0)
    if ab:
        import re
        L=[]
        for l_ in g.L:
            if ab&1 and (re.search(r'v\[2[23]\d:2[23]\d\], v(29|30|244) offset:\d+$',l_) and not l_.strip().startswith('ds_read_b128 v[2') or re.search(r'b128 v\[2(24|28|32|36):\d+\], v(29|244) offset:(?!(0|16|32|48)$)',l_) or 'v_mfma_f32_16x16x32_bf16 v[240:243]' in l_): continue
            if ab&4 and re.search(r'ds_write_b128 v[4-8],',l_): continue
            if ab&16 and 'v_exp_f32 v2' in l_ and len(L)>2500: continue
            if ab&32 and 'v_fmac_f32' in l_ and re.search(r'v(80|47|96), v',l_) and len(L)>2500: continue
            if ab&64 and 'v_permlane16_swap_b32 v1' in l_ and len(L)>2500: continue
            if ab&128 and 'buffer_store_dword v' in l_ and 's[68:71]' in l_ and 'v4' not in l_ and 'v5' not in l_ and 'v6' not in l_: continue
            L.append(l_)
        g.L=L
    body=hz.fix('\n'.join(g.L), verbose=opt.get('v',0))
    if opt.get('al'):
        import align
        body,nw,nn=align.run(body,lambda b: header([(NAME,256,512,163840)])+kstart(NAME)+b+'\n',opt['al'])
    if opt.get('ic'):
        import align
        body,npad=align.pads('L_anchor:\n'+body,lambda b: header([(NAME,256,512,163840)])+b+'\n')
        body=body.replace('L_anchor:\n','')
        if opt.get('v'): print('pads',npad)
    ref=open('parallel_sum__ssm_conv_s5__geglu_ffn__prompt.s.ref').read() if opt.get('final') else ''
    cm_=''.join(l+'\n' for l in ref.split('\n') if l.startswith(';') and '@launch' not in l and 'Override' not in l and 'grid=ceil' not in l)
    if opt.get('final'): cm_+=DOC
    return cm_+header([(NAME,256,512,163840)])+('.p2align 12\n' if opt.get('pa',1) else '')+kstart(NAME)+body+'\n'+RODATA+kd(NAME,256,256)

if __name__=='__main__':
    out=sys.argv[1]; opt={}
    for a in sys.argv[2:]:
        k,_,val=a.partition('='); opt[k]=int(val) if val.lstrip('-').isdigit() else (val or 1)
    open(out,'w').write(build(opt))
```
